```python
import torch

def _softmax(x, axis=-1):
    return torch.softmax(x, dim=axis)

def _gelu(x):
    return torch.nn.functional.gelu(x, approximate='tanh')

def _silu(x):
    return torch.nn.functional.silu(x)

def _sigmoid(x):
    return torch.sigmoid(x)

def _layernorm(x, axis=-1, eps=1e-05):
    m = x.mean(dim=axis, keepdim=True)
    v = x.var(dim=axis, keepdim=True, unbiased=False)
    return (x - m) / torch.sqrt(v + eps)

def _scatter_add(tgt, idx, src, axis=0):
    return tgt.clone().index_add_(axis, idx, src)

def _segment_sum(src, seg, n):
    out = torch.zeros((n,) + src.shape[1:], dtype=src.dtype)
    return out.index_add_(0, seg, src)

def _pad(x, pw):
    flat = tuple((v for pair in reversed(pw) for v in pair))
    return torch.nn.functional.pad(x, flat)
kernel_name = 'parallel_sum__memory_aug_recurrent_mem_tr__dense_activation_relu__prompt'

def setup_inputs():

    _w = lambda a: (lambda t: t.to(torch.bfloat16) if t.is_floating_point() else t)(torch.as_tensor(a))

    def _A_setup():
        B, S, Dm = (1, 2048, 448)
        H, Dh = (16, 256)
        M, seg = (8, 32)
        seg = min(seg, S)
        S = S // seg * seg
        return {'x': _w((lambda *s: torch.randn(*s, dtype=torch.bfloat16) * 0.05)(B, S, Dm)), 'mem0': _w((lambda *s: torch.randn(*s, dtype=torch.bfloat16) * 1.6)(B, M, Dm)), 'Wq': _w((lambda *s: torch.randn(*s, dtype=torch.bfloat16) * 0.8)(Dm, H, Dh) * Dm ** (-0.5)), 'Wk': _w((lambda *s: torch.randn(*s, dtype=torch.bfloat16) * 0.8)(Dm, H, Dh) * Dm ** (-0.5)), 'Wv': _w((lambda *s: torch.randn(*s, dtype=torch.bfloat16) * 1.6)(Dm, H, Dh) * Dm ** (-0.5)), 'Wo': _w((lambda *s: torch.randn(*s, dtype=torch.bfloat16) * 1.6)(H, Dh, Dm) * (H * Dh) ** (-0.5)), 'seg_len': seg}
    _A_in = _A_setup()

    def _B_setup():
        B, S, D, Dff = (1, 2048, 448, 1792)
        return {'x': _w((lambda *s: torch.randn(*s, dtype=torch.bfloat16) * 0.05)(B, S, D)), 'w1': _w((lambda *s: torch.randn(*s, dtype=torch.bfloat16) * 0.05)(D, Dff)), 'w2': _w((lambda *s: torch.randn(*s, dtype=torch.bfloat16) * 0.05)(Dff, D))}
    _B_in = _B_setup()
    return {'A_x': _A_in['x'], 'A_mem0': _A_in['mem0'], 'A_Wq': _A_in['Wq'], 'A_Wk': _A_in['Wk'], 'A_Wv': _A_in['Wv'], 'A_Wo': _A_in['Wo'], 'A_seg_len': _A_in['seg_len'], 'B_x': _B_in['x'], 'B_w1': _B_in['w1'], 'B_w2': _B_in['w2']}

def reference(A_x, A_mem0, A_Wq, A_Wk, A_Wv, A_Wo, A_seg_len, B_x, B_w1, B_w2):

    def _A_ref(x, mem0, Wq, Wk, Wv, Wo, seg_len):
        B, S, Dm = x.shape
        H, Dh = (Wq.shape[1], Wq.shape[2])
        M = mem0.shape[1]
        scale = Dh ** (-0.5)
        n_seg = S // seg_len
        L = M + seg_len
        idx = torch.arange(L)
        mask = (idx[:, None] < M) | (idx[:, None] >= idx[None, :])
        mem = mem0
        outs = []
        for s in range(n_seg):
            xs = x[:, s * seg_len:(s + 1) * seg_len, :].clone()
            h = torch.concatenate([mem, xs], axis=1)
            q = torch.einsum('btd,dhe->bhte', h, Wq)
            k = torch.einsum('btd,dhe->bhte', h, Wk)
            v = torch.einsum('btd,dhe->bhte', h, Wv)
            scores = torch.einsum('bhqe,bhke->bhqk', q, k) * scale
            scores = torch.where(mask[None, None], scores, -1000000000.0)
            p = _softmax(scores, axis=-1)
            o = torch.einsum('bhqk,bhke->bhqe', p, v)
            o = torch.einsum('bhte,hed->btd', o, Wo)
            mem = o[:, :M, :].clone()
            outs.append(o[:, M:, :])
        return torch.concatenate(outs, axis=1)

    def _B_ref(x, w1, w2):
        h = torch.einsum('bsd,df->bsf', x, w1)
        zero = torch.zeros_like(h)
        h = torch.maximum(h, zero)
        return torch.einsum('bsf,fd->bsd', h, w2)
    x = A_x
    xn = _layernorm(x, axis=-1)
    return x + _A_ref(xn, A_mem0, A_Wq, A_Wk, A_Wv, A_Wo, A_seg_len) + _B_ref(xn, B_w1, B_w2)
```

```python
import re

def vr(b, n=1):
    return "v%d" % b if n == 1 else "v[%d:%d]" % (b, b + n - 1)
def sr(b, n=1):
    return "s%d" % b if n == 1 else "s[%d:%d]" % (b, b + n - 1)

_R = re.compile(r"^(-|\|)?([vsa])(\d+)\|?$|^(-|\|)?([vsa])\[(\d+):(\d+)\]\|?$")
def regs(op):
    op = op.strip()
    if op == "vcc": return {("s", 106), ("s", 107)}
    if op == "vcc_lo": return {("s", 106)}
    if op == "vcc_hi": return {("s", 107)}
    if op == "m0": return {("s", 124)}
    if op == "exec": return {("s", 126), ("s", 127)}
    m = _R.match(op)
    if not m: return set()
    if m.group(2): return {(m.group(2), int(m.group(3)))}
    return {(m.group(5), i) for i in range(int(m.group(6)), int(m.group(7)) + 1)}

TRANS = ("v_exp_", "v_log_", "v_rcp_", "v_rsq_", "v_sqrt_", "v_sin_", "v_cos_")

class Ins:
    def __init__(self, text):
        self.text = text
        t = text.split(";")[0].strip()
        self.label = None; self.mn = None
        if t.endswith(":"):
            self.label = t[:-1]; return
        if not t or t.startswith("."): return
        p = t.split(None, 1)
        self.mn = mn = p[0]
        rest = p[1] if len(p) > 1 else ""
        toks = [x.strip() for x in rest.split(",")]
        ops = []; mods = ""
        for i, x in enumerate(toks):
            w = x.split()
            if not w: continue
            ops.append(w[0])
            if len(w) > 1: mods += " " + " ".join(w[1:])
        self.ops = ops; self.mods = mods + " " + rest
        self.W = set(); self.R = set()
        self.kind = "other"
        self.A = self.B = self.C = set(); self.passes = 0
        self.states = 1
        R = lambda i: regs(ops[i]) if i < len(ops) else set()
        if mn == "s_nop":
            self.kind = "salu"; self.states = int(ops[0], 0) + 1
        elif mn.startswith("v_mfma") or mn.startswith("v_smfmac"):
            self.kind = "mfma"; self.W = R(0); self.A = R(1) | R(2)
            if mn.startswith("v_smfmac"): self.C = R(0); self.A |= R(3)
            else: self.C = R(3)
            self.passes = 8 if "32x32" in mn else 4
            self.R = self.A | self.C
        elif mn.startswith("v_"):
            self.kind = "valu"
            self.trans = mn.startswith(TRANS)
            self.dpp = ("row_" in rest or "quad_perm" in rest or "wave_" in rest)
            self.perm = mn.startswith("v_permlane")
            self.rl = mn.startswith("v_readlane") or mn.startswith("v_readfirstlane")
            self.lanesel = set()
            if self.perm or mn.startswith("v_swap"):
                self.W = R(0) | R(1); self.R = R(0) | R(1)
            else:
                self.W = R(0)
                for i in range(1, len(ops)): self.R |= R(i)
                if mn.startswith(("v_fmac", "v_mac", "v_dot2c", "v_pk_fmac", "v_writelane")): self.R |= R(0)
                if mn.startswith("v_cndmask") and len(ops) == 3: self.R |= regs("vcc")
                if mn.startswith(("v_readlane", "v_writelane")): self.lanesel = R(2)
                if mn.startswith(("v_add_co", "v_sub_co", "v_addc_co", "v_subb_co")): self.W |= R(1)
        elif mn.startswith(("global_", "buffer_")):
            self.kind = "vmem"; self.sdata = set(); self.dma = False
            if "_load_lds" in mn:
                self.R = R(0) | R(1); self.dma = True
            elif "_load" in mn:
                self.W = R(0); self.R = R(1) | R(2) | R(3)
            elif "_store" in mn:
                self.R = R(0) | R(1) | R(2) | R(3)
                if "x4" in mn or "x3" in mn: self.sdata = R(1)
            elif "_atomic" in mn:
                if len(ops) == 4: self.W = R(0); self.R = R(1) | R(2) | R(3)
                else: self.R = R(0) | R(1) | R(2)
            else: pass
        elif mn.startswith("ds_"):
            self.kind = "ds"
            if mn.startswith(("ds_read", "ds_bpermute", "ds_permute", "ds_swizzle")) or "_rtn" in mn:
                self.W = R(0)
                for i in range(1, len(ops)): self.R |= R(i)
            else:
                for i in range(len(ops)): self.R |= R(i)
        elif mn.startswith("s_"):
            self.kind = "salu"
            if not mn.startswith(("s_cmp", "s_cbranch", "s_branch", "s_waitcnt", "s_barrier", "s_endpgm", "s_setprio", "s_bitcmp")):
                self.W = R(0)
            for i in range(1, len(ops)): self.R |= R(i)

def need(p, c):
    n = 0
    V = lambda S: {x for x in S if x[0] != "s"}
    S_ = lambda S: {x for x in S if x[0] == "s"}
    if p.kind == "valu":
        wv, ws = V(p.W), S_(p.W)
        if c.kind == "mfma" and wv & c.R: n = max(n, 2)
        if c.kind == "valu":
            if c.rl and wv & c.R: n = max(n, 1)
            if (c.dpp or c.perm) and wv & c.R: n = max(n, 2)
            if ws & c.R: n = max(n, 2)
            if ws & c.lanesel: n = max(n, 4)
            if p.trans and wv & c.R: n = max(n, 1)
        if p.trans and c.kind in ("vmem", "ds") and wv & c.R: n = max(n, 1)
        if c.kind == "vmem" and ws & c.R: n = max(n, 5)
    if p.kind == "mfma":
        big = {4: 8, 8: 12}[p.passes]
        if c.kind == "mfma":
            if p.W & c.A: n = max(n, big)
            if p.W & c.C and p.W != c.C: n = max(n, big - 2)
            if p.W & c.C and p.mn != c.mn: n = max(n, big - 2)
            if p.W & c.W and not (p.W & c.C): n = max(n, big)
        elif c.kind in ("valu", "vmem", "ds"):
            if p.W & (c.R | c.W): n = max(n, big)
        if c.kind == "valu" and p.C & c.W: n = max(n, {4: 3, 8: 7}[p.passes])
    if p.kind == "salu" and ("s", 124) in p.W and c.kind == "vmem" and c.dma: n = max(n, 1)
    if p.kind == "vmem" and p.sdata:
        if c.kind in ("valu", "mfma") and p.sdata & c.W: n = max(n, 2)
        elif p.sdata & c.W: n = max(n, 1)
    return n

def hazard_pass(lines):
    ins = [Ins(l) for l in lines]
    WIN = 13
    for it in range(50):
        lab_in = getattr(hazard_pass, "_x", None)
        changed = False
        lab_state = {}
        for scan in range(3):
            st = []
            out = []
            for I in ins:
                if I.label is not None:
                    st = st + lab_state.get(I.label, [])
                    out.append(I); continue
                if I.mn is None:
                    out.append(I); continue
                if scan == 2:
                    k = 0
                    for (p, age) in st:
                        k = max(k, need(p, I) - age)
                    if k > 0:
                        N = Ins("    s_nop %d ; hz" % (k - 1))
                        out.append(N); changed = True
                        st = [(p, a + k) for (p, a) in st if a + k < WIN]
                out.append(I)
                st = [(p, a + I.states) for (p, a) in st if a + I.states < WIN]
                if I.kind in ("valu", "mfma", "vmem") or (I.kind == "salu" and ("s", 124) in I.W): st.append((I, 0))
                if I.mn.startswith(("s_cbranch", "s_branch")):
                    tgt = I.ops[0]
                    cur = lab_state.get(tgt, [])
                    for e in st:
                        if e not in cur: cur.append(e)
                    lab_state[tgt] = cur
                if I.mn in ("s_branch", "s_endpgm"): st = []
            if scan == 2: ins = out
        if not changed: break
    return [I.text for I in ins]

class Asm:
    def __init__(self):
        self.L = []
        self.n = 0
    def __call__(self, s, *a):
        if a: s = s % a
        for x in s.split("\n"):
            self.L.append("    " + x.strip())
    def label(self, name):
        self.L.append(name + ":")
    def newlabel(self, p="L"):
        self.n += 1
        return "%s_%d" % (p, self.n)
    def raw(self, s):
        self.L.append(s)
    def c(self, s):
        self.L.append("    ; " + s)
    def text(self):
        return "\n".join(hazard_pass(self.L)) + "\n"

def kd(name, vgpr=256, sgpr=102, acc=256):
    return """.p2align 6
.amdhsa_kernel %s
  .amdhsa_next_free_vgpr %d
  .amdhsa_next_free_sgpr %d
  .amdhsa_accum_offset %d
  .amdhsa_group_segment_fixed_size 0
  .amdhsa_kernarg_size 104
  .amdhsa_user_sgpr_count 2
  .amdhsa_user_sgpr_kernarg_segment_ptr 1
  .amdhsa_system_sgpr_workgroup_id_x 1
.end_amdhsa_kernel
""" % (name, vgpr, sgpr, acc)
```

```python
import sys
sys.path.insert(0, "gen")
from asmlib import *
import k1
HDR = open("parallel_sum__memory_aug_recurrent_mem_tr__dense_activation_relu__prompt.s.ref").read().split("\n")
def build(out, parts):
    top = [l for l in HDR[:14]]
    for (n, fn, g, b, lds) in parts:
        top.append("; @launch kernel=%s grid=(%d,1,1) block=(%d,1,1) lds=%d" % (n, g, b, lds))
    txt = "\n".join(top) + "\n"
    txt += '.amdgcn_target "amdgcn-amd-amdhsa--gfx950"\n.text\n'
    seen = []
    for (n, fn, g, b, lds) in parts:
        if n in seen: continue
        seen.append(n)
        a = Asm()
        a.raw(".globl %s" % n); a.raw(".type %s,@function" % n)
        fn(a)
        txt += a.text()
    txt += '.section .rodata,"a"\n'
    for n in seen: txt += kd(n)
    open(out, "w").write(txt)
if __name__ == "__main__":
    build("t1.s", [("prep_kernel", k1.emit_prep, 256, 512, 32768)])
```

```python
from common import *
L_MEMI = 0; L_TAI = 7168; L_RED = 11264; L_TB1 = 15360; L_TB2 = 19456; L_BW = 23552; BWSZ = 16384
CHAIN_LDS = L_BW + 7 * BWSZ
MFR = 16; ACC0 = 44; ACC1 = 48; STG = 52; EX = 68; BW = 96; AW = 144
C_TICKET = 32
VP = 0

class Prof:
    def __init__(self, a, on, step=40): self.a = a; self.on = on; self.step = step; self.names = ["top"] if on else []
    def __call__(self, name):
        if not self.on or (self.on == 1 and name != "top"): return
        if (self.on == 3) != name.startswith("a") and name not in ("top", "TA done", "bar2"): return
        if name not in self.names: self.names.append(name)
        k = self.names.index(name)
        assert k < 16
        self.a("s_memtime s[%d:%d]", 64 + 2 * k, 65 + 2 * k)
    def flush(self, n=16):
        if not self.on: return
        a = self.a
        l = a.newlabel("PF")
        a("s_cmp_lg_u32 s24, %d", self.step + 1)
        a("s_cbranch_scc1 %s", l)
        for k in range(n): a("v_writelane_b32 v%d, s%d, %d", VP, 64 + 2 * k, k)
        a.label(l)
        for st, ln in ((10, 20), (60, 21)):
            l = a.newlabel("PF")
            a("s_cmp_lg_u32 s24, %d", st)
            a("s_cbranch_scc1 %s", l)
            a("v_writelane_b32 v%d, s64, %d", VP, ln)
            a.label(l)

class LQ:
    def __init__(self, a): self.a = a; self.q = []
    def issue(self, tag, txt, *args): self.a(txt, *args); self.q.append(tag)
    def wait(self, tag):
        if tag not in self.q: return
        last = max(k for k, t in enumerate(self.q) if t == tag)
        self.a("s_waitcnt lgkmcnt(%d)", len(self.q) - 1 - last)
        self.q = self.q[last + 1:]
    def all(self): self.a("s_waitcnt lgkmcnt(0)"); self.q = []

def interleave(a, b):
    a("v_swap_b32 v%d, v%d", b + 1, b + 4)
    a("v_swap_b32 v%d, v%d", b + 3, b + 5)
    a("v_swap_b32 v%d, v%d", b + 2, b + 4)
    a("v_swap_b32 v%d, v%d", b + 5, b + 6)

SM = "v_smfmac_f32_16x16x64_f16 %s, %s, %s, v5"
def emit_chain(a, prof=False, nv=64, ns=(0, 0, 0, 0), bpos=9, nb2=4, nb3=8, gpos=13, g2=1, pdel=1, p2=1, flag=1, fpos=5, dep=6, dep2=7, nb7=0, xp=0, abort="CH_abort"):
    P = Prof(a, prof)
    npf = nv + sum(ns)
    def spf(w):
        o = nv + sum(ns[:w - 4])
        for i in range(ns[w - 4]): a("s_load_dword s96, s[54:55], %d", (o + i) * 128)
    ST = ""
    a.c("---- chain, role s20")
    a("s_lshr_b32 s21, s20, 1")
    a("s_and_b32 s22, s20, 1")
    a("s_cmp_lt_u32 s20, 28")
    a("s_cselect_b32 s23, 1, 0")
    a("s_mov_b32 s25, 0x100000")
    a("s_mov_b32 s46, 0x00ff00ff")
    a("s_mov_b32 s47, 0x00ff00ff")
    add64(a, 26, 4, imm=MEMR)
    add64(a, 28, 4, imm=SR)
    for r in (30, 32, 58): a("s_mov_b64 s[%d:%d], s[26:27]", r, r + 1)
    for r in (34, 36): a("s_mov_b64 s[%d:%d], s[28:29]", r, r + 1)
    a("s_and_b32 s60, s14, 3")
    a("s_lshr_b32 s61, s14, 2")
    a("s_xor_b32 s61, s61, s22")
    a("s_xor_b32 s61, s61, 1")
    a("s_barrier")
    a("v_bfe_u32 v5, v4, 1, 1")
    a("v_mul_u32_u24 v5, 14336, v5")
    a("v_lshrrev_b32 v6, 2, v4")
    a("v_lshl_add_u32 v5, v6, 6, v5")
    a("v_and_b32 v6, 1, v4")
    a("v_lshl_add_u32 v5, v6, 5, v5")
    a("v_lshl_add_u32 v5, v3, 8, v5")
    a("s_cmp_eq_u32 s14, 7")
    a("s_cbranch_scc1 CH_A1")
    a("s_mul_i32 s50, s20, 7")
    a("s_add_u32 s50, s50, s14")
    a("s_mul_i32 s50, s50, %d", 28 * 1024)
    a("s_add_u32 s50, s50, 0x%x", AF + 4096)
    a("s_mul_i32 s51, s61, 7168")
    a("s_add_u32 s52, s50, s51")
    a("s_sub_u32 s50, s50, s51")
    a("s_add_u32 s50, s50, 7168")
    add64(a, 50, 4, off_sgpr=50)
    add64(a, 52, 4, off_sgpr=52)
    for u in range(2):
        for k in range(7):
            for w in range(2):
                a("global_load_dwordx4 %s, v5, s[%d:%d] offset:%d", vr(AW + (u * 7 + k) * 8 + w * 4, 4), 50 + 2 * u, 51 + 2 * u, k * 1024 - 4096 + 16 * w)
    a.label("CH_A1")
    a("s_mul_i32 s50, s14, %d", BWSZ)
    a("s_add_u32 s50, s50, %d", L_BW)
    a("v_add_u32 v15, s50, v2")
    a("s_cmp_eq_u32 s23, 0")
    a("s_cbranch_scc1 CH_noB")
    a("s_lshl_b32 s50, s22, 2")
    a("s_add_u32 s50, s50, s60")
    a("s_mul_i32 s50, s50, 14")
    a("s_add_u32 s50, s50, s21")
    a("s_mul_i32 s50, s50, %d", 56 * 1024)
    a("s_mul_i32 s51, s61, 7168")
    a("s_add_u32 s50, s50, s51")
    a("s_add_u32 s50, s50, 0x%x", BF + 4096)
    add64(a, 50, 4, off_sgpr=50)
    a("v_add_u32 v6, %d, v2", 14336)
    def breg(n): return BW + n * 8 if n < 6 else 16 + (n - 6) * 8
    for b in range(2):
        if b:
            a("s_add_u32 s50, s50, %d", 28 * 1024); a("s_addc_u32 s51, s51, 0")
        for k in range(7):
            for w in range(2):
                a("global_load_dwordx4 %s, v%d, s[50:51] offset:%d", vr(breg(2 * k + b) + w * 4, 4), 6 if w else 2, k * 1024 - 4096)
    a("s_waitcnt vmcnt(0)")
    for n in range(14): interleave(a, breg(n))
    a("s_cmp_eq_u32 s14, 7")
    a("s_cbranch_scc1 CH_B3")
    for n in range(6, 14):
        for hf in range(2):
            a("ds_write_b128 v15, %s offset:%d", vr(breg(n) + 4 * hf, 4), (n - 6) * 2048 + hf * 1024)
    a("s_branch CH_noB")
    a.label("CH_B3")
    for i in range(64): a("v_mov_b32 v%d, v%d", AW + i, 16 + i)
    a("s_branch CH_wdone")
    a.label("CH_noB")
    a("s_waitcnt vmcnt(0)")
    for k in range(14): interleave(a, AW + k * 8)
    a.label("CH_wdone")
    a("s_waitcnt lgkmcnt(0)")
    a("v_bfe_u32 v5, v4, 1, 1")
    a("v_mul_u32_u24 v5, 0xaaaa, v5")
    a("v_add_u32 v5, 0x4444, v5")
    a("v_lshrrev_b32 v6, 2, v4")
    a("v_lshlrev_b32 v6, 1, v6")
    a("v_and_b32 v7, 1, v4")
    a("v_add_u32 v6, v6, v7")
    a("v_lshlrev_b32 v6, 4, v6")
    a("v_lshl_add_u32 v6, v3, 7, v6")
    a("s_mul_i32 s50, s61, 3584")
    a("v_add_u32 v6, s50, v6")
    a("v_lshrrev_b32 v7, 2, v4")
    a("v_lshlrev_b32 v7, 7, v7")
    a("v_lshl_add_u32 v7, v3, 5, v7")
    a("v_and_b32 v8, 3, v4")
    a("v_lshl_add_u32 v7, v8, 2, v7")
    a("s_lshl_b32 s50, s14, 9")
    a("s_add_u32 s50, s50, %d", L_TAI)
    a("v_add_u32 v7, s50, v7")
    a("s_lshl_b32 s50, s60, 10")
    a("s_add_u32 s50, s50, %d", L_TB1)
    a("v_add_u32 v12, s50, v2")
    a("s_min_u32 s50, s14, 6")
    a("s_lshl_b32 s50, s50, 10")
    a("v_add_u32 v14, s50, v2")
    a("s_cmp_ge_u32 s14, 4")
    a("s_cbranch_scc1 CH_c4")
    a("s_lshr_b32 s50, s60, 1")
    a("s_lshl_b32 s50, s50, 10")
    a("s_and_b32 s51, s60, 1")
    a("s_lshl_b32 s51, s51, 3")
    a("s_add_u32 s50, s50, s51")
    a("s_add_u32 s50, s50, %d", L_TB2)
    a("v_add_u32 v8, s50, v2")
    a("s_lshl_b32 s50, s60, 10")
    a("s_add_u32 s50, s50, %d", L_RED)
    a("v_lshlrev_b32 v9, 2, v1")
    a("v_add_u32 v9, s50, v9")
    a("s_lshl_b32 s50, s22, 2")
    a("s_add_u32 s50, s50, s60")
    a("s_lshl_b32 s51, s50, 11")
    a("v_add_u32 v10, s51, v2")
    a("s_lshl_b32 s51, s50, 9")
    a("s_add_u32 s51, s51, 16384")
    a("v_lshlrev_b32 v11, 2, v1")
    a("v_add_u32 v11, s51, v11")
    a("s_lshl_b32 s50, s60, 12")
    a("v_add_u32 v13, s50, v2")
    a("s_branch CH_c5")
    a.label("CH_c4")
    a("v_mov_b32 v11, 0")
    a("v_and_b32 v16, 7, v4")
    a("s_cmp_eq_u32 s14, 5")
    a("s_cselect_b64 vcc, -1, 0")
    a("v_lshlrev_b32 v8, 4, v16")
    a("v_lshl_add_u32 v17, v3, 7, v8")
    a("v_and_b32 v18, 1, v3")
    a("v_lshl_add_u32 v8, v18, 8, v8")
    a("v_lshrrev_b32 v18, 1, v3")
    a("v_lshl_add_u32 v8, v18, 3, v8")
    a("v_cndmask_b32 v8, v17, v8")
    a("v_add_u32 v8, %d, v8", L_TAI)
    a("v_lshrrev_b32 v17, 1, v16")
    a("v_lshlrev_b32 v17, 2, v17")
    a("v_and_b32 v18, 1, v16")
    a("v_add_u32 v17, v17, v18")
    a("s_and_b32 s50, s21, 1")
    a("s_lshl_b32 s50, s50, 1")
    a("v_add_u32 v17, s50, v17")
    a("s_lshr_b32 s50, s21, 1")
    a("s_lshl_b32 s50, s50, 1")
    a("s_add_u32 s50, s50, s22")
    a("s_lshl_b32 s51, s50, 10")
    a("s_sub_u32 s52, 7, s14")
    a("s_lshl_b32 s52, s52, 9")
    a("s_add_u32 s51, s51, s52")
    a("v_lshlrev_b32 v9, 4, v17")
    a("v_lshrrev_b32 v18, 1, v3")
    a("v_lshl_add_u32 v9, v18, 8, v9")
    a("v_and_b32 v18, 1, v3")
    a("v_lshl_add_u32 v9, v18, 3, v9")
    a("v_add_u32 v9, s51, v9")
    a("s_lshl_b32 s51, s50, 8")
    a("s_add_u32 s51, s51, 16384")
    a("v_lshl_add_u32 v17, v3, 4, v17")
    a("v_lshlrev_b32 v18, 2, v17")
    a("v_add_u32 v18, s51, v18")
    a("v_cndmask_b32 v9, v9, v18")
    a("v_bfe_u32 v13, v1, 1, 1")
    a("v_lshlrev_b32 v13, 7, v13")
    a("v_and_b32 v16, 1, v1")
    a("v_lshl_add_u32 v13, v16, 3, v13")
    a("v_bfe_u32 v16, v1, 2, 2")
    a("v_lshl_add_u32 v13, v16, 5, v13")
    a("v_lshrrev_b32 v16, 5, v1")
    a("v_lshl_add_u32 v13, v16, 4, v13")
    a("v_bfe_u32 v16, v1, 4, 1")
    a("v_lshl_add_u32 v13, v16, 8, v13")
    a("s_mul_i32 s50, s22, 7168")
    a("s_lshl_b32 s51, s21, 9")
    a("s_add_u32 s50, s50, s51")
    a("v_add_u32 v13, s50, v13")
    a("v_min_u32 v10, %d, v1", max(nv - 1, 0))
    a("v_lshlrev_b32 v10, 7, v10")
    a("v_add_u32 v16, 2048, v8")
    a("v_cndmask_b32 v10, v10, v16")
    a.label("CH_c5")
    a("s_mul_i32 s50, s61, 7168")
    a("s_sub_u32 s50, 3584, s50")
    a("v_add_u32 v3, s50, v6")
    a("s_lshl_b32 s50, s20, 7")
    a("s_add_u32 s50, s50, %d", 192 * 1024)
    a("v_mov_b32 v4, s50")
    a("s_mul_i32 s50, s20, 5120")
    add64(a, 50, 26, off_sgpr=50)
    a("v_min_u32 v30, 39, v1")
    a("v_lshlrev_b32 v30, 7, v30")
    a("global_load_dword v31, v30, s[50:51] sc1")
    a("s_mul_i32 s42, s22, 7168")
    a("s_and_b32 s43, s14, 1")
    a("s_xor_b32 s43, s43, 1")
    a("s_mul_i32 s43, s43, 14336")
    a("s_add_u32 s42, s42, s43")
    a("s_add_u32 s42, s42, 0x%x", XF + 4096)
    add64(a, 42, 4, off_sgpr=42)
    a("s_sub_u32 s44, s20, 28")
    a("s_max_i32 s44, s44, 0")
    a("s_mul_i32 s44, s44, 7168")
    a("s_add_u32 s44, s44, 0x%x", XF + 2 * 28 * 1024)
    add64(a, 44, 4, off_sgpr=44)
    a("s_mov_b32 s24, 0")
    a("s_mov_b64 s[62:63], 0")
    a("s_min_u32 s38, s20, 27")
    a("s_mul_i32 s38, s38, %d", 16 * 1024)
    a("s_add_u32 s38, s38, 0x%x", UF)
    add64(a, 38, 4, off_sgpr=38)
    a("s_lshl_b32 s40, s21, 13")
    a("s_lshl_b32 s41, s22, 11")
    a("s_add_u32 s40, s40, s41")
    a("s_add_u32 s40, s40, 0x%x", TBX - 28 * 4096 + 2048)
    add64(a, 40, 4, off_sgpr=40)
    add64(a, 48, 4, imm=MEMX)
    a("s_mov_b64 s[54:55], s[38:39]")
    a("s_sub_u32 s56, s20, 28")
    a("s_max_i32 s56, s56, 0")
    a("s_mul_i32 s56, s56, %d", 7 * 16384)
    a("s_add_u32 s56, s56, 0x%x", UF + 2 * 28 * 16 * 1024)
    add64(a, 56, 4, off_sgpr=56)
    a("s_cmp_lg_u32 s23, 0")
    a("s_cbranch_scc1 CH_hs")
    NL = max(128 - npf, 1); NHP = (7 * NL + 319) // 320
    a("s_and_b32 s50, s20, 1")
    a("s_lshl_b32 s50, s50, 2")
    a("s_add_u32 s50, s50, s60")
    a("s_min_u32 s50, s50, 6")
    a("s_lshl_b32 s50, s50, 10")
    a("v_lshrrev_b32 v4, 5, v1")
    a("v_lshlrev_b32 v4, 9, v4")
    a("v_bfe_u32 v16, v1, 4, 1")
    a("v_lshl_add_u32 v4, v16, 7, v4")
    a("v_and_b32 v16, 7, v1")
    a("v_lshl_add_u32 v4, v16, 4, v4")
    a("v_bfe_u32 v16, v1, 3, 1")
    a("v_lshl_add_u32 v4, v16, 3, v4")
    a("v_add_u32 v4, s50, v4")
    a("v_add_u32 v13, s50, v2")
    a("s_sub_u32 s50, s20, 28")
    a("s_lshl_b32 s50, s50, 7")
    a("s_add_u32 s50, s50, %d", 192 * 1024)
    a("v_mov_b32 v11, s50")
    a("s_cmp_lg_u32 s14, 7")
    a("s_cbranch_scc1 CH_h7")
    a("v_min_u32 v10, 55, v1")
    a("v_lshlrev_b32 v10, 7, v10")
    a.label("CH_h7")
    for i in range(NHP):
        a("s_min_u32 s50, s14, 4")
        a("s_add_u32 s50, s50, %d", 5 * i)
        a("s_lshl_b32 s50, s50, 6")
        a("v_add_u32 v16, s50, v1")
        a("v_min_u32 v16, %d, v16", 7 * NL - 1)
        a("v_cvt_f32_u32 v17, v16")
        a("v_add_f32 v17, 0.5, v17")
        a("v_mul_f32 v17, %s, v17", f32(1.0 / NL))
        a("v_cvt_u32_f32 v17, v17")
        a("v_mul_u32_u24 v18, %d, v17", NL)
        a("v_sub_u32 v16, v16, v18")
        a("v_add_u32 v16, %d, v16", 128 - NL)
        a("v_lshlrev_b32 v16, 7, v16")
        a("v_lshl_add_u32 v%d, v17, 14, v16", BW + i)
    a.label("CH_hs")
    XR = EX; UR = EX; GX = EX + 16; GM = EX + 24
    def xload():
        for k in range(7):
            a("global_load_dwordx4 %s, v2, s[42:43] offset:%d sc1", vr(XR + 4 * k, 4), k * 1024 - 4096)
    a("s_cmp_eq_u32 s14, 7")
    a("s_cbranch_scc1 CH_m0d")
    a("v_bfe_u32 v16, v14, 4, 3")
    a("v_mul_u32_u24 v16, 896, v16")
    a("v_lshrrev_b32 v17, 9, v14")
    a("v_lshl_add_u32 v16, v17, 6, v16")
    a("v_bfe_u32 v17, v14, 7, 1")
    a("v_lshl_add_u32 v16, v17, 5, v16")
    a("v_bfe_u32 v17, v14, 8, 1")
    a("v_lshl_add_u32 v16, v17, 3, v16")
    a("global_load_dwordx2 v[20:21], v16, s[12:13]")
    a("global_load_dwordx2 v[22:23], v16, s[12:13] offset:16")
    a("s_waitcnt vmcnt(0)")
    for d in range(4):
        a("v_lshlrev_b32 v24, 16, v%d", 20 + d)
        a("v_and_b32 v25, 0xffff0000, v%d", 20 + d)
        a("v_cvt_pk_f16_f32 v%d, v24, v25", 20 + d)
    a("ds_write_b128 v14, v[20:23]")
    a.label("CH_m0d")
    a("s_cmp_lt_u32 s14, 6")
    a("s_cbranch_scc1 CH_x0")
    xload()
    a.label("CH_x0")
    a("v_mov_b32 v0, 0")
    a("s_waitcnt vmcnt(0) lgkmcnt(0)")
    def slotptr(d, base, delta, stride):
        a("s_add_u32 s50, s24, %d", delta)
        a("s_and_b32 s50, s50, 3")
        a("s_mul_i32 s50, s50, %d", stride)
        add64(a, d, base, off_sgpr=50)
    def adv(r, n):
        if (xp & 1) and r in (38, 42, 44, 54, 56): return
        a("s_add_u32 s%d, s%d, %d", r, r, n); a("s_addc_u32 s%d, s%d, 0", r + 1, r + 1)
    def ptrs(w, first=False):
        if w != 4: slotptr(34, 28, 0, SR_STRIDE)
        if w >= 5: slotptr(36, 28, 3, SR_STRIDE)
        slotptr(30, 26, 1, MEMR_STRIDE)
        if w == 6: slotptr(32, 26, 3, MEMR_STRIDE)
        if w >= 6: adv(42, 28 * 1024)
        if w >= 4: adv(54, 28 * 16384)
        if first: return
        if w < 4: adv(38, 28 * 16384); adv(48, 8192)
        if w == 7: adv(40, 28 * 4096); adv(44, 28 * 1024)
        if w <= 4: adv(56, 28 * 16384)
    G1 = (GX, GX + 4, GM, GM + 1); G2 = (MFR + 24, STG + 12, EX + 26, EX + 27)
    def gather(G=G1):
        a("global_load_dwordx4 %s, v10, s[34:35] sc1", vr(G[0], 4))
        a("global_load_dwordx4 %s, v10, s[34:35] offset:1024 sc1", vr(G[1], 4))
        a("global_load_dword v%d, v11, s[34:35] sc1", G[2])
        a("global_load_dword v%d, v11, s[34:35] offset:256 sc1", G[3])
    def zero(r, n=4):
        for i in range(n): a("v_mov_b32 v%d, 0", r + i)
    def memx():
        a("ds_read2_b64 %s, v4 offset0:0 offset1:32", vr(STG, 4))
        a("s_waitcnt lgkmcnt(0)")
        a("global_store_dwordx4 v13, %s, s[48:49] sc1", vr(STG, 4))
    def tbx_read(d):
        for k in range(4):
            a("ds_read_b128 %s, v2 offset:%d", vr(d + 4 * k, 4), L_TB2 + k * 1024)
    def tbx_store(d):
        for k in range(4):
            a("global_store_dwordx4 v2, %s, s[40:41] offset:%d sc1", vr(d + 4 * k, 4), (k >> 1) * 4096 + (k & 1) * 1024 - 2048)

    class TB:
        def __init__(self, w, q):
            self.w = w; self.q = q
            self.loc = {n: BW + 8 * n for n in range(6)}
            if w == 7:
                for n in range(6, 14): self.loc[n] = AW + 8 * (n - 6)
                self.pend = []; self.order = list(range(14))
            else:
                self.pend = list(range(6, 14))
                self.order = [6, 0, 7, 1, 8, 2, 9, 3, 10, 4, 11, 5, 12, 13]
            self.lds = set(self.pend); self.pos = 0
        def stage(self, slot):
            if not self.pend: return
            n = self.pend.pop(0); self.loc[n] = slot
            for hf in range(2):
                self.q.issue(("B", n), "ds_read_b128 %s, v15 offset:%d", vr(slot + 4 * hf, 4), (n - 6) * 2048 + hf * 1024)
        def late(self):
            self.order = [0, 1, 2, 6, 3, 7, 4, 8, 5, 9, 10, 11, 12, 13]
        def run(self, upto, hooks={}):
            while self.pos < upto:
                n = self.order[self.pos]
                self.q.wait(("M", n >> 1))
                if n in self.lds: self.q.wait(("B", n))
                a(SM, vr(ACC1 if n & 1 else ACC0, 4), vr(MFR + 4 * (n >> 1), 4), vr(self.loc[n], 8))
                if n in self.lds: self.stage(self.loc[n])
                if self.pos in hooks: hooks[self.pos]()
                self.pos += 1
    TBO = MFR; TPR = MFR + 8; PX = MFR + 12; PM = MFR + 16; T0 = MFR + 18; T1 = MFR + 19; RZ = MFR + 20
    ONE = STG; ZA = STG + 8
    def tb_cvt(d):
        for b, acc in enumerate((ACC0, ACC1)):
            a("v_cvt_pk_f16_f32 v%d, v%d, v%d", d + 2 * b, acc, acc + 1)
            a("v_cvt_pk_f16_f32 v%d, v%d, v%d", d + 2 * b + 1, acc + 2, acc + 3)
    def tb_give(d=TBO):
        tb_cvt(d)
        a("ds_write_b128 v12, %s", vr(d, 4))
        a("s_waitcnt lgkmcnt(0)")
        P("TB done")
    def tb_take1():
        a("s_barrier")
        a("ds_read_b128 %s, v12", vr(TPR, 4))
    def tb_take2():
        a("s_waitcnt lgkmcnt(0)")
        for d in range(4): a("v_pk_add_f16 v%d, v%d, v%d", TBO + d, TBO + d, TPR + d)
    def tb_take3():
        for b in range(2): a("ds_write_b64 v8, %s offset:%d", vr(TBO + 2 * b, 2), b * 2048)
    def mread(q, n):
        q.issue(("O", n) if n < 7 else ("M", n - 7), "ds_read_b128 %s, v%d offset:%d", vr(MFR + 4 * (n % 7), 4), 3 if n < 7 else 6, (n % 7) * 512)

    FLG = 192 * 1024
    class _N:
        def __call__(self, *x): pass
    def wave_loop(w, hp):
        pv = w < 4; N = ("H%d" if hp else "C%d") % w
        TA = GX if pv else ACC0
        W7 = AW + 64
        r = {7: W7}.get(w, EX); r2 = r + 8; t = MFR
        pol = w != 6
        tail = []
        def poll(r):
            a("global_load_dwordx4 %s, v14, s[58:59] offset:-3584 sc1", vr(r, 4))
            a("global_load_dwordx4 %s, v14, s[58:59] offset:3584 sc1", vr(r + 4, 4))
        def newtb(q0, q):
            if hp: return None
            tb = TB(w, q0)
            if w < 6: tb.stage(STG); tb.stage(STG + 8)
            tb.q = q
            return tb
        def pre():
            newtb(LQ(a), None)
            if w != 7: zero(TA)
            if (pv or w == 7) and not hp: zero(ACC0); zero(ACC1)
            a("s_setprio 1")
        def mchk(x, lab):
            for d in range(4): a("v_pk_add_f16 v%d, v%d, v%d", t + d, x + d, x + 4 + d)
            a("ds_write_b128 v14, %s", vr(t, 4))
            a("v_pk_maximum3_f16 v%d, v%d, v%d, v%d", t + 4, t, t + 1, t + 2)
            a("v_pk_maximum3_f16 v%d, v%d, v%d, v%d", t + 4, t + 4, t + 3, t + 3)
            a("v_cmp_u_f16 vcc, v%d, v%d", t + 4, t + 4)
            a("s_cbranch_vccnz %s", lab)
        a.label(N + "_entry")
        ptrs(w, True)
        pre()
        a("s_branch %s_top", N)
        a.raw(".p2align 6")
        a.label(N + "_loop")
        if pol:
            a("s_waitcnt vmcnt(%d)", 2 if p2 else 0)
            mchk(r, N + "_mre")
            def mre():
                a.label(N + "_mre")
                poll(r)
                P("M re")
                if prof: a("s_add_u32 s62, s62, 1")
                a("s_sub_u32 s25, s25, 1")
                a("s_cbranch_scc1 %s", abort)
                if p2:
                    a("s_waitcnt vmcnt(2) lgkmcnt(0)")
                    mchk(r2, N + "_mre2")
                    a("s_branch %s_got", N)
                    a.label(N + "_mre2")
                    poll(r2)
                a("s_waitcnt lgkmcnt(0)")
                a("s_branch %s_loop", N)
            tail.append(mre)
        else:
            a("s_waitcnt vmcnt(0)")
        a.label(N + "_got")
        P("mem got")
        a.label(N + "_top")
        a("s_cmp_eq_u32 s24, 63")
        a("s_waitcnt lgkmcnt(0)")
        a("s_barrier")
        P("top")
        a("s_cbranch_scc1 %s_fin", N)
        q = LQ(a)
        tb = newtb(LQ(_N()), q)
        if w != 7:
            dp = dep if pv else dep2
            for n in range(dp): mread(q, n)
            for n in range(14):
                if n == 0: P("a pre")
                q.wait(("O", n) if n < 7 else ("M", n - 7))
                a(SM, vr(TA, 4), vr(MFR + 4 * (n % 7), 4), vr(AW + n * 8, 8))
                if n in (0, 2, 4, 6, 8, 10, 13): P("a%d" % n)
                if n + dp < 14: mread(q, n + dp)
            if pv and not hp:
                for k in range(2): a("global_load_dwordx4 %s, v13, s[38:39] offset:%d sc1", vr(UR + 4 * k, 4), k * 1024)
            a("v_cvt_pk_f16_f32 v%d, v%d, v%d", TA, TA, TA + 2)
            a("v_cvt_pk_f16_f32 v%d, v%d, v%d", TA + 1, TA + 1, TA + 3)
            q.issue("T", "ds_write2_b32 v7, v%d, v%d offset0:0 offset1:4", TA, TA + 1)
            if pv:
                a("s_setprio 0")
                if hp:
                    if not (xp & 2): memx()
                else:
                    for k in range(2, 4): a("global_load_dwordx4 %s, v13, s[38:39] offset:%d sc1", vr(UR + 4 * k, 4), k * 1024)
                    tb.run(nb2)
            q.wait("T")
            if w == 5: a("s_waitcnt vmcnt(0)")
        elif hp:
            a("global_load_dword v%d, v10, s[44:45] sc1", BW + 28)
        else:
            a("s_setprio 0")
            if nv > 0: a("global_load_dword v4, v10, s[54:55] sc1")
            tbx_read(STG)
            a("s_waitcnt lgkmcnt(0)")
            if not (xp & 2): tbx_store(STG)
            for n in range(7, 14): mread(q, n)
            tb.run(nb7)
        P("TA done")
        a("s_barrier")
        P("bar2")
        def pubS():
            a("s_barrier")
            P("pubS")
        def gath():
            P("G iss")
            gather()
        if w >= 5:
            a("s_setprio 3")
            ring = {5: [EX + 4 * k for k in range(7)], 6: [STG, STG + 4, STG + 8, STG + 12, ACC1], 7: [W7 + 16 + 4 * k for k in range(7)]}[w]
            SA = W7 + 44 if w == 7 else ACC0
            D = len(ring)
            def trd(k):
                if w == 5: q.issue(("S", k), "ds_read2_b64 %s, v%d offset0:%d offset1:%d", vr(ring[k], 4), 8 if k < 4 else 10, (k & 3) * 64, (k & 3) * 64 + 16)
                else: q.issue(("S", k), "ds_read_b128 %s, v8 offset:%d", vr(ring[k % D], 4), k * 512)
            for k in range(min(D, 7)): trd(k)
            for k in range(7):
                q.wait(("S", k))
                a("v_mfma_f32_16x16x32_f16 %s, %s, %s, %s", vr(SA, 4), vr((MFR if w == 5 else XR) + 4 * k, 4), vr(ring[k % D], 4), vr(SA, 4) if k else "0")
                if k + D < 7: trd(k + D)
            o = ring[2]
            a("s_mov_b64 exec, s[46:47]")
            a("v_mov_b32 v%d, -1", o + 2)
            if w == 5:
                a("v_cvt_pk_f16_f32 v%d, v%d, v%d", o, ACC0, ACC0 + 1)
                a("global_store_dword v9, v%d, s[34:35] %s", o, ST)
                a("global_store_dword v9, v%d, s[36:37] %s", o + 2, ST)
            else:
                a("v_mov_b32 v%d, -1", o + 3)
                a("v_cvt_pk_f16_f32 v%d, v%d, v%d", o, SA, SA + 1)
                a("v_cvt_pk_f16_f32 v%d, v%d, v%d", o + 1, SA + 2, SA + 3)
                a("global_store_dwordx2 v9, %s, s[34:35] %s", vr(o, 2), ST)
                a("global_store_dwordx2 v9, %s, s[36:37] %s", vr(o + 2, 2), ST)
            a("s_mov_b64 exec, -1")
            a("s_setprio 0")
            P("S pub")
            pubS()
            if not hp:
                if w == 6: tb.stage(STG)
                if w < 7: zero(ACC0); zero(ACC1)
                if w == 6:
                    tb.late()
                    tb.stage(STG + 8)
                tb.run(14)
                tb_give()
                a("s_barrier")
                if w >= 6: xload()
                if w != 6: spf(w)
        elif hp:
            if w == 4: a("s_setprio 0")
            pubS()
        elif pv: tb.run(nb3); pubS(); tb.run(14, {gpos: gath})
        else:
            a("s_setprio 0")
            zero(ACC0); zero(ACC1)
            tb.run(14, {bpos: pubS})
            tb_give()
            spf(4)
            a("s_barrier")
        if hp:
            if w <= 4:
                for i in range(NHP): a("global_load_dword v%d, v%d, s[56:57] sc1", EX + i, BW + i)
            elif w >= 6: xload()
            elif flag:
                for i in range(flag - 1): a("global_load_dword v%d, v11, s[26:27] sc1", EX + i)
                a.label(N + "_fl")
                a("s_sub_u32 s25, s25, 1")
                a("s_cbranch_scc1 %s", abort)
                for i in range(flag):
                    a("global_load_dword v%d, v11, s[26:27] sc1", EX + (i + flag - 1) % flag)
                    a("s_waitcnt vmcnt(%d)", flag - 1)
                    a("v_cmp_gt_i32 vcc, s24, v%d", EX + i)
                    if i < flag - 1: a("s_cbranch_vccz %s_fd", N)
                    else: a("s_cbranch_vccnz %s_fl", N)
                a.label(N + "_fd")
            if flag: a("s_barrier")
        if pv and not hp:
            for i in range(8): a("v_mov_b32 v%d, 0x3c003c00", ONE + i)
            zero(ZA)
            if gpos == 14: gath()
            tb_cvt(TBO)
            zero(TBO + 4, 2); zero(PM + 1, 1)
            zero(ACC0); zero(ACC1)
            if w == 3: a("v_mov_b32 v%d, s24", RZ)
            if gpos == 15: gath()
            if g2: gather(G2)
            P("II")
            def gchk(G, lab):
                for d in range(4): a("v_pk_add_f16 v%d, v%d, v%d", PX + d, G[0] + d, G[1] + d)
                a("v_pk_add_f16 v%d, v%d, v%d", PM, G[2], G[3])
                a("v_pk_maximum3_f16 v%d, v%d, v%d, v%d", T0, PX, PX + 1, PX + 2)
                a("v_pk_maximum3_f16 v%d, v%d, v%d, v%d", T0, T0, PX + 3, PM)
                a("v_pk_maximum3_f16 v%d, v%d, v%d, v%d op_sel:[0,1,0] op_sel_hi:[1,0,1]", T0, T0, T0, T0)
                a("v_mov_b32 v%d, v%d", T1, T0)
                a("v_cmp_u_f16 vcc, v%d, v%d", T0, T0)
                a("v_permlane32_swap_b32 v%d, v%d", T0, T1)
                a("v_pk_max_f16 v%d, v%d, v%d", T0, T0, T1)
                a("v_mov_b32 v%d, v%d", T1, T0)
                a("s_cbranch_vccnz %s", lab)
            a.label(N + "_sp")
            a("s_waitcnt vmcnt(%d)", 4 if g2 else 0)
            gchk(G1, N + "_gre")
            def gre():
                a.label(N + "_gre")
                P("G re")
                if prof: a("s_add_u32 s63, s63, 1")
                gather()
                a("s_sub_u32 s25, s25, 1")
                a("s_cbranch_scc1 %s", abort)
                if g2:
                    a("s_waitcnt vmcnt(4)")
                    gchk(G2, N + "_gre2")
                    a("s_branch %s_sok", N)
                    a.label(N + "_gre2")
                    gather(G2)
                a("s_branch %s_sp", N)
            tail.append(gre)
            a.label(N + "_sok")
            P("S got")
            a("v_permlane16_swap_b32 v%d, v%d", T0, T1)
            a("v_pk_max_f16 v%d, v%d, v%d", T0, T0, T1)
            for x in (PM, PX, PX + 1, PX + 2, PX + 3):
                a("v_pk_add_f16 v%d, v%d, v%d neg_lo:[0,1] neg_hi:[0,1]", x, x, T0)
            nex = [0]
            def ex(x, hi):
                a("v_exp_f16_sdwa v%d, v%d dst_sel:WORD_%d dst_unused:UNUSED_PRESERVE src0_sel:WORD_%d", x, x, hi, hi)
                if w == 3 and flag and nex[0] == fpos: a("global_store_dword v4, v%d, s[26:27] %s", RZ, ST)
                nex[0] += 1
            S2 = "v_smfmac_f32_16x16x32_f16 %s, %s, %s, v5"
            ex(PM, 0); ex(PX, 0)
            tb_take1()
            P("bar3")
            ex(PM, 1); ex(PX + 1, 0); ex(PX, 1)
            a(S2, vr(ZA, 4), vr(PM, 2), vr(ONE, 4))
            ex(PX + 2, 0); ex(PX + 1, 1); ex(PX + 3, 0); ex(PX + 2, 1); ex(PX + 3, 1)
            a(SM, vr(ZA, 4), vr(PX, 4), vr(ONE, 8))
            a(SM, vr(ACC0, 4), vr(PX, 4), vr(UR, 8))
            a(SM, vr(ACC1, 4), vr(PX, 4), vr(UR + 8, 8))
            tb_take2()
            a(S2, vr(ACC0, 4), vr(PM, 2), vr(TBO, 4))
            a(S2, vr(ACC1, 4), vr(PM, 2), vr(TBO + 2, 4))
            for i in range(4): a("v_rcp_f32 v%d, v%d", RZ + i, ZA + i)
            for b, acc in enumerate((ACC0, ACC1)):
                a("v_pk_mul_f32 %s, %s, %s", vr(acc, 2), vr(acc, 2), vr(RZ, 2))
                a("v_pk_fma_f32 %s, %s, %s, %s", vr(acc, 2), vr(acc + 2, 2), vr(RZ + 2, 2), vr(acc, 2))
                a("ds_write2st64_b32 v9, v%d, v%d offset0:%d offset1:%d", acc, acc + 1, b, 2 + b)
            tb_take3()
            a("s_waitcnt lgkmcnt(2)")
            P("red wr")
        if not hp:
            a("s_barrier")
            if w == 6:
                R = MFR
                for k in range(4): a("ds_read_b128 %s, v2 offset:%d", vr(R + 4 * k, 4), L_RED + k * 1024)
                a("v_mov_b32 v%d, -1", R + 16)
                a("v_mov_b32 v%d, -1", R + 17)
                a("s_waitcnt lgkmcnt(2)")
                for d in (0, 2): a("v_pk_add_f32 %s, %s, %s", vr(R + d, 2), vr(R + d, 2), vr(R + 4 + d, 2))
                a("s_waitcnt lgkmcnt(1)")
                for d in (0, 2): a("v_pk_add_f32 %s, %s, %s", vr(R + d, 2), vr(R + d, 2), vr(R + 8 + d, 2))
                a("s_waitcnt lgkmcnt(0)")
                for d in (0, 2): a("v_pk_add_f32 %s, %s, %s", vr(R + d, 2), vr(R + d, 2), vr(R + 12 + d, 2))
                a("v_cvt_pk_f16_f32 v%d, v%d, v%d", R, R, R + 1)
                a("v_cvt_pk_f16_f32 v%d, v%d, v%d", R + 1, R + 2, R + 3)
                a("global_store_dwordx2 v13, %s, s[30:31] %s", vr(R, 2), ST)
                a("global_store_dwordx2 v13, %s, s[32:33] %s", vr(R + 16, 2), ST)
                P("mem pub")
                spf(6)
            a("s_barrier")
        a("s_add_u32 s58, s30, 3584"); a("s_addc_u32 s59, s31, 0")
        pd = 0 if hp else pdel
        def p1(): poll(r); P("M iss")
        if pol and pd == 0: p1()
        a("s_add_u32 s24, s24, 1")
        ptrs(w)
        if pol and pd == 1: p1()
        if pv and not hp: a("s_waitcnt vmcnt(%d)", 0 if pd == 2 else 2)
        pre()
        if pol and pd == 2: p1()
        if P.on:
            a("s_waitcnt lgkmcnt(0)")
            P.flush()
        if pol and p2: poll(r2)
        a("s_branch %s_loop", N)
        for f in tail: f()
        a.label(N + "_fin")
        a("s_setprio 0")
        a("s_waitcnt vmcnt(0)")
        if hp:
            if pv: memx()
            a("s_branch CH_fin")
            return
        q = LQ(a)
        tb = newtb(LQ(_N()), q)
        for n in range(7, 14): mread(q, n)
        if w == 7: tbx_read(W7)
        if w == 6: tb.stage(STG); tb.stage(STG + 8)
        if w in (4, 5, 6): zero(ACC1)
        q.all()
        if w == 7: tbx_store(W7); adv(40, 28 * 4096)
        tb.run(14)
        if pv:
            tb_cvt(TBO); tb_take1(); tb_take2(); tb_take3()
            a("s_waitcnt lgkmcnt(0)")
        else:
            tb_give()
            a("s_barrier")
        a("s_barrier")
        if w == 7:
            tbx_read(MFR)
            a("s_waitcnt lgkmcnt(0)")
            tbx_store(MFR)
        a("s_branch CH_fin")
    for hp in (0, 1):
        H = "H" if hp else "C"
        if hp: a.label("CH_hdisp")
        else:
            a("s_cmp_eq_u32 s23, 0")
            a("s_cbranch_scc1 CH_hdisp")
        for w in (3, 4, 5, 6, 7):
            a("s_cmp_eq_u32 s14, %d", w)
            a("s_cbranch_scc1 %s%d_entry", H, w)
        for w in (0, 3, 4, 5, 6, 7): wave_loop(w, hp)
    a.label("CH_fin")
    a("s_waitcnt vmcnt(0)")
    if prof:
        a("s_lshl_b32 s50, s20, 3")
        a("s_add_u32 s50, s50, s14")
        a("s_lshl_b32 s50, s50, 8")
        a("s_add_u32 s50, s50, 0x%x", POIS_END)
        add64(a, 50, 4, off_sgpr=50)
        a("v_writelane_b32 v%d, s62, 22", VP)
        a("v_writelane_b32 v%d, s63, 23", VP)
        a("v_lshlrev_b32 v16, 2, v1")
        a("global_store_dword v16, v%d, s[50:51]", VP)
    return P.names

def emit_chain_kernel(a, prof=False, **kw):
    a.raw(".p2align 8")
    a.label("chain_kernel")
    a("s_cmp_ge_u32 s2, 256")
    a("s_cbranch_scc1 CH_abort")
    a("s_getreg_b32 s16, hwreg(HW_REG_XCC_ID)")
    a("s_and_b32 s16, s16, 15")
    a("s_cmp_lg_u32 s16, 0")
    a("s_cbranch_scc1 CH_abort")
    main_prologue(a)
    a("s_cmp_lg_u32 s14, 0")
    a("s_cbranch_scc1 CK_w")
    a("v_mov_b32 v6, %d", C_TICKET * 4)
    a("v_mov_b32 v7, 1")
    a("s_mov_b64 exec, 1")
    a("global_atomic_add v8, v6, v7, s[10:11] sc0 sc1")
    a("s_waitcnt vmcnt(0)")
    a("v_mov_b32 v6, 0")
    a("ds_write_b32 v6, v8")
    a("s_mov_b64 exec, -1")
    a("s_waitcnt lgkmcnt(0)")
    a.label("CK_w")
    a("s_barrier")
    a("v_mov_b32 v6, 0")
    a("ds_read_b32 v8, v6")
    a("s_waitcnt lgkmcnt(0)")
    a("v_readfirstlane_b32 s20, v8")
    a("s_cmp_ge_u32 s20, 32")
    a("s_cbranch_scc1 CH_abort")
    names = emit_chain(a, prof, **kw)
    a.label("CH_abort")
    a("s_endpgm")
    return names
```

```python
from asmlib import *
from layout import *
import struct
def f32(x): return "0x%08x" % struct.unpack("<I", struct.pack("<f", x))[0]
def add64(a, d, s, off_sgpr=None, imm=None):
    o = ("s%d" % off_sgpr) if off_sgpr is not None else ("0x%x" % imm)
    a("s_add_u32 s%d, s%d, %s", d, s, o)
    a("s_addc_u32 s%d, s%d, 0", d + 1, s + 1)
S_WS, S_X, S_OUT, S_DBG, S_MEM0, S_WAVE, S_TASK = 4, 6, 8, 10, 12, 14, 15
V_LANE, V_L16, V_G, V_I = 1, 2, 3, 4
def main_prologue(a):
    a("s_load_dwordx2 s[4:5], s[0:1], 96")
    a("s_load_dwordx2 s[6:7], s[0:1], 0")
    a("s_load_dwordx2 s[8:9], s[0:1], 80")
    a("s_load_dwordx2 s[10:11], s[0:1], 88")
    a("s_load_dwordx2 s[12:13], s[0:1], 8")
    a("v_lshrrev_b32 v5, 6, v0")
    a("v_and_b32 v1, 63, v0")
    a("v_readfirstlane_b32 s14, v5")
    a("v_lshlrev_b32 v2, 4, v1")
    a("v_lshrrev_b32 v3, 4, v1")
    a("v_and_b32 v4, 15, v1")
    a("s_waitcnt lgkmcnt(0)")
C_U, C_G1, C_G2 = 0, 8, 16
def signal(a, sidx_bytes):
    l = a.newlabel("SG")
    a("s_waitcnt vmcnt(0)")
    a("s_barrier")
    a("s_cmp_lg_u32 s14, 0")
    a("s_cbranch_scc1 %s", l)
    a("v_mov_b32 v6, s%d", sidx_bytes)
    a("v_mov_b32 v7, 1")
    a("s_mov_b64 s[90:91], exec")
    a("s_mov_b64 exec, 1")
    a("global_atomic_add v6, v7, s[10:11] sc1")
    a("s_mov_b64 exec, s[90:91]")
    a.label(l)
```

```python
from common import *
LX = 0; LM = 28 * 1024; LP = 36 * 1024; LPM = 52 * 1024
MF = "v_mfma_f32_16x16x32_f16 %s, %s, %s, %s"
def emit_f(a, abort, pre=None):
    QR = 16; SX = 128; SMm = 144; RING = 152; UE = 176; FOR = 248; TBR = 72; PR = 104
    a.c("---- F task")
    a("s_lshr_b32 s21, s20, 2")
    a("s_bfe_u32 s22, s20, 0x10001")
    a("s_and_b32 s23, s20, 1")
    a("s_mov_b32 s25, 0x400000")
    a("s_min_u32 s24, s14, 6")
    a("s_mul_i32 s23, s23, 7")
    a("s_add_u32 s23, s23, s24")
    a("s_mul_i32 s26, s21, %d", 28 * 1024)
    a("s_add_u32 s26, s26, 0x%x", XF)
    add64(a, 26, 4, off_sgpr=26)
    a("s_lshl_b32 s28, s21, 4")
    a("s_lshl_b32 s29, s14, 1")
    a("s_add_u32 s28, s28, s29")
    a("s_lshl_b32 s28, s28, 1")
    a("s_add_u32 s28, s28, s22")
    a("s_mul_i32 s28, s28, %d", 14 * 1024)
    a("s_add_u32 s28, s28, 0x%x", QF + 4096)
    add64(a, 28, 4, off_sgpr=28)
    a("s_mul_i32 s30, s21, 14")
    a("s_add_u32 s30, s30, s23")
    a("s_lshl_b32 s32, s30, 15")
    a("s_add_u32 s32, s32, 0x%x", UF + 4096)
    add64(a, 32, 4, off_sgpr=32)
    a("s_lshl_b32 s34, s30, 2")
    a("s_add_u32 s34, s34, s22")
    a("s_lshl_b32 s34, s34, 10")
    a("s_add_u32 s34, s34, 0x%x", FO)
    add64(a, 34, 4, off_sgpr=34)
    a("s_lshl_b32 s36, s30, 13")
    a("s_add_u32 s36, s36, 0x%x", TBX + 4096)
    add64(a, 36, 4, off_sgpr=36)
    a("s_lshl_b32 s38, s21, 13")
    a("s_lshl_b32 s39, s24, 10")
    a("s_add_u32 s38, s38, s39")
    a("s_add_u32 s38, s38, 0x%x", MEMX)
    a("s_add_u32 s39, s39, %d", LM)
    a("v_add_u32 v14, s39, v2")
    add64(a, 38, 4, off_sgpr=38)
    a("s_lshl_b32 s48, s21, 1")
    a("s_add_u32 s48, s48, s22")
    a("s_mul_i32 s48, s48, %d", 16 * 896)
    a("s_lshl_b32 s49, s23, 6")
    a("s_add_u32 s48, s48, s49")
    add64(a, 48, 8, off_sgpr=48)
    a("v_mul_u32_u24 v15, 896, v4")
    a("v_lshl_add_u32 v15, v3, 4, v15")
    for k in range(1, 4): a("v_add_u32 v%d, %d, v2", 4 + k, k * 8192)
    a("v_lshrrev_b32 v12, 2, v4")
    a("v_lshlrev_b32 v12, 1, v12")
    a("v_and_b32 v13, 1, v4")
    a("v_add_u32 v12, v12, v13")
    a("v_lshlrev_b32 v12, 4, v12")
    a("v_lshl_add_u32 v12, v3, 7, v12")
    a("v_add_u32 v12, %d, v12", LM)
    a("v_lshlrev_b32 v13, 2, v3")
    a("v_sub_u32 v13, v4, v13")
    for r in range(4): a("v_cmp_le_i32 s[%d:%d], %d, v13", 40 + 2 * r, 41 + 2 * r, r)
    if pre: pre()
    a("s_barrier")
    av = lambda off: ([2, 5, 6, 7][off // 8192], off % 8192 - 4096)
    end = a.newlabel("Fend")
    l1 = a.newlabel("Ft1")
    a("s_cmp_eq_u32 s22, 1")
    a("s_cbranch_scc1 %s", l1)
    for tt in range(2):
        if tt: a.label(l1)
        nx = 2 * (tt + 1)
        a("s_mul_i32 s50, s24, %d", nx * 1024)
        a("v_add_u32 v8, s50, v2")
        a("s_add_u32 m0, s50, %d", LX)
        for k in range(nx): a("global_load_lds_dwordx4 v8, s[26:27] offset:%d", 1024 * k)
        for hh in range(2):
            for ks in range(14):
                v, o = av(ks * 1024)
                a("global_load_dwordx4 %s, v%d, s[28:29] offset:%d sc1", vr(QR + (hh * 14 + ks) * 4, 4), v, o)
            if hh == 0:
                a("s_add_u32 s28, s28, %d", 28 * 1024); a("s_addc_u32 s29, s29, 0")
        ufr = [(p, t, b) for p in range(8) for t in range(tt + 1) for b in range(2)]
        ureg = {f: (UE + 4 * n if n < 18 else QR + 4 * (n - 18)) for n, f in enumerate(ufr)}
        def uld(f):
            p, t, b = f
            v, o = av((p * 4 + b * 2 + t) * 1024)
            a("global_load_dwordx4 %s, v%d, s[32:33] offset:%d sc1", vr(ureg[f], 4), v, o)
        for f in ufr[:18]: uld(f)
        for b in range(2): a("global_load_dwordx4 %s, v2, s[34:35] offset:%d sc1", vr(FOR + 4 * b, 4), b * 2048)
        ne = min(len(ufr), 18) + 2
        a("s_waitcnt vmcnt(%d)", 28 + ne)
        a("s_barrier")
        fr = [(ks, t) for ks in range(14) for t in range(tt + 1)]
        def rd(n):
            ks, t = fr[n]
            a("ds_read_b128 %s, v2 offset:%d", vr(RING + (n % 6) * 4, 4), LX + (t * 14 + ks) * 1024)
        for n in range(5): rd(n)
        a("s_waitcnt vmcnt(%d)", ne)
        for n in range(len(fr)):
            if n + 5 < len(fr): rd(n + 5)
            a("s_waitcnt lgkmcnt(%d)", min(5, len(fr) - 1 - n))
            ks, t = fr[n]
            for hh in range(2):
                d = vr(SX + (hh * 2 + t) * 4, 4)
                a(MF, d, vr(RING + (n % 6) * 4, 4), vr(QR + (hh * 14 + ks) * 4, 4), d if ks else "0")
        lp = a.newlabel("Fmp")
        a.label(lp)
        a("global_load_dwordx4 v[8:11], v2, s[38:39] sc1")
        a("s_sub_u32 s25, s25, 1")
        a("s_cbranch_scc1 %s", abort)
        a("s_waitcnt vmcnt(0)")
        a("v_pk_maximum3_f16 v%d, v8, v9, v10", RING)
        a("v_pk_maximum3_f16 v%d, v%d, v11, v11", RING, RING)
        a("v_cmp_u_f16 vcc, v%d, v%d", RING, RING)
        a("s_cbranch_vccnz %s", lp)
        a("ds_write_b128 v14, v[8:11]")
        a("s_waitcnt lgkmcnt(0)")
        a("s_barrier")
        def rm(n): a("ds_read_b128 %s, v12 offset:%d", vr(RING + (n % 6) * 4, 4), n * 512)
        for n in range(5): rm(n)
        for n in range(14):
            if n + 5 < 14: rm(n + 5)
            a("s_waitcnt lgkmcnt(%d)", min(5, 13 - n))
            for hh in range(2):
                d = vr(SMm + hh * 4, 4)
                a(MF, d, vr(RING + (n % 6) * 4, 4), vr(QR + (hh * 14 + n) * 4, 4), d if n else "0")
        for f in ufr[18:]: uld(f)
        def tbl():
            for b in range(2):
                for pp in range(4):
                    a("global_load_dwordx4 %s, v2, s[36:37] offset:%d sc1", vr(TBR + (b * 4 + pp) * 4, 4), (b * 4 + pp) * 1024 - 4096)
        tbl()
        a("v_mov_b32 v8, 0xff800000")
        vals = []
        for hh in range(2):
            for r in range(4):
                x = SX + (hh * 2 + tt) * 4 + r
                a("v_cndmask_b32 v%d, v8, v%d, s[%d:%d]", x, x, 40 + 2 * r, 41 + 2 * r)
            vals.append([SX + (hh * 2 + t) * 4 + r for t in range(tt + 1) for r in range(4)] + [SMm + hh * 4, SMm + hh * 4 + 1])
        M = [RING, RING + 1]; T = [RING + 2, RING + 3]
        n = len(vals[0])
        for hh in range(2): a("v_max_f32 v%d, v%d, v%d", M[hh], vals[hh][0], vals[hh][1])
        for k in range(2, n, 2):
            for hh in range(2): a("v_max3_f32 v%d, v%d, v%d, v%d", M[hh], M[hh], vals[hh][k], vals[hh][k + 1])
        def allred(op):
            for sw in ("v_permlane32_swap_b32", "v_permlane16_swap_b32"):
                for hh in range(2): a("v_mov_b32 v%d, v%d", T[hh], M[hh])
                for hh in range(2): a("%s v%d, v%d", sw, M[hh], T[hh])
                for hh in range(2): a("%s v%d, v%d, v%d", op, M[hh], M[hh], T[hh])
        allred("v_max_f32")
        for k in range(n):
            for hh in range(2): a("v_sub_f32 v%d, v%d, v%d", vals[hh][k], vals[hh][k], M[hh])
        for k in range(n):
            for hh in range(2): a("v_exp_f32 v%d, v%d", vals[hh][k], vals[hh][k])
        for hh in range(2): a("v_add_f32 v%d, v%d, v%d", M[hh], vals[hh][0], vals[hh][1])
        for k in range(2, n):
            for hh in range(2): a("v_add_f32 v%d, v%d, v%d", M[hh], M[hh], vals[hh][k])
        allred("v_add_f32")
        for hh in range(2): a("v_rcp_f32 v%d, v%d", M[hh], M[hh])
        for k in range(n):
            for hh in range(2): a("v_mul_f32 v%d, v%d, v%d", vals[hh][k], vals[hh][k], M[hh])
        a("s_lshl_b32 s50, s14, 11")
        a("s_add_u32 s50, s50, %d", LP)
        a("v_add_u32 v8, s50, v2")
        a("s_lshr_b32 s50, s14, 1")
        a("s_lshl_b32 s50, s50, 10")
        a("s_and_b32 s51, s14, 1")
        a("s_lshl_b32 s51, s51, 3")
        a("s_add_u32 s50, s50, s51")
        a("s_add_u32 s50, s50, %d", LPM)
        a("v_add_u32 v9, s50, v2")
        O = RING + 4
        for t in range(tt + 1):
            for hh in range(2):
                for r2 in range(2):
                    x = SX + (hh * 2 + t) * 4 + 2 * r2
                    a("v_cvt_pk_f16_f32 v%d, v%d, v%d", O + 4 * t + 2 * r2 + hh, x, x + 1)
            a("ds_write_b128 v8, %s offset:%d", vr(O + 4 * t, 4), t * 1024)
        for hh in range(2): a("v_cvt_pk_f16_f32 v%d, v%d, v%d", O + 8 + hh, SMm + hh * 4, SMm + hh * 4 + 1)
        a("ds_write_b64 v9, %s", vr(O + 8, 2))
        a("s_waitcnt lgkmcnt(0)")
        a("s_barrier")
        a("s_cmp_eq_u32 s14, 7")
        a("s_cbranch_scc1 %s", end)
        pf = [(p, t) for p in range(8) for t in range(tt + 1)]
        PMR = RING
        def rp(n):
            p, t = pf[n]
            a("ds_read_b128 %s, v2 offset:%d", vr(PR + (n % 6) * 4, 4), LP + (p * 2 + t) * 1024)
        for pp in range(4): a("ds_read_b128 %s, v2 offset:%d", vr(PMR + 4 * pp, 4), LPM + pp * 1024)
        for n in range(5): rp(n)
        late = len(ufr) - 18
        for n in range(len(pf)):
            if n + 5 < len(pf): rp(n + 5)
            a("s_waitcnt lgkmcnt(%d)", min(5, len(pf) - 1 - n))
            p, t = pf[n]
            if 2 * n + 1 >= 18: a("s_waitcnt vmcnt(%d)", 8 + len(ufr) - 1 - (2 * n + 1))
            for b in range(2):
                d = vr(FOR + 4 * b, 4)
                a(MF, d, vr(ureg[(p, t, b)], 4), vr(PR + (n % 6) * 4, 4), d)
        lt = a.newlabel("Ftb"); lr = a.newlabel("Ftr")
        a.label(lt)
        a("s_waitcnt vmcnt(0)")
        for pp in range(4):
            for b in range(2):
                d = vr(SX + 4 * b, 4)
                a(MF, d, vr(TBR + (b * 4 + pp) * 4, 4), vr(PMR + 4 * pp, 4), d if pp else "0")
        for k in range(0, 8, 2): a("v_pk_add_f32 %s, %s, %s", vr(SX + k, 2), vr(SX + k, 2), vr(FOR + k, 2))
        a("v_pk_add_f32 v[8:9], %s, %s", vr(SX, 2), vr(SX + 2, 2))
        a("v_pk_add_f32 v[10:11], %s, %s", vr(SX + 4, 2), vr(SX + 6, 2))
        a("v_pk_add_f32 v[8:9], v[8:9], v[10:11]")
        a("v_cmp_u_f32 vcc, v8, v9")
        a("s_cbranch_vccnz %s", lr)
        for k in range(4): a("v_cvt_pk_bf16_f32 v%d, v%d, v%d", 8 + k, SX + 2 * k, SX + 2 * k + 1)
        a("global_store_dwordx4 v15, v[8:11], s[48:49]")
        a("s_branch %s", end)
        a.label(lr)
        tbl()
        a("s_sub_u32 s25, s25, 1")
        a("s_cbranch_scc0 %s", lt)
        a("s_branch %s", abort)
    a.label(end)

def emit_f_kernel(a):
    a.raw(".p2align 8")
    a.label("f_kernel")
    a("s_cmp_ge_u32 s2, 256")
    a("s_cbranch_scc1 F_end")
    main_prologue(a)
    a("s_mov_b32 s20, s2")
    emit_f(a, "F_end")
    a.label("F_end")
    a("s_endpgm")
```

```python
from common import *
def emit_g1(a, SC="sc1"):
    XR = 16; WR = 128; ACC = 160; OUTR = 192
    PB = 28 * 1024
    a.c("---- G1 task")
    a("s_lshl_b32 s22, s20, 3")
    a("s_add_u32 s22, s22, s14")
    a("s_lshl_b32 s23, s14, 12")
    a("v_add_u32 v8, s23, v2")
    a("s_mov_b32 s24, 0")
    a("s_mov_b32 s25, 0")
    def stage():
        l = a.newlabel("G1s");
        a("s_cmp_ge_u32 s24, 18")
        a("s_cbranch_scc1 %s", l)
        a("s_cmp_eq_u32 s14, 7")
        a("s_cbranch_scc1 %s", l)
        a("s_lshl_b32 s26, s21, 3")
        a("s_add_u32 s26, s26, s24")
        a("s_add_u32 s27, s26, 216")
        a("s_cmp_ge_u32 s24, 8")
        a("s_cselect_b32 s26, s27, s26")
        a("s_lshl_b32 s27, s21, 1")
        a("s_add_u32 s27, s27, s24")
        a("s_add_u32 s27, s27, 432")
        a("s_cmp_ge_u32 s24, 16")
        a("s_cselect_b32 s26, s27, s26")
        a("s_mul_i32 s26, s26, %d", PB)
        a("s_add_u32 s26, s26, 0x%x", WALL)
        a("s_add_u32 s26, s4, s26")
        a("s_addc_u32 s27, s5, 0")
        a("s_add_u32 m0, s25, s23")
        for k in range(4):
            a("global_load_lds_dwordx4 v8, s[26:27] offset:%d", 1024 * k)
        a.label(l)
        a("s_add_u32 s24, s24, 1")
        a("s_add_u32 s25, s25, %d", PB)
        a("s_cmp_eq_u32 s25, %d", 3 * PB)
        a("s_cselect_b32 s25, 0, s25")
    a("s_barrier")
    stage(); stage()
    a("s_mul_i32 s28, s22, %d", 28 * 1024)
    a("s_add_u32 s28, s28, 0x%x", XF + 4096)
    add64(a, 28, 4, off_sgpr=28)
    for f in range(28):
        if f and f % 8 == 0:
            a("s_add_u32 s28, s28, 8192"); a("s_addc_u32 s29, s29, 0")
        a("global_load_dwordx4 %s, v2, s[28:29] offset:%d", vr(XR + 4 * f, 4), (f % 8) * 1024 - 4096)
    a("s_waitcnt vmcnt(0)")
    a("s_mov_b32 s30, 0")
    a("s_mov_b32 s31, 0")
    a("v_add_u32 v9, %d, v2", 1024)
    a("v_add_u32 v10, %d, v2", 14 * 1024)
    a("v_add_u32 v11, %d, v2", 56 * 1024)
    def body(kind, lim):
        L = a.newlabel("G1" + kind)
        a.label(L)
        a("s_waitcnt vmcnt(%d)", 4 if kind == "H" else 8)
        a("s_barrier")
        stage()
        a("v_add_u32 v12, s31, v2")
        for i in range(16): a("v_mov_b32 v%d, 0", ACC + i)
        def rd(ks):
            for b in range(2):
                a("ds_read_b128 %s, v12 offset:%d", vr(WR + (ks % 3) * 8 + b * 4, 4), (b * 14 + ks) * 1024)
        rd(0); rd(1)
        if kind == "U":
            a("s_lshl_b32 s32, s21, 3")
            a("s_add_u32 s32, s32, s30")
            a("s_mul_i32 s33, s32, 2341")
            a("s_lshr_b32 s33, s33, 16")
            a("s_mul_i32 s34, s33, 28")
            a("s_sub_u32 s34, s32, s34")
            a("s_mul_i32 s35, s22, 14")
            a("s_lshr_b32 s32, s34, 1")
            a("s_add_u32 s35, s35, s32")
            a("s_lshl_b32 s35, s35, 3")
            a("s_add_u32 s35, s35, s33")
            a("s_lshl_b32 s35, s35, 1")
            a("s_and_b32 s34, s34, 1")
            a("s_add_u32 s35, s35, s34")
            a("s_lshl_b32 s35, s35, 11")
            a("s_add_u32 s35, s35, 0x%x", UF)
        elif kind == "Q":
            a("s_lshl_b32 s32, s21, 3")
            a("s_add_u32 s32, s32, s30")
            a("s_sub_u32 s32, s32, 8")
            a("s_mul_i32 s33, s32, 4682")
            a("s_lshr_b32 s33, s33, 16")
            a("s_mul_i32 s34, s33, 14")
            a("s_sub_u32 s34, s32, s34")
            a("s_lshl_b32 s35, s22, 4")
            a("s_add_u32 s35, s35, s33")
            a("s_mul_i32 s35, s35, 28")
            a("s_add_u32 s35, s35, s34")
            a("s_lshl_b32 s35, s35, 10")
            a("s_add_u32 s35, s35, 0x%x", QF)
        else:
            a("s_mul_i32 s35, s22, 112")
            a("s_lshl_b32 s32, s21, 1")
            a("s_add_u32 s35, s35, s32")
            a("s_add_u32 s35, s35, s30")
            a("s_sub_u32 s35, s35, 16")
            a("s_lshl_b32 s35, s35, 10")
            a("s_add_u32 s35, s35, 0x%x", HF)
        add64(a, 36, 4, off_sgpr=35)
        for ks in range(14):
            if ks + 2 < 14:
                rd(ks + 2); a("s_waitcnt lgkmcnt(4)")
            elif ks == 12: a("s_waitcnt lgkmcnt(2)")
            else: a("s_waitcnt lgkmcnt(0)")
            for b in range(2):
                for tt in range(2):
                    d = vr(ACC + (tt * 2 + b) * 4, 4); x = vr(XR + (tt * 14 + ks) * 4, 4); w = vr(WR + (ks % 3) * 8 + b * 4, 4)
                    if kind == "U": a("v_mfma_f32_16x16x32_f16 %s, %s, %s, %s", d, x, w, d)
                    else: a("v_mfma_f32_16x16x32_f16 %s, %s, %s, %s", d, w, x, d)
        a("s_add_u32 s30, s30, 1")
        a("s_add_u32 s31, s31, %d", PB)
        a("s_cmp_eq_u32 s31, %d", 3 * PB)
        a("s_cselect_b32 s31, 0, s31")
        for o in range(2):
            for hf in range(2):
                d = ACC + (o * 2 + hf) * 4
                if kind == "H":
                    for r in range(4): a("v_max_f32 v%d, 0, v%d", d + r, d + r)
                o0, o1 = (hf, 2 + hf) if kind == "U" else (2 * hf, 2 * hf + 1)
                a("v_cvt_pk_f16_f32 v%d, v%d, v%d", OUTR + o * 4 + o0, d, d + 1)
                a("v_cvt_pk_f16_f32 v%d, v%d, v%d", OUTR + o * 4 + o1, d + 2, d + 3)
            va = 2 if o == 0 else {"U": 9, "Q": 10, "H": 11}[kind]
            a("global_store_dwordx4 v%d, %s, s[36:37] %s", va, vr(OUTR + o * 4, 4), SC)
        a("s_cmp_lt_u32 s30, %d", lim)
        a("s_cbranch_scc1 %s", L)
    body("U", 8)
    a("s_lshl_b32 s38, s20, 2")
    a("s_add_u32 s38, s38, %d", C_U * 4)
    signal(a, 38)
    body("Q", 16)
    body("H", 18)
    a("s_lshl_b32 s38, s20, 2")
    a("s_add_u32 s38, s38, %d", C_G1 * 4)
    signal(a, 38)

def emit_g1_kernel(a):
    a.raw(".p2align 8")
    a.label("g1_kernel")
    a("s_cmp_ge_u32 s2, 224")
    a("s_cbranch_scc1 G1_end")
    main_prologue(a)
    a("s_and_b32 s20, s2, 7")
    a("s_lshr_b32 s21, s2, 3")
    emit_g1(a)
    a.label("G1_end")
    a("s_endpgm")
```

```python
from common import *
def emit_g2(a):
    ACC = 64; FRG = 128
    a.c("---- G2 task")
    a("s_mul_i32 s21, s20, 293")
    a("s_lshr_b32 s21, s21, 11")
    a("s_mul_i32 s22, s21, 7")
    a("s_sub_u32 s22, s20, s22")
    a("s_mul_i32 s23, s14, 7168")
    a("s_add_u32 s23, s23, 4096")
    a("s_mul_i32 s24, s21, %d", 4 * 56 * 1024)
    a("s_add_u32 s24, s24, s23")
    a("s_add_u32 s24, s24, 0x%x", HF)
    add64(a, 24, 4, off_sgpr=24)
    a("s_mul_i32 s26, s22, %d", 4 * 56 * 1024)
    a("s_add_u32 s26, s26, s23")
    a("s_add_u32 s26, s26, 0x%x", W2F)
    add64(a, 26, 4, off_sgpr=26)
    for j in range(1, 4): a("v_add_u32 v%d, %d, v2", 7 + j, j * 56 * 1024)
    adr = [2, 8, 9, 10]
    def ld(k):
        b = FRG + (k & 3) * 32
        for j in range(4):
            a("global_load_dwordx4 %s, v%d, s[24:25] offset:%d sc1", vr(b + 4 * j, 4), adr[j], k * 1024 - 4096)
            a("global_load_dwordx4 %s, v%d, s[26:27] offset:%d", vr(b + 16 + 4 * j, 4), adr[j], k * 1024 - 4096)
    for k in range(4): ld(k)
    a("s_lshr_b32 s28, s14, 1")
    a("s_lshl_b32 s29, s21, 2")
    a("s_add_u32 s28, s28, s29")
    a("s_and_b32 s29, s14, 1")
    a("s_lshl_b32 s30, s22, 1")
    a("s_add_u32 s29, s29, s30")
    a("s_mul_i32 s30, s28, %d", 16 * 896)
    a("s_lshl_b32 s31, s29, 6")
    a("s_add_u32 s30, s30, s31")
    add64(a, 30, 6, off_sgpr=30)
    a("v_mul_u32_u24 v11, 896, v4")
    a("v_lshl_add_u32 v11, v3, 4, v11")
    a("global_load_dwordx4 v[12:15], v11, s[30:31]" + nt(256))
    a("s_lshr_b32 s32, s28, 1")
    a("s_mul_i32 s32, s32, 28")
    a("s_lshl_b32 s33, s29, 1")
    a("s_add_u32 s32, s32, s33")
    a("s_lshl_b32 s32, s32, 1")
    a("s_and_b32 s33, s28, 1")
    a("s_add_u32 s32, s32, s33")
    a("s_lshl_b32 s32, s32, 10")
    a("s_add_u32 s32, s32, 0x%x", FO)
    add64(a, 32, 4, off_sgpr=32)
    for k in range(7):
        a("s_waitcnt vmcnt(%d)", [25, 25, 25, 25, 16, 8, 0][k])
        b = FRG + (k & 3) * 32
        for j in range(4):
            for c in range(4):
                d = vr(ACC + (j * 4 + c) * 4, 4)
                a("v_mfma_f32_16x16x32_f16 %s, %s, %s, %s", d, vr(b + 16 + 4 * c, 4), vr(b + 4 * j, 4), d if k else "0")
        if k + 4 < 7: ld(k + 4)
    a("s_barrier")
    a("s_lshl_b32 s34, s14, 14")
    a("v_add_u32 v8, s34, v2")
    for t in range(16):
        a("ds_write_b128 v8, %s offset:%d", vr(ACC + 4 * t, 4), t * 1024)
    a("s_lshl_b32 s34, s14, 11")
    a("v_add_u32 v8, s34, v2")
    a("v_add_u32 v9, 0x10000, v8")
    a("s_waitcnt lgkmcnt(0)")
    a("s_barrier")
    for s in range(8):
        for b in range(2):
            a("ds_read_b128 %s, v%d offset:%d", vr(FRG + (s * 2 + b) * 4, 4), 8 if s < 4 else 9, (s & 3) * 16384 + b * 1024)
    for d in range(4):
        a("v_lshlrev_b32 v%d, 16, v%d", ACC + 2 * d, 12 + d)
        a("v_and_b32 v%d, 0xffff0000, v%d", ACC + 2 * d + 1, 12 + d)
    for s in range(8):
        a("s_waitcnt lgkmcnt(%d)", 14 - 2 * s)
        for d in range(0, 8, 2):
            a("v_pk_add_f32 %s, %s, %s", vr(ACC + d, 2), vr(ACC + d, 2), vr(FRG + s * 8 + d, 2))
    a("global_store_dwordx4 v2, %s, s[32:33] sc1", vr(ACC, 4))
    a("global_store_dwordx4 v2, %s, s[32:33] offset:2048 sc1", vr(ACC + 4, 4))
    g2_cnt(a, 38, 21, 39)
    signal(a, 38)

def emit_g2_kernel(a):
    a.raw(".p2align 8")
    a.label("g2_kernel")
    a("s_cmp_ge_u32 s2, 224")
    a("s_cbranch_scc1 G2_end")
    main_prologue(a)
    a("s_mov_b32 s20, s2")
    emit_g2(a)
    a.label("G2_end")
    a("s_endpgm")
```

```python
from asmlib import *
from layout import *
import struct
def f32(x): return "0x%08x" % struct.unpack("<I", struct.pack("<f", x))[0]
SCALE = 1.4426950408889634 / 16.0

def add64(a, d, s, off_sgpr=None, imm=None):
    o = ("s%d" % off_sgpr) if off_sgpr is not None else ("0x%x" % imm)
    a("s_add_u32 s%d, s%d, %s", d, s, o)
    a("s_addc_u32 s%d, s%d, 0", d + 1, s + 1)

def transp_loads(a, dst, voff, sbase, rstride):
    for e in range(8):
        off = e * rstride
        if off < 4096:
            a("global_load_dwordx2 %s, v%d, %s offset:%d", vr(dst + 2 * e, 2), voff, sr(sbase, 2), off)
        else:
            raise ValueError
def transp_perm(a, out, src, sLo, sHi):
    for r in range(4):
        for jj in range(4):
            d0 = src + 2 * (2 * jj) + (r >> 1); d1 = src + 2 * (2 * jj + 1) + (r >> 1)
            a("v_perm_b32 v%d, v%d, v%d, s%d", out + 4 * r + jj, d1, d0, sHi if r & 1 else sLo)

def transp_cvt(a, out, src, tmp):
    for r in range(4):
        for jj in range(4):
            d0 = src + 2 * (2 * jj) + (r >> 1); d1 = src + 2 * (2 * jj + 1) + (r >> 1)
            t = tmp + 2 * (jj & 1)
            for k, d in enumerate((d0, d1)):
                if r & 1: a("v_and_b32 v%d, 0xffff0000, v%d", t + k, d)
                else: a("v_lshlrev_b32 v%d, 16, v%d", t + k, d)
            a("v_cvt_pk_f16_f32 v%d, v%d, v%d", out + 4 * r + jj, t, t + 1)

def emit_prep(a):
    a.raw(".p2align 8")
    a.label("prep_kernel")
    a("s_cmp_ge_u32 s2, 256")
    a("s_cbranch_scc1 P_end")
    a("s_load_dwordx2 s[4:5], s[0:1], 0")
    a("s_load_dwordx2 s[6:7], s[0:1], 16")
    a("s_load_dwordx2 s[8:9], s[0:1], 24")
    a("s_load_dwordx2 s[10:11], s[0:1], 32")
    a("s_load_dwordx2 s[12:13], s[0:1], 40")
    a("s_load_dwordx2 s[14:15], s[0:1], 64")
    a("s_load_dwordx2 s[16:17], s[0:1], 72")
    a("s_load_dwordx2 s[18:19], s[0:1], 96")
    a("v_lshrrev_b32 v1, 6, v0")
    a("v_and_b32 v2, 63, v0")
    a("v_readfirstlane_b32 s20, v1")
    a("v_lshrrev_b32 v3, 4, v2")
    a("v_and_b32 v4, 15, v2")
    a("v_lshlrev_b32 v5, 4, v2")
    a("s_mov_b32 s40, 0x05040100")
    a("s_mov_b32 s41, 0x07060302")
    a("s_and_b32 s21, s2, 7")
    a("s_lshr_b32 s22, s2, 3")
    a("s_cmp_ge_u32 s22, 28")
    a("s_cbranch_scc1 P_small")
    a("s_mul_i32 s23, s22, 37")
    a("s_lshr_b32 s23, s23, 8")
    a("s_mul_i32 s24, s23, 7")
    a("s_sub_u32 s24, s22, s24")
    a("s_lshl_b32 s25, s21, 2")
    a("s_add_u32 s25, s25, s23")
    a("s_lshr_b32 s26, s25, 4")
    a("s_and_b32 s27, s25, 15")
    a("v_lshrrev_b32 v6, 2, v4")
    a("v_lshlrev_b32 v6, 3, v6")
    a("v_and_b32 v7, 3, v4")
    a("v_add_u32 v6, v6, v7")
    a("v_lshlrev_b32 v6, 13, v6")
    a("v_lshl_add_u32 v6, v3, 4, v6")
    a("s_waitcnt lgkmcnt(0)")
    a("s_lshl_b32 s30, s27, 9")
    a("s_cmp_eq_u32 s26, 0")
    a("s_cselect_b32 s28, s10, s6")
    a("s_cselect_b32 s29, s11, s7")
    a("s_cbranch_scc1 P_stB")
    a("s_lshr_b32 s31, s20, 1")
    a("s_lshr_b32 s32, s31, 1")
    a("s_lshl_b32 s32, s32, 5")
    a("s_and_b32 s33, s31, 1")
    a("s_lshl_b32 s33, s33, 2")
    a("s_add_u32 s32, s32, s33")
    a("s_lshl_b32 s33, s24, 6")
    a("s_add_u32 s32, s32, s33")
    a("s_lshl_b32 s32, s32, 13")
    a("s_add_u32 s32, s32, s30")
    a("s_and_b32 s33, s20, 1")
    a("s_lshl_b32 s34, s33, 8")
    a("s_add_u32 s32, s32, s34")
    add64(a, 34, 8, off_sgpr=32)
    for k in range(4):
        a("global_load_dwordx4 %s, v6, s[34:35] offset:%d", vr(200 + 4 * k, 4), 64 * k)
    a("s_lshl_b32 s36, s20, 12")
    a("v_add_u32 v8, s36, v5")
    a("s_branch P_rows")
    a.label("P_stB")
    a("s_mul_i32 s32, s27, 229376")
    a("s_mul_i32 s33, s20, %d", 32 * 896)
    a("s_add_u32 s32, s32, s33")
    a("s_lshl_b32 s33, s24, 7")
    a("s_add_u32 s32, s32, s33")
    add64(a, 34, 12, off_sgpr=32)
    a("v_mul_u32_u24 v9, %d, v3", 8 * 896)
    a("v_lshl_add_u32 v9, v4, 3, v9")
    a("v_add_u32 v10, %d, v9", 4 * 896)
    for e in range(8):
        a("global_load_dwordx2 %s, v%d, s[34:35] offset:%d", vr(216 + 2 * e, 2), 9 if e < 4 else 10, (e & 3) * 896)
    a("v_lshrrev_b32 v8, 3, v4")
    a("v_lshlrev_b32 v8, 1, v8")
    a("v_and_b32 v11, 1, v4")
    a("v_add_u32 v8, v8, v11")
    a("v_lshlrev_b32 v8, 13, v8")
    a("v_bfe_u32 v11, v4, 1, 2")
    a("v_lshl_add_u32 v8, v11, 6, v8")
    a("v_lshl_add_u32 v8, v3, 8, v8")
    a("s_lshl_b32 s36, s20, 10")
    a("v_add_u32 v8, s36, v8")
    a.label("P_rows")
    a("s_cmp_eq_u32 s20, 7")
    a("s_cbranch_scc1 P_norows")
    a("s_lshl_b32 s32, s20, 19")
    a("s_add_u32 s32, s32, s30")
    add64(a, 36, 28, off_sgpr=32)
    for t in range(4):
        if t:
            a("s_add_u32 s36, s36, 0x%x", (4 * 8192) if t & 1 else (28 * 8192))
            a("s_addc_u32 s37, s37, 0")
        for kd_ in range(8):
            a("global_load_dwordx4 %s, v6, s[36:37] offset:%d", vr(64 + (t * 8 + kd_) * 4, 4), 64 * kd_)
    a("s_waitcnt vmcnt(32)")
    a("s_branch P_stage")
    a.label("P_norows")
    a("s_waitcnt vmcnt(0)")
    a.label("P_stage")
    a("s_cmp_eq_u32 s26, 0")
    a("s_cbranch_scc1 P_stB2")
    for k in range(4):
        a("ds_write_b128 v8, %s offset:%d", vr(200 + 4 * k, 4), 1024 * k)
    a("s_branch P_staged")
    a.label("P_stB2")
    transp_perm(a, 200, 216, 40, 41)
    for r in range(4):
        a("ds_write_b128 v8, %s offset:%d", vr(200 + 4 * r, 4), 16 * r)
    a.label("P_staged")
    a("s_waitcnt lgkmcnt(0)")
    a("s_barrier")
    a("s_cmp_eq_u32 s20, 7")
    a("s_cbranch_scc1 P_w7")
    ACC = 192; BFR = 16
    for i in range(64): a("v_mov_b32 v%d, 0", ACC + i)
    def rd(kd_):
        for ct in range(4):
            a("ds_read_b128 %s, v5 offset:%d", vr(BFR + (kd_ & 1) * 16 + ct * 4, 4), (ct * 8 + kd_) * 1024)
    rd(0)
    a("s_waitcnt vmcnt(0)")
    for kd_ in range(8):
        if kd_ < 7:
            rd(kd_ + 1); a("s_waitcnt lgkmcnt(4)")
        else: a("s_waitcnt lgkmcnt(0)")
        for ct in range(4):
            for t in range(4):
                d = ACC + (t * 4 + ct) * 4
                a("v_mfma_f32_16x16x32_bf16 %s, %s, %s, %s", vr(d, 4), vr(64 + (t * 8 + kd_) * 4, 4), vr(BFR + (kd_ & 1) * 16 + ct * 4, 4), vr(d, 4))
    a("s_cmp_eq_u32 s26, 0")
    a("s_cselect_b32 s38, 1.0, %s", f32(SCALE))
    a("s_lshl_b32 s33, s24, 2")
    a("s_mul_i32 s32, s27, 28")
    a("s_add_u32 s32, s32, s33")
    a("s_add_u32 s32, s32, 448")
    a("s_lshr_b32 s34, s27, 1")
    a("s_mul_i32 s34, s34, 28")
    a("s_add_u32 s34, s34, s33")
    a("s_lshl_b32 s34, s34, 1")
    a("s_and_b32 s33, s27, 1")
    a("s_add_u32 s34, s34, s33")
    a("s_movk_i32 s39, %d", 14 * 1024)
    a("s_cmp_eq_u32 s26, 0")
    a("s_cselect_b32 s32, s34, s32")
    a("s_cselect_b32 s39, %d, s39", 28 * 1024)
    a("s_mul_i32 s32, s32, 14")
    a("s_lshl_b32 s33, s20, 1")
    a("s_add_u32 s32, s32, s33")
    a("s_lshl_b32 s32, s32, 10")
    a("s_add_u32 s32, s32, 0x%x", WALL)
    add64(a, 36, 18, off_sgpr=32)
    for ct in range(4):
        if ct:
            a("s_add_u32 s36, s36, s39")
            a("s_addc_u32 s37, s37, 0")
        for ksl in range(2):
            o = 64 + (ct * 2 + ksl) * 4
            for b in range(2):
                d = ACC + ((ksl * 2 + b) * 4 + ct) * 4
                for r in range(4): a("v_mul_f32 v%d, s38, v%d", d + r, d + r)
                a("v_cvt_pk_f16_f32 v%d, v%d, v%d", o + 2 * b, d, d + 1)
                a("v_cvt_pk_f16_f32 v%d, v%d, v%d", o + 2 * b + 1, d + 2, d + 3)
            a("global_store_dwordx4 v5, %s, s[36:37] offset:%d", vr(o, 4), ksl * 1024)
    a("s_endpgm")
    a.label("P_w7")
    a("s_mul_i32 s44, s25, 7")
    a("s_add_u32 s44, s44, s24")
    a("s_branch P_wtask")
    a.label("P_small")
    a("s_lshl_b32 s23, s21, 2")
    a("s_add_u32 s23, s23, s22")
    a("s_sub_u32 s23, s23, 28")
    a("s_waitcnt lgkmcnt(0)")
    a("s_lshl_b32 s24, s23, 13")
    a("s_add_u32 s24, s24, 0x%x", MEMR)
    add64(a, 26, 18, off_sgpr=24)
    a("v_lshlrev_b32 v6, 4, v0")
    for r in range(4): a("v_mov_b32 v%d, -1", 8 + r)
    a("global_store_dwordx4 v6, v[8:11], s[26:27]")
    a("s_lshl_b32 s24, s23, 3")
    a("s_add_u32 s24, s24, s20")
    a("s_cmp_ge_u32 s24, 128")
    a("s_cbranch_scc1 P_w2")
    a("s_mul_i32 s25, s24, %d", 16 * 896)
    add64(a, 26, 4, off_sgpr=25)
    a("v_mul_u32_u24 v6, 896, v4")
    a("v_lshl_add_u32 v6, v3, 4, v6")
    X = 16
    for ks in range(14):
        a("global_load_dwordx4 %s, v6, s[26:27] offset:%d", vr(X + 4 * ks, 4), ks * 64)
    F = 80
    a("s_waitcnt vmcnt(0)")
    for d in range(56):
        a("v_lshlrev_b32 v%d, 16, v%d", F + 2 * d, X + d)
        a("v_and_b32 v%d, 0xffff0000, v%d", F + 2 * d + 1, X + d)
    def allred(acc, tmp):
        a("v_mov_b32 v%d, v%d", tmp, acc)
        a("v_permlane32_swap_b32 v%d, v%d", acc, tmp)
        a("v_add_f32 v%d, v%d, v%d", acc, acc, tmp)
        a("v_mov_b32 v%d, v%d", tmp, acc)
        a("v_permlane16_swap_b32 v%d, v%d", acc, tmp)
        a("v_add_f32 v%d, v%d, v%d", acc, acc, tmp)
    for q in range(4): a("v_mov_b32 v%d, v%d", 8 + q, F + q)
    for d in range(4, 112): a("v_add_f32 v%d, v%d, v%d", 8 + (d & 3), 8 + (d & 3), F + d)
    a("v_add_f32 v8, v8, v9"); a("v_add_f32 v10, v10, v11"); a("v_add_f32 v8, v8, v10")
    allred(8, 9)
    a("v_mul_f32 v12, %s, v8", f32(1.0 / 448))
    for d in range(112): a("v_sub_f32 v%d, v%d, v12", F + d, F + d)
    for q in range(4): a("v_mul_f32 v%d, v%d, v%d", 8 + q, F + q, F + q)
    for d in range(4, 112): a("v_fmac_f32 v%d, v%d, v%d", 8 + (d & 3), F + d, F + d)
    a("v_add_f32 v8, v8, v9"); a("v_add_f32 v10, v10, v11"); a("v_add_f32 v8, v8, v10")
    allred(8, 9)
    a("v_mov_b32 v9, %s", f32(1e-5))
    a("v_fmac_f32 v9, %s, v8", f32(1.0 / 448))
    a("v_sqrt_f32 v9, v9")
    a("v_rcp_f32 v9, v9")
    a("s_mul_i32 s25, s24, %d", 14 * 1024)
    a("s_add_u32 s25, s25, 0x%x", XF + 4096)
    add64(a, 26, 18, off_sgpr=25)
    for d in range(112): a("v_mul_f32 v%d, v%d, v9", F + d, F + d)
    for d in range(56): a("v_cvt_pk_f16_f32 v%d, v%d, v%d", X + d, F + 2 * d, F + 2 * d + 1)
    for ks in range(14):
        if ks == 8:
            a("s_add_u32 s26, s26, 8192"); a("s_addc_u32 s27, s27, 0")
        a("global_store_dwordx4 v5, %s, s[26:27] offset:%d", vr(X + 4 * ks, 4), (ks & 7) * 1024 - 4096)
    a("s_cmp_ge_u32 s24, 40")
    a("s_cbranch_scc1 P_end")
    a("s_add_u32 s44, s24, 352")
    a("s_branch P_wtask")
    a.label("P_w2")
    a("s_add_u32 s44, s24, 96")
    a.label("P_wtask")
    a("s_cmp_ge_u32 s44, 196")
    a("s_cselect_b32 s45, 196, 0")
    a("s_cselect_b32 s46, 1, 0")
    a("s_sub_u32 s44, s44, s45")
    a("s_mul_i32 s47, s44, 147")
    a("s_lshr_b32 s47, s47, 10")
    a("s_mul_i32 s48, s47, 7")
    a("s_sub_u32 s48, s44, s48")
    a("s_cmp_eq_u32 s46, 0")
    a("s_cselect_b32 s49, s48, s47")
    a("s_cselect_b32 s50, s47, s48")
    a("s_movk_i32 s51, 896")
    a("s_cselect_b32 s51, 3584, s51")
    a("s_cselect_b32 s52, s14, s16")
    a("s_cselect_b32 s53, s15, s17")
    a("s_cselect_b32 s54, 14, 56")
    a("s_mov_b32 s55, 0x%x", W2F)
    a("s_cselect_b32 s55, 0x%x, s55", W1F)
    a("s_mul_i32 s56, s49, s51")
    a("s_lshl_b32 s56, s56, 6")
    a("s_lshl_b32 s57, s50, 7")
    a("s_add_u32 s56, s56, s57")
    add64(a, 52, 52, off_sgpr=56)
    a("v_mul_lo_u32 v9, v3, s51")
    a("v_lshlrev_b32 v9, 3, v9")
    a("v_lshl_add_u32 v9, v4, 3, v9")
    for e in range(16):
        if e == 8:
            a("s_mul_i32 s56, s51, 24")
            add64(a, 52, 52, off_sgpr=56)
        a("global_load_dwordx2 %s, v9, s[52:53]", vr(16 + 2 * e, 2))
        add64(a, 52, 52, off_sgpr=51)
    a("v_lshrrev_b32 v8, 3, v4")
    a("v_lshlrev_b32 v8, 1, v8")
    a("v_and_b32 v11, 1, v4")
    a("v_add_u32 v8, v8, v11")
    a("v_mul_lo_u32 v8, v8, s54")
    a("v_lshlrev_b32 v8, 10, v8")
    a("v_bfe_u32 v11, v4, 1, 2")
    a("v_lshl_add_u32 v8, v11, 6, v8")
    a("v_lshl_add_u32 v8, v3, 8, v8")
    a("s_mul_i32 s56, s50, s54")
    a("s_lshl_b32 s56, s56, 2")
    a("s_lshl_b32 s57, s49, 1")
    a("s_add_u32 s56, s56, s57")
    a("s_lshl_b32 s56, s56, 10")
    a("s_add_u32 s56, s56, s55")
    add64(a, 58, 18, off_sgpr=56)
    for hlf in range(2):
        a("s_waitcnt vmcnt(%d)", 8 if hlf == 0 else 4)
        transp_cvt(a, 48 + 16 * hlf, 16 + 16 * hlf, 80)
        for r in range(4):
            a("global_store_dwordx4 v8, %s, s[58:59] offset:%d", vr(48 + 16 * hlf + 4 * r, 4), hlf * 1024 + 16 * r)
    a.label("P_end")
    a("s_endpgm")
```

```python
KB = 1024
FR = 1024
XF   = 0
XF_SZ = 128 * 14 * FR
WALL = XF + XF_SZ
WALL_SZ = 1008 * 14 * FR
BF = WALL
AF = WALL + 448 * 14 * FR
W1F = WALL + 896 * 14 * FR
W2F = WALL + WALL_SZ
W2F_SZ = 28 * 56 * FR
UF = W2F + W2F_SZ
UF_SZ = 64 * 28 * 16 * FR
QF = UF + UF_SZ
QF_SZ = 64 * 16 * 2 * 14 * FR
HF = QF + QF_SZ
HF_SZ = 128 * 56 * FR
FO = HF + HF_SZ
FO_SZ = 64 * 28 * 2 * FR
POIS = FO + FO_SZ
MEMX = POIS
MEMX_SZ = 64 * 8 * KB
TBX = MEMX + MEMX_SZ + 28 * 4 * KB
TBX_SZ = 64 * 28 * 8 * 512
MEMR = TBX + TBX_SZ
MEMR_STRIDE = 16 * KB
MEMR_SZ = 4 * MEMR_STRIDE
SR = MEMR + MEMR_SZ
SR_STRIDE = 24 * KB
SR_SZ = 4 * SR_STRIDE
MEMP = MEMR + 160 * KB
SHARD = MEMR + 200 * KB
ABF = MEMR + 384 * KB
RDY = MEMR + 400 * KB
LNF = MEMR + 404 * KB
UFL = MEMR + 256 * KB
POIS_END = MEMR + 512 * KB
AFL = MEMR + 424 * KB
AX = POIS_END + 4096 * KB
POIS_SZ = POIS_END - POIS
WS_SIZE = 268435456
if __name__ == "__main__":
    for k, v in list(globals().items()):
        if isinstance(v, int): print(k, v, hex(v))
```

```python
import sys; sys.path.insert(0,"gen")
import build, k1, g1, g2, ft, chain
kw = dict(p2=0,gpos=14,pdel=2,flag=3,nv=54,ns=(14,14,0,14))
out = sys.argv[1] if len(sys.argv) > 1 else "f5.s"
build.build(out, [("prep_kernel", k1.emit_prep, 256, 512, 32768), ("g1_kernel", g1.emit_g1_kernel, 224, 512, 86016),
  ("g2_kernel", g2.emit_g2_kernel, 224, 512, 131072),
  ("chain_kernel", lambda a: chain.emit_chain_kernel(a, 0, **kw), 256, 512, chain.CHAIN_LDS),
  ("f_kernel", ft.emit_f_kernel, 256, 512, 57344)])
```

```python
from common import *
L_MEMI = 0; L_TAI = 7168; L_RED = 11264; L_TB1 = 15360; L_TB2 = 19456; L_BW = 23552; BWSZ = 16384
CHAIN_LDS = L_BW + 7 * BWSZ
MFR = 16; ACC0 = 44; ACC1 = 48; STG = 52; EX = 68; BW = 96; AW = 144
VP = 0

class Prof:
    def __init__(self, a, on, step=40): self.a = a; self.on = on; self.step = step; self.names = ["top"] if on else []
    def __call__(self, name):
        if not self.on or (self.on in (1, 4) and name != "top"): return
        if self.on == 4:
            self.a("s_memtime s[64:65]"); self.a("s_memrealtime s[66:67]"); return
        if (self.on == 3) != name.startswith("a") and name not in ("top", "TA done", "bar2"): return
        if name not in self.names: self.names.append(name)
        k = self.names.index(name)
        assert k < 16
        self.a("s_memtime s[%d:%d]", 64 + 2 * k, 65 + 2 * k)
    def flush(self, n=16):
        if not self.on: return
        a = self.a
        if self.on == 4:
            a("s_bitcmp1_b32 s14, 0")
            a("s_cselect_b32 s64, s66, s64")
            a("s_mov_b32 m0, s24")
            a("v_writelane_b32 v%d, s64, m0", VP)
            return
        l = a.newlabel("PF")
        a("s_cmp_lg_u32 s24, %d", self.step + 1)
        a("s_cbranch_scc1 %s", l)
        for k in range(n): a("v_writelane_b32 v%d, s%d, %d", VP, 64 + 2 * k, k)
        a.label(l)
        for st, ln in ((10, 20), (60, 21)):
            l = a.newlabel("PF")
            a("s_cmp_lg_u32 s24, %d", st)
            a("s_cbranch_scc1 %s", l)
            a("v_writelane_b32 v%d, s64, %d", VP, ln)
            a.label(l)

class LQ:
    def __init__(self, a): self.a = a; self.q = []
    def issue(self, tag, txt, *args): self.a(txt, *args); self.q.append(tag)
    def wait(self, tag):
        if tag not in self.q: return
        last = max(k for k, t in enumerate(self.q) if t == tag)
        self.a("s_waitcnt lgkmcnt(%d)", len(self.q) - 1 - last)
        self.q = self.q[last + 1:]
    def all(self): self.a("s_waitcnt lgkmcnt(0)"); self.q = []

def interleave(a, b):
    a("v_swap_b32 v%d, v%d", b + 1, b + 4)
    a("v_swap_b32 v%d, v%d", b + 3, b + 5)
    a("v_swap_b32 v%d, v%d", b + 2, b + 4)
    a("v_swap_b32 v%d, v%d", b + 5, b + 6)

SM = "v_smfmac_f32_16x16x64_f16 %s, %s, %s, v5"
def emit_chain(a, prof=False, nv=64, ns=(0, 0, 0, 0), bpos=9, nb2=4, nb3=8, gpos=13, g2=1, pdel=1, p2=1, flag=1, fpos=5, dep=6, dep2=7, nb7=0, xp=0, abort="CH_abort", merged=False):
    P = Prof(a, prof)
    npf = nv + sum(ns)
    def spf(w):
        o = nv + sum(ns[:w - 4])
        for i in range(ns[w - 4]): a("s_load_dword s96, s[54:55], %d", (o + i) * 128)
    MODE = {"ST": "", "PX": ""}
    a.c("---- chain, role s20")
    a("s_lshr_b32 s21, s20, 1")
    a("s_and_b32 s22, s20, 1")
    a("s_cmp_lt_u32 s20, 28")
    a("s_cselect_b32 s23, 1, 0")
    a("s_mov_b32 s25, 0x100000")
    a("s_mov_b32 s46, 0x00ff00ff")
    a("s_mov_b32 s47, 0x00ff00ff")
    add64(a, 26, 4, imm=MEMR)
    add64(a, 28, 4, imm=SR)
    for r in (30, 32, 58): a("s_mov_b64 s[%d:%d], s[26:27]", r, r + 1)
    for r in (34, 36): a("s_mov_b64 s[%d:%d], s[28:29]", r, r + 1)
    a("s_and_b32 s60, s14, 3")
    a("s_lshr_b32 s61, s14, 2")
    a("s_xor_b32 s61, s61, s22")
    a("s_xor_b32 s61, s61, 1")
    for i in range(4): a("v_mov_b32 v%d, 0", BW + i)
    a("s_barrier")
    a("v_add_u32 v6, %d, v2", 14336)
    a("s_cmp_eq_u32 s14, 7")
    a("s_cbranch_scc1 CH_A1")
    a("s_mul_i32 s50, s20, 7")
    a("s_add_u32 s50, s50, s14")
    a("s_mul_i32 s50, s50, %d", 28 * 1024)
    a("s_add_u32 s50, s50, 0x%x", AF + 4096)
    a("s_mul_i32 s51, s61, 7168")
    a("s_add_u32 s52, s50, s51")
    a("s_sub_u32 s50, s50, s51")
    a("s_add_u32 s50, s50, 7168")
    add64(a, 50, 4, off_sgpr=50)
    add64(a, 52, 4, off_sgpr=52)
    for u in range(2):
        for k in range(7):
            for w in range(2):
                a("global_load_dwordx4 %s, v%d, s[%d:%d] offset:%d", vr(AW + (u * 7 + k) * 8 + w * 4, 4), 6 if w else 2, 50 + 2 * u, 51 + 2 * u, k * 1024 - 4096)
    a.label("CH_A1")
    a("s_mul_i32 s50, s14, %d", BWSZ)
    a("s_add_u32 s50, s50, %d", L_BW)
    a("v_add_u32 v15, s50, v2")
    a("s_cmp_eq_u32 s23, 0")
    a("s_cbranch_scc1 CH_noB")
    a("s_lshl_b32 s50, s22, 2")
    a("s_add_u32 s50, s50, s60")
    a("s_mul_i32 s50, s50, 14")
    a("s_add_u32 s50, s50, s21")
    a("s_mul_i32 s50, s50, %d", 56 * 1024)
    a("s_mul_i32 s51, s61, 7168")
    a("s_add_u32 s50, s50, s51")
    a("s_add_u32 s50, s50, 0x%x", BF + 4096)
    add64(a, 50, 4, off_sgpr=50)
    a("v_add_u32 v6, %d, v2", 14336)
    def breg(n): return BW + n * 8 if n < 6 else 16 + (n - 6) * 8
    for b in range(2):
        if b:
            a("s_add_u32 s50, s50, %d", 28 * 1024); a("s_addc_u32 s51, s51, 0")
        for k in range(7):
            for w in range(2):
                a("global_load_dwordx4 %s, v%d, s[50:51] offset:%d", vr(breg(2 * k + b) + w * 4, 4), 6 if w else 2, k * 1024 - 4096)
    a("s_waitcnt vmcnt(0)")
    for n in range(14): interleave(a, breg(n))
    a("s_cmp_eq_u32 s14, 7")
    a("s_cbranch_scc1 CH_B3")
    for n in range(6, 14):
        for hf in range(2):
            a("ds_write_b128 v15, %s offset:%d", vr(breg(n) + 4 * hf, 4), (n - 6) * 2048 + hf * 1024)
    a("s_branch CH_noB")
    a.label("CH_B3")
    for i in range(64): a("v_mov_b32 v%d, v%d", AW + i, 16 + i)
    a("s_branch CH_wdone")
    a.label("CH_noB")
    a("s_waitcnt vmcnt(0)")
    for k in range(14): interleave(a, AW + k * 8)
    a.label("CH_wdone")
    a("s_waitcnt lgkmcnt(0)")
    a("v_bfe_u32 v5, v4, 1, 1")
    a("v_mul_u32_u24 v5, 0xaaaa, v5")
    a("v_add_u32 v5, 0x4444, v5")
    a("v_lshrrev_b32 v6, 2, v4")
    a("v_lshlrev_b32 v6, 1, v6")
    a("v_and_b32 v7, 1, v4")
    a("v_add_u32 v6, v6, v7")
    a("v_lshlrev_b32 v6, 4, v6")
    a("v_lshl_add_u32 v6, v3, 7, v6")
    a("s_mul_i32 s50, s61, 3584")
    a("v_add_u32 v6, s50, v6")
    a("v_lshrrev_b32 v7, 2, v4")
    a("v_lshlrev_b32 v7, 7, v7")
    a("v_lshl_add_u32 v7, v3, 5, v7")
    a("v_and_b32 v8, 3, v4")
    a("v_lshl_add_u32 v7, v8, 2, v7")
    a("s_lshl_b32 s50, s14, 9")
    a("s_add_u32 s50, s50, %d", L_TAI)
    a("v_add_u32 v7, s50, v7")
    a("s_lshl_b32 s50, s60, 10")
    a("s_add_u32 s50, s50, %d", L_TB1)
    a("v_add_u32 v12, s50, v2")
    a("s_min_u32 s50, s14, 6")
    a("s_lshl_b32 s50, s50, 10")
    a("v_add_u32 v14, s50, v2")
    a("s_cmp_ge_u32 s14, 4")
    a("s_cbranch_scc1 CH_c4")
    a("s_lshr_b32 s50, s60, 1")
    a("s_lshl_b32 s50, s50, 10")
    a("s_and_b32 s51, s60, 1")
    a("s_lshl_b32 s51, s51, 3")
    a("s_add_u32 s50, s50, s51")
    a("s_add_u32 s50, s50, %d", L_TB2)
    a("v_add_u32 v8, s50, v2")
    a("s_lshl_b32 s50, s60, 10")
    a("s_add_u32 s50, s50, %d", L_RED)
    a("v_lshlrev_b32 v9, 2, v1")
    a("v_add_u32 v9, s50, v9")
    a("s_lshl_b32 s50, s22, 2")
    a("s_add_u32 s50, s50, s60")
    a("s_lshl_b32 s51, s50, 11")
    a("v_add_u32 v10, s51, v2")
    a("s_lshl_b32 s51, s50, 9")
    a("s_add_u32 s51, s51, 16384")
    a("v_lshlrev_b32 v11, 2, v1")
    a("v_add_u32 v11, s51, v11")
    a("s_lshl_b32 s50, s60, 12")
    a("v_add_u32 v13, s50, v2")
    a("s_branch CH_c5")
    a.label("CH_c4")
    a("v_mov_b32 v11, 0")
    a("v_and_b32 v16, 7, v4")
    a("s_cmp_eq_u32 s14, 5")
    a("s_cselect_b64 vcc, -1, 0")
    a("v_lshlrev_b32 v8, 4, v16")
    a("v_lshl_add_u32 v17, v3, 7, v8")
    a("v_and_b32 v18, 1, v3")
    a("v_lshl_add_u32 v8, v18, 8, v8")
    a("v_lshrrev_b32 v18, 1, v3")
    a("v_lshl_add_u32 v8, v18, 3, v8")
    a("v_cndmask_b32 v8, v17, v8")
    a("v_add_u32 v8, %d, v8", L_TAI)
    a("v_lshrrev_b32 v17, 1, v16")
    a("v_lshlrev_b32 v17, 2, v17")
    a("v_and_b32 v18, 1, v16")
    a("v_add_u32 v17, v17, v18")
    a("s_and_b32 s50, s21, 1")
    a("s_lshl_b32 s50, s50, 1")
    a("v_add_u32 v17, s50, v17")
    a("s_lshr_b32 s50, s21, 1")
    a("s_lshl_b32 s50, s50, 1")
    a("s_add_u32 s50, s50, s22")
    a("s_lshl_b32 s51, s50, 10")
    a("s_sub_u32 s52, 7, s14")
    a("s_lshl_b32 s52, s52, 9")
    a("s_add_u32 s51, s51, s52")
    a("v_lshlrev_b32 v9, 4, v17")
    a("v_lshrrev_b32 v18, 1, v3")
    a("v_lshl_add_u32 v9, v18, 8, v9")
    a("v_and_b32 v18, 1, v3")
    a("v_lshl_add_u32 v9, v18, 3, v9")
    a("v_add_u32 v9, s51, v9")
    a("s_lshl_b32 s51, s50, 8")
    a("s_add_u32 s51, s51, 16384")
    a("v_lshl_add_u32 v17, v3, 4, v17")
    a("v_lshlrev_b32 v18, 2, v17")
    a("v_add_u32 v18, s51, v18")
    a("v_cndmask_b32 v9, v9, v18")
    a("v_bfe_u32 v13, v1, 1, 1")
    a("v_lshlrev_b32 v13, 7, v13")
    a("v_and_b32 v16, 1, v1")
    a("v_lshl_add_u32 v13, v16, 3, v13")
    a("v_bfe_u32 v16, v1, 2, 2")
    a("v_lshl_add_u32 v13, v16, 5, v13")
    a("v_lshrrev_b32 v16, 5, v1")
    a("v_lshl_add_u32 v13, v16, 4, v13")
    a("v_bfe_u32 v16, v1, 4, 1")
    a("v_lshl_add_u32 v13, v16, 8, v13")
    a("s_mul_i32 s50, s22, 7168")
    a("s_lshl_b32 s51, s21, 9")
    a("s_add_u32 s50, s50, s51")
    a("v_add_u32 v13, s50, v13")
    a("v_min_u32 v10, %d, v1", max(nv - 1, 0))
    a("v_lshlrev_b32 v10, 7, v10")
    a("v_add_u32 v16, 2048, v8")
    a("v_cndmask_b32 v10, v10, v16")
    a.label("CH_c5")
    a("s_mul_i32 s50, s61, 7168")
    a("s_sub_u32 s50, 3584, s50")
    a("v_add_u32 v3, s50, v6")
    a("s_lshl_b32 s50, s20, 7")
    a("s_add_u32 s50, s50, %d", 192 * 1024)
    a("v_mov_b32 v4, s50")
    a("s_mul_i32 s50, s20, 5120")
    add64(a, 50, 26, off_sgpr=50)
    a("v_min_u32 v30, 39, v1")
    a("v_lshlrev_b32 v30, 7, v30")
    a("global_load_dword v31, v30, s[50:51] sc1")
    a("s_mul_i32 s42, s22, 7168")
    a("s_and_b32 s43, s14, 1")
    a("s_xor_b32 s43, s43, 1")
    a("s_mul_i32 s43, s43, 14336")
    a("s_add_u32 s42, s42, s43")
    a("s_add_u32 s42, s42, 0x%x", XF + 4096)
    add64(a, 42, 4, off_sgpr=42)
    a("s_sub_u32 s44, s20, 28")
    a("s_max_i32 s44, s44, 0")
    a("s_mul_i32 s44, s44, 7168")
    a("s_add_u32 s44, s44, 0x%x", XF + 2 * 28 * 1024)
    add64(a, 44, 4, off_sgpr=44)
    a("s_mov_b32 s24, 0")
    a("s_mov_b64 s[62:63], 0")
    a("s_min_u32 s38, s20, 27")
    a("s_mul_i32 s38, s38, %d", 16 * 1024)
    a("s_add_u32 s38, s38, 0x%x", UF)
    add64(a, 38, 4, off_sgpr=38)
    a("s_lshl_b32 s40, s21, 13")
    a("s_lshl_b32 s41, s22, 11")
    a("s_add_u32 s40, s40, s41")
    a("s_add_u32 s40, s40, 0x%x", TBX - 28 * 4096 + 2048)
    add64(a, 40, 4, off_sgpr=40)
    add64(a, 48, 4, imm=MEMX)
    a("s_mov_b64 s[54:55], s[38:39]")
    a("s_sub_u32 s56, s20, 28")
    a("s_max_i32 s56, s56, 0")
    a("s_mul_i32 s56, s56, %d", 7 * 16384)
    a("s_add_u32 s56, s56, 0x%x", UF + 2 * 28 * 16 * 1024)
    add64(a, 56, 4, off_sgpr=56)
    a("s_cmp_lg_u32 s23, 0")
    a("s_cbranch_scc1 CH_hs")
    NL = max(128 - npf, 1); NHP = (7 * NL + 319) // 320
    a("s_and_b32 s50, s20, 1")
    a("s_lshl_b32 s50, s50, 2")
    a("s_add_u32 s50, s50, s60")
    a("s_min_u32 s50, s50, 6")
    a("s_lshl_b32 s50, s50, 10")
    a("v_lshrrev_b32 v4, 5, v1")
    a("v_lshlrev_b32 v4, 9, v4")
    a("v_bfe_u32 v16, v1, 4, 1")
    a("v_lshl_add_u32 v4, v16, 7, v4")
    a("v_and_b32 v16, 7, v1")
    a("v_lshl_add_u32 v4, v16, 4, v4")
    a("v_bfe_u32 v16, v1, 3, 1")
    a("v_lshl_add_u32 v4, v16, 3, v4")
    a("v_add_u32 v4, s50, v4")
    a("v_add_u32 v13, s50, v2")
    a("s_sub_u32 s50, s20, 28")
    a("s_lshl_b32 s50, s50, 7")
    a("s_add_u32 s50, s50, %d", 192 * 1024)
    a("v_mov_b32 v11, s50")
    a("s_cmp_lg_u32 s14, 7")
    a("s_cbranch_scc1 CH_h7")
    a("v_min_u32 v10, 55, v1")
    a("v_lshlrev_b32 v10, 7, v10")
    a.label("CH_h7")
    for i in range(NHP):
        a("s_min_u32 s50, s14, 4")
        a("s_add_u32 s50, s50, %d", 5 * i)
        a("s_lshl_b32 s50, s50, 6")
        a("v_add_u32 v16, s50, v1")
        a("v_min_u32 v16, %d, v16", 7 * NL - 1)
        a("v_cvt_f32_u32 v17, v16")
        a("v_add_f32 v17, 0.5, v17")
        a("v_mul_f32 v17, %s, v17", f32(1.0 / NL))
        a("v_cvt_u32_f32 v17, v17")
        a("v_mul_u32_u24 v18, %d, v17", NL)
        a("v_sub_u32 v16, v16, v18")
        a("v_add_u32 v16, %d, v16", 128 - NL)
        a("v_lshlrev_b32 v16, 7, v16")
        a("v_lshl_add_u32 v%d, v17, 14, v16", BW + i)
    a.label("CH_hs")
    XR = EX; UR = EX; GX = EX + 16; GM = EX + 24
    def xload():
        for k in range(7):
            a("global_load_dwordx4 %s, v2, s[42:43] offset:%d sc1", vr(XR + 4 * k, 4), k * 1024 - 4096)
    a("s_cmp_eq_u32 s14, 7")
    a("s_cbranch_scc1 CH_m0d")
    a("v_bfe_u32 v16, v14, 4, 3")
    a("v_mul_u32_u24 v16, 896, v16")
    a("v_lshrrev_b32 v17, 9, v14")
    a("v_lshl_add_u32 v16, v17, 6, v16")
    a("v_bfe_u32 v17, v14, 7, 1")
    a("v_lshl_add_u32 v16, v17, 5, v16")
    a("v_bfe_u32 v17, v14, 8, 1")
    a("v_lshl_add_u32 v16, v17, 3, v16")
    a("global_load_dwordx2 v[20:21], v16, s[12:13]")
    a("global_load_dwordx2 v[22:23], v16, s[12:13] offset:16")
    a("s_waitcnt vmcnt(0)")
    for d in range(4):
        a("v_lshlrev_b32 v24, 16, v%d", 20 + d)
        a("v_and_b32 v25, 0xffff0000, v%d", 20 + d)
        a("v_cvt_pk_f16_f32 v%d, v24, v25", 20 + d)
    a("ds_write_b128 v14, v[20:23]")
    a.label("CH_m0d")
    a("s_cmp_lt_u32 s14, 6")
    a("s_cbranch_scc1 CH_x0")
    xload()
    a.label("CH_x0")
    a("v_mov_b32 v0, 0")
    a("s_waitcnt vmcnt(0) lgkmcnt(0)")
    a("s_mov_b32 s97, 0")
    if merged:
        a("s_lshl_b32 s50, s14, 10")
        wait_ufl(a, 50, abort, t=MFR)
        a("v_mov_b32 v16, %d", C_TICKET * 4)
        a.label("CH_t0")
        a("global_load_dword v17, v16, s[10:11] sc1")
        a("s_sub_u32 s25, s25, 1")
        a("s_cbranch_scc1 %s", abort)
        a("s_waitcnt vmcnt(0)")
        a("v_readfirstlane_b32 s97, v17")
        a("s_and_b32 s50, s97, 0xffff")
        a("s_cmp_lt_u32 s50, 32")
        a("s_cbranch_scc1 CH_t0")
        a("s_lshr_b32 s97, s97, 16")
        add64(a, 52, 4, imm=UFL)
        a("v_min_u32 v%d, 55, v1", STG + 8)
        a("v_lshlrev_b32 v%d, 4, v%d", STG + 8, STG + 8)
        for i in range(8): a("v_mov_b32 v%d, 0", STG + i)
    def slotptr(d, base, delta, stride):
        a("s_add_u32 s50, s24, %d", delta)
        a("s_and_b32 s50, s50, 3")
        a("s_mul_i32 s50, s50, %d", stride)
        add64(a, d, base, off_sgpr=50)
    def adv(r, n):
        if (xp & 1) and r in (38, 42, 44, 54, 56): return
        a("s_add_u32 s%d, s%d, %d", r, r, n); a("s_addc_u32 s%d, s%d, 0", r + 1, r + 1)
    def ptrs(w, first=False):
        if w != 4: slotptr(34, 28, 0, SR_STRIDE)
        if w >= 5: slotptr(36, 28, 3, SR_STRIDE)
        slotptr(30, 26, 1, MEMR_STRIDE)
        if w == 6: slotptr(32, 26, 3, MEMR_STRIDE)
        if w >= 6: adv(42, 28 * 1024)
        if w >= 4: adv(54, 28 * 16384)
        if first: return
        if w < 4: adv(38, 28 * 16384); adv(48, 8192)
        if w == 7: adv(40, 28 * 4096); adv(44, 28 * 1024)
        if w <= 4: adv(56, 28 * 16384)
    G1 = (GX, GX + 4, GM, GM + 1); G2 = (MFR + 24, STG + 12, EX + 26, EX + 27)
    def gather(G=G1):
        a("global_load_dwordx4 %s, v10, s[34:35] sc1", vr(G[0], 4))
        a("global_load_dwordx4 %s, v10, s[34:35] offset:1024 sc1", vr(G[1], 4))
        a("global_load_dword v%d, v11, s[34:35] sc1", G[2])
        a("global_load_dword v%d, v11, s[34:35] offset:256 sc1", G[3])
    def zero(r, n=4):
        for i in range(n): a("v_mov_b32 v%d, 0", r + i)
    def memx():
        a("ds_read2_b64 %s, v4 offset0:0 offset1:32", vr(STG, 4))
        a("s_waitcnt lgkmcnt(0)")
        a("global_store_dwordx4 v13, %s, s[48:49] sc1", vr(STG, 4))
    def tbx_read(d):
        for k in range(4):
            a("ds_read_b128 %s, v2 offset:%d", vr(d + 4 * k, 4), L_TB2 + k * 1024)
    def tbx_store(d):
        for k in range(4):
            a("global_store_dwordx4 v2, %s, s[40:41] offset:%d sc1", vr(d + 4 * k, 4), (k >> 1) * 4096 + (k & 1) * 1024 - 2048)

    class TB:
        def __init__(self, w, q):
            self.w = w; self.q = q
            self.loc = {n: BW + 8 * n for n in range(6)}
            if w == 7:
                for n in range(6, 14): self.loc[n] = AW + 8 * (n - 6)
                self.pend = []; self.order = list(range(14))
            else:
                self.pend = list(range(6, 14))
                self.order = [6, 0, 7, 1, 8, 2, 9, 3, 10, 4, 11, 5, 12, 13]
            self.lds = set(self.pend); self.pos = 0
        def stage(self, slot):
            if not self.pend: return
            n = self.pend.pop(0); self.loc[n] = slot
            for hf in range(2):
                self.q.issue(("B", n), "ds_read_b128 %s, v15 offset:%d", vr(slot + 4 * hf, 4), (n - 6) * 2048 + hf * 1024)
        def late(self):
            self.order = [0, 1, 2, 6, 3, 7, 4, 8, 5, 9, 10, 11, 12, 13]
        def run(self, upto, hooks={}):
            while self.pos < upto:
                n = self.order[self.pos]
                self.q.wait(("M", n >> 1))
                if n in self.lds: self.q.wait(("B", n))
                a(SM, vr(ACC1 if n & 1 else ACC0, 4), vr(MFR + 4 * (n >> 1), 4), vr(self.loc[n], 8))
                if n in self.lds: self.stage(self.loc[n])
                if self.pos in hooks: hooks[self.pos]()
                self.pos += 1
    TBO = MFR; TPR = MFR + 8; PX = MFR + 12; PM = MFR + 16; T0 = MFR + 18; T1 = MFR + 19; RZ = MFR + 20
    ONE = STG; ZA = STG + 8
    def tb_cvt(d):
        for b, acc in enumerate((ACC0, ACC1)):
            a("v_cvt_pk_f16_f32 v%d, v%d, v%d", d + 2 * b, acc, acc + 1)
            a("v_cvt_pk_f16_f32 v%d, v%d, v%d", d + 2 * b + 1, acc + 2, acc + 3)
    def tb_give(d=TBO):
        tb_cvt(d)
        a("ds_write_b128 v12, %s", vr(d, 4))
        a("s_waitcnt lgkmcnt(0)")
        P("TB done")
    def tb_take1():
        a("s_barrier")
        a("ds_read_b128 %s, v12", vr(TPR, 4))
    def tb_take2():
        a("s_waitcnt lgkmcnt(0)")
        for d in range(4): a("v_pk_add_f16 v%d, v%d, v%d", TBO + d, TBO + d, TPR + d)
    def tb_take3():
        for b in range(2): a("ds_write_b64 v8, %s offset:%d", vr(TBO + 2 * b, 2), b * 2048)
    def mread(q, n):
        q.issue(("O", n) if n < 7 else ("M", n - 7), "ds_read_b128 %s, v%d offset:%d", vr(MFR + 4 * (n % 7), 4), 3 if n < 7 else 6, (n % 7) * 512)

    FLG = 192 * 1024
    class _N:
        def __call__(self, *x): pass
    def wave_loop(w, hp):
        pv = w < 4; N = MODE["PX"] + ("H%d" if hp else "C%d") % w
        ST = MODE["ST"]
        uchk = merged and hp and w == 4
        def ufl_ld(delta):
            a("s_add_u32 s50, s24, %d", delta)
            a("s_min_u32 s50, s50, 63")
            a("s_lshl_b32 s50, s50, 11")
            add64(a, 50, 52, off_sgpr=50)
            for k in range(2): a("global_load_dwordx4 %s, v%d, s[50:51] offset:%d sc1", vr(STG + 4 * k, 4), STG + 8, 1024 * k)
        TA = GX if pv else ACC0
        W7 = AW + 64
        r = {7: W7}.get(w, EX); r2 = r + 8; t = MFR
        pol = w != 6
        tail = []
        def poll(r):
            a("global_load_dwordx4 %s, v14, s[58:59] offset:-3584 sc1", vr(r, 4))
            a("global_load_dwordx4 %s, v14, s[58:59] offset:3584 sc1", vr(r + 4, 4))
        def newtb(q0, q):
            if hp: return None
            tb = TB(w, q0)
            if w < 6: tb.stage(STG); tb.stage(STG + 8)
            tb.q = q
            return tb
        def pre():
            newtb(LQ(a), None)
            if w != 7: zero(TA)
            if (pv or w == 7) and not hp: zero(ACC0); zero(ACC1)
            a("s_setprio 1")
        def mchk(x, lab):
            for d in range(4): a("v_pk_add_f16 v%d, v%d, v%d", t + d, x + d, x + 4 + d)
            a("ds_write_b128 v14, %s", vr(t, 4))
            a("v_pk_maximum3_f16 v%d, v%d, v%d, v%d", t + 4, t, t + 1, t + 2)
            a("v_pk_maximum3_f16 v%d, v%d, v%d, v%d", t + 4, t + 4, t + 3, t + 3)
            a("v_cmp_u_f16 vcc, v%d, v%d", t + 4, t + 4)
            a("s_cbranch_vccnz %s", lab)
        a.label(N + "_entry")
        ptrs(w, True)
        pre()
        a("s_branch %s_top", N)
        a.raw(".p2align 6")
        a.label(N + "_loop")
        if pol:
            a("s_waitcnt vmcnt(%d)", 2 if p2 else 0)
            mchk(r, N + "_mre")
            def mre():
                a.label(N + "_mre")
                poll(r)
                P("M re")
                if prof: a("s_add_u32 s62, s62, 1")
                a("s_sub_u32 s25, s25, 1")
                a("s_cbranch_scc1 %s", abort)
                if p2:
                    a("s_waitcnt vmcnt(2) lgkmcnt(0)")
                    mchk(r2, N + "_mre2")
                    a("s_branch %s_got", N)
                    a.label(N + "_mre2")
                    poll(r2)
                a("s_waitcnt lgkmcnt(0)")
                a("s_branch %s_loop", N)
            tail.append(mre)
        else:
            a("s_waitcnt vmcnt(0)")
        a.label(N + "_got")
        P("mem got")
        a.label(N + "_top")
        a("s_cmp_eq_u32 s24, 63")
        a("s_waitcnt lgkmcnt(0)")
        a("s_barrier")
        P("top")
        a("s_cbranch_scc1 %s_fin", N)
        q = LQ(a)
        tb = newtb(LQ(_N()), q)
        if w != 7:
            dp = dep if pv else dep2
            for n in range(dp): mread(q, n)
            for n in range(14):
                if n == 0: P("a pre")
                q.wait(("O", n) if n < 7 else ("M", n - 7))
                a(SM, vr(TA, 4), vr(MFR + 4 * (n % 7), 4), vr(AW + n * 8, 8))
                if n in (0, 2, 4, 6, 8, 10, 13): P("a%d" % n)
                if n + dp < 14: mread(q, n + dp)
            if pv and not hp:
                for k in range(2): a("global_load_dwordx4 %s, v13, s[38:39] offset:%d sc1", vr(UR + 4 * k, 4), k * 1024)
            a("v_cvt_pk_f16_f32 v%d, v%d, v%d", TA, TA, TA + 2)
            a("v_cvt_pk_f16_f32 v%d, v%d, v%d", TA + 1, TA + 1, TA + 3)
            q.issue("T", "ds_write2_b32 v7, v%d, v%d offset0:0 offset1:4", TA, TA + 1)
            if pv:
                a("s_setprio 0")
                if hp:
                    if not (xp & 2): memx()
                else:
                    for k in range(2, 4): a("global_load_dwordx4 %s, v13, s[38:39] offset:%d sc1", vr(UR + 4 * k, 4), k * 1024)
                    tb.run(nb2)
            if uchk:
                a.label(N + "_uc")
                a("v_or3_b32 v%d, v%d, v%d, v%d", STG, STG, STG + 1, STG + 2)
                a("v_or3_b32 v%d, v%d, v%d, v%d", STG + 3, STG + 3, STG + 4, STG + 5)
                a("v_or3_b32 v%d, v%d, v%d, v%d", STG, STG, STG + 6, STG + 7)
                a("v_or_b32 v%d, v%d, v%d", STG, STG, STG + 3)
                a("v_cmp_ne_u32 vcc, 0, v%d", STG)
                a("s_cbranch_vccnz %s_ure", N)
                def ure():
                    a.label(N + "_ure")
                    ufl_ld(3)
                    a("s_sub_u32 s25, s25, 1")
                    a("s_cbranch_scc1 %s", abort)
                    a("s_waitcnt vmcnt(0)")
                    a("s_branch %s_uc", N)
                tail.append(ure)
            q.wait("T")
            if w == 5: a("s_waitcnt vmcnt(0)")
        elif hp:
            a("global_load_dword v%d, v10, s[44:45] sc1", BW + 28)
        else:
            a("s_setprio 0")
            if nv > 0: a("global_load_dword v4, v10, s[54:55] sc1")
            tbx_read(STG)
            a("s_waitcnt lgkmcnt(0)")
            if not (xp & 2): tbx_store(STG)
            for n in range(7, 14): mread(q, n)
            tb.run(nb7)
        P("TA done")
        a("s_barrier")
        P("bar2")
        def pubS():
            a("s_barrier")
            P("pubS")
        def gath():
            P("G iss")
            gather()
        if w >= 5:
            a("s_setprio 3")
            ring = {5: [EX + 4 * k for k in range(7)], 6: [STG, STG + 4, STG + 8, STG + 12, ACC1], 7: [W7 + 16 + 4 * k for k in range(7)]}[w]
            SA = W7 + 44 if w == 7 else ACC0
            D = len(ring)
            def trd(k):
                if w == 5: q.issue(("S", k), "ds_read2_b64 %s, v%d offset0:%d offset1:%d", vr(ring[k], 4), 8 if k < 4 else 10, (k & 3) * 64, (k & 3) * 64 + 16)
                else: q.issue(("S", k), "ds_read_b128 %s, v8 offset:%d", vr(ring[k % D], 4), k * 512)
            for k in range(min(D, 7)): trd(k)
            for k in range(7):
                q.wait(("S", k))
                a("v_mfma_f32_16x16x32_f16 %s, %s, %s, %s", vr(SA, 4), vr((MFR if w == 5 else XR) + 4 * k, 4), vr(ring[k % D], 4), vr(SA, 4) if k else "0")
                if k + D < 7: trd(k + D)
            o = ring[2]
            a("s_mov_b64 exec, s[46:47]")
            a("v_mov_b32 v%d, -1", o + 2)
            if w == 5:
                a("v_cvt_pk_f16_f32 v%d, v%d, v%d", o, ACC0, ACC0 + 1)
                a("global_store_dword v9, v%d, s[34:35] %s", o, ST)
                a("global_store_dword v9, v%d, s[36:37] %s", o + 2, ST)
            else:
                a("v_mov_b32 v%d, -1", o + 3)
                a("v_cvt_pk_f16_f32 v%d, v%d, v%d", o, SA, SA + 1)
                a("v_cvt_pk_f16_f32 v%d, v%d, v%d", o + 1, SA + 2, SA + 3)
                a("global_store_dwordx2 v9, %s, s[34:35] %s", vr(o, 2), ST)
                a("global_store_dwordx2 v9, %s, s[36:37] %s", vr(o + 2, 2), ST)
            a("s_mov_b64 exec, -1")
            a("s_setprio 0")
            P("S pub")
            pubS()
            if not hp:
                if w == 6: tb.stage(STG)
                if w < 7: zero(ACC0); zero(ACC1)
                if w == 6:
                    tb.late()
                    tb.stage(STG + 8)
                tb.run(14)
                tb_give()
                a("s_barrier")
                if w >= 6: xload()
                if w != 6: spf(w)
        elif hp:
            if w == 4: a("s_setprio 0")
            pubS()
        elif pv: tb.run(nb3); pubS(); tb.run(14, {gpos: gath})
        else:
            a("s_setprio 0")
            zero(ACC0); zero(ACC1)
            tb.run(14, {bpos: pubS})
            tb_give()
            spf(4)
            a("s_barrier")
        if hp:
            if w <= 4:
                for i in range(NHP): a("global_load_dword v%d, v%d, s[56:57] sc1", EX + i, BW + i)
                if uchk: ufl_ld(4)
            elif w >= 6: xload()
            elif flag:
                for i in range(flag - 1): a("global_load_dword v%d, v11, s[26:27] sc1", EX + i)
                a.label(N + "_fl")
                a("s_sub_u32 s25, s25, 1")
                a("s_cbranch_scc1 %s", abort)
                for i in range(flag):
                    a("global_load_dword v%d, v11, s[26:27] sc1", EX + (i + flag - 1) % flag)
                    a("s_waitcnt vmcnt(%d)", flag - 1)
                    a("v_cmp_gt_i32 vcc, s24, v%d", EX + i)
                    if i < flag - 1: a("s_cbranch_vccz %s_fd", N)
                    else: a("s_cbranch_vccnz %s_fl", N)
                a.label(N + "_fd")
            if flag: a("s_barrier")
        if pv and not hp:
            for i in range(8): a("v_mov_b32 v%d, 0x3c003c00", ONE + i)
            zero(ZA)
            if gpos == 14: gath()
            tb_cvt(TBO)
            zero(TBO + 4, 2); zero(PM + 1, 1)
            zero(ACC0); zero(ACC1)
            if w == 3: a("v_mov_b32 v%d, s24", RZ)
            if gpos == 15: gath()
            if g2: gather(G2)
            P("II")
            def gchk(G, lab):
                for d in range(4): a("v_pk_add_f16 v%d, v%d, v%d", PX + d, G[0] + d, G[1] + d)
                a("v_pk_add_f16 v%d, v%d, v%d", PM, G[2], G[3])
                a("v_pk_maximum3_f16 v%d, v%d, v%d, v%d", T0, PX, PX + 1, PX + 2)
                a("v_pk_maximum3_f16 v%d, v%d, v%d, v%d", T0, T0, PX + 3, PM)
                a("v_pk_maximum3_f16 v%d, v%d, v%d, v%d op_sel:[0,1,0] op_sel_hi:[1,0,1]", T0, T0, T0, T0)
                a("v_mov_b32 v%d, v%d", T1, T0)
                a("v_cmp_u_f16 vcc, v%d, v%d", T0, T0)
                a("v_permlane32_swap_b32 v%d, v%d", T0, T1)
                a("v_pk_max_f16 v%d, v%d, v%d", T0, T0, T1)
                a("v_mov_b32 v%d, v%d", T1, T0)
                a("s_cbranch_vccnz %s", lab)
            a.label(N + "_sp")
            a("s_waitcnt vmcnt(%d)", 4 if g2 else 0)
            gchk(G1, N + "_gre")
            def gre():
                a.label(N + "_gre")
                P("G re")
                if prof: a("s_add_u32 s63, s63, 1")
                gather()
                a("s_sub_u32 s25, s25, 1")
                a("s_cbranch_scc1 %s", abort)
                if g2:
                    a("s_waitcnt vmcnt(4)")
                    gchk(G2, N + "_gre2")
                    a("s_branch %s_sok", N)
                    a.label(N + "_gre2")
                    gather(G2)
                a("s_branch %s_sp", N)
            tail.append(gre)
            a.label(N + "_sok")
            P("S got")
            a("v_permlane16_swap_b32 v%d, v%d", T0, T1)
            a("v_pk_max_f16 v%d, v%d, v%d", T0, T0, T1)
            for x in (PM, PX, PX + 1, PX + 2, PX + 3):
                a("v_pk_add_f16 v%d, v%d, v%d neg_lo:[0,1] neg_hi:[0,1]", x, x, T0)
            nex = [0]
            def ex(x, hi):
                a("v_exp_f16_sdwa v%d, v%d dst_sel:WORD_%d dst_unused:UNUSED_PRESERVE src0_sel:WORD_%d", x, x, hi, hi)
                if w == 3 and flag and nex[0] == fpos: a("global_store_dword v4, v%d, s[26:27] %s", RZ, ST)
                nex[0] += 1
            S2 = "v_smfmac_f32_16x16x32_f16 %s, %s, %s, v5"
            ex(PM, 0); ex(PX, 0)
            tb_take1()
            P("bar3")
            ex(PM, 1); ex(PX + 1, 0); ex(PX, 1)
            a(S2, vr(ZA, 4), vr(PM, 2), vr(ONE, 4))
            ex(PX + 2, 0); ex(PX + 1, 1); ex(PX + 3, 0); ex(PX + 2, 1); ex(PX + 3, 1)
            a(SM, vr(ZA, 4), vr(PX, 4), vr(ONE, 8))
            a(SM, vr(ACC0, 4), vr(PX, 4), vr(UR, 8))
            a(SM, vr(ACC1, 4), vr(PX, 4), vr(UR + 8, 8))
            tb_take2()
            a(S2, vr(ACC0, 4), vr(PM, 2), vr(TBO, 4))
            a(S2, vr(ACC1, 4), vr(PM, 2), vr(TBO + 2, 4))
            for i in range(4): a("v_rcp_f32 v%d, v%d", RZ + i, ZA + i)
            for b, acc in enumerate((ACC0, ACC1)):
                a("v_pk_mul_f32 %s, %s, %s", vr(acc, 2), vr(acc, 2), vr(RZ, 2))
                a("v_pk_fma_f32 %s, %s, %s, %s", vr(acc, 2), vr(acc + 2, 2), vr(RZ + 2, 2), vr(acc, 2))
                a("ds_write2st64_b32 v9, v%d, v%d offset0:%d offset1:%d", acc, acc + 1, b, 2 + b)
            tb_take3()
            a("s_waitcnt lgkmcnt(2)")
            P("red wr")
        if not hp:
            a("s_barrier")
            if w == 6:
                R = MFR
                for k in range(4): a("ds_read_b128 %s, v2 offset:%d", vr(R + 4 * k, 4), L_RED + k * 1024)
                a("v_mov_b32 v%d, -1", R + 16)
                a("v_mov_b32 v%d, -1", R + 17)
                a("s_waitcnt lgkmcnt(2)")
                for d in (0, 2): a("v_pk_add_f32 %s, %s, %s", vr(R + d, 2), vr(R + d, 2), vr(R + 4 + d, 2))
                a("s_waitcnt lgkmcnt(1)")
                for d in (0, 2): a("v_pk_add_f32 %s, %s, %s", vr(R + d, 2), vr(R + d, 2), vr(R + 8 + d, 2))
                a("s_waitcnt lgkmcnt(0)")
                for d in (0, 2): a("v_pk_add_f32 %s, %s, %s", vr(R + d, 2), vr(R + d, 2), vr(R + 12 + d, 2))
                a("v_cvt_pk_f16_f32 v%d, v%d, v%d", R, R, R + 1)
                a("v_cvt_pk_f16_f32 v%d, v%d, v%d", R + 1, R + 2, R + 3)
                a("global_store_dwordx2 v13, %s, s[30:31] %s", vr(R, 2), ST)
                a("global_store_dwordx2 v13, %s, s[32:33] %s", vr(R + 16, 2), ST)
                P("mem pub")
                spf(6)
            a("s_barrier")
        a("s_add_u32 s58, s30, 3584"); a("s_addc_u32 s59, s31, 0")
        pd = 0 if hp else pdel
        def p1(): poll(r); P("M iss")
        if pol and pd == 0: p1()
        a("s_add_u32 s24, s24, 1")
        ptrs(w)
        if pol and pd == 1: p1()
        if pv and not hp: a("s_waitcnt vmcnt(%d)", 0 if pd == 2 else 2)
        pre()
        if pol and pd == 2: p1()
        if P.on:
            a("s_waitcnt lgkmcnt(0)")
            P.flush()
        if pol and p2: poll(r2)
        a("s_branch %s_loop", N)
        for f in tail: f()
        a.label(N + "_fin")
        a("s_setprio 0")
        a("s_waitcnt vmcnt(0)")
        if hp:
            if pv: memx()
            a("s_branch CH_fin")
            return
        q = LQ(a)
        tb = newtb(LQ(_N()), q)
        for n in range(7, 14): mread(q, n)
        if w == 7: tbx_read(W7)
        if w == 6: tb.stage(STG); tb.stage(STG + 8)
        if w in (4, 5, 6): zero(ACC1)
        q.all()
        if w == 7: tbx_store(W7); adv(40, 28 * 4096)
        tb.run(14)
        if pv:
            tb_cvt(TBO); tb_take1(); tb_take2(); tb_take3()
            a("s_waitcnt lgkmcnt(0)")
        else:
            tb_give()
            a("s_barrier")
        a("s_barrier")
        if w == 7:
            tbx_read(MFR)
            a("s_waitcnt lgkmcnt(0)")
            tbx_store(MFR)
        a("s_branch CH_fin")
    if merged:
        a("s_cmp_lg_u32 s97, 0")
        a("s_cbranch_scc1 CH_mixed")
    for px, st in ((("", ""), ("X", "sc1")) if merged else (("", ""),)):
        MODE["PX"] = px; MODE["ST"] = st
        if px: a.label("CH_mixed")
        for hp in (0, 1):
            H = px + ("H" if hp else "C")
            if hp: a.label(px + "CH_hdisp")
            else:
                a("s_cmp_eq_u32 s23, 0")
                a("s_cbranch_scc1 %sCH_hdisp", px)
            for w in (3, 4, 5, 6, 7):
                a("s_cmp_eq_u32 s14, %d", w)
                a("s_cbranch_scc1 %s%d_entry", H, w)
            for w in (0, 3, 4, 5, 6, 7): wave_loop(w, hp)
    a.label("CH_fin")
    a("s_waitcnt vmcnt(0)")
    if prof:
        a("s_lshl_b32 s50, s20, 3")
        a("s_add_u32 s50, s50, s14")
        a("s_lshl_b32 s50, s50, 8")
        a("s_add_u32 s50, s50, 0x%x", POIS_END)
        add64(a, 50, 4, off_sgpr=50)
        if prof == 4:
            a("s_bitcmp1_b32 s14, 0")
            a("s_cselect_b32 s98, s100, s98")
            a("v_writelane_b32 v%d, s98, 0", VP)
        else:
            a("v_writelane_b32 v%d, s62, 22", VP)
            a("v_writelane_b32 v%d, s63, 23", VP)
        a("v_lshlrev_b32 v16, 2, v1")
        a("global_store_dword v16, v%d, s[50:51]", VP)
    return P.names

def emit_chain_kernel(a, prof=False, **kw):
    a.raw(".p2align 8")
    a.label("chain_kernel")
    a("s_cmp_ge_u32 s2, 256")
    a("s_cbranch_scc1 CH_abort")
    a("s_getreg_b32 s16, hwreg(HW_REG_XCC_ID)")
    a("s_and_b32 s16, s16, 15")
    a("s_cmp_lg_u32 s16, 0")
    a("s_cbranch_scc1 CH_abort")
    main_prologue(a)
    a("s_cmp_lg_u32 s14, 0")
    a("s_cbranch_scc1 CK_w")
    a("v_mov_b32 v6, %d", C_TICKET * 4)
    a("v_mov_b32 v7, 1")
    a("s_mov_b64 exec, 1")
    a("global_atomic_add v8, v6, v7, s[10:11] sc0 sc1")
    a("s_waitcnt vmcnt(0)")
    a("v_mov_b32 v6, 0")
    a("ds_write_b32 v6, v8")
    a("s_mov_b64 exec, -1")
    a("s_waitcnt lgkmcnt(0)")
    a.label("CK_w")
    a("s_barrier")
    a("v_mov_b32 v6, 0")
    a("ds_read_b32 v8, v6")
    a("s_waitcnt lgkmcnt(0)")
    a("v_readfirstlane_b32 s20, v8")
    a("s_cmp_ge_u32 s20, 32")
    a("s_cbranch_scc1 CH_abort")
    names = emit_chain(a, prof, **kw)
    a.label("CH_abort")
    a("s_endpgm")
    return names
```

```python
from asmlib import *
from layout import *
import struct
def f32(x): return "0x%08x" % struct.unpack("<I", struct.pack("<f", x))[0]
def add64(a, d, s, off_sgpr=None, imm=None):
    o = ("s%d" % off_sgpr) if off_sgpr is not None else ("0x%x" % imm)
    a("s_add_u32 s%d, s%d, %s", d, s, o)
    a("s_addc_u32 s%d, s%d, 0", d + 1, s + 1)
S_WS, S_X, S_OUT, S_DBG, S_MEM0, S_WAVE, S_TASK = 4, 6, 8, 10, 12, 14, 15
V_LANE, V_L16, V_G, V_I = 1, 2, 3, 4
def main_prologue(a):
    a("s_load_dwordx2 s[4:5], s[0:1], 96")
    a("s_load_dwordx2 s[6:7], s[0:1], 0")
    a("s_load_dwordx2 s[8:9], s[0:1], 80")
    a("s_load_dwordx2 s[10:11], s[0:1], 88")
    a("s_load_dwordx2 s[12:13], s[0:1], 8")
    a("v_lshrrev_b32 v5, 6, v0")
    a("v_and_b32 v1, 63, v0")
    a("v_readfirstlane_b32 s14, v5")
    a("v_lshlrev_b32 v2, 4, v1")
    a("v_lshrrev_b32 v3, 4, v1")
    a("v_and_b32 v4, 15, v1")
    a("s_waitcnt lgkmcnt(0)")
C_U, C_G1, C_G2, C_TICKET, C_Q = 0, 8, 16, 48, 49
def signal(a, sidx_bytes):
    l = a.newlabel("SG")
    a("s_waitcnt vmcnt(0)")
    a("s_barrier")
    a("s_cmp_lg_u32 s14, 0")
    a("s_cbranch_scc1 %s", l)
    a("v_mov_b32 v6, s%d", sidx_bytes)
    a("v_mov_b32 v7, 1")
    a("s_mov_b64 s[90:91], exec")
    a("s_mov_b64 exec, 1")
    a("global_atomic_add v6, v7, s[10:11] sc1")
    a("s_mov_b64 exec, s[90:91]")
    a.label(l)

def wait_cnt(a, sidx_bytes, target, abort, budget=25):
    l = a.newlabel("WC")
    a("v_mov_b32 v8, s%d", sidx_bytes)
    a.label(l)
    a("global_load_dword v9, v8, s[10:11] sc1")
    a("s_sub_u32 s%d, s%d, 1", budget, budget)
    a("s_cbranch_scc1 %s", abort)
    a("s_waitcnt vmcnt(0)")
    a("v_cmp_gt_u32 vcc, %d, v9", target)
    a("s_cbranch_vccnz %s", l)
def wait_ufl(a, soff, abort, budget=25, t=8, sp=50):
    l = a.newlabel("WU")
    a("s_add_u32 s%d, s%d, 0x%x", sp, soff, UFL)
    add64(a, sp, 4, off_sgpr=sp)
    a("v_min_u32 v%d, 55, v1", t + 4)
    a("v_lshlrev_b32 v%d, 4, v%d", t + 4, t + 4)
    a.label(l)
    a("global_load_dwordx4 %s, v%d, s[%d:%d] sc1", vr(t, 4), t + 4, sp, sp + 1)
    a("s_sub_u32 s%d, s%d, 1", budget, budget)
    a("s_cbranch_scc1 %s", abort)
    a("s_waitcnt vmcnt(0)")
    a("v_or3_b32 v%d, v%d, v%d, v%d", t, t, t + 1, t + 2)
    a("v_or_b32 v%d, v%d, v%d", t, t, t + 3)
    a("v_cmp_ne_u32 vcc, 0, v%d", t)
    a("s_cbranch_vccnz %s", l)
```

```python
from common import *
def emit_g1(a, SC="sc1", first=0):
    XR = 16; WR = 128; ACC = 160; OUTR = 192
    PB = 28 * 1024
    a.c("---- G1 task")
    a("s_lshl_b32 s22, s20, 3")
    a("s_add_u32 s22, s22, s14")
    a("s_lshl_b32 s23, s14, 12")
    a("v_add_u32 v8, s23, v2")
    a("s_mov_b32 s24, %d", first)
    a("s_mov_b32 s25, 0")
    def stage():
        l = a.newlabel("G1s");
        a("s_cmp_ge_u32 s24, 18")
        a("s_cbranch_scc1 %s", l)
        a("s_cmp_eq_u32 s14, 7")
        a("s_cbranch_scc1 %s", l)
        a("s_lshl_b32 s26, s21, 3")
        a("s_add_u32 s26, s26, s24")
        a("s_add_u32 s27, s26, 216")
        a("s_cmp_ge_u32 s24, 8")
        a("s_cselect_b32 s26, s27, s26")
        a("s_lshl_b32 s27, s21, 1")
        a("s_add_u32 s27, s27, s24")
        a("s_add_u32 s27, s27, 432")
        a("s_cmp_ge_u32 s24, 16")
        a("s_cselect_b32 s26, s27, s26")
        a("s_mul_i32 s26, s26, %d", PB)
        a("s_add_u32 s26, s26, 0x%x", WALL)
        a("s_add_u32 s26, s4, s26")
        a("s_addc_u32 s27, s5, 0")
        a("s_add_u32 m0, s25, s23")
        for k in range(4):
            a("global_load_lds_dwordx4 v8, s[26:27] offset:%d", 1024 * k)
        a.label(l)
        a("s_add_u32 s24, s24, 1")
        a("s_add_u32 s25, s25, %d", PB)
        a("s_cmp_eq_u32 s25, %d", 3 * PB)
        a("s_cselect_b32 s25, 0, s25")
    a("s_barrier")
    stage(); stage()
    a("s_mul_i32 s28, s22, %d", 28 * 1024)
    a("s_add_u32 s28, s28, 0x%x", XF + 4096)
    add64(a, 28, 4, off_sgpr=28)
    for f in range(28):
        if f and f % 8 == 0:
            a("s_add_u32 s28, s28, 8192"); a("s_addc_u32 s29, s29, 0")
        a("global_load_dwordx4 %s, v2, s[28:29] offset:%d", vr(XR + 4 * f, 4), (f % 8) * 1024 - 4096)
    a("s_waitcnt vmcnt(0)")
    a("s_mov_b32 s30, %d", first)
    a("s_mov_b32 s31, 0")
    a("v_add_u32 v9, %d, v2", 1024)
    a("v_add_u32 v10, %d, v2", 14 * 1024)
    a("v_add_u32 v11, %d, v2", 56 * 1024)
    def body(kind, lim):
        L = a.newlabel("G1" + kind)
        a.label(L)
        a("s_waitcnt vmcnt(%d)", 4 if kind == "H" else 8)
        a("s_barrier")
        stage()
        a("v_add_u32 v12, s31, v2")
        for i in range(16): a("v_mov_b32 v%d, 0", ACC + i)
        def rd(ks):
            for b in range(2):
                a("ds_read_b128 %s, v12 offset:%d", vr(WR + (ks % 3) * 8 + b * 4, 4), (b * 14 + ks) * 1024)
        rd(0); rd(1)
        if kind == "U":
            a("s_lshl_b32 s32, s21, 3")
            a("s_add_u32 s32, s32, s30")
            a("s_mul_i32 s33, s32, 2341")
            a("s_lshr_b32 s33, s33, 16")
            a("s_mul_i32 s34, s33, 28")
            a("s_sub_u32 s34, s32, s34")
            a("s_mul_i32 s35, s22, 14")
            a("s_lshr_b32 s32, s34, 1")
            a("s_add_u32 s35, s35, s32")
            a("s_lshl_b32 s35, s35, 3")
            a("s_add_u32 s35, s35, s33")
            a("s_lshl_b32 s35, s35, 1")
            a("s_and_b32 s34, s34, 1")
            a("s_add_u32 s35, s35, s34")
            a("s_lshl_b32 s35, s35, 11")
            a("s_add_u32 s35, s35, 0x%x", UF)
        elif kind == "Q":
            a("s_lshl_b32 s32, s21, 3")
            a("s_add_u32 s32, s32, s30")
            a("s_sub_u32 s32, s32, 8")
            a("s_mul_i32 s33, s32, 4682")
            a("s_lshr_b32 s33, s33, 16")
            a("s_mul_i32 s34, s33, 14")
            a("s_sub_u32 s34, s32, s34")
            a("s_lshl_b32 s35, s22, 4")
            a("s_add_u32 s35, s35, s33")
            a("s_mul_i32 s35, s35, 28")
            a("s_add_u32 s35, s35, s34")
            a("s_lshl_b32 s35, s35, 10")
            a("s_add_u32 s35, s35, 0x%x", QF)
        else:
            a("s_mul_i32 s35, s22, 112")
            a("s_lshl_b32 s32, s21, 1")
            a("s_add_u32 s35, s35, s32")
            a("s_add_u32 s35, s35, s30")
            a("s_sub_u32 s35, s35, 16")
            a("s_lshl_b32 s35, s35, 10")
            a("s_add_u32 s35, s35, 0x%x", HF)
        add64(a, 36, 4, off_sgpr=35)
        for ks in range(14):
            if ks + 2 < 14:
                rd(ks + 2); a("s_waitcnt lgkmcnt(4)")
            elif ks == 12: a("s_waitcnt lgkmcnt(2)")
            else: a("s_waitcnt lgkmcnt(0)")
            for b in range(2):
                for tt in range(2):
                    d = vr(ACC + (tt * 2 + b) * 4, 4); x = vr(XR + (tt * 14 + ks) * 4, 4); w = vr(WR + (ks % 3) * 8 + b * 4, 4)
                    if kind == "U": a("v_mfma_f32_16x16x32_f16 %s, %s, %s, %s", d, x, w, d)
                    else: a("v_mfma_f32_16x16x32_f16 %s, %s, %s, %s", d, w, x, d)
        a("s_add_u32 s30, s30, 1")
        a("s_add_u32 s31, s31, %d", PB)
        a("s_cmp_eq_u32 s31, %d", 3 * PB)
        a("s_cselect_b32 s31, 0, s31")
        for o in range(2):
            if kind == "Q":
                for r in range(4): a("v_cvt_pk_f16_f32 v%d, v%d, v%d", OUTR + o * 4 + r, ACC + o * 8 + r, ACC + o * 8 + 4 + r)
            for hf in range(2):
                if kind == "Q": break
                d = ACC + (o * 2 + hf) * 4
                if kind == "H":
                    for r in range(4): a("v_max_f32 v%d, 0, v%d", d + r, d + r)
                o0, o1 = (hf, 2 + hf) if kind == "U" else (2 * hf, 2 * hf + 1)
                a("v_cvt_pk_f16_f32 v%d, v%d, v%d", OUTR + o * 4 + o0, d, d + 1)
                a("v_cvt_pk_f16_f32 v%d, v%d, v%d", OUTR + o * 4 + o1, d + 2, d + 3)
            va = 2 if o == 0 else {"U": 9, "Q": 10, "H": 11}[kind]
            a("global_store_dwordx4 v%d, %s, s[36:37] %s", va, vr(OUTR + o * 4, 4), SC)
        a("s_cmp_lt_u32 s30, %d", lim)
        a("s_cbranch_scc1 %s", L)
    if first == 0:
        body("U", 8)
        a("s_lshl_b32 s38, s20, 2")
        a("s_add_u32 s38, s38, %d", C_U * 4)
        signal(a, 38)
    body("Q", 16)
    body("H", 18)
    a("s_lshl_b32 s38, s20, 2")
    a("s_add_u32 s38, s38, %d", C_G1 * 4)
    signal(a, 38)

def emit_g1_kernel(a):
    a.raw(".p2align 8")
    a.label("g1_kernel")
    a("s_cmp_ge_u32 s2, 224")
    a("s_cbranch_scc1 G1_end")
    main_prologue(a)
    a("s_and_b32 s20, s2, 7")
    a("s_lshr_b32 s21, s2, 3")
    emit_g1(a)
    a.label("G1_end")
    a("s_endpgm")
```

```python
from asmlib import *
from layout import *
import struct
def f32(x): return "0x%08x" % struct.unpack("<I", struct.pack("<f", x))[0]
SCALE = 1.4426950408889634 / 16.0

def add64(a, d, s, off_sgpr=None, imm=None):
    o = ("s%d" % off_sgpr) if off_sgpr is not None else ("0x%x" % imm)
    a("s_add_u32 s%d, s%d, %s", d, s, o)
    a("s_addc_u32 s%d, s%d, 0", d + 1, s + 1)

def transp_loads(a, dst, voff, sbase, rstride):
    for e in range(8):
        off = e * rstride
        if off < 4096:
            a("global_load_dwordx2 %s, v%d, %s offset:%d", vr(dst + 2 * e, 2), voff, sr(sbase, 2), off)
        else:
            raise ValueError
def transp_perm(a, out, src, sLo, sHi):
    for r in range(4):
        for jj in range(4):
            d0 = src + 2 * (2 * jj) + (r >> 1); d1 = src + 2 * (2 * jj + 1) + (r >> 1)
            a("v_perm_b32 v%d, v%d, v%d, s%d", out + 4 * r + jj, d1, d0, sHi if r & 1 else sLo)

def transp_cvt(a, out, src, tmp):
    for r in range(4):
        for jj in range(4):
            d0 = src + 2 * (2 * jj) + (r >> 1); d1 = src + 2 * (2 * jj + 1) + (r >> 1)
            t = tmp + 2 * (jj & 1)
            for k, d in enumerate((d0, d1)):
                if r & 1: a("v_and_b32 v%d, 0xffff0000, v%d", t + k, d)
                else: a("v_lshlrev_b32 v%d, 16, v%d", t + k, d)
            a("v_cvt_pk_f16_f32 v%d, v%d, v%d", out + 4 * r + jj, t, t + 1)

PREP_LDS = 32768 + 7 * 16384
def emit_prep(a, prof=0, touch=0):
    def T(k):
        if prof: a("s_memrealtime s[%d:%d]", 64 + 2 * k, 65 + 2 * k)
    def END():
        if prof:
            a("s_waitcnt vmcnt(0)")
            T(5)
            a("s_waitcnt lgkmcnt(0)")
            for k in range(6): a("v_writelane_b32 v0, s%d, %d", 64 + 2 * k, k)
            a("s_lshl_b32 s60, s2, 3")
            a("s_add_u32 s60, s60, s20")
            a("s_lshl_b32 s60, s60, 8")
            a("s_add_u32 s60, s60, 0x%x", POIS_END + 0x100000)
            add64(a, 60, 18, off_sgpr=60)
            a("v_lshlrev_b32 v1, 2, v2")
            a("global_store_dword v1, v0, s[60:61]")
        a("s_endpgm")
    a.raw(".p2align 8")
    a.label("prep_kernel")
    a("s_cmp_ge_u32 s2, 256")
    a("s_cbranch_scc1 P_end0")
    T(0)
    a("s_load_dwordx2 s[4:5], s[0:1], 0")
    a("s_load_dwordx2 s[6:7], s[0:1], 16")
    a("s_load_dwordx2 s[8:9], s[0:1], 24")
    a("s_load_dwordx2 s[10:11], s[0:1], 32")
    a("s_load_dwordx2 s[12:13], s[0:1], 40")
    a("s_load_dwordx2 s[14:15], s[0:1], 64")
    a("s_load_dwordx2 s[16:17], s[0:1], 72")
    a("s_load_dwordx2 s[18:19], s[0:1], 96")
    a("v_lshrrev_b32 v1, 6, v0")
    a("v_and_b32 v2, 63, v0")
    a("v_readfirstlane_b32 s20, v1")
    a("v_lshrrev_b32 v3, 4, v2")
    a("v_and_b32 v4, 15, v2")
    a("v_lshlrev_b32 v5, 4, v2")
    a("v_and_b32 v12, 3, v2")
    a("v_xor_b32 v12, v12, v3")
    a("v_lshlrev_b32 v12, 4, v12")
    a("v_lshrrev_b32 v14, 2, v4")
    a("v_xor_b32 v14, v14, v3")
    a("v_lshlrev_b32 v14, 4, v14")
    a("v_lshl_add_u32 v14, v4, 6, v14")
    a("s_mov_b32 s40, 0x05040100")
    a("s_mov_b32 s41, 0x07060302")
    a("s_and_b32 s21, s2, 7")
    a("s_lshr_b32 s22, s2, 3")
    a("s_cmp_ge_u32 s22, 28")
    a("s_cbranch_scc1 P_small")
    a("s_mul_i32 s23, s22, 37")
    a("s_lshr_b32 s23, s23, 8")
    a("s_mul_i32 s24, s23, 7")
    a("s_sub_u32 s24, s22, s24")
    a("s_lshl_b32 s25, s21, 2")
    a("s_add_u32 s25, s25, s23")
    a("s_lshr_b32 s26, s25, 4")
    a("s_and_b32 s27, s25, 15")
    a("v_lshrrev_b32 v6, 4, v2")
    a("v_bfe_u32 v7, v2, 2, 2")
    a("v_lshlrev_b32 v13, 16, v6")
    a("v_add_u32 v13, v13, v12")
    a("v_lshl_add_u32 v6, v7, 13, v13")
    a("v_lshl_add_u32 v7, v7, 14, v13")
    a("s_waitcnt lgkmcnt(0)")
    T(1)
    a("s_lshl_b32 s30, s27, 9")
    a("s_cmp_eq_u32 s26, 0")
    a("s_cselect_b32 s28, s10, s6")
    a("s_cselect_b32 s29, s11, s7")
    a("s_cselect_b64 vcc, -1, 0")
    a("v_cndmask_b32 v15, v14, v5")
    a("s_cbranch_scc1 P_stB")
    a("s_lshr_b32 s31, s20, 1")
    a("s_lshr_b32 s32, s31, 1")
    a("s_lshl_b32 s32, s32, 5")
    a("s_and_b32 s33, s31, 1")
    a("s_add_u32 s32, s32, s33")
    a("s_lshl_b32 s33, s24, 6")
    a("s_add_u32 s32, s32, s33")
    a("s_lshl_b32 s32, s32, 13")
    a("s_add_u32 s32, s32, s30")
    a("s_and_b32 s33, s20, 1")
    a("s_lshl_b32 s34, s33, 8")
    a("s_add_u32 s32, s32, s34")
    add64(a, 34, 8, off_sgpr=32)
    a("s_lshl_b32 s36, s20, 12")
    for k in range(4):
        a("s_add_u32 m0, s36, %d", 960 * k)
        a("global_load_lds_dwordx4 v7, s[34:35] offset:%d", 64 * k)
    a("v_mov_b32 v8, 0")
    a("s_branch P_rows")
    a.label("P_stB")
    a("s_mul_i32 s32, s27, 229376")
    a("s_mul_i32 s33, s20, %d", 32 * 896)
    a("s_add_u32 s32, s32, s33")
    a("s_lshl_b32 s33, s24, 7")
    a("s_add_u32 s32, s32, s33")
    add64(a, 34, 12, off_sgpr=32)
    a("v_mul_u32_u24 v9, %d, v3", 8 * 896)
    a("v_lshl_add_u32 v9, v4, 3, v9")
    a("v_add_u32 v10, %d, v9", 4 * 896)
    for e in range(8):
        a("global_load_dwordx2 %s, v%d, s[34:35] offset:%d", vr(216 + 2 * e, 2), 9 if e < 4 else 10, (e & 3) * 896)
    a("v_lshrrev_b32 v8, 3, v4")
    a("v_lshlrev_b32 v8, 1, v8")
    a("v_and_b32 v11, 1, v4")
    a("v_add_u32 v8, v8, v11")
    a("v_lshlrev_b32 v8, 13, v8")
    a("v_bfe_u32 v11, v4, 1, 2")
    a("v_lshl_add_u32 v8, v11, 6, v8")
    a("v_lshl_add_u32 v8, v3, 8, v8")
    a("s_lshl_b32 s36, s20, 10")
    a("v_add_u32 v8, s36, v8")
    a.label("P_rows")
    a("s_lshl_b32 s32, s20, 19")
    a("s_add_u32 s32, s32, s30")
    add64(a, 36, 28, off_sgpr=32)
    a("s_lshl_b32 s42, s20, 14")
    a("s_add_u32 s42, s42, 32768")
    a("s_cmp_eq_u32 s20, 7")
    a("s_cbranch_scc1 P_norows")
    def rows():
        for t in range(2):
            for kd_ in range(8):
                a("s_add_u32 m0, s42, %d", t * 8192 + 960 * kd_)
                a("global_load_lds_dwordx4 v6, s[36:37] offset:%d", 64 * kd_)
            a("s_add_u32 s36, s36, 0x%x", (28 * 8192) if t else (4 * 8192))
            a("s_addc_u32 s37, s37, 0")
    rows()
    a("v_lshrrev_b32 v9, 1, v2")
    a("v_lshlrev_b32 v9, 13, v9")
    a("v_and_b32 v10, 1, v2")
    a("v_lshl_add_u32 v9, v10, 8, v9")
    if touch:
        a("global_load_dword v16, v9, s[36:37]")
        a("global_load_dword v17, v9, s[36:37] offset:128")
    T(2)
    a("s_waitcnt vmcnt(%d)", 16 + 2 * touch)
    a("s_branch P_stage")
    a.label("P_norows")
    a("s_waitcnt vmcnt(0)")
    a.label("P_stage")
    a("s_cmp_lg_u32 s26, 0")
    a("s_cbranch_scc1 P_staged")
    transp_perm(a, 200, 216, 40, 41)
    for r in range(4):
        a("ds_write_b128 v8, %s offset:%d", vr(200 + 4 * r, 4), 16 * r)
    a.label("P_staged")
    T(3)
    a("s_waitcnt lgkmcnt(0)")
    a("s_barrier")
    a("s_cmp_eq_u32 s20, 7")
    a("s_cbranch_scc1 P_w7")
    OUT = 16; ACC = 32; RR = 64; CR = 128
    for f in range(32): a("ds_read_b128 %s, v15 offset:%d", vr(CR + 4 * f, 4), f * 1024)
    a("v_add_u32 v14, s42, v14")
    a("s_cmp_eq_u32 s26, 0")
    a("s_cselect_b32 s38, 1.0, %s", f32(SCALE))
    a("s_lshl_b32 s33, s24, 2")
    a("s_mul_i32 s32, s27, 28")
    a("s_add_u32 s32, s32, s33")
    a("s_add_u32 s32, s32, 448")
    a("s_lshr_b32 s34, s27, 1")
    a("s_mul_i32 s34, s34, 28")
    a("s_add_u32 s34, s34, s33")
    a("s_lshl_b32 s34, s34, 1")
    a("s_and_b32 s33, s27, 1")
    a("s_add_u32 s34, s34, s33")
    a("s_movk_i32 s39, %d", 14 * 1024)
    a("s_cmp_eq_u32 s26, 0")
    a("s_cselect_b32 s32, s34, s32")
    a("s_cselect_b32 s39, %d, s39", 28 * 1024)
    a("s_mul_i32 s32, s32, 14")
    a("s_lshl_b32 s33, s20, 1")
    a("s_add_u32 s32, s32, s33")
    a("s_lshl_b32 s32, s32, 10")
    a("s_add_u32 s32, s32, 0x%x", WALL)
    add64(a, 44, 18, off_sgpr=32)
    a("v_add_u32 v9, s39, v5")
    a("v_add_u32 v10, s39, v9")
    a("v_add_u32 v11, s39, v10")
    for ksl in range(2):
        a("s_waitcnt vmcnt(%d)", 4 if ksl else 2 * touch)
        if ksl == 0: T(4)
        for f in range(16): a("ds_read_b128 %s, v14 offset:%d", vr(RR + 4 * f, 4), f * 1024)
        if ksl == 0:
            a("s_waitcnt lgkmcnt(0)")
            rows()
        for b in range(2):
            for kd_ in range(8):
                if ksl: a("s_waitcnt lgkmcnt(%d)", 15 - (b * 8 + kd_))
                for ct in range(4):
                    d = vr(ACC + (b * 4 + ct) * 4, 4)
                    a("v_mfma_f32_16x16x32_bf16 %s, %s, %s, %s", d, vr(RR + (b * 8 + kd_) * 4, 4), vr(CR + (ct * 8 + kd_) * 4, 4), d if kd_ else "0")
        if ksl == 0: a("s_waitcnt vmcnt(16)")
        for ct in range(4):
            o = OUT + ct * 4
            for b in range(2):
                d = ACC + (b * 4 + ct) * 4
                for r in range(4): a("v_mul_f32 v%d, s38, v%d", d + r, d + r)
                a("v_cvt_pk_f16_f32 v%d, v%d, v%d", o + 2 * b, d, d + 1)
                a("v_cvt_pk_f16_f32 v%d, v%d, v%d", o + 2 * b + 1, d + 2, d + 3)
            a("global_store_dwordx4 v%d, %s, s[44:45] offset:%d", [5, 9, 10, 11][ct], vr(o, 4), ksl * 1024)
    END()
    a.label("P_w7")
    a("s_mul_i32 s44, s25, 7")
    a("s_add_u32 s44, s44, s24")
    a("s_branch P_wtask")
    a.label("P_small")
    a("s_lshl_b32 s23, s21, 2")
    a("s_add_u32 s23, s23, s22")
    a("s_sub_u32 s23, s23, 28")
    a("s_waitcnt lgkmcnt(0)")
    a("s_lshl_b32 s24, s23, 14")
    a("s_add_u32 s24, s24, 0x%x", MEMR)
    add64(a, 26, 18, off_sgpr=24)
    a("v_lshlrev_b32 v6, 4, v0")
    a("v_add_u32 v7, 8192, v6")
    for r in range(4): a("v_mov_b32 v%d, -1", 8 + r)
    a("global_store_dwordx4 v6, v[8:11], s[26:27]")
    a("global_store_dwordx4 v7, v[8:11], s[26:27]")
    a("s_lshl_b32 s24, s23, 2")
    a("s_and_b32 s25, s20, 3")
    a("s_add_u32 s24, s24, s25")
    a("s_cmp_ge_u32 s20, 4")
    a("s_cbranch_scc1 P_w2")
    a("s_mul_i32 s25, s24, %d", 16 * 896)
    add64(a, 26, 4, off_sgpr=25)
    a("v_lshrrev_b32 v6, 2, v2")
    a("v_mul_u32_u24 v6, 896, v6")
    a("v_add_u32 v6, v6, v12")
    a("s_lshl_b32 s42, s20, 14")
    a("v_add_u32 v14, s42, v14")
    X = 16
    for ks in range(14):
        a("s_add_u32 m0, s42, %d", 960 * ks)
        a("global_load_lds_dwordx4 v6, s[26:27] offset:%d", ks * 64)
    a("s_waitcnt vmcnt(0)")
    for ks in range(14): a("ds_read_b128 %s, v14 offset:%d", vr(X + 4 * ks, 4), ks * 1024)
    a("s_waitcnt lgkmcnt(0)")
    F = 80
    a("s_waitcnt vmcnt(0)")
    T(1)
    for d in range(56):
        a("v_lshlrev_b32 v%d, 16, v%d", F + 2 * d, X + d)
        a("v_and_b32 v%d, 0xffff0000, v%d", F + 2 * d + 1, X + d)
    def allred(acc, tmp):
        a("v_mov_b32 v%d, v%d", tmp, acc)
        a("v_permlane32_swap_b32 v%d, v%d", acc, tmp)
        a("v_add_f32 v%d, v%d, v%d", acc, acc, tmp)
        a("v_mov_b32 v%d, v%d", tmp, acc)
        a("v_permlane16_swap_b32 v%d, v%d", acc, tmp)
        a("v_add_f32 v%d, v%d, v%d", acc, acc, tmp)
    for q in range(4): a("v_mov_b32 v%d, v%d", 8 + q, F + q)
    for d in range(4, 112): a("v_add_f32 v%d, v%d, v%d", 8 + (d & 3), 8 + (d & 3), F + d)
    a("v_add_f32 v8, v8, v9"); a("v_add_f32 v10, v10, v11"); a("v_add_f32 v8, v8, v10")
    allred(8, 9)
    a("v_mul_f32 v12, %s, v8", f32(1.0 / 448))
    for d in range(112): a("v_sub_f32 v%d, v%d, v12", F + d, F + d)
    for q in range(4): a("v_mul_f32 v%d, v%d, v%d", 8 + q, F + q, F + q)
    for d in range(4, 112): a("v_fmac_f32 v%d, v%d, v%d", 8 + (d & 3), F + d, F + d)
    a("v_add_f32 v8, v8, v9"); a("v_add_f32 v10, v10, v11"); a("v_add_f32 v8, v8, v10")
    allred(8, 9)
    a("v_mov_b32 v9, %s", f32(1e-5))
    a("v_fmac_f32 v9, %s, v8", f32(1.0 / 448))
    a("v_sqrt_f32 v9, v9")
    a("v_rcp_f32 v9, v9")
    a("s_mul_i32 s25, s24, %d", 14 * 1024)
    a("s_add_u32 s25, s25, 0x%x", XF + 4096)
    add64(a, 26, 18, off_sgpr=25)
    for d in range(112): a("v_mul_f32 v%d, v%d, v9", F + d, F + d)
    for d in range(56): a("v_cvt_pk_f16_f32 v%d, v%d, v%d", X + d, F + 2 * d, F + 2 * d + 1)
    for ks in range(14):
        if ks == 8:
            a("s_add_u32 s26, s26, 8192"); a("s_addc_u32 s27, s27, 0")
        a("global_store_dwordx4 v5, %s, s[26:27] offset:%d", vr(X + 4 * ks, 4), (ks & 7) * 1024 - 4096)
    T(2)
    a("s_branch P_end")
    a.label("P_w2")
    a("s_add_u32 s44, s24, 224")
    a.label("P_wtask")
    a("s_mov_b32 s43, s44")
    a("s_cmp_ge_u32 s44, 196")
    a("s_cselect_b32 s45, 196, 0")
    a("s_cselect_b32 s46, 1, 0")
    a("s_sub_u32 s44, s44, s45")
    a("s_mul_i32 s47, s44, 147")
    a("s_lshr_b32 s47, s47, 10")
    a("s_mul_i32 s48, s47, 7")
    a("s_sub_u32 s48, s44, s48")
    a("s_cmp_eq_u32 s46, 0")
    a("s_cselect_b32 s49, s48, s47")
    a("s_cselect_b32 s50, s47, s48")
    a("s_movk_i32 s51, 896")
    a("s_cselect_b32 s51, 3584, s51")
    a("s_cselect_b32 s52, s14, s16")
    a("s_cselect_b32 s53, s15, s17")
    a("s_cselect_b32 s54, 14, 56")
    a("s_mov_b32 s55, 0x%x", W2F)
    a("s_cselect_b32 s55, 0x%x, s55", W1F)
    a("s_mul_i32 s56, s49, s51")
    a("s_lshl_b32 s56, s56, 6")
    a("s_lshl_b32 s57, s50, 7")
    a("s_add_u32 s56, s56, s57")
    add64(a, 52, 52, off_sgpr=56)
    a("v_mul_lo_u32 v9, v3, s51")
    a("v_lshlrev_b32 v9, 3, v9")
    a("v_lshl_add_u32 v9, v4, 3, v9")
    for e in range(16):
        if e == 8:
            a("s_mul_i32 s56, s51, 24")
            add64(a, 52, 52, off_sgpr=56)
        a("global_load_dwordx2 %s, v9, s[52:53]", vr(16 + 2 * e, 2))
        add64(a, 52, 52, off_sgpr=51)
    a("v_lshrrev_b32 v8, 3, v4")
    a("v_lshlrev_b32 v8, 1, v8")
    a("v_and_b32 v11, 1, v4")
    a("v_add_u32 v8, v8, v11")
    a("v_mul_lo_u32 v8, v8, s54")
    a("v_lshlrev_b32 v8, 10, v8")
    a("v_bfe_u32 v11, v4, 1, 2")
    a("v_lshl_add_u32 v8, v11, 6, v8")
    a("v_lshl_add_u32 v8, v3, 8, v8")
    a("s_mul_i32 s56, s50, s54")
    a("s_lshl_b32 s56, s56, 2")
    a("s_lshl_b32 s57, s49, 1")
    a("s_add_u32 s56, s56, s57")
    a("s_lshl_b32 s56, s56, 10")
    a("s_add_u32 s56, s56, s55")
    add64(a, 58, 18, off_sgpr=56)
    for hlf in range(2):
        a("s_waitcnt vmcnt(%d)", 8 if hlf == 0 else 4)
        transp_cvt(a, 48 + 16 * hlf, 16 + 16 * hlf, 80)
        for r in range(4):
            a("global_store_dwordx4 v8, %s, s[58:59] offset:%d", vr(48 + 16 * hlf + 4 * r, 4), hlf * 1024 + 16 * r)
    a("s_sub_u32 s44, s43, 224")
    a("s_cmp_lt_u32 s44, 40")
    a("s_add_u32 s44, s43, 128")
    a("s_sub_u32 s45, s43, 224")
    a("s_cmp_lt_u32 s45, 40")
    a("s_cbranch_scc1 P_wtask")
    a.label("P_end")
    END()
    a.label("P_end0")
    a("s_endpgm")
```

```python
from common import *
import chain, ut, g1, g2, ft
L_TK = chain.CHAIN_LDS
MAIN_LDS = chain.CHAIN_LDS + 64
N_G1, N_G2, N_F = 224, 224, 256
def bcast_begin(a, l):
    a("s_cmp_lg_u32 s14, 0")
    a("s_cbranch_scc1 %s", l)
def emit_main(a, prof=0, force_mixed=False, gate=2, gmax=60, **kw):
    a.raw(".p2align 8")
    a.label("main_kernel")
    a("s_cmp_ge_u32 s2, 256")
    a("s_cbranch_scc1 M_end")
    a("s_getreg_b32 s16, hwreg(HW_REG_XCC_ID)")
    a("s_and_b32 s16, s16, 15")
    main_prologue(a)
    if prof: a("s_memtime s[98:99]"); a("s_memrealtime s[100:101]")
    a("s_mov_b32 s15, -1")
    a("s_mov_b32 s17, 1")
    add64(a, 18, 4, imm=SHARD)
    if force_mixed:
        a("s_and_b32 s20, s2, 8")
        a("s_or_b32 s16, s16, s20")
    a("s_cmp_lg_u32 s16, 0")
    a("s_cbranch_scc1 M_first")
    a.label("M_role")
    bcast_begin(a, "M_r1")
    a("v_mov_b32 v6, %d", C_TICKET * 4)
    a("v_mov_b32 v7, s17")
    a("s_mov_b64 exec, 1")
    a("global_atomic_add v8, v6, v7, s[10:11] sc0 sc1")
    a("v_mov_b32 v6, %d", L_TK + 32)
    a("s_waitcnt vmcnt(0)")
    a("ds_write_b32 v6, v8")
    a("s_mov_b64 exec, -1")
    a("s_waitcnt lgkmcnt(0)")
    a.label("M_r1")
    a("s_barrier")
    a("v_mov_b32 v6, %d", L_TK + 32)
    a("ds_read_b32 v8, v6")
    a("s_waitcnt lgkmcnt(0)")
    a("v_readfirstlane_b32 s20, v8")
    a("s_and_b32 s20, s20, 0xffff")
    a("s_cmp_ge_u32 s20, 32")
    a("s_cbranch_scc1 M_norole")
    names = chain.emit_chain(a, prof, abort="M_end", merged=True, **kw)
    a("v_lshrrev_b32 v3, 4, v1")
    a("v_and_b32 v4, 15, v1")
    a.label("M_norole")
    a("s_cmp_lg_u32 s15, -1")
    a("s_cbranch_scc1 M_disp")
    a.label("M_first")
    a("s_add_u32 s20, s16, 6")
    a("s_and_b32 s20, s20, 15")
    a("s_cmp_ge_u32 s20, 7")
    a("s_cselect_b32 s21, 7, 0")
    a("s_sub_u32 s20, s20, s21")
    a("s_cmp_ge_u32 s20, 7")
    a("s_cselect_b32 s21, 7, 0")
    a("s_sub_u32 s16, s20, s21")
    a("s_lshl_b32 s17, 1, s16")
    a.label("M_take")
    a("s_barrier")
    bcast_begin(a, "M_f1")
    a("v_lshlrev_b32 v6, 8, v1")
    a("v_mov_b32 v7, 1")
    a("v_mov_b32 v8, 64")
    a("v_lshlrev_b32 v9, 2, v1")
    a("v_add_u32 v9, %d, v9", L_TK)
    a("s_mov_b32 exec_hi, 0")
    a("s_mov_b32 exec_lo, s17")
    a("global_atomic_add v8, v6, v7, s[18:19] sc0 sc1")
    a("s_mov_b32 exec_lo, 0x7f")
    a("s_waitcnt vmcnt(0)")
    a("v_add_u32 v8, 1, v8")
    a("ds_write_b32 v9, v8")
    a("s_mov_b64 exec, -1")
    a("s_waitcnt lgkmcnt(0)")
    a.label("M_f1")
    a("s_barrier")
    a("v_min_u32 v6, 6, v1")
    a("v_lshlrev_b32 v6, 2, v6")
    a("v_add_u32 v6, %d, v6", L_TK)
    a("ds_read_b32 v0, v6")
    a("s_waitcnt lgkmcnt(0)")
    a("v_cmp_gt_u32 vcc, 32, v0")
    a("s_and_b32 s100, vcc_lo, 0x7f")
    a.label("M_u")
    a("s_cmp_eq_u32 s100, 0")
    a("s_cbranch_scc1 M_u1")
    a("s_ff1_i32_b32 s21, s100")
    a("s_bitset0_b32 s100, s21")
    a("v_readlane_b32 s20, v0, s21")
    a("s_lshl_b32 s21, s21, 5")
    a("s_add_u32 s20, s20, s21")
    ut.emit_u(a)
    a("s_barrier")
    a("s_branch M_u")
    a.label("M_u1")
    a("s_cmp_eq_u32 s17, 0x7f")
    a("s_mov_b32 s17, 0x7f")
    a("s_cbranch_scc0 M_take")
    a("v_cmp_gt_u32 vcc, 32, v0")
    a("s_and_b32 s21, vcc_lo, 0x7f")
    a("s_cbranch_scc1 M_take")
    a.label("M_next")
    a("s_barrier")
    bcast_begin(a, "M_q1")
    a("v_mov_b32 v6, %d", C_Q * 4)
    a("v_mov_b32 v7, 1")
    a("s_mov_b64 exec, 1")
    a("global_atomic_add v8, v6, v7, s[10:11] sc0 sc1")
    a("global_load_dword v9, v6, s[10:11] offset:%d sc1", (C_TICKET - C_Q) * 4)
    a("v_mov_b32 v6, %d", L_TK)
    a("s_waitcnt vmcnt(0)")
    a("ds_write_b64 v6, v[8:9]")
    a("s_mov_b64 exec, -1")
    a("s_waitcnt lgkmcnt(0)")
    a.label("M_q1")
    a("s_barrier")
    a("v_mov_b32 v6, %d", L_TK)
    a("ds_read_b64 v[8:9], v6")
    a("s_waitcnt lgkmcnt(0)")
    a("v_readfirstlane_b32 s15, v8")
    a("v_readfirstlane_b32 s21, v9")
    a("s_cmp_lt_u32 s15, %d", N_G1 + N_G2)
    a("s_cbranch_scc1 M_disp")
    a("s_and_b32 s21, s21, 0xffff")
    a("s_mov_b32 s17, 0x10001")
    a("s_cmp_lt_u32 s21, 32")
    a("s_cbranch_scc1 M_role")
    a.label("M_disp")
    a("s_mov_b32 s25, 0x400000")
    a("s_cmp_lt_u32 s15, %d", N_G1)
    a("s_cbranch_scc0 M_d2")
    a("s_mul_i32 s20, s15, 2341")
    a("s_lshr_b32 s20, s20, 16")
    a("s_mul_i32 s21, s20, 28")
    a("s_sub_u32 s21, s15, s21")
    g1.emit_g1(a, first=8)
    a("s_branch M_next")
    a.label("M_d2")
    a("s_sub_u32 s20, s15, %d", N_G1)
    a("s_cmp_lt_u32 s20, %d", N_G2)
    a("s_cbranch_scc0 M_d3")
    bcast_begin(a, "M_d2w")
    a("s_mul_i32 s21, s20, 2341")
    a("s_lshr_b32 s21, s21, 16")
    a("s_lshl_b32 s21, s21, 2")
    a("s_add_u32 s21, s21, %d", C_G1 * 4)
    wait_cnt(a, 21, 28, "M_end")
    a.label("M_d2w")
    a("s_barrier")
    g2.emit_g2(a)
    a("s_branch M_next")
    a.label("M_d3")
    a("s_sub_u32 s20, s20, %d", N_G2)
    a("s_cmp_lt_u32 s20, %d", N_F)
    a("s_cbranch_scc0 M_end")
    def pre():
        if gate:
            a("s_cmp_lg_u32 s14, 3")
            a("s_cbranch_scc1 M_fg")
            a("s_add_u32 s50, s21, %d", gate)
            a("s_min_u32 s50, s50, %d", gmax)
            a("s_lshl_b32 s50, s50, 13")
            a("s_add_u32 s50, s50, 0x%x", MEMX)
            add64(a, 50, 4, off_sgpr=50)
            a("v_mov_b32 v8, 0")
            a.label("M_fgl")
            a("global_load_dword v9, v8, s[50:51] sc1")
            a("s_sub_u32 s25, s25, 1")
            a("s_cbranch_scc1 M_end")
            a("s_waitcnt vmcnt(0)")
            a("v_cmp_eq_u32 vcc, -1, v9")
            a("s_cbranch_vccnz M_fgl")
            a.label("M_fg")
        a("s_cmp_gt_u32 s14, 2")
        a("s_cbranch_scc1 M_fw")
        a("s_cmp_eq_u32 s14, 2")
        a("s_cbranch_scc1 M_fw2")
        a("s_lshl_b32 s50, s21, 1")
        a("s_add_u32 s50, s50, s14")
        a("s_lshl_b32 s50, s50, 10")
        wait_ufl(a, 50, "M_end", t=16)
        a("s_branch M_fw")
        a.label("M_fw2")
        a("s_lshr_b32 s50, s21, 1")
        a("s_lshl_b32 s50, s50, 2")
        a("s_add_u32 s50, s50, %d", C_G2 * 4)
        wait_cnt(a, 50, 7, "M_end")
        a.label("M_fw")
    ft.emit_f(a, "M_end", pre)
    a("s_branch M_next")
    a.label("M_end")
    a("s_endpgm")
    return names
```

```python
from common import *
MF = "v_mfma_f32_16x16x32_f16 %s, %s, %s, %s"
def emit_u(a):
    WR = 16; XR = (128, 184); ACC = 240; OUT = 248
    a.c("---- U task")
    a("s_min_u32 s21, s14, 6")
    a("s_lshl_b32 s21, s21, 12")
    a("v_add_u32 v8, s21, v2")
    a("s_mul_i32 s26, s20, %d", 28 * 1024)
    a("s_add_u32 s26, s26, 0x%x", BF)
    add64(a, 26, 4, off_sgpr=26)
    a("s_mov_b32 m0, s21")
    for k in range(4): a("global_load_lds_dwordx4 v8, s[26:27] offset:%d", 1024 * k)
    a("s_mul_i32 s28, s14, %d", 14 * 1024)
    a("s_add_u32 s28, s28, 0x%x", XF + 4096)
    add64(a, 28, 4, off_sgpr=28)
    a("v_add_u32 v9, 8192, v2")
    def xld(b):
        for ks in range(14):
            a("global_load_dwordx4 %s, v%d, s[28:29] offset:%d", vr(XR[b] + 4 * ks, 4), 2 if ks < 8 else 9, (ks & 7) * 1024 - 4096)
        a("s_add_u32 s28, s28, %d", 8 * 14 * 1024); a("s_addc_u32 s29, s29, 0")
    xld(0)
    a("s_mul_i32 s33, s20, 2341")
    a("s_lshr_b32 s33, s33, 16")
    a("s_mul_i32 s34, s33, 28")
    a("s_sub_u32 s34, s20, s34")
    a("s_lshr_b32 s22, s14, 1")
    a("s_and_b32 s23, s14, 1")
    a("s_mul_i32 s35, s22, 14")
    a("s_lshr_b32 s32, s34, 1")
    a("s_add_u32 s35, s35, s32")
    a("s_lshl_b32 s35, s35, 3")
    a("s_add_u32 s35, s35, s33")
    a("s_lshl_b32 s35, s35, 1")
    a("s_and_b32 s34, s34, 1")
    a("s_add_u32 s35, s35, s34")
    a("s_lshl_b32 s35, s35, 1")
    a("s_add_u32 s35, s35, s23")
    a("s_lshl_b32 s35, s35, 10")
    a("s_add_u32 s35, s35, 0x%x", UF)
    add64(a, 30, 4, off_sgpr=35)
    a("s_lshl_b32 s36, s20, 1")
    a("s_add_u32 s36, s36, s23")
    a("s_lshl_b32 s36, s36, 8")
    a("s_mul_i32 s32, s22, %d", 112 * 1024)
    a("s_add_u32 s32, s32, s36")
    a("s_add_u32 s32, s32, 0x%x", TBX)
    add64(a, 32, 4, off_sgpr=32)
    a("s_min_u32 s36, s36, %d", 31 * 256)
    a("s_lshl_b32 s34, s22, 13")
    a("s_add_u32 s34, s34, s36")
    a("s_add_u32 s34, s34, 0x%x", MEMX)
    add64(a, 34, 4, off_sgpr=34)
    a("s_lshl_b32 s36, s14, 10")
    a("s_lshl_b32 s37, s20, 2")
    a("s_add_u32 s36, s36, s37")
    a("s_add_u32 s36, s36, 0x%x", UFL)
    add64(a, 36, 4, off_sgpr=36)
    for r in range(4): a("v_mov_b32 v%d, -1", 12 + r)
    a("v_mov_b32 v10, 0")
    a("s_mov_b32 s24, 0")
    a("s_waitcnt vmcnt(14)")
    a("s_barrier")
    for f in range(28): a("ds_read_b128 %s, v2 offset:%d", vr(WR + 4 * f, 4), f * 1024)
    a("s_waitcnt vmcnt(0) lgkmcnt(0)")
    L = a.newlabel("UT")
    a.label(L)
    for b in range(2):
        if b:
            sk = a.newlabel("UTs")
            a("s_cmp_eq_u32 s24, 7")
            a("s_cbranch_scc1 %s", sk)
        xld(1 - b)
        if b: a.label(sk)
        for ks in range(14):
            for w in range(2):
                d = vr(ACC + 4 * w, 4)
                a(MF, d, vr(XR[b] + 4 * ks, 4), vr(WR + (w * 14 + ks) * 4, 4), d if ks else "0")
        a("s_mov_b64 exec, 0xffff")
        a("global_store_dwordx4 v2, v[12:15], s[32:33] sc1")
        l = a.newlabel("UTm")
        a("s_cmp_ge_u32 s20, 14")
        a("s_cbranch_scc1 %s", l)
        a("global_store_dwordx4 v2, v[12:15], s[34:35] sc1")
        a.label(l)
        a("s_mov_b64 exec, -1")
        for w in range(2):
            a("v_cvt_pk_f16_f32 v%d, v%d, v%d", OUT + w, ACC + 4 * w, ACC + 4 * w + 1)
            a("v_cvt_pk_f16_f32 v%d, v%d, v%d", OUT + 2 + w, ACC + 4 * w + 2, ACC + 4 * w + 3)
        a("global_store_dwordx4 v2, %s, s[30:31] sc1", vr(OUT, 4))
        for r, n in ((30, 4 * 14 * 32768), (32, 4 * 112 * 1024), (34, 4 * 8192)):
            a("s_add_u32 s%d, s%d, %d", r, r, n); a("s_addc_u32 s%d, s%d, 0", r + 1, r + 1)
        a("s_waitcnt vmcnt(0)")
        a("s_mov_b64 exec, 1")
        a("global_store_dword v10, v10, s[36:37] sc1")
        a("s_mov_b64 exec, -1")
        a("s_add_u32 s36, s36, 8192"); a("s_addc_u32 s37, s37, 0")
    a("s_add_u32 s24, s24, 1")
    a("s_cmp_lt_u32 s24, 8")
    a("s_cbranch_scc1 %s", L)
```

```python
import sys; sys.path.insert(0,"gen")
import build, k1, mainK
BEST = dict(p2=0,gpos=14,pdel=2,flag=3,nv=54,ns=(14,14,0,14))
def mk(out, **kw):
    k = dict(BEST); k.update(kw)
    names = []
    pk = k.pop("pk", {})
    build.build(out, [("prep_kernel", lambda a: k1.emit_prep(a, **pk), 256, 512, k1.PREP_LDS),
      ("main_kernel", lambda a: names.extend(mainK.emit_main(a, **k)), 256, 512, mainK.MAIN_LDS)])
    if k.get("prof"): open(out, "a").write("; names " + ",".join(names) + "\n")
if __name__ == "__main__":
    for i, arg in enumerate(sys.argv[1:]):
        if arg.startswith("final"): mk("parallel_sum__memory_aug_recurrent_mem_tr__dense_activation_relu__prompt.s", **eval("dict(%s)" % arg[6:]))
        else: mk("m%d.s" % i, **eval("dict(%s)" % arg))
```

```python
from common import *
L_MEMI = 0; L_TAI = 7168; L_RED = 11264; L_TB1 = 15360; L_TB2 = 19456; L_BW = 23552; BWSZ = 16384
CHAIN_LDS = L_BW + 7 * BWSZ
MFR = 16; ACC0 = 44; ACC1 = 48; STG = 52; EX = 68; BW = 96; AW = 144
VP = 0

class Prof:
    def __init__(self, a, on, step=40): self.a = a; self.on = on; self.step = step; self.names = ["top"] if on else []
    def __call__(self, name):
        if not self.on or (self.on in (1, 4) and name != "top"): return
        if self.on == 4:
            self.a("s_memtime s[64:65]"); self.a("s_memrealtime s[66:67]"); return
        if (self.on == 3) != name.startswith("a") and name not in ("top", "TA done", "bar2"): return
        if name not in self.names: self.names.append(name)
        k = self.names.index(name)
        assert k < 16
        self.a("s_memtime s[%d:%d]", 64 + 2 * k, 65 + 2 * k)
    def flush(self, n=16):
        if not self.on: return
        a = self.a
        if self.on == 4:
            a("s_bitcmp1_b32 s14, 0")
            a("s_cselect_b32 s64, s66, s64")
            a("s_mov_b32 m0, s24")
            a("v_writelane_b32 v%d, s64, m0", VP)
            return
        l = a.newlabel("PF")
        a("s_cmp_lg_u32 s24, %d", self.step + 1)
        a("s_cbranch_scc1 %s", l)
        for k in range(n): a("v_writelane_b32 v%d, s%d, %d", VP, 64 + 2 * k, k)
        a.label(l)
        for st, ln in ((10, 20), (60, 21)):
            l = a.newlabel("PF")
            a("s_cmp_lg_u32 s24, %d", st)
            a("s_cbranch_scc1 %s", l)
            a("v_writelane_b32 v%d, s64, %d", VP, ln)
            a.label(l)

class LQ:
    def __init__(self, a): self.a = a; self.q = []
    def issue(self, tag, txt, *args): self.a(txt, *args); self.q.append(tag)
    def wait(self, tag):
        if tag not in self.q: return
        last = max(k for k, t in enumerate(self.q) if t == tag)
        self.a("s_waitcnt lgkmcnt(%d)", len(self.q) - 1 - last)
        self.q = self.q[last + 1:]
    def all(self): self.a("s_waitcnt lgkmcnt(0)"); self.q = []

def interleave(a, b):
    a("v_swap_b32 v%d, v%d", b + 1, b + 4)
    a("v_swap_b32 v%d, v%d", b + 3, b + 5)
    a("v_swap_b32 v%d, v%d", b + 2, b + 4)
    a("v_swap_b32 v%d, v%d", b + 5, b + 6)

SM = "v_smfmac_f32_16x16x64_f16 %s, %s, %s, v5"
def emit_chain(a, prof=False, nv=64, ns=(0, 0, 0, 0), bpos=9, nb2=4, nb3=8, gpos=13, g2=1, pdel=1, p2=1, flag=1, fpos=5, dep=6, dep2=7, nb7=0, xp=0, abort="CH_abort", merged=False):
    P = Prof(a, prof)
    npf = nv + sum(ns)
    def spf(w):
        o = nv + sum(ns[:w - 4])
        for i in range(ns[w - 4]): a("s_load_dword s96, s[54:55], %d", (o + i) * 128)
    MODE = {"ST": "", "PX": ""}
    a.c("---- chain, role s20")
    a("s_lshr_b32 s21, s20, 1")
    a("s_and_b32 s22, s20, 1")
    a("s_cmp_lt_u32 s20, 28")
    a("s_cselect_b32 s23, 1, 0")
    a("s_mov_b32 s25, 0x100000")
    a("s_mov_b32 s46, 0x00ff00ff")
    a("s_mov_b32 s47, 0x00ff00ff")
    add64(a, 26, 4, imm=MEMR)
    add64(a, 28, 4, imm=SR)
    for r in (30, 32, 58): a("s_mov_b64 s[%d:%d], s[26:27]", r, r + 1)
    for r in (34, 36): a("s_mov_b64 s[%d:%d], s[28:29]", r, r + 1)
    a("s_and_b32 s60, s14, 3")
    a("s_lshr_b32 s61, s14, 2")
    a("s_xor_b32 s61, s61, s22")
    a("s_xor_b32 s61, s61, 1")
    for i in range(4): a("v_mov_b32 v%d, 0", BW + i)
    a("s_barrier")
    a("s_min_u32 s50, s14, 6")
    a("s_lshl_b32 s50, s50, 10")
    a("v_add_u32 v14, s50, v2")
    a("v_bfe_u32 v16, v14, 4, 3")
    a("v_mul_u32_u24 v16, 896, v16")
    a("v_lshrrev_b32 v17, 9, v14")
    a("v_lshl_add_u32 v16, v17, 6, v16")
    a("v_bfe_u32 v17, v14, 7, 1")
    a("v_lshl_add_u32 v16, v17, 5, v16")
    a("v_bfe_u32 v17, v14, 8, 1")
    a("v_lshl_add_u32 v16, v17, 3, v16")
    a("global_load_dwordx2 v[20:21], v16, s[12:13]")
    a("global_load_dwordx2 v[22:23], v16, s[12:13] offset:16")
    a("v_add_u32 v31, %d, v2", 14336)
    a("s_cmp_eq_u32 s14, 7")
    a("s_cbranch_scc1 CH_A1")
    a("s_mul_i32 s50, s20, 7")
    a("s_add_u32 s50, s50, s14")
    a("s_mul_i32 s50, s50, %d", 28 * 1024)
    a("s_add_u32 s50, s50, 0x%x", AF + 4096)
    a("s_mul_i32 s51, s61, 7168")
    a("s_add_u32 s52, s50, s51")
    a("s_sub_u32 s50, s50, s51")
    a("s_add_u32 s50, s50, 7168")
    add64(a, 50, 4, off_sgpr=50)
    add64(a, 52, 4, off_sgpr=52)
    for u in range(2):
        for k in range(7):
            for w in range(2):
                a("global_load_dwordx4 %s, v%d, s[%d:%d] offset:%d", vr(AW + (u * 7 + k) * 8 + w * 4, 4), 31 if w else 2, 50 + 2 * u, 51 + 2 * u, k * 1024 - 4096)
    a.label("CH_A1")
    a("v_bfe_u32 v5, v4, 1, 1")
    a("v_mul_u32_u24 v5, 0xaaaa, v5")
    a("v_add_u32 v5, 0x4444, v5")
    a("v_lshrrev_b32 v6, 2, v4")
    a("v_lshlrev_b32 v6, 1, v6")
    a("v_and_b32 v7, 1, v4")
    a("v_add_u32 v6, v6, v7")
    a("v_lshlrev_b32 v6, 4, v6")
    a("v_lshl_add_u32 v6, v3, 7, v6")
    a("s_mul_i32 s50, s61, 3584")
    a("v_add_u32 v6, s50, v6")
    a("v_lshrrev_b32 v7, 2, v4")
    a("v_lshlrev_b32 v7, 7, v7")
    a("v_lshl_add_u32 v7, v3, 5, v7")
    a("v_and_b32 v8, 3, v4")
    a("v_lshl_add_u32 v7, v8, 2, v7")
    a("s_lshl_b32 s50, s14, 9")
    a("s_add_u32 s50, s50, %d", L_TAI)
    a("v_add_u32 v7, s50, v7")
    a("s_lshl_b32 s50, s60, 10")
    a("s_add_u32 s50, s50, %d", L_TB1)
    a("v_add_u32 v12, s50, v2")
    a("s_cmp_ge_u32 s14, 4")
    a("s_cbranch_scc1 CH_c4")
    a("s_lshr_b32 s50, s60, 1")
    a("s_lshl_b32 s50, s50, 10")
    a("s_and_b32 s51, s60, 1")
    a("s_lshl_b32 s51, s51, 3")
    a("s_add_u32 s50, s50, s51")
    a("s_add_u32 s50, s50, %d", L_TB2)
    a("v_add_u32 v8, s50, v2")
    a("s_lshl_b32 s50, s60, 10")
    a("s_add_u32 s50, s50, %d", L_RED)
    a("v_lshlrev_b32 v9, 2, v1")
    a("v_add_u32 v9, s50, v9")
    a("s_lshl_b32 s50, s22, 2")
    a("s_add_u32 s50, s50, s60")
    a("s_lshl_b32 s51, s50, 11")
    a("v_add_u32 v10, s51, v2")
    a("s_lshl_b32 s51, s50, 9")
    a("s_add_u32 s51, s51, 16384")
    a("v_lshlrev_b32 v11, 2, v1")
    a("v_add_u32 v11, s51, v11")
    a("s_lshl_b32 s50, s60, 12")
    a("v_add_u32 v13, s50, v2")
    a("s_branch CH_c5")
    a.label("CH_c4")
    a("v_mov_b32 v11, 0")
    a("v_and_b32 v16, 7, v4")
    a("s_cmp_eq_u32 s14, 5")
    a("s_cselect_b64 vcc, -1, 0")
    a("v_lshlrev_b32 v8, 4, v16")
    a("v_lshl_add_u32 v17, v3, 7, v8")
    a("v_and_b32 v18, 1, v3")
    a("v_lshl_add_u32 v8, v18, 8, v8")
    a("v_lshrrev_b32 v18, 1, v3")
    a("v_lshl_add_u32 v8, v18, 3, v8")
    a("v_cndmask_b32 v8, v17, v8")
    a("v_add_u32 v8, %d, v8", L_TAI)
    a("v_lshrrev_b32 v17, 1, v16")
    a("v_lshlrev_b32 v17, 2, v17")
    a("v_and_b32 v18, 1, v16")
    a("v_add_u32 v17, v17, v18")
    a("s_and_b32 s50, s21, 1")
    a("s_lshl_b32 s50, s50, 1")
    a("v_add_u32 v17, s50, v17")
    a("s_lshr_b32 s50, s21, 1")
    a("s_lshl_b32 s50, s50, 1")
    a("s_add_u32 s50, s50, s22")
    a("s_lshl_b32 s51, s50, 10")
    a("s_sub_u32 s52, 7, s14")
    a("s_lshl_b32 s52, s52, 9")
    a("s_add_u32 s51, s51, s52")
    a("v_lshlrev_b32 v9, 4, v17")
    a("v_lshrrev_b32 v18, 1, v3")
    a("v_lshl_add_u32 v9, v18, 8, v9")
    a("v_and_b32 v18, 1, v3")
    a("v_lshl_add_u32 v9, v18, 3, v9")
    a("v_add_u32 v9, s51, v9")
    a("s_lshl_b32 s51, s50, 8")
    a("s_add_u32 s51, s51, 16384")
    a("v_lshl_add_u32 v17, v3, 4, v17")
    a("v_lshlrev_b32 v18, 2, v17")
    a("v_add_u32 v18, s51, v18")
    a("v_cndmask_b32 v9, v9, v18")
    a("v_bfe_u32 v13, v1, 1, 1")
    a("v_lshlrev_b32 v13, 7, v13")
    a("v_and_b32 v16, 1, v1")
    a("v_lshl_add_u32 v13, v16, 3, v13")
    a("v_bfe_u32 v16, v1, 2, 2")
    a("v_lshl_add_u32 v13, v16, 5, v13")
    a("v_lshrrev_b32 v16, 5, v1")
    a("v_lshl_add_u32 v13, v16, 4, v13")
    a("v_bfe_u32 v16, v1, 4, 1")
    a("v_lshl_add_u32 v13, v16, 8, v13")
    a("s_mul_i32 s50, s22, 7168")
    a("s_lshl_b32 s51, s21, 9")
    a("s_add_u32 s50, s50, s51")
    a("v_add_u32 v13, s50, v13")
    a("v_min_u32 v10, %d, v1", max(nv - 1, 0))
    a("v_lshlrev_b32 v10, 7, v10")
    a("v_add_u32 v16, 2048, v8")
    a("v_cndmask_b32 v10, v10, v16")
    a.label("CH_c5")
    a("s_mul_i32 s50, s61, 7168")
    a("s_sub_u32 s50, 3584, s50")
    a("v_add_u32 v3, s50, v6")
    a("s_lshl_b32 s50, s20, 7")
    a("s_add_u32 s50, s50, %d", 192 * 1024)
    a("v_mov_b32 v4, s50")
    a("s_mul_i32 s42, s22, 7168")
    a("s_and_b32 s43, s14, 1")
    a("s_xor_b32 s43, s43, 1")
    a("s_mul_i32 s43, s43, 14336")
    a("s_add_u32 s42, s42, s43")
    a("s_add_u32 s42, s42, 0x%x", XF + 4096)
    add64(a, 42, 4, off_sgpr=42)
    a("s_sub_u32 s44, s20, 28")
    a("s_max_i32 s44, s44, 0")
    a("s_mul_i32 s44, s44, 7168")
    a("s_add_u32 s44, s44, 0x%x", XF + 2 * 28 * 1024)
    add64(a, 44, 4, off_sgpr=44)
    a("s_mov_b32 s24, 0")
    a("s_mov_b64 s[62:63], 0")
    a("s_min_u32 s38, s20, 27")
    a("s_mul_i32 s38, s38, %d", 16 * 1024)
    a("s_add_u32 s38, s38, 0x%x", UF)
    add64(a, 38, 4, off_sgpr=38)
    a("s_lshl_b32 s40, s21, 13")
    a("s_lshl_b32 s41, s22, 11")
    a("s_add_u32 s40, s40, s41")
    a("s_add_u32 s40, s40, 0x%x", TBX - 28 * 4096 + 2048)
    add64(a, 40, 4, off_sgpr=40)
    add64(a, 48, 4, imm=MEMX)
    a("s_mov_b64 s[54:55], s[38:39]")
    a("s_sub_u32 s56, s20, 28")
    a("s_max_i32 s56, s56, 0")
    a("s_mul_i32 s56, s56, %d", 7 * 16384)
    a("s_add_u32 s56, s56, 0x%x", UF + 2 * 28 * 16 * 1024)
    add64(a, 56, 4, off_sgpr=56)
    a("s_cmp_lg_u32 s23, 0")
    a("s_cbranch_scc1 CH_hs")
    NL = max(128 - npf, 1); NHP = (7 * NL + 319) // 320
    a("s_and_b32 s50, s20, 1")
    a("s_lshl_b32 s50, s50, 2")
    a("s_add_u32 s50, s50, s60")
    a("s_min_u32 s50, s50, 6")
    a("s_lshl_b32 s50, s50, 10")
    a("v_lshrrev_b32 v4, 5, v1")
    a("v_lshlrev_b32 v4, 9, v4")
    a("v_bfe_u32 v16, v1, 4, 1")
    a("v_lshl_add_u32 v4, v16, 7, v4")
    a("v_and_b32 v16, 7, v1")
    a("v_lshl_add_u32 v4, v16, 4, v4")
    a("v_bfe_u32 v16, v1, 3, 1")
    a("v_lshl_add_u32 v4, v16, 3, v4")
    a("v_add_u32 v4, s50, v4")
    a("v_add_u32 v13, s50, v2")
    a("s_sub_u32 s50, s20, 28")
    a("s_lshl_b32 s50, s50, 7")
    a("s_add_u32 s50, s50, %d", 192 * 1024)
    a("v_mov_b32 v11, s50")
    a("s_cmp_lg_u32 s14, 7")
    a("s_cbranch_scc1 CH_h7")
    a("v_min_u32 v10, 55, v1")
    a("v_lshlrev_b32 v10, 7, v10")
    a.label("CH_h7")
    for i in range(NHP):
        a("s_min_u32 s50, s14, 4")
        a("s_add_u32 s50, s50, %d", 5 * i)
        a("s_lshl_b32 s50, s50, 6")
        a("v_add_u32 v16, s50, v1")
        a("v_min_u32 v16, %d, v16", 7 * NL - 1)
        a("v_cvt_f32_u32 v17, v16")
        a("v_add_f32 v17, 0.5, v17")
        a("v_mul_f32 v17, %s, v17", f32(1.0 / NL))
        a("v_cvt_u32_f32 v17, v17")
        a("v_mul_u32_u24 v18, %d, v17", NL)
        a("v_sub_u32 v16, v16, v18")
        a("v_add_u32 v16, %d, v16", 128 - NL)
        a("v_lshlrev_b32 v16, 7, v16")
        a("v_lshl_add_u32 v%d, v17, 14, v16", BW + i)
    a.label("CH_hs")
    XR = EX; UR = EX; GX = EX + 16; GM = EX + 24
    def xload():
        for k in range(7):
            a("global_load_dwordx4 %s, v2, s[42:43] offset:%d sc1", vr(XR + 4 * k, 4), k * 1024 - 4096)
    a("s_mul_i32 s50, s14, %d", BWSZ)
    a("s_add_u32 s50, s50, %d", L_BW)
    a("v_add_u32 v15, s50, v2")
    a("v_min_u32 v16, 55, v1")
    a("v_lshlrev_b32 v17, 7, v16")
    a("global_load_dword v30, v17, s[42:43] offset:-4096 sc1")
    def breg(n): return BW + n * 8 if n < 6 else 32 + (n - 6) * 8
    a("s_cmp_eq_u32 s23, 0")
    a("s_cbranch_scc1 CH_noB")
    a("s_lshl_b32 s50, s22, 2")
    a("s_add_u32 s50, s50, s60")
    a("s_mul_i32 s50, s50, 14")
    a("s_add_u32 s50, s50, s21")
    a("s_mul_i32 s50, s50, %d", 56 * 1024)
    a("s_mul_i32 s51, s61, 7168")
    a("s_add_u32 s50, s50, s51")
    a("s_add_u32 s50, s50, 0x%x", BF + 4096)
    add64(a, 50, 4, off_sgpr=50)
    add64(a, 52, 50, imm=28 * 1024)
    border = list(range(6, 14)) + list(range(6))
    for n in border:
        for w in range(2):
            a("global_load_dwordx4 %s, v%d, s[%d:%d] offset:%d", vr(breg(n) + w * 4, 4), 31 if w else 2, 50 + 2 * (n & 1), 51 + 2 * (n & 1), (n >> 1) * 1024 - 4096)
    a("s_branch CH_B1")
    a.label("CH_noB")
    a("s_waitcnt vmcnt(0)")
    a.label("CH_B1")
    NX = 3 if merged else 1
    a("s_mul_i32 s50, s20, 5120")
    add64(a, 50, 26, off_sgpr=50)
    a("v_min_u32 v19, 39, v1")
    a("v_lshlrev_b32 v19, 7, v19")
    a("global_load_dword v29, v19, s[50:51] sc1")
    if merged:
        add64(a, 52, 4, imm=UFL)
        a("v_lshlrev_b32 v16, 4, v16")
        a("s_lshl_b32 s50, s14, 10")
        a("v_add_u32 v17, s50, v16")
        a("v_mov_b32 v18, %d", C_TICKET * 4)
        a("global_load_dwordx4 v[24:27], v17, s[52:53] sc1")
        a("global_load_dword v28, v18, s[10:11] sc1")
    a("s_cmp_eq_u32 s14, 7")
    a("s_cbranch_scc1 CH_A2")
    a("s_waitcnt vmcnt(%d)", 57 + NX)
    for d in range(4):
        a("v_lshlrev_b32 v19, 16, v%d", 20 + d)
        a("v_and_b32 v%d, 0xffff0000, v%d", 20 + d, 20 + d)
        a("v_cvt_pk_f16_f32 v%d, v19, v%d", 20 + d, 20 + d)
    a("ds_write_b128 v14, v[20:23]")
    for k in range(14):
        a("s_waitcnt vmcnt(%d)", 26 - 2 * k + 29 + NX)
        interleave(a, AW + k * 8)
    a.label("CH_A2")
    a("s_cmp_eq_u32 s23, 0")
    a("s_cbranch_scc1 CH_wdone")
    a("s_cmp_eq_u32 s14, 7")
    a("s_cbranch_scc1 CH_B3")
    for i, n in enumerate(border[:8]):
        a("s_waitcnt vmcnt(%d)", 26 - 2 * i + NX)
        interleave(a, breg(n))
        for hf in range(2):
            a("ds_write_b128 v15, %s offset:%d", vr(breg(n) + 4 * hf, 4), (n - 6) * 2048 + hf * 1024)
    a("s_branch CH_B4")
    a.label("CH_B3")
    for i, n in enumerate(border[:8]):
        a("s_waitcnt vmcnt(%d)", 26 - 2 * i + NX)
        b = breg(n)
        for d in range(8): a("v_mov_b32 v%d, v%d", AW + 8 * i + d, b + (d >> 1) + 4 * (d & 1))
    a.label("CH_B4")
    a("s_waitcnt lgkmcnt(0)")
    a.label("CH_wdone")
    a("s_cmp_lt_u32 s14, 6")
    a("s_cbranch_scc1 CH_x0")
    xload()
    a("s_waitcnt vmcnt(7)")
    a.label("CH_x0")
    a("s_cmp_eq_u32 s23, 0")
    a("s_cbranch_scc1 CH_B5")
    for i, n in enumerate(border[8:]):
        a("s_waitcnt vmcnt(%d)", 10 - 2 * i + NX)
        interleave(a, breg(n))
    a.label("CH_B5")
    a("v_mov_b32 v0, 0")
    a("s_mov_b32 s97, 0")
    a("s_waitcnt vmcnt(0) lgkmcnt(0)")
    if prof == 4: a("s_memrealtime s[94:95]")
    if merged:
        a("s_branch CH_t1")
        a.label("CH_t0")
        a("global_load_dwordx4 v[24:27], v17, s[52:53] sc1")
        a("global_load_dword v28, v18, s[10:11] sc1")
        a("s_sub_u32 s25, s25, 1")
        a("s_cbranch_scc1 %s", abort)
        a("s_waitcnt vmcnt(0)")
        a.label("CH_t1")
        a("v_or3_b32 v24, v24, v25, v26")
        a("v_or_b32 v24, v24, v27")
        a("v_cmp_ne_u32 vcc, 0, v24")
        a("v_readfirstlane_b32 s97, v28")
        a("s_cbranch_vccnz CH_t0")
        a("s_and_b32 s50, s97, 0xffff")
        a("s_cmp_lt_u32 s50, 32")
        a("s_cbranch_scc1 CH_t0")
        a("s_lshr_b32 s97, s97, 16")
        a("v_mov_b32 v%d, v16", STG + 8)
        for i in range(8): a("v_mov_b32 v%d, 0", STG + i)
    def slotptr(d, base, delta, stride):
        a("s_add_u32 s50, s24, %d", delta)
        a("s_and_b32 s50, s50, 3")
        a("s_mul_i32 s50, s50, %d", stride)
        add64(a, d, base, off_sgpr=50)
    def adv(r, n):
        if (xp & 1) and r in (38, 42, 44, 54, 56): return
        a("s_add_u32 s%d, s%d, %d", r, r, n); a("s_addc_u32 s%d, s%d, 0", r + 1, r + 1)
    def ptrs(w, first=False):
        if w != 4: slotptr(34, 28, 0, SR_STRIDE)
        if w >= 5: slotptr(36, 28, 3, SR_STRIDE)
        slotptr(30, 26, 1, MEMR_STRIDE)
        if w == 6: slotptr(32, 26, 3, MEMR_STRIDE)
        if w >= 6: adv(42, 28 * 1024)
        if w >= 4: adv(54, 28 * 16384)
        if first: return
        if w < 4: adv(38, 28 * 16384); adv(48, 8192)
        if w == 7: adv(40, 28 * 4096); adv(44, 28 * 1024)
        if w <= 4: adv(56, 28 * 16384)
    G1 = (GX, GX + 4, GM, GM + 1); G2 = (MFR + 24, STG + 12, EX + 26, EX + 27)
    def gather(G=G1):
        a("global_load_dwordx4 %s, v10, s[34:35] sc1", vr(G[0], 4))
        a("global_load_dwordx4 %s, v10, s[34:35] offset:1024 sc1", vr(G[1], 4))
        a("global_load_dword v%d, v11, s[34:35] sc1", G[2])
        a("global_load_dword v%d, v11, s[34:35] offset:256 sc1", G[3])
    def zero(r, n=4):
        for i in range(n): a("v_mov_b32 v%d, 0", r + i)
    def memx():
        a("ds_read2_b64 %s, v4 offset0:0 offset1:32", vr(STG, 4))
        a("s_waitcnt lgkmcnt(0)")
        a("global_store_dwordx4 v13, %s, s[48:49] sc1", vr(STG, 4))
    def tbx_read(d):
        for k in range(4):
            a("ds_read_b128 %s, v2 offset:%d", vr(d + 4 * k, 4), L_TB2 + k * 1024)
    def tbx_store(d):
        for k in range(4):
            a("global_store_dwordx4 v2, %s, s[40:41] offset:%d sc1", vr(d + 4 * k, 4), (k >> 1) * 4096 + (k & 1) * 1024 - 2048)

    class TB:
        def __init__(self, w, q):
            self.w = w; self.q = q
            self.loc = {n: BW + 8 * n for n in range(6)}
            if w == 7:
                for n in range(6, 14): self.loc[n] = AW + 8 * (n - 6)
                self.pend = []; self.order = list(range(14))
            else:
                self.pend = list(range(6, 14))
                self.order = [6, 0, 7, 1, 8, 2, 9, 3, 10, 4, 11, 5, 12, 13]
            self.lds = set(self.pend); self.pos = 0
        def stage(self, slot):
            if not self.pend: return
            n = self.pend.pop(0); self.loc[n] = slot
            for hf in range(2):
                self.q.issue(("B", n), "ds_read_b128 %s, v15 offset:%d", vr(slot + 4 * hf, 4), (n - 6) * 2048 + hf * 1024)
        def late(self):
            self.order = [0, 1, 2, 6, 3, 7, 4, 8, 5, 9, 10, 11, 12, 13]
        def run(self, upto, hooks={}):
            while self.pos < upto:
                n = self.order[self.pos]
                self.q.wait(("M", n >> 1))
                if n in self.lds: self.q.wait(("B", n))
                a(SM, vr(ACC1 if n & 1 else ACC0, 4), vr(MFR + 4 * (n >> 1), 4), vr(self.loc[n], 8))
                if n in self.lds: self.stage(self.loc[n])
                if self.pos in hooks: hooks[self.pos]()
                self.pos += 1
    TBO = MFR; TPR = MFR + 8; PX = MFR + 12; PM = MFR + 16; T0 = MFR + 18; T1 = MFR + 19; RZ = MFR + 20
    ONE = STG; ZA = STG + 8
    def tb_cvt(d):
        for b, acc in enumerate((ACC0, ACC1)):
            a("v_cvt_pk_f16_f32 v%d, v%d, v%d", d + 2 * b, acc, acc + 1)
            a("v_cvt_pk_f16_f32 v%d, v%d, v%d", d + 2 * b + 1, acc + 2, acc + 3)
    def tb_give(d=TBO):
        tb_cvt(d)
        a("ds_write_b128 v12, %s", vr(d, 4))
        a("s_waitcnt lgkmcnt(0)")
        P("TB done")
    def tb_take1():
        a("s_barrier")
        a("ds_read_b128 %s, v12", vr(TPR, 4))
    def tb_take2():
        a("s_waitcnt lgkmcnt(0)")
        for d in range(4): a("v_pk_add_f16 v%d, v%d, v%d", TBO + d, TBO + d, TPR + d)
    def tb_take3():
        for b in range(2): a("ds_write_b64 v8, %s offset:%d", vr(TBO + 2 * b, 2), b * 2048)
    def mread(q, n):
        q.issue(("O", n) if n < 7 else ("M", n - 7), "ds_read_b128 %s, v%d offset:%d", vr(MFR + 4 * (n % 7), 4), 3 if n < 7 else 6, (n % 7) * 512)

    FLG = 192 * 1024
    class _N:
        def __call__(self, *x): pass
    def wave_loop(w, hp):
        pv = w < 4; N = MODE["PX"] + ("H%d" if hp else "C%d") % w
        ST = MODE["ST"]
        uchk = merged and hp and w == 4
        def ufl_ld(delta):
            a("s_add_u32 s50, s24, %d", delta)
            a("s_min_u32 s50, s50, 63")
            a("s_lshl_b32 s50, s50, 11")
            add64(a, 50, 52, off_sgpr=50)
            for k in range(2): a("global_load_dwordx4 %s, v%d, s[50:51] offset:%d sc1", vr(STG + 4 * k, 4), STG + 8, 1024 * k)
        TA = GX if pv else ACC0
        W7 = AW + 64
        r = {7: W7}.get(w, EX); r2 = r + 8; t = MFR
        pol = w != 6
        tail = []
        def poll(r):
            a("global_load_dwordx4 %s, v14, s[58:59] offset:-3584 sc1", vr(r, 4))
            a("global_load_dwordx4 %s, v14, s[58:59] offset:3584 sc1", vr(r + 4, 4))
        def newtb(q0, q):
            if hp: return None
            tb = TB(w, q0)
            if w < 6: tb.stage(STG); tb.stage(STG + 8)
            tb.q = q
            return tb
        def pre():
            newtb(LQ(a), None)
            if w != 7: zero(TA)
            if (pv or w == 7) and not hp: zero(ACC0); zero(ACC1)
            a("s_setprio 1")
        def mchk(x, lab):
            for d in range(4): a("v_pk_add_f16 v%d, v%d, v%d", t + d, x + d, x + 4 + d)
            a("ds_write_b128 v14, %s", vr(t, 4))
            a("v_pk_maximum3_f16 v%d, v%d, v%d, v%d", t + 4, t, t + 1, t + 2)
            a("v_pk_maximum3_f16 v%d, v%d, v%d, v%d", t + 4, t + 4, t + 3, t + 3)
            a("v_cmp_u_f16 vcc, v%d, v%d", t + 4, t + 4)
            a("s_cbranch_vccnz %s", lab)
        a.label(N + "_entry")
        ptrs(w, True)
        pre()
        a("s_branch %s_top", N)
        a.raw(".p2align 6")
        a.label(N + "_loop")
        if pol:
            a("s_waitcnt vmcnt(%d)", 2 if p2 else 0)
            mchk(r, N + "_mre")
            def mre():
                a.label(N + "_mre")
                poll(r)
                P("M re")
                if prof: a("s_add_u32 s62, s62, 1")
                a("s_sub_u32 s25, s25, 1")
                a("s_cbranch_scc1 %s", abort)
                if p2:
                    a("s_waitcnt vmcnt(2) lgkmcnt(0)")
                    mchk(r2, N + "_mre2")
                    a("s_branch %s_got", N)
                    a.label(N + "_mre2")
                    poll(r2)
                a("s_waitcnt lgkmcnt(0)")
                a("s_branch %s_loop", N)
            tail.append(mre)
        else:
            a("s_waitcnt vmcnt(0)")
        a.label(N + "_got")
        P("mem got")
        a.label(N + "_top")
        a("s_cmp_eq_u32 s24, 63")
        a("s_waitcnt lgkmcnt(0)")
        a("s_barrier")
        P("top")
        a("s_cbranch_scc1 %s_fin", N)
        q = LQ(a)
        tb = newtb(LQ(_N()), q)
        if w != 7:
            dp = dep if pv else dep2
            for n in range(dp): mread(q, n)
            for n in range(14):
                if n == 0: P("a pre")
                q.wait(("O", n) if n < 7 else ("M", n - 7))
                a(SM, vr(TA, 4), vr(MFR + 4 * (n % 7), 4), vr(AW + n * 8, 8))
                if n in (0, 2, 4, 6, 8, 10, 13): P("a%d" % n)
                if n + dp < 14: mread(q, n + dp)
            if pv and not hp:
                for k in range(2): a("global_load_dwordx4 %s, v13, s[38:39] offset:%d sc1", vr(UR + 4 * k, 4), k * 1024)
            a("v_cvt_pk_f16_f32 v%d, v%d, v%d", TA, TA, TA + 2)
            a("v_cvt_pk_f16_f32 v%d, v%d, v%d", TA + 1, TA + 1, TA + 3)
            q.issue("T", "ds_write2_b32 v7, v%d, v%d offset0:0 offset1:4", TA, TA + 1)
            if pv:
                a("s_setprio 0")
                if hp:
                    if not (xp & 2): memx()
                else:
                    for k in range(2, 4): a("global_load_dwordx4 %s, v13, s[38:39] offset:%d sc1", vr(UR + 4 * k, 4), k * 1024)
                    tb.run(nb2)
            if uchk:
                a.label(N + "_uc")
                a("v_or3_b32 v%d, v%d, v%d, v%d", STG, STG, STG + 1, STG + 2)
                a("v_or3_b32 v%d, v%d, v%d, v%d", STG + 3, STG + 3, STG + 4, STG + 5)
                a("v_or3_b32 v%d, v%d, v%d, v%d", STG, STG, STG + 6, STG + 7)
                a("v_or_b32 v%d, v%d, v%d", STG, STG, STG + 3)
                a("v_cmp_ne_u32 vcc, 0, v%d", STG)
                a("s_cbranch_vccnz %s_ure", N)
                def ure():
                    a.label(N + "_ure")
                    ufl_ld(3)
                    a("s_sub_u32 s25, s25, 1")
                    a("s_cbranch_scc1 %s", abort)
                    a("s_waitcnt vmcnt(0)")
                    a("s_branch %s_uc", N)
                tail.append(ure)
            q.wait("T")
            if w == 5: a("s_waitcnt vmcnt(0)")
        elif hp:
            a("global_load_dword v%d, v10, s[44:45] sc1", BW + 28)
        else:
            a("s_setprio 0")
            if nv > 0: a("global_load_dword v4, v10, s[54:55] sc1")
            tbx_read(STG)
            a("s_waitcnt lgkmcnt(0)")
            if not (xp & 2): tbx_store(STG)
            for n in range(7, 14): mread(q, n)
            tb.run(nb7)
        P("TA done")
        a("s_barrier")
        P("bar2")
        def pubS():
            a("s_barrier")
            P("pubS")
        def gath():
            P("G iss")
            gather()
        if w >= 5:
            a("s_setprio 3")
            ring = {5: [EX + 4 * k for k in range(7)], 6: [STG, STG + 4, STG + 8, STG + 12, ACC1], 7: [W7 + 16 + 4 * k for k in range(7)]}[w]
            SA = W7 + 44 if w == 7 else ACC0
            D = len(ring)
            def trd(k):
                if w == 5: q.issue(("S", k), "ds_read2_b64 %s, v%d offset0:%d offset1:%d", vr(ring[k], 4), 8 if k < 4 else 10, (k & 3) * 64, (k & 3) * 64 + 16)
                else: q.issue(("S", k), "ds_read_b128 %s, v8 offset:%d", vr(ring[k % D], 4), k * 512)
            for k in range(min(D, 7)): trd(k)
            for k in range(7):
                q.wait(("S", k))
                a("v_mfma_f32_16x16x32_f16 %s, %s, %s, %s", vr(SA, 4), vr((MFR if w == 5 else XR) + 4 * k, 4), vr(ring[k % D], 4), vr(SA, 4) if k else "0")
                if k + D < 7: trd(k + D)
            o = ring[2]
            a("s_mov_b64 exec, s[46:47]")
            a("v_mov_b32 v%d, -1", o + 2)
            if w == 5:
                a("v_cvt_pk_f16_f32 v%d, v%d, v%d", o, ACC0, ACC0 + 1)
                a("global_store_dword v9, v%d, s[34:35] %s", o, ST)
                a("global_store_dword v9, v%d, s[36:37] %s", o + 2, ST)
            else:
                a("v_mov_b32 v%d, -1", o + 3)
                a("v_cvt_pk_f16_f32 v%d, v%d, v%d", o, SA, SA + 1)
                a("v_cvt_pk_f16_f32 v%d, v%d, v%d", o + 1, SA + 2, SA + 3)
                a("global_store_dwordx2 v9, %s, s[34:35] %s", vr(o, 2), ST)
                a("global_store_dwordx2 v9, %s, s[36:37] %s", vr(o + 2, 2), ST)
            a("s_mov_b64 exec, -1")
            a("s_setprio 0")
            P("S pub")
            pubS()
            if not hp:
                if w == 6: tb.stage(STG)
                if w < 7: zero(ACC0); zero(ACC1)
                if w == 6:
                    tb.late()
                    tb.stage(STG + 8)
                tb.run(14)
                tb_give()
                a("s_barrier")
                if w >= 6: xload()
                if w != 6: spf(w)
        elif hp:
            if w == 4: a("s_setprio 0")
            pubS()
        elif pv: tb.run(nb3); pubS(); tb.run(14, {gpos: gath})
        else:
            a("s_setprio 0")
            zero(ACC0); zero(ACC1)
            tb.run(14, {bpos: pubS})
            tb_give()
            spf(4)
            a("s_barrier")
        if hp:
            if w <= 4:
                for i in range(NHP): a("global_load_dword v%d, v%d, s[56:57] sc1", EX + i, BW + i)
                if uchk: ufl_ld(4)
            elif w >= 6: xload()
            elif flag:
                for i in range(flag - 1): a("global_load_dword v%d, v11, s[26:27] sc1", EX + i)
                a.label(N + "_fl")
                a("s_sub_u32 s25, s25, 1")
                a("s_cbranch_scc1 %s", abort)
                for i in range(flag):
                    a("global_load_dword v%d, v11, s[26:27] sc1", EX + (i + flag - 1) % flag)
                    a("s_waitcnt vmcnt(%d)", flag - 1)
                    a("v_cmp_gt_i32 vcc, s24, v%d", EX + i)
                    if i < flag - 1: a("s_cbranch_vccz %s_fd", N)
                    else: a("s_cbranch_vccnz %s_fl", N)
                a.label(N + "_fd")
            if flag: a("s_barrier")
        if pv and not hp:
            for i in range(8): a("v_mov_b32 v%d, 0x3c003c00", ONE + i)
            zero(ZA)
            if gpos == 14: gath()
            tb_cvt(TBO)
            zero(TBO + 4, 2); zero(PM + 1, 1)
            zero(ACC0); zero(ACC1)
            if w == 3: a("v_mov_b32 v%d, s24", RZ)
            if gpos == 15: gath()
            if g2: gather(G2)
            P("II")
            def gchk(G, lab):
                for d in range(4): a("v_pk_add_f16 v%d, v%d, v%d", PX + d, G[0] + d, G[1] + d)
                a("v_pk_add_f16 v%d, v%d, v%d", PM, G[2], G[3])
                a("v_pk_maximum3_f16 v%d, v%d, v%d, v%d", T0, PX, PX + 1, PX + 2)
                a("v_pk_maximum3_f16 v%d, v%d, v%d, v%d", T0, T0, PX + 3, PM)
                a("v_pk_maximum3_f16 v%d, v%d, v%d, v%d op_sel:[0,1,0] op_sel_hi:[1,0,1]", T0, T0, T0, T0)
                a("v_mov_b32 v%d, v%d", T1, T0)
                a("v_cmp_u_f16 vcc, v%d, v%d", T0, T0)
                a("v_permlane32_swap_b32 v%d, v%d", T0, T1)
                a("v_pk_max_f16 v%d, v%d, v%d", T0, T0, T1)
                a("v_mov_b32 v%d, v%d", T1, T0)
                a("s_cbranch_vccnz %s", lab)
            a.label(N + "_sp")
            a("s_waitcnt vmcnt(%d)", 4 if g2 else 0)
            gchk(G1, N + "_gre")
            def gre():
                a.label(N + "_gre")
                P("G re")
                if prof: a("s_add_u32 s63, s63, 1")
                gather()
                a("s_sub_u32 s25, s25, 1")
                a("s_cbranch_scc1 %s", abort)
                if g2:
                    a("s_waitcnt vmcnt(4)")
                    gchk(G2, N + "_gre2")
                    a("s_branch %s_sok", N)
                    a.label(N + "_gre2")
                    gather(G2)
                a("s_branch %s_sp", N)
            tail.append(gre)
            a.label(N + "_sok")
            P("S got")
            a("v_permlane16_swap_b32 v%d, v%d", T0, T1)
            a("v_pk_max_f16 v%d, v%d, v%d", T0, T0, T1)
            for x in (PM, PX, PX + 1, PX + 2, PX + 3):
                a("v_pk_add_f16 v%d, v%d, v%d neg_lo:[0,1] neg_hi:[0,1]", x, x, T0)
            nex = [0]
            def ex(x, hi):
                a("v_exp_f16_sdwa v%d, v%d dst_sel:WORD_%d dst_unused:UNUSED_PRESERVE src0_sel:WORD_%d", x, x, hi, hi)
                if w == 3 and flag and nex[0] == fpos: a("global_store_dword v4, v%d, s[26:27] %s", RZ, ST)
                nex[0] += 1
            S2 = "v_smfmac_f32_16x16x32_f16 %s, %s, %s, v5"
            ex(PM, 0); ex(PX, 0)
            tb_take1()
            P("bar3")
            ex(PM, 1); ex(PX + 1, 0); ex(PX, 1)
            a(S2, vr(ZA, 4), vr(PM, 2), vr(ONE, 4))
            ex(PX + 2, 0); ex(PX + 1, 1); ex(PX + 3, 0); ex(PX + 2, 1); ex(PX + 3, 1)
            a(SM, vr(ZA, 4), vr(PX, 4), vr(ONE, 8))
            a(SM, vr(ACC0, 4), vr(PX, 4), vr(UR, 8))
            a(SM, vr(ACC1, 4), vr(PX, 4), vr(UR + 8, 8))
            tb_take2()
            a(S2, vr(ACC0, 4), vr(PM, 2), vr(TBO, 4))
            a(S2, vr(ACC1, 4), vr(PM, 2), vr(TBO + 2, 4))
            for i in range(4): a("v_rcp_f32 v%d, v%d", RZ + i, ZA + i)
            for b, acc in enumerate((ACC0, ACC1)):
                a("v_pk_mul_f32 %s, %s, %s", vr(acc, 2), vr(acc, 2), vr(RZ, 2))
                a("v_pk_fma_f32 %s, %s, %s, %s", vr(acc, 2), vr(acc + 2, 2), vr(RZ + 2, 2), vr(acc, 2))
                a("ds_write2st64_b32 v9, v%d, v%d offset0:%d offset1:%d", acc, acc + 1, b, 2 + b)
            tb_take3()
            a("s_waitcnt lgkmcnt(2)")
            P("red wr")
        if not hp:
            a("s_barrier")
            if w == 6:
                R = MFR
                for k in range(4): a("ds_read_b128 %s, v2 offset:%d", vr(R + 4 * k, 4), L_RED + k * 1024)
                a("v_mov_b32 v%d, -1", R + 16)
                a("v_mov_b32 v%d, -1", R + 17)
                a("s_waitcnt lgkmcnt(2)")
                for d in (0, 2): a("v_pk_add_f32 %s, %s, %s", vr(R + d, 2), vr(R + d, 2), vr(R + 4 + d, 2))
                a("s_waitcnt lgkmcnt(1)")
                for d in (0, 2): a("v_pk_add_f32 %s, %s, %s", vr(R + d, 2), vr(R + d, 2), vr(R + 8 + d, 2))
                a("s_waitcnt lgkmcnt(0)")
                for d in (0, 2): a("v_pk_add_f32 %s, %s, %s", vr(R + d, 2), vr(R + d, 2), vr(R + 12 + d, 2))
                a("v_cvt_pk_f16_f32 v%d, v%d, v%d", R, R, R + 1)
                a("v_cvt_pk_f16_f32 v%d, v%d, v%d", R + 1, R + 2, R + 3)
                a("global_store_dwordx2 v13, %s, s[30:31] %s", vr(R, 2), ST)
                a("global_store_dwordx2 v13, %s, s[32:33] %s", vr(R + 16, 2), ST)
                P("mem pub")
                spf(6)
            a("s_barrier")
        a("s_add_u32 s58, s30, 3584"); a("s_addc_u32 s59, s31, 0")
        pd = 0 if hp else pdel
        def p1(): poll(r); P("M iss")
        if pol and pd == 0: p1()
        a("s_add_u32 s24, s24, 1")
        ptrs(w)
        if pol and pd == 1: p1()
        if pv and not hp: a("s_waitcnt vmcnt(%d)", 0 if pd == 2 else 2)
        pre()
        if pol and pd == 2: p1()
        if P.on:
            a("s_waitcnt lgkmcnt(0)")
            P.flush()
        if pol and p2: poll(r2)
        a("s_branch %s_loop", N)
        for f in tail: f()
        a.label(N + "_fin")
        a("s_setprio 0")
        a("s_waitcnt vmcnt(0)")
        if hp:
            if pv: memx()
            a("s_branch CH_fin")
            return
        q = LQ(a)
        tb = newtb(LQ(_N()), q)
        for n in range(7, 14): mread(q, n)
        if w == 7: tbx_read(W7)
        if w == 6: tb.stage(STG); tb.stage(STG + 8)
        if w in (4, 5, 6): zero(ACC1)
        q.all()
        if w == 7: tbx_store(W7); adv(40, 28 * 4096)
        tb.run(14)
        if pv:
            tb_cvt(TBO); tb_take1(); tb_take2(); tb_take3()
            a("s_waitcnt lgkmcnt(0)")
        else:
            tb_give()
            a("s_barrier")
        a("s_barrier")
        if w == 7:
            tbx_read(MFR)
            a("s_waitcnt lgkmcnt(0)")
            tbx_store(MFR)
        a("s_branch CH_fin")
    if merged:
        a("s_cmp_lg_u32 s97, 0")
        a("s_cbranch_scc1 CH_mixed")
    for px, st in ((("", ""), ("X", "sc1")) if merged else (("", ""),)):
        MODE["PX"] = px; MODE["ST"] = st
        if px: a.label("CH_mixed")
        for hp in (0, 1):
            H = px + ("H" if hp else "C")
            if hp: a.label(px + "CH_hdisp")
            else:
                a("s_cmp_eq_u32 s23, 0")
                a("s_cbranch_scc1 %sCH_hdisp", px)
            for w in (3, 4, 5, 6, 7):
                a("s_cmp_eq_u32 s14, %d", w)
                a("s_cbranch_scc1 %s%d_entry", H, w)
            for w in (0, 3, 4, 5, 6, 7): wave_loop(w, hp)
    a.label("CH_fin")
    a("s_waitcnt vmcnt(0)")
    if prof:
        a("s_lshl_b32 s50, s20, 3")
        a("s_add_u32 s50, s50, s14")
        a("s_lshl_b32 s50, s50, 8")
        a("s_add_u32 s50, s50, 0x%x", POIS_END)
        add64(a, 50, 4, off_sgpr=50)
        if prof == 4:
            a("s_bitcmp1_b32 s14, 0")
            a("s_cselect_b32 s98, s100, s98")
            a("s_cmp_eq_u32 s14, 3")
            a("s_cselect_b32 s98, s94, s98")
            a("s_memrealtime s[94:95]")
            a("s_waitcnt lgkmcnt(0)")
            a("s_cmp_eq_u32 s14, 5")
            a("s_cselect_b32 s98, s66, s98")
            a("s_cmp_eq_u32 s14, 7")
            a("s_cselect_b32 s98, s94, s98")
            a("v_writelane_b32 v%d, s98, 0", VP)
        else:
            a("v_writelane_b32 v%d, s62, 22", VP)
            a("v_writelane_b32 v%d, s63, 23", VP)
        a("v_lshlrev_b32 v16, 2, v1")
        a("global_store_dword v16, v%d, s[50:51]", VP)
    return P.names

def emit_chain_kernel(a, prof=False, **kw):
    a.raw(".p2align 8")
    a.label("chain_kernel")
    a("s_cmp_ge_u32 s2, 256")
    a("s_cbranch_scc1 CH_abort")
    a("s_getreg_b32 s16, hwreg(HW_REG_XCC_ID)")
    a("s_and_b32 s16, s16, 15")
    a("s_cmp_lg_u32 s16, 0")
    a("s_cbranch_scc1 CH_abort")
    main_prologue(a)
    a("s_cmp_lg_u32 s14, 0")
    a("s_cbranch_scc1 CK_w")
    a("v_mov_b32 v6, %d", C_TICKET * 4)
    a("v_mov_b32 v7, 1")
    a("s_mov_b64 exec, 1")
    a("global_atomic_add v8, v6, v7, s[10:11] sc0 sc1")
    a("s_waitcnt vmcnt(0)")
    a("v_mov_b32 v6, 0")
    a("ds_write_b32 v6, v8")
    a("s_mov_b64 exec, -1")
    a("s_waitcnt lgkmcnt(0)")
    a.label("CK_w")
    a("s_barrier")
    a("v_mov_b32 v6, 0")
    a("ds_read_b32 v8, v6")
    a("s_waitcnt lgkmcnt(0)")
    a("v_readfirstlane_b32 s20, v8")
    a("s_cmp_ge_u32 s20, 32")
    a("s_cbranch_scc1 CH_abort")
    names = emit_chain(a, prof, **kw)
    a.label("CH_abort")
    a("s_endpgm")
    return names
```

```python
from common import *
LX = 0; LM = 28 * 1024; LP = 36 * 1024; LPM = 52 * 1024
MF = "v_mfma_f32_16x16x32_f16 %s, %s, %s, %s"
def emit_f(a, abort, nb, pre=None, prof=0, gate=2):
    QR = 16; SX = 128; SMm = 144; RING = 152; UE = 176; FOR = 248; TBR = 72; PR = 104
    a.c("---- F task")
    a("s_mov_b32 s25, 0x400000")
    a("s_min_u32 s24, s14, 6")
    a("s_mul_i32 s23, s23, 7")
    a("s_add_u32 s23, s23, s24")
    if nb == 2: a("s_lshl_b32 s23, s23, 1")
    a("s_mul_i32 s26, s21, %d", 28 * 1024)
    a("s_add_u32 s26, s26, 0x%x", XF)
    add64(a, 26, 4, off_sgpr=26)
    a("s_lshl_b32 s28, s21, 4")
    a("s_lshl_b32 s29, s14, 1")
    a("s_add_u32 s28, s28, s29")
    a("s_lshl_b32 s28, s28, 1")
    a("s_add_u32 s28, s28, s22")
    a("s_mul_i32 s28, s28, %d", 14 * 1024)
    a("s_add_u32 s28, s28, 0x%x", QF + 4096)
    add64(a, 28, 4, off_sgpr=28)
    a("s_mul_i32 s30, s21, 28")
    a("s_add_u32 s30, s30, s23")
    a("s_lshr_b32 s32, s30, 1")
    a("s_lshl_b32 s32, s32, 15")
    a("s_and_b32 s31, s30, 1")
    a("s_lshl_b32 s33, s31, 11")
    a("s_add_u32 s32, s32, s33")
    a("s_add_u32 s32, s32, 0x%x", UF + 4096)
    add64(a, 32, 4, off_sgpr=32)
    a("s_lshl_b32 s34, s30, 1")
    a("s_add_u32 s34, s34, s22")
    a("s_lshl_b32 s34, s34, 10")
    a("s_add_u32 s34, s34, 0x%x", FO)
    add64(a, 34, 4, off_sgpr=34)
    a("s_lshl_b32 s36, s30, 12")
    a("s_add_u32 s36, s36, 0x%x", TBX + 4096)
    add64(a, 36, 4, off_sgpr=36)
    a("s_lshl_b32 s38, s21, 13")
    a("s_lshl_b32 s39, s24, 10")
    a("s_add_u32 s38, s38, s39")
    a("s_add_u32 s38, s38, 0x%x", MEMX)
    a("s_add_u32 s39, s39, %d", LM)
    a("v_add_u32 v14, s39, v2")
    add64(a, 38, 4, off_sgpr=38)
    a("s_add_u32 s52, s21, %d", gate)
    a("s_min_u32 s52, s52, 63")
    a("s_lshl_b32 s52, s52, 13")
    a("s_add_u32 s52, s52, 0x%x", MEMX)
    add64(a, 52, 4, off_sgpr=52)
    a("s_lshl_b32 s48, s21, 1")
    a("s_add_u32 s48, s48, s22")
    a("s_mul_i32 s48, s48, %d", 16 * 896)
    a("s_lshr_b32 s49, s23, 1")
    a("s_lshl_b32 s49, s49, 6")
    a("s_add_u32 s48, s48, s49")
    a("s_lshl_b32 s49, s31, 3")
    a("s_add_u32 s48, s48, s49")
    add64(a, 48, 8, off_sgpr=48)
    a("v_mul_u32_u24 v15, 896, v4")
    a("v_lshl_add_u32 v15, v3, 4, v15")
    for k in range(1, 4): a("v_add_u32 v%d, %d, v2", 4 + k, k * 8192)
    a("v_lshrrev_b32 v12, 2, v4")
    a("v_lshlrev_b32 v12, 1, v12")
    a("v_and_b32 v13, 1, v4")
    a("v_add_u32 v12, v12, v13")
    a("v_lshlrev_b32 v12, 4, v12")
    a("v_lshl_add_u32 v12, v3, 7, v12")
    a("v_add_u32 v12, %d, v12", LM)
    a("v_lshlrev_b32 v13, 2, v3")
    a("v_sub_u32 v13, v4, v13")
    for r in range(4): a("v_cmp_le_i32 s[%d:%d], %d, v13", 40 + 2 * r, 41 + 2 * r, r)
    if pre: pre()
    a("s_barrier")
    av = lambda off: ([2, 5, 6, 7][off // 8192], off % 8192 - 4096)
    end = a.newlabel("Fend")
    l1 = a.newlabel("Ft1")
    a("s_cmp_eq_u32 s22, 1")
    a("s_cbranch_scc1 %s", l1)
    for tt in range(2):
        if tt: a.label(l1)
        nx = 2 * (tt + 1)
        a("s_mul_i32 s50, s24, %d", nx * 1024)
        a("v_add_u32 v8, s50, v2")
        a("s_add_u32 m0, s50, %d", LX)
        for k in range(nx): a("global_load_lds_dwordx4 v8, s[26:27] offset:%d", 1024 * k)
        for hh in range(2):
            for ks in range(14):
                v, o = av(ks * 1024)
                a("global_load_dwordx4 %s, v%d, s[28:29] offset:%d sc1", vr(QR + (hh * 14 + ks) * 4, 4), v, o)
            if hh == 0:
                a("s_add_u32 s28, s28, %d", 28 * 1024); a("s_addc_u32 s29, s29, 0")
        ufr = [(p, t, b) for p in range(8) for t in range(tt + 1) for b in range(nb)]
        ureg = {f: (UE + 4 * n if n < 18 else QR + 4 * (n - 18)) for n, f in enumerate(ufr)}
        def uld(f):
            p, t, b = f
            v, o = av((p * 4 + b * 2 + t) * 1024)
            a("global_load_dwordx4 %s, v%d, s[32:33] offset:%d sc1", vr(ureg[f], 4), v, o)
        for f in ufr[:18]: uld(f)
        for b in range(nb): a("global_load_dwordx4 %s, v2, s[34:35] offset:%d sc1", vr(FOR + 4 * b, 4), b * 2048)
        ne = min(len(ufr), 18) + nb
        a("s_waitcnt vmcnt(%d)", 28 + ne)
        a("s_barrier")
        fr = [(ks, t) for ks in range(14) for t in range(tt + 1)]
        def rd(n):
            ks, t = fr[n]
            a("ds_read_b128 %s, v2 offset:%d", vr(RING + (n % 6) * 4, 4), LX + (t * 14 + ks) * 1024)
        for n in range(5): rd(n)
        a("s_waitcnt vmcnt(%d)", ne)
        for n in range(len(fr)):
            if n + 5 < len(fr): rd(n + 5)
            a("s_waitcnt lgkmcnt(%d)", min(5, len(fr) - 1 - n))
            ks, t = fr[n]
            for hh in range(2):
                d = vr(SX + (hh * 2 + t) * 4, 4)
                a(MF, d, vr(RING + (n % 6) * 4, 4), vr(QR + (hh * 14 + ks) * 4, 4), d if ks else "0")
        a("v_mov_b32 v8, 0xff800000")
        vals = []
        for hh in range(2):
            for r in range(4):
                x = SX + (hh * 2 + tt) * 4 + r
                a("v_cndmask_b32 v%d, v8, v%d, s[%d:%d]", x, x, 40 + 2 * r, 41 + 2 * r)
            vals.append([SX + (hh * 2 + t) * 4 + r for t in range(tt + 1) for r in range(4)] + [SMm + hh * 4, SMm + hh * 4 + 1])
        n = len(vals[0])
        M0 = [13, 0]
        for hh in range(2): a("v_max_f32 v%d, v%d, v%d", M0[hh], vals[hh][0], vals[hh][1])
        for k in range(2, n - 2, 2):
            for hh in range(2): a("v_max3_f32 v%d, v%d, v%d, v%d", M0[hh], M0[hh], vals[hh][k], vals[hh][k + 1])
        lp = a.newlabel("Fmp"); lg = a.newlabel("Fg"); lb = a.newlabel("Fgb")
        if gate:
            a("s_cmp_eq_u32 s21, 63")
            a("s_cbranch_scc1 %s", lp)
            a("s_cmp_lg_u32 s14, 7")
            a("s_cbranch_scc1 %s", lb)
            a("v_mov_b32 v8, 0")
            a.label(lg)
            a("global_load_dword v9, v8, s[52:53] sc1")
            a("s_sub_u32 s25, s25, 1")
            a("s_cbranch_scc1 %s", abort)
            a("s_waitcnt vmcnt(0)")
            a("v_cmp_eq_u32 vcc, -1, v9")
            a("s_cbranch_vccnz %s", lg)
            a.label(lb)
            a("s_barrier")
        a.label(lp)
        a("global_load_dwordx4 v[8:11], v2, s[38:39] sc1")
        a("s_sub_u32 s25, s25, 1")
        a("s_cbranch_scc1 %s", abort)
        a("s_waitcnt vmcnt(0)")
        a("v_pk_maximum3_f16 v%d, v8, v9, v10", RING)
        a("v_pk_maximum3_f16 v%d, v%d, v11, v11", RING, RING)
        a("v_cmp_u_f16 vcc, v%d, v%d", RING, RING)
        a("s_cbranch_vccnz %s", lp)
        if prof: a("s_memrealtime s[64:65]")
        a("ds_write_b128 v14, v[8:11]")
        a("s_waitcnt lgkmcnt(0)")
        a("s_barrier")
        def rm(n): a("ds_read_b128 %s, v12 offset:%d", vr(RING + (n % 6) * 4, 4), n * 512)
        for k in range(5): rm(k)
        for k in range(14):
            if k + 5 < 14: rm(k + 5)
            a("s_waitcnt lgkmcnt(%d)", min(5, 13 - k))
            for hh in range(2):
                d = vr(SMm + hh * 4, 4)
                a(MF, d, vr(RING + (k % 6) * 4, 4), vr(QR + (hh * 14 + k) * 4, 4), d if k else "0")
        for f in ufr[18:]: uld(f)
        def tbl():
            for b in range(nb):
                for pp in range(4):
                    a("global_load_dwordx4 %s, v2, s[36:37] offset:%d sc1", vr(TBR + (b * 4 + pp) * 4, 4), (b * 4 + pp) * 1024 - 4096)
        tbl()
        a("s_lshl_b32 s50, s14, 11")
        a("s_add_u32 s50, s50, %d", LP)
        a("v_add_u32 v8, s50, v2")
        a("s_lshr_b32 s50, s14, 1")
        a("s_lshl_b32 s50, s50, 10")
        a("s_and_b32 s51, s14, 1")
        a("s_lshl_b32 s51, s51, 3")
        a("s_add_u32 s50, s50, s51")
        a("s_add_u32 s50, s50, %d", LPM)
        a("v_add_u32 v9, s50, v2")
        M = [RING, RING + 1]; T = [RING + 2, RING + 3]
        for hh in range(2): a("v_max3_f32 v%d, v%d, v%d, v%d", M[hh], M0[hh], vals[hh][n - 2], vals[hh][n - 1])
        def allred(op):
            for sw in ("v_permlane32_swap_b32", "v_permlane16_swap_b32"):
                for hh in range(2): a("v_mov_b32 v%d, v%d", T[hh], M[hh])
                for hh in range(2): a("%s v%d, v%d", sw, M[hh], T[hh])
                for hh in range(2): a("%s v%d, v%d, v%d", op, M[hh], M[hh], T[hh])
        allred("v_max_f32")
        for k in range(n):
            for hh in range(2): a("v_sub_f32 v%d, v%d, v%d", vals[hh][k], vals[hh][k], M[hh])
        for k in range(n):
            for hh in range(2): a("v_exp_f32 v%d, v%d", vals[hh][k], vals[hh][k])
        for hh in range(2): a("v_add_f32 v%d, v%d, v%d", M[hh], vals[hh][0], vals[hh][1])
        for k in range(2, n):
            for hh in range(2): a("v_add_f32 v%d, v%d, v%d", M[hh], M[hh], vals[hh][k])
        allred("v_add_f32")
        for hh in range(2): a("v_rcp_f32 v%d, v%d", M[hh], M[hh])
        for k in range(n):
            for hh in range(2): a("v_mul_f32 v%d, v%d, v%d", vals[hh][k], vals[hh][k], M[hh])
        O = RING + 4
        for t in range(tt + 1):
            for hh in range(2):
                for r2 in range(2):
                    x = SX + (hh * 2 + t) * 4 + 2 * r2
                    a("v_cvt_pk_f16_f32 v%d, v%d, v%d", O + 4 * t + 2 * r2 + hh, x, x + 1)
            a("ds_write_b128 v8, %s offset:%d", vr(O + 4 * t, 4), t * 1024)
        for hh in range(2): a("v_cvt_pk_f16_f32 v%d, v%d, v%d", O + 8 + hh, SMm + hh * 4, SMm + hh * 4 + 1)
        a("ds_write_b64 v9, %s", vr(O + 8, 2))
        a("s_waitcnt lgkmcnt(0)")
        a("s_barrier")
        a("s_cmp_eq_u32 s14, 7")
        a("s_cbranch_scc1 %s", end)
        if prof: a("s_memrealtime s[66:67]"); a("s_waitcnt lgkmcnt(0)")
        pf = [(p, t) for p in range(8) for t in range(tt + 1)]
        PMR = RING
        def rp(n):
            p, t = pf[n]
            a("ds_read_b128 %s, v2 offset:%d", vr(PR + (n % 6) * 4, 4), LP + (p * 2 + t) * 1024)
        for pp in range(4): a("ds_read_b128 %s, v2 offset:%d", vr(PMR + 4 * pp, 4), LPM + pp * 1024)
        for k in range(5): rp(k)
        for k in range(len(pf)):
            if k + 5 < len(pf): rp(k + 5)
            a("s_waitcnt lgkmcnt(%d)", min(5, len(pf) - 1 - k))
            p, t = pf[k]
            last = nb * k + nb - 1
            if last >= 18: a("s_waitcnt vmcnt(%d)", 4 * nb + len(ufr) - 1 - last)
            for b in range(nb):
                d = vr(FOR + 4 * b, 4)
                a(MF, d, vr(ureg[(p, t, b)], 4), vr(PR + (k % 6) * 4, 4), d)
        lt = a.newlabel("Ftb"); lr = a.newlabel("Ftr")
        a.label(lt)
        a("s_waitcnt vmcnt(0)")
        for pp in range(4):
            for b in range(nb):
                d = vr(SX + 4 * b, 4)
                a(MF, d, vr(TBR + (b * 4 + pp) * 4, 4), vr(PMR + 4 * pp, 4), d if pp else "0")
        for k in range(0, 4 * nb, 2): a("v_pk_add_f32 %s, %s, %s", vr(SX + k, 2), vr(SX + k, 2), vr(FOR + k, 2))
        a("v_pk_add_f32 v[8:9], %s, %s", vr(SX, 2), vr(SX + 2, 2))
        if nb == 2:
            a("v_pk_add_f32 v[10:11], %s, %s", vr(SX + 4, 2), vr(SX + 6, 2))
            a("v_pk_add_f32 v[8:9], v[8:9], v[10:11]")
        a("v_cmp_u_f32 vcc, v8, v9")
        for k in range(2 * nb): a("v_cvt_pk_bf16_f32 v%d, v%d, v%d", 8 + k, SX + 2 * k, SX + 2 * k + 1)
        a("s_cbranch_vccnz %s", lr)
        a("global_store_dwordx%d v15, %s, s[48:49]", 2 * nb, vr(8, 2 * nb))
        if prof:
            a("s_memrealtime s[68:69]")
            a("s_waitcnt vmcnt(0)")
            a("s_memrealtime s[70:71]")
            a("s_waitcnt lgkmcnt(0)")
            for k in range(4): a("v_mov_b32 v%d, s%d", 8 + k, 64 + 2 * k)
            a("s_lshl_b32 s50, s20, 3")
            a("s_add_u32 s50, s50, s14")
            a("s_lshl_b32 s50, s50, 4")
            a("s_add_u32 s50, s50, 0x%x", POIS_END + 0x10000)
            add64(a, 50, 4, off_sgpr=50)
            a("v_mov_b32 v12, 0")
            a("global_store_dwordx4 v12, v[8:11], s[50:51]")
        a("s_branch %s", end)
        a.label(lr)
        tbl()
        a("s_sub_u32 s25, s25, 1")
        a("s_cbranch_scc0 %s", lt)
        a("s_branch %s", abort)
    a.label(end)
```

```python
from common import *
import chain, ut, g1, g2, ft
L_TK = chain.CHAIN_LDS
MAIN_LDS = chain.CHAIN_LDS + 64
FSPLIT = 60
N_G1, N_G2, N_F = 224, 224, 4 * FSPLIT + 8 * (64 - FSPLIT)
def bcast_begin(a, l):
    a("s_cmp_lg_u32 s14, 0")
    a("s_cbranch_scc1 %s", l)
def emit_main(a, prof=0, force_mixed=False, gate=2, g0=34, **kw):
    a.raw(".p2align 8")
    a.label("main_kernel")
    a("s_cmp_ge_u32 s2, 256")
    a("s_cbranch_scc1 M_end")
    a("s_getreg_b32 s16, hwreg(HW_REG_XCC_ID)")
    a("s_and_b32 s16, s16, 15")
    main_prologue(a)
    if prof: a("s_memtime s[98:99]"); a("s_memrealtime s[100:101]")
    a("s_mov_b32 s15, -1")
    a("s_mov_b32 s17, 1")
    add64(a, 18, 4, imm=SHARD)
    if force_mixed:
        a("s_and_b32 s20, s2, 8")
        a("s_or_b32 s16, s16, s20")
    a("s_cmp_lg_u32 s16, 0")
    a("s_cbranch_scc1 M_first")
    a.label("M_role")
    bcast_begin(a, "M_r1")
    a("v_mov_b32 v6, %d", C_TICKET * 4)
    a("v_mov_b32 v7, s17")
    a("s_mov_b64 exec, 1")
    a("global_atomic_add v8, v6, v7, s[10:11] sc0 sc1")
    a("v_mov_b32 v6, %d", L_TK + 32)
    a("s_waitcnt vmcnt(0)")
    a("ds_write_b32 v6, v8")
    a("s_mov_b64 exec, -1")
    a("s_waitcnt lgkmcnt(0)")
    a.label("M_r1")
    a("s_barrier")
    a("v_mov_b32 v6, %d", L_TK + 32)
    a("ds_read_b32 v8, v6")
    a("s_waitcnt lgkmcnt(0)")
    a("v_readfirstlane_b32 s20, v8")
    a("s_and_b32 s20, s20, 0xffff")
    a("s_cmp_ge_u32 s20, 32")
    a("s_cbranch_scc1 M_norole")
    names = chain.emit_chain(a, prof, abort="M_end", merged=True, **kw)
    a("v_lshrrev_b32 v3, 4, v1")
    a("v_and_b32 v4, 15, v1")
    a.label("M_norole")
    a("s_cmp_lg_u32 s15, -1")
    a("s_cbranch_scc1 M_disp")
    a.label("M_first")
    a("s_add_u32 s20, s16, 6")
    a("s_and_b32 s20, s20, 15")
    a("s_cmp_ge_u32 s20, 7")
    a("s_cselect_b32 s21, 7, 0")
    a("s_sub_u32 s20, s20, s21")
    a("s_cmp_ge_u32 s20, 7")
    a("s_cselect_b32 s21, 7, 0")
    a("s_sub_u32 s16, s20, s21")
    a("s_lshl_b32 s17, 1, s16")
    a.label("M_take")
    a("s_barrier")
    bcast_begin(a, "M_f1")
    a("v_lshlrev_b32 v6, 8, v1")
    a("v_mov_b32 v7, 1")
    a("v_mov_b32 v8, 64")
    a("v_lshlrev_b32 v9, 2, v1")
    a("v_add_u32 v9, %d, v9", L_TK)
    a("s_mov_b32 exec_hi, 0")
    a("s_mov_b32 exec_lo, s17")
    a("global_atomic_add v8, v6, v7, s[18:19] sc0 sc1")
    a("s_mov_b32 exec_lo, 0x7f")
    a("s_waitcnt vmcnt(0)")
    a("v_add_u32 v8, 1, v8")
    a("ds_write_b32 v9, v8")
    a("s_mov_b64 exec, -1")
    a("s_waitcnt lgkmcnt(0)")
    a.label("M_f1")
    a("s_barrier")
    a("v_min_u32 v6, 6, v1")
    a("v_lshlrev_b32 v6, 2, v6")
    a("v_add_u32 v6, %d, v6", L_TK)
    a("ds_read_b32 v0, v6")
    a("s_waitcnt lgkmcnt(0)")
    a("v_cmp_gt_u32 vcc, 32, v0")
    a("s_and_b32 s100, vcc_lo, 0x7f")
    a.label("M_u")
    a("s_cmp_eq_u32 s100, 0")
    a("s_cbranch_scc1 M_u1")
    a("s_ff1_i32_b32 s21, s100")
    a("s_bitset0_b32 s100, s21")
    a("v_readlane_b32 s20, v0, s21")
    a("s_lshl_b32 s21, s21, 5")
    a("s_add_u32 s20, s20, s21")
    ut.emit_u(a)
    a("s_barrier")
    a("s_branch M_u")
    a.label("M_u1")
    a("s_cmp_eq_u32 s17, 0x7f")
    a("s_mov_b32 s17, 0x7f")
    a("s_cbranch_scc0 M_take")
    a("v_cmp_gt_u32 vcc, 32, v0")
    a("s_and_b32 s21, vcc_lo, 0x7f")
    a("s_cbranch_scc1 M_take")
    a.label("M_next")
    a("s_barrier")
    bcast_begin(a, "M_q1")
    a("v_mov_b32 v6, %d", C_Q * 4)
    a("v_mov_b32 v7, 1")
    a("s_mov_b64 exec, 1")
    a("global_atomic_add v8, v6, v7, s[10:11] sc0 sc1")
    a("global_load_dword v9, v6, s[10:11] offset:%d sc1", (C_TICKET - C_Q) * 4)
    a("v_mov_b32 v6, %d", L_TK)
    a("s_waitcnt vmcnt(0)")
    a("ds_write_b64 v6, v[8:9]")
    a("s_mov_b64 exec, -1")
    a("s_waitcnt lgkmcnt(0)")
    a.label("M_q1")
    a("s_barrier")
    a("v_mov_b32 v6, %d", L_TK)
    a("ds_read_b64 v[8:9], v6")
    a("s_waitcnt lgkmcnt(0)")
    a("v_readfirstlane_b32 s15, v8")
    a("v_readfirstlane_b32 s21, v9")
    a("s_cmp_lt_u32 s15, %d", N_G1 + N_G2)
    a("s_cbranch_scc1 M_disp")
    a("s_and_b32 s21, s21, 0xffff")
    a("s_mov_b32 s17, 0x10001")
    a("s_cmp_lt_u32 s21, 32")
    a("s_cbranch_scc1 M_role")
    a.label("M_disp")
    a("s_mov_b32 s25, 0x400000")
    a("s_cmp_lt_u32 s15, %d", N_G1)
    a("s_cbranch_scc0 M_d2")
    a("s_mul_i32 s20, s15, 2341")
    a("s_lshr_b32 s20, s20, 16")
    a("s_mul_i32 s21, s20, 28")
    a("s_sub_u32 s21, s15, s21")
    g1.emit_g1(a, first=8)
    a("s_branch M_next")
    a.label("M_d2")
    a("s_sub_u32 s20, s15, %d", N_G1)
    a("s_cmp_lt_u32 s20, %d", N_G2)
    a("s_cbranch_scc0 M_d3")
    bcast_begin(a, "M_d2w")
    a("s_mul_i32 s21, s20, 2341")
    a("s_lshr_b32 s21, s21, 16")
    a("s_lshl_b32 s21, s21, 2")
    a("s_add_u32 s21, s21, %d", C_G1 * 4)
    wait_cnt(a, 21, 28, "M_end")
    a.label("M_d2w")
    a("s_barrier")
    g2.emit_g2(a)
    a("s_branch M_next")
    a.label("M_d3")
    a("s_sub_u32 s20, s20, %d", N_G2)
    a("s_cmp_lt_u32 s20, %d", N_F)
    a("s_cbranch_scc0 M_end")
    for nb in (2, 1):
        X = "M%d" % nb
        def pre():
            if g0:
                a("s_cmp_lg_u32 s14, 3")
                a("s_cbranch_scc1 %s_fg", X)
                a("s_mul_i32 s50, s21, %d", (57 - g0) * 1024 // 63)
                a("s_lshr_b32 s50, s50, 10")
                a("s_add_u32 s50, s50, %d", g0)
                a("s_lshl_b32 s50, s50, 13")
                a("s_add_u32 s50, s50, 0x%x", MEMX)
                add64(a, 50, 4, off_sgpr=50)
                a("v_mov_b32 v8, 128")
                a.label(X + "_fgl")
                a("global_load_dword v9, v8, s[50:51] sc1")
                a("s_sub_u32 s25, s25, 1")
                a("s_cbranch_scc1 M_end")
                a("s_waitcnt vmcnt(0)")
                a("v_cmp_eq_u32 vcc, -1, v9")
                a("s_cbranch_vccnz %s_fgl", X)
                a.label(X + "_fg")
            a("s_cmp_gt_u32 s14, 2")
            a("s_cbranch_scc1 %s_fw", X)
            a("s_cmp_eq_u32 s14, 2")
            a("s_cbranch_scc1 %s_fw2", X)
            a("s_lshl_b32 s50, s21, 1")
            a("s_add_u32 s50, s50, s14")
            a("s_lshl_b32 s50, s50, 10")
            wait_ufl(a, 50, "M_end", t=16)
            a("s_branch %s_fw", X)
            a.label(X + "_fw2")
            a("s_lshr_b32 s50, s21, 1")
            a("s_lshl_b32 s50, s50, 2")
            a("s_add_u32 s50, s50, %d", C_G2 * 4)
            wait_cnt(a, 50, 7, "M_end")
            a.label(X + "_fw")
        if nb == 2:
            a("s_cmp_ge_u32 s20, %d", 4 * FSPLIT)
            a("s_cbranch_scc1 M_d4")
            a("s_lshr_b32 s21, s20, 2")
            a("s_bfe_u32 s22, s20, 0x10001")
            a("s_and_b32 s23, s20, 1")
        else:
            a.label("M_d4")
            a("s_add_u32 s21, s20, %d", 4 * FSPLIT)
            a("s_lshr_b32 s21, s21, 3")
            a("s_bfe_u32 s22, s20, 0x10002")
            a("s_and_b32 s23, s20, 3")
        ft.emit_f(a, "M_end", nb, pre, prof, gate)
        a("s_branch M_next")
    a.label("M_end")
    a("s_endpgm")
    return names
```

```python
from asmlib import *
from layout import *
import struct
def f32(x): return "0x%08x" % struct.unpack("<I", struct.pack("<f", x))[0]
NT = [0]
def nt(b): return " nt" if NT[0] & b else ""
def add64(a, d, s, off_sgpr=None, imm=None):
    o = ("s%d" % off_sgpr) if off_sgpr is not None else ("0x%x" % imm)
    a("s_add_u32 s%d, s%d, %s", d, s, o)
    a("s_addc_u32 s%d, s%d, 0", d + 1, s + 1)
S_WS, S_X, S_OUT, S_DBG, S_MEM0, S_WAVE, S_TASK = 4, 6, 8, 10, 12, 14, 15
V_LANE, V_L16, V_G, V_I = 1, 2, 3, 4
def main_prologue(a):
    a("s_load_dwordx2 s[4:5], s[0:1], 96")
    a("s_load_dwordx2 s[6:7], s[0:1], 0")
    a("s_load_dwordx2 s[8:9], s[0:1], 80")
    a("s_load_dwordx2 s[10:11], s[0:1], 88")
    a("s_load_dwordx2 s[12:13], s[0:1], 8")
    a("v_lshrrev_b32 v5, 6, v0")
    a("v_and_b32 v1, 63, v0")
    a("v_readfirstlane_b32 s14, v5")
    a("v_lshlrev_b32 v2, 4, v1")
    a("v_lshrrev_b32 v3, 4, v1")
    a("v_and_b32 v4, 15, v1")
    a("s_waitcnt lgkmcnt(0)")
C_TICKET, C_NON, C_Q, C_P = 0, 1, 3, 11
def g1_cnt(a, d, rb):
    a("s_lshl_b32 s%d, s%d, 5", d, rb)
    a("s_add_u32 s%d, s%d, 8", d, d)
def g2_cnt(a, d, tg, t):
    a("s_and_b32 s%d, s%d, 3", t, tg)
    a("s_lshr_b32 s%d, s%d, 2", d, tg)
    a("s_lshl_b32 s%d, s%d, 3", d, d)
    a("s_add_u32 s%d, s%d, s%d", d, d, t)
    a("s_lshl_b32 s%d, s%d, 2", d, d)
    a("s_add_u32 s%d, s%d, 16", d, d)
def allnon(a, regs):
    a("v_xor_b32 v%d, s19, v%d", regs[0], regs[0])
    for r in regs[1:]: a("v_bitop3_b32 v%d, v%d, v%d, s19 bitop3:0xf6", regs[0], regs[0], r)
def signal(a, sidx_bytes):
    l = a.newlabel("SG")
    a("s_waitcnt vmcnt(0)")
    a("s_barrier")
    a("s_cmp_lg_u32 s14, 0")
    a("s_cbranch_scc1 %s", l)
    a("v_mov_b32 v6, s%d", sidx_bytes)
    a("v_mov_b32 v7, 1")
    a("s_mov_b64 s[90:91], exec")
    a("s_mov_b64 exec, 1")
    a("global_atomic_add v6, v7, s[10:11] sc1")
    a("s_mov_b64 exec, s[90:91]")
    a.label(l)

def wait_cnt(a, sidx_bytes, target, abort, budget=25):
    l = a.newlabel("WC")
    a("v_mov_b32 v8, s%d", sidx_bytes)
    a.label(l)
    a("global_load_dword v9, v8, s[10:11] sc1")
    a("s_sub_u32 s%d, s%d, 1", budget, budget)
    a("s_cbranch_scc1 %s", abort)
    a("s_waitcnt vmcnt(0)")
    a("v_cmp_gt_u32 vcc, %d, v9", target)
    a("s_cbranch_vccnz %s", l)
def wait_ufl(a, soff, abort, budget=25, t=8, sp=50):
    l = a.newlabel("WU")
    a("s_add_u32 s%d, s%d, 0x%x", sp, soff, UFL)
    add64(a, sp, 4, off_sgpr=sp)
    a("v_min_u32 v%d, 55, v1", t + 4)
    a("v_lshlrev_b32 v%d, 4, v%d", t + 4, t + 4)
    a.label(l)
    a("global_load_dwordx4 %s, v%d, s[%d:%d] sc1", vr(t, 4), t + 4, sp, sp + 1)
    a("s_sub_u32 s%d, s%d, 1", budget, budget)
    a("s_cbranch_scc1 %s", abort)
    a("s_waitcnt vmcnt(0)")
    allnon(a, [t, t + 1, t + 2, t + 3])
    a("v_cmp_ne_u32 vcc, 0, v%d", t)
    a("s_cbranch_vccnz %s", l)
```

```python
from asmlib import *
from layout import *
import struct
def f32(x): return "0x%08x" % struct.unpack("<I", struct.pack("<f", x))[0]
SCALE = 1.4426950408889634 / 16.0

def add64(a, d, s, off_sgpr=None, imm=None):
    o = ("s%d" % off_sgpr) if off_sgpr is not None else ("0x%x" % imm)
    a("s_add_u32 s%d, s%d, %s", d, s, o)
    a("s_addc_u32 s%d, s%d, 0", d + 1, s + 1)

def transp_loads(a, dst, voff, sbase, rstride):
    for e in range(8):
        off = e * rstride
        if off < 4096:
            a("global_load_dwordx2 %s, v%d, %s offset:%d", vr(dst + 2 * e, 2), voff, sr(sbase, 2), off)
        else:
            raise ValueError
def transp_perm(a, out, src, sLo, sHi):
    for r in range(4):
        for jj in range(4):
            d0 = src + 2 * (2 * jj) + (r >> 1); d1 = src + 2 * (2 * jj + 1) + (r >> 1)
            a("v_perm_b32 v%d, v%d, v%d, s%d", out + 4 * r + jj, d1, d0, sHi if r & 1 else sLo)

def transp_cvt(a, out, src, tmp):
    for r in range(4):
        for jj in range(4):
            d0 = src + 2 * (2 * jj) + (r >> 1); d1 = src + 2 * (2 * jj + 1) + (r >> 1)
            t = tmp + 2 * (jj & 1)
            for k, d in enumerate((d0, d1)):
                if r & 1: a("v_and_b32 v%d, 0xffff0000, v%d", t + k, d)
                else: a("v_lshlrev_b32 v%d, 16, v%d", t + k, d)
            a("v_cvt_pk_f16_f32 v%d, v%d, v%d", out + 4 * r + jj, t, t + 1)

PREP_LDS = 32768 + 7 * 16384
def emit_prep(a, prof=0, touch=0, dbgout=0):
    def T(k):
        if prof: a("s_memrealtime s[%d:%d]", 64 + 2 * k, 65 + 2 * k)
    def END():
        if prof:
            a("s_waitcnt vmcnt(0)")
            T(5)
            a("s_waitcnt lgkmcnt(0)")
            for k in range(6): a("v_writelane_b32 v0, s%d, %d", 64 + 2 * k, k)
            a("s_lshl_b32 s60, s2, 3")
            a("s_add_u32 s60, s60, s20")
            a("s_lshl_b32 s60, s60, 8")
            a("s_add_u32 s60, s60, 0x%x", POIS_END + 0x100000)
            add64(a, 60, 18, off_sgpr=60)
            a("v_lshlrev_b32 v1, 2, v2")
            a("global_store_dword v1, v0, s[60:61]")
        a("s_endpgm")
    a.raw(".p2align 8")
    a.label("prep_kernel")
    a("s_cmp_ge_u32 s2, 256")
    a("s_cbranch_scc1 P_end0")
    T(0)
    a("s_load_dwordx2 s[4:5], s[0:1], 0")
    a("s_load_dwordx2 s[6:7], s[0:1], 16")
    a("s_load_dwordx2 s[8:9], s[0:1], 24")
    a("s_load_dwordx2 s[10:11], s[0:1], 32")
    a("s_load_dwordx2 s[12:13], s[0:1], 40")
    a("s_load_dwordx2 s[14:15], s[0:1], 64")
    a("s_load_dwordx2 s[16:17], s[0:1], 72")
    a("s_load_dwordx2 s[18:19], s[0:1], 96")
    a("v_lshrrev_b32 v1, 6, v0")
    a("v_and_b32 v2, 63, v0")
    a("v_readfirstlane_b32 s20, v1")
    a("v_lshrrev_b32 v3, 4, v2")
    a("v_and_b32 v4, 15, v2")
    a("v_lshlrev_b32 v5, 4, v2")
    a("v_and_b32 v12, 3, v2")
    a("v_xor_b32 v12, v12, v3")
    a("v_lshlrev_b32 v12, 4, v12")
    a("v_lshrrev_b32 v14, 2, v4")
    a("v_xor_b32 v14, v14, v3")
    a("v_lshlrev_b32 v14, 4, v14")
    a("v_lshl_add_u32 v14, v4, 6, v14")
    a("s_mov_b32 s40, 0x05040100")
    a("s_mov_b32 s41, 0x07060302")
    a("s_and_b32 s21, s2, 7")
    a("s_lshr_b32 s22, s2, 3")
    a("s_cmp_ge_u32 s22, 28")
    a("s_cbranch_scc1 P_small")
    a("s_mul_i32 s23, s22, 37")
    a("s_lshr_b32 s23, s23, 8")
    a("s_mul_i32 s24, s23, 7")
    a("s_sub_u32 s24, s22, s24")
    a("s_lshl_b32 s25, s21, 2")
    a("s_add_u32 s25, s25, s23")
    a("s_lshr_b32 s26, s25, 4")
    a("s_and_b32 s27, s25, 15")
    a("v_lshrrev_b32 v6, 4, v2")
    a("v_bfe_u32 v7, v2, 2, 2")
    a("v_lshlrev_b32 v13, 16, v6")
    a("v_add_u32 v13, v13, v12")
    a("v_lshl_add_u32 v6, v7, 13, v13")
    a("v_lshl_add_u32 v7, v7, 14, v13")
    a("s_waitcnt lgkmcnt(0)")
    T(1)
    a("s_lshl_b32 s30, s27, 9")
    a("s_cmp_eq_u32 s26, 0")
    a("s_cselect_b32 s28, s10, s6")
    a("s_cselect_b32 s29, s11, s7")
    a("s_cselect_b64 vcc, -1, 0")
    a("v_cndmask_b32 v15, v14, v5")
    a("s_cbranch_scc1 P_stB")
    a("s_lshr_b32 s31, s20, 1")
    a("s_lshr_b32 s32, s31, 1")
    a("s_lshl_b32 s32, s32, 5")
    a("s_and_b32 s33, s31, 1")
    a("s_add_u32 s32, s32, s33")
    a("s_lshl_b32 s33, s24, 6")
    a("s_add_u32 s32, s32, s33")
    a("s_lshl_b32 s32, s32, 13")
    a("s_add_u32 s32, s32, s30")
    a("s_and_b32 s33, s20, 1")
    a("s_lshl_b32 s34, s33, 8")
    a("s_add_u32 s32, s32, s34")
    add64(a, 34, 8, off_sgpr=32)
    a("s_lshl_b32 s36, s20, 12")
    for k in range(4):
        a("s_add_u32 m0, s36, %d", 960 * k)
        a("global_load_lds_dwordx4 v7, s[34:35] offset:%d", 64 * k)
    a("v_mov_b32 v8, 0")
    a("s_branch P_rows")
    a.label("P_stB")
    a("s_mul_i32 s32, s27, 229376")
    a("s_mul_i32 s33, s20, %d", 32 * 896)
    a("s_add_u32 s32, s32, s33")
    a("s_lshl_b32 s33, s24, 7")
    a("s_add_u32 s32, s32, s33")
    add64(a, 34, 12, off_sgpr=32)
    a("v_mul_u32_u24 v9, %d, v3", 8 * 896)
    a("v_lshl_add_u32 v9, v4, 3, v9")
    a("v_add_u32 v10, %d, v9", 4 * 896)
    for e in range(8):
        a("global_load_dwordx2 %s, v%d, s[34:35] offset:%d", vr(216 + 2 * e, 2), 9 if e < 4 else 10, (e & 3) * 896)
    a("v_lshrrev_b32 v8, 3, v4")
    a("v_lshlrev_b32 v8, 1, v8")
    a("v_and_b32 v11, 1, v4")
    a("v_add_u32 v8, v8, v11")
    a("v_lshlrev_b32 v8, 13, v8")
    a("v_bfe_u32 v11, v4, 1, 2")
    a("v_lshl_add_u32 v8, v11, 6, v8")
    a("v_lshl_add_u32 v8, v3, 8, v8")
    a("s_lshl_b32 s36, s20, 10")
    a("v_add_u32 v8, s36, v8")
    a.label("P_rows")
    a("s_lshl_b32 s32, s20, 19")
    a("s_add_u32 s32, s32, s30")
    add64(a, 36, 28, off_sgpr=32)
    a("s_lshl_b32 s42, s20, 14")
    a("s_add_u32 s42, s42, 32768")
    a("s_cmp_eq_u32 s20, 7")
    a("s_cbranch_scc1 P_norows")
    def rows():
        for t in range(2):
            for kd_ in range(8):
                a("s_add_u32 m0, s42, %d", t * 8192 + 960 * kd_)
                a("global_load_lds_dwordx4 v6, s[36:37] offset:%d", 64 * kd_)
            a("s_add_u32 s36, s36, 0x%x", (28 * 8192) if t else (4 * 8192))
            a("s_addc_u32 s37, s37, 0")
    rows()
    a("v_lshrrev_b32 v9, 1, v2")
    a("v_lshlrev_b32 v9, 13, v9")
    a("v_and_b32 v10, 1, v2")
    a("v_lshl_add_u32 v9, v10, 8, v9")
    if touch:
        a("global_load_dword v16, v9, s[36:37]")
        a("global_load_dword v17, v9, s[36:37] offset:128")
    T(2)
    a("s_waitcnt vmcnt(%d)", 16 + 2 * touch)
    a("s_branch P_stage")
    a.label("P_norows")
    a("s_waitcnt vmcnt(0)")
    a.label("P_stage")
    a("s_cmp_lg_u32 s26, 0")
    a("s_cbranch_scc1 P_staged")
    transp_perm(a, 200, 216, 40, 41)
    for r in range(4):
        a("ds_write_b128 v8, %s offset:%d", vr(200 + 4 * r, 4), 16 * r)
    a.label("P_staged")
    T(3)
    a("s_waitcnt lgkmcnt(0)")
    a("s_barrier")
    a("s_cmp_eq_u32 s20, 7")
    a("s_cbranch_scc1 P_w7")
    OUT = 16; ACC = 32; RR = 64; CR = 128
    for f in range(32): a("ds_read_b128 %s, v15 offset:%d", vr(CR + 4 * f, 4), f * 1024)
    a("v_add_u32 v14, s42, v14")
    a("s_cmp_eq_u32 s26, 0")
    a("s_cselect_b32 s38, 1.0, %s", f32(SCALE))
    a("s_lshl_b32 s33, s24, 2")
    a("s_mul_i32 s32, s27, 28")
    a("s_add_u32 s32, s32, s33")
    a("s_add_u32 s32, s32, 448")
    a("s_lshr_b32 s34, s27, 1")
    a("s_mul_i32 s34, s34, 28")
    a("s_add_u32 s34, s34, s33")
    a("s_lshl_b32 s34, s34, 1")
    a("s_and_b32 s33, s27, 1")
    a("s_add_u32 s34, s34, s33")
    a("s_movk_i32 s39, %d", 14 * 1024)
    a("s_cmp_eq_u32 s26, 0")
    a("s_cselect_b32 s32, s34, s32")
    a("s_cselect_b32 s39, %d, s39", 28 * 1024)
    a("s_mul_i32 s32, s32, 14")
    a("s_lshl_b32 s33, s20, 1")
    a("s_add_u32 s32, s32, s33")
    a("s_lshl_b32 s32, s32, 10")
    a("s_add_u32 s32, s32, 0x%x", WALL)
    add64(a, 44, 18, off_sgpr=32)
    a("v_add_u32 v9, s39, v5")
    a("v_add_u32 v10, s39, v9")
    a("v_add_u32 v11, s39, v10")
    for ksl in range(2):
        a("s_waitcnt vmcnt(%d)", 4 if ksl else 2 * touch)
        if ksl == 0: T(4)
        for f in range(16): a("ds_read_b128 %s, v14 offset:%d", vr(RR + 4 * f, 4), f * 1024)
        if ksl == 0:
            a("s_waitcnt lgkmcnt(0)")
            rows()
        for b in range(2):
            for kd_ in range(8):
                if ksl: a("s_waitcnt lgkmcnt(%d)", 15 - (b * 8 + kd_))
                for ct in range(4):
                    d = vr(ACC + (b * 4 + ct) * 4, 4)
                    a("v_mfma_f32_16x16x32_bf16 %s, %s, %s, %s", d, vr(RR + (b * 8 + kd_) * 4, 4), vr(CR + (ct * 8 + kd_) * 4, 4), d if kd_ else "0")
        if ksl == 0: a("s_waitcnt vmcnt(16)")
        for ct in range(4):
            o = OUT + ct * 4
            for b in range(2):
                d = ACC + (b * 4 + ct) * 4
                for r in range(4): a("v_mul_f32 v%d, s38, v%d", d + r, d + r)
                a("v_cvt_pk_f16_f32 v%d, v%d, v%d", o + 2 * b, d, d + 1)
                a("v_cvt_pk_f16_f32 v%d, v%d, v%d", o + 2 * b + 1, d + 2, d + 3)
            a("global_store_dwordx4 v%d, %s, s[44:45] offset:%d", [5, 9, 10, 11][ct], vr(o, 4), ksl * 1024)
    END()
    a.label("P_w7")
    a("s_mul_i32 s44, s25, 7")
    a("s_add_u32 s44, s44, s24")
    a("s_branch P_wtask")
    a.label("P_small")
    a("s_lshl_b32 s23, s21, 2")
    a("s_add_u32 s23, s23, s22")
    a("s_sub_u32 s23, s23, 28")
    a("s_waitcnt lgkmcnt(0)")
    if dbgout:
        a("s_memrealtime s[64:65]")
        add64(a, 26, 18, imm=POIS_END + 0x20000)
        a("s_waitcnt lgkmcnt(0)")
        a("v_mov_b32 v6, 0")
        a("v_mov_b32 v7, s64")
        a("global_store_dword v6, v7, s[26:27]")
    a("s_lshl_b32 s24, s23, 14")
    a("s_add_u32 s24, s24, 0x%x", MEMR)
    add64(a, 26, 18, off_sgpr=24)
    a("v_lshlrev_b32 v6, 4, v0")
    a("v_add_u32 v7, 8192, v6")
    for r in range(4): a("v_mov_b32 v%d, -1", 8 + r)
    a("global_store_dwordx4 v6, v[8:11], s[26:27]")
    a("global_store_dwordx4 v7, v[8:11], s[26:27]")
    a("s_lshl_b32 s24, s23, 2")
    a("s_and_b32 s25, s20, 3")
    a("s_add_u32 s24, s24, s25")
    a("s_cmp_ge_u32 s20, 4")
    a("s_cbranch_scc1 P_w2")
    a("s_mul_i32 s25, s24, %d", 16 * 896)
    add64(a, 26, 4, off_sgpr=25)
    a("v_lshrrev_b32 v6, 2, v2")
    a("v_mul_u32_u24 v6, 896, v6")
    a("v_add_u32 v6, v6, v12")
    a("s_lshl_b32 s42, s20, 14")
    a("v_add_u32 v14, s42, v14")
    X = 16
    for ks in range(14):
        a("s_add_u32 m0, s42, %d", 960 * ks)
        a("global_load_lds_dwordx4 v6, s[26:27] offset:%d", ks * 64)
    a("s_waitcnt vmcnt(0)")
    for ks in range(14): a("ds_read_b128 %s, v14 offset:%d", vr(X + 4 * ks, 4), ks * 1024)
    a("s_waitcnt lgkmcnt(0)")
    F = 80
    a("s_waitcnt vmcnt(0)")
    T(1)
    for d in range(56):
        a("v_lshlrev_b32 v%d, 16, v%d", F + 2 * d, X + d)
        a("v_and_b32 v%d, 0xffff0000, v%d", F + 2 * d + 1, X + d)
    def allred(acc, tmp):
        a("v_mov_b32 v%d, v%d", tmp, acc)
        a("v_permlane32_swap_b32 v%d, v%d", acc, tmp)
        a("v_add_f32 v%d, v%d, v%d", acc, acc, tmp)
        a("v_mov_b32 v%d, v%d", tmp, acc)
        a("v_permlane16_swap_b32 v%d, v%d", acc, tmp)
        a("v_add_f32 v%d, v%d, v%d", acc, acc, tmp)
    for q in range(4): a("v_mov_b32 v%d, v%d", 8 + q, F + q)
    for d in range(4, 112): a("v_add_f32 v%d, v%d, v%d", 8 + (d & 3), 8 + (d & 3), F + d)
    a("v_add_f32 v8, v8, v9"); a("v_add_f32 v10, v10, v11"); a("v_add_f32 v8, v8, v10")
    allred(8, 9)
    a("v_mul_f32 v12, %s, v8", f32(1.0 / 448))
    for d in range(112): a("v_sub_f32 v%d, v%d, v12", F + d, F + d)
    for q in range(4): a("v_mul_f32 v%d, v%d, v%d", 8 + q, F + q, F + q)
    for d in range(4, 112): a("v_fmac_f32 v%d, v%d, v%d", 8 + (d & 3), F + d, F + d)
    a("v_add_f32 v8, v8, v9"); a("v_add_f32 v10, v10, v11"); a("v_add_f32 v8, v8, v10")
    allred(8, 9)
    a("v_mov_b32 v9, %s", f32(1e-5))
    a("v_fmac_f32 v9, %s, v8", f32(1.0 / 448))
    a("v_sqrt_f32 v9, v9")
    a("v_rcp_f32 v9, v9")
    a("s_mul_i32 s25, s24, %d", 14 * 1024)
    a("s_add_u32 s25, s25, 0x%x", XF + 4096)
    add64(a, 26, 18, off_sgpr=25)
    for d in range(112): a("v_mul_f32 v%d, v%d, v9", F + d, F + d)
    for d in range(56): a("v_cvt_pk_f16_f32 v%d, v%d, v%d", X + d, F + 2 * d, F + 2 * d + 1)
    for ks in range(14):
        if ks == 8:
            a("s_add_u32 s26, s26, 8192"); a("s_addc_u32 s27, s27, 0")
        a("global_store_dwordx4 v5, %s, s[26:27] offset:%d", vr(X + 4 * ks, 4), (ks & 7) * 1024 - 4096)
    T(2)
    a("s_branch P_end")
    a.label("P_w2")
    a("s_add_u32 s44, s24, 224")
    a.label("P_wtask")
    a("s_mov_b32 s43, s44")
    a("s_cmp_ge_u32 s44, 196")
    a("s_cselect_b32 s45, 196, 0")
    a("s_cselect_b32 s46, 1, 0")
    a("s_sub_u32 s44, s44, s45")
    a("s_mul_i32 s47, s44, 147")
    a("s_lshr_b32 s47, s47, 10")
    a("s_mul_i32 s48, s47, 7")
    a("s_sub_u32 s48, s44, s48")
    a("s_cmp_eq_u32 s46, 0")
    a("s_cselect_b32 s49, s48, s47")
    a("s_cselect_b32 s50, s47, s48")
    a("s_movk_i32 s51, 896")
    a("s_cselect_b32 s51, 3584, s51")
    a("s_cselect_b32 s52, s14, s16")
    a("s_cselect_b32 s53, s15, s17")
    a("s_cselect_b32 s54, 14, 56")
    a("s_mov_b32 s55, 0x%x", W2F)
    a("s_cselect_b32 s55, 0x%x, s55", W1F)
    a("s_mul_i32 s56, s49, s51")
    a("s_lshl_b32 s56, s56, 6")
    a("s_lshl_b32 s57, s50, 7")
    a("s_add_u32 s56, s56, s57")
    add64(a, 52, 52, off_sgpr=56)
    a("v_mul_lo_u32 v9, v3, s51")
    a("v_lshlrev_b32 v9, 3, v9")
    a("v_lshl_add_u32 v9, v4, 3, v9")
    for e in range(16):
        if e == 8:
            a("s_mul_i32 s56, s51, 24")
            add64(a, 52, 52, off_sgpr=56)
        a("global_load_dwordx2 %s, v9, s[52:53]", vr(16 + 2 * e, 2))
        add64(a, 52, 52, off_sgpr=51)
    a("v_lshrrev_b32 v8, 3, v4")
    a("v_lshlrev_b32 v8, 1, v8")
    a("v_and_b32 v11, 1, v4")
    a("v_add_u32 v8, v8, v11")
    a("v_mul_lo_u32 v8, v8, s54")
    a("v_lshlrev_b32 v8, 10, v8")
    a("v_bfe_u32 v11, v4, 1, 2")
    a("v_lshl_add_u32 v8, v11, 6, v8")
    a("v_lshl_add_u32 v8, v3, 8, v8")
    a("s_mul_i32 s56, s50, s54")
    a("s_lshl_b32 s56, s56, 2")
    a("s_lshl_b32 s57, s49, 1")
    a("s_add_u32 s56, s56, s57")
    a("s_lshl_b32 s56, s56, 10")
    a("s_add_u32 s56, s56, s55")
    add64(a, 58, 18, off_sgpr=56)
    for hlf in range(2):
        a("s_waitcnt vmcnt(%d)", 8 if hlf == 0 else 4)
        transp_cvt(a, 48 + 16 * hlf, 16 + 16 * hlf, 80)
        for r in range(4):
            a("global_store_dwordx4 v8, %s, s[58:59] offset:%d", vr(48 + 16 * hlf + 4 * r, 4), hlf * 1024 + 16 * r)
    a("s_sub_u32 s44, s43, 224")
    a("s_cmp_lt_u32 s44, 40")
    a("s_add_u32 s44, s43, 128")
    a("s_sub_u32 s45, s43, 224")
    a("s_cmp_lt_u32 s45, 40")
    a("s_cbranch_scc1 P_wtask")
    a.label("P_end")
    END()
    a.label("P_end0")
    a("s_endpgm")
```

```python
import sys; sys.path.insert(0,"gen")
import build
from common import *
def emit(a, ncu=32, share=0, touch=0, allx=0, sc="", nl=48, lds=0, base=64<<20):
    a.raw(".p2align 8")
    a.label("mb_kernel")
    a("s_cmp_ge_u32 s2, 256")
    a("s_cbranch_scc1 E")
    a("s_getreg_b32 s16, hwreg(HW_REG_XCC_ID)")
    a("s_and_b32 s16, s16, 7")
    main_prologue(a)
    if not allx:
        a("s_cmp_lg_u32 s16, 0"); a("s_cbranch_scc1 E")
    a("s_lshl_b32 s21, s16, 5")
    a("s_cmp_lg_u32 s14, 0"); a("s_cbranch_scc1 R1")
    a("v_mov_b32 v6, s21"); a("v_mov_b32 v7, 1"); a("s_mov_b64 exec, 1")
    a("global_atomic_add v8, v6, v7, s[10:11] sc0 sc1")
    a("v_mov_b32 v6, 150000"); a("s_waitcnt vmcnt(0)"); a("ds_write_b32 v6, v8"); a("s_mov_b64 exec, -1")
    a.label("R1")
    a("s_waitcnt lgkmcnt(0)"); a("s_barrier")
    a("v_mov_b32 v6, 150000"); a("ds_read_b32 v8, v6"); a("s_waitcnt lgkmcnt(0)")
    a("v_readfirstlane_b32 s20, v8")
    a("s_cmp_ge_u32 s20, %d", ncu); a("s_cbranch_scc1 E")
    a("s_add_u32 s22, s20, s21")
    a("s_lshr_b32 s23, s22, %d", share)
    a("s_lshl_b32 s23, s23, 3"); a("s_add_u32 s23, s23, s14")
    a("s_mul_i32 s23, s23, %d", nl * 1024)
    a("s_add_u32 s23, s23, 0x%x", base)
    add64(a, 24, 4, off_sgpr=23)
    a("s_memrealtime s[30:31]")
    a("s_waitcnt lgkmcnt(0)")
    if touch:
        a("v_lshlrev_b32 v6, 7, v1")
        for k in range(nl // 8):
            a("global_load_dword v%d, v6, s[24:25] %s", 8 + k, sc)
            a("v_add_u32 v6, 8192, v6")
        if touch == 2: a("s_waitcnt vmcnt(0)")
    a("s_memrealtime s[36:37]")
    a("s_lshl_b32 s40, s14, 14")
    for k in range(nl):
        if lds:
            a("s_add_u32 m0, s40, %d", (k & 15) * 1024 - (k & 3) * 1024)
            a("global_load_lds_dwordx4 v2, s[24:25] offset:%d %s", (k & 3) * 1024, sc)
        else: a("global_load_dwordx4 %s, v2, s[24:25] offset:%d %s", vr(16 + 4 * k, 4), (k & 3) * 1024, sc)
        if (k & 3) == 3: a("s_add_u32 s24, s24, 4096"); a("s_addc_u32 s25, s25, 0")
        if k == 0 and not touch:
            pass
    a("s_memrealtime s[32:33]")
    a("s_waitcnt vmcnt(0)")
    a("s_memrealtime s[34:35]")
    a("s_waitcnt lgkmcnt(0)")
    a("v_mov_b32 v8, s30"); a("v_mov_b32 v9, s36"); a("v_mov_b32 v10, s32"); a("v_mov_b32 v11, s34")
    a("s_lshl_b32 s22, s22, 3"); a("s_add_u32 s22, s22, s14"); a("s_lshl_b32 s22, s22, 4")
    a("v_mov_b32 v6, s22")
    a("s_mov_b64 exec, 1")
    a("global_store_dwordx4 v6, v[8:11], s[4:5]")
    a.label("E")
    a("s_endpgm")
for i, arg in enumerate(sys.argv[1:]):
    kw = eval("dict(%s)" % arg)
    build.build("bi%d.s" % i, [("mb_kernel", lambda a: emit(a, **kw), 256, 512, 160000)])
    open("bi%d.s" % i, "a").write("; kw " + arg + "\n")
```

```python
from common import *
L_MEMI = 0; L_TAI = 7168; L_RED = 11264; L_TB1 = 15360; L_TB2 = 19456; L_BW = 23552; BWSZ = 16384
CHAIN_LDS = L_BW + 7 * BWSZ
MFR = 16; ACC0 = 44; ACC1 = 48; STG = 52; EX = 68; BW = 96; AW = 144
VP = 0

class Prof:
    def __init__(self, a, on, step=40): self.a = a; self.on = on; self.step = step; self.names = ["top"] if on else []
    def __call__(self, name):
        if not self.on or (self.on in (1, 4) and name != "top"): return
        if self.on == 4:
            self.a("s_memtime s[64:65]"); self.a("s_memrealtime s[66:67]"); return
        if (self.on == 3) != name.startswith("a") and name not in ("top", "TA done", "bar2"): return
        if name not in self.names: self.names.append(name)
        k = self.names.index(name)
        assert k < 16
        self.a("s_memtime s[%d:%d]", 64 + 2 * k, 65 + 2 * k)
    def flush(self, n=16):
        if not self.on: return
        a = self.a
        if self.on == 4:
            a("s_bitcmp1_b32 s14, 0")
            a("s_cselect_b32 s64, s66, s64")
            a("s_mov_b32 m0, s24")
            a("v_writelane_b32 v%d, s64, m0", VP)
            return
        l = a.newlabel("PF")
        a("s_cmp_lg_u32 s24, %d", self.step + 1)
        a("s_cbranch_scc1 %s", l)
        for k in range(n): a("v_writelane_b32 v%d, s%d, %d", VP, 64 + 2 * k, k)
        a.label(l)
        for st, ln in ((10, 20), (60, 21)):
            l = a.newlabel("PF")
            a("s_cmp_lg_u32 s24, %d", st)
            a("s_cbranch_scc1 %s", l)
            a("v_writelane_b32 v%d, s64, %d", VP, ln)
            a.label(l)

class LQ:
    def __init__(self, a): self.a = a; self.q = []
    def issue(self, tag, txt, *args): self.a(txt, *args); self.q.append(tag)
    def wait(self, tag):
        if tag not in self.q: return
        last = max(k for k, t in enumerate(self.q) if t == tag)
        self.a("s_waitcnt lgkmcnt(%d)", len(self.q) - 1 - last)
        self.q = self.q[last + 1:]
    def all(self): self.a("s_waitcnt lgkmcnt(0)"); self.q = []

def interleave(a, b):
    a("v_swap_b32 v%d, v%d", b + 1, b + 4)
    a("v_swap_b32 v%d, v%d", b + 3, b + 5)
    a("v_swap_b32 v%d, v%d", b + 2, b + 4)
    a("v_swap_b32 v%d, v%d", b + 5, b + 6)

L_FL = L_BW + 8 * BWSZ
def local_a(a, prof, abort, bload, hi, k0, pd, touch, rdep, bands, ni, ramp, pa, p7):
    import pt
    from k1 import SCALE
    R = lambda i: L_BW + i * BWSZ
    sl = [R(0), R(1), R(2), 0, R(7), R(4), R(5), R(6), R(3)]
    slot = {k: sl[k % 9] for k in range(14)}
    pt.lanes(a)
    a("v_bfe_u32 v7, v1, 2, 2")
    a("s_lshl_b32 s30, s21, 9")
    def bptr():
        a("s_lshl_b32 s50, s22, 2")
        a("s_add_u32 s50, s50, s60")
        a("s_mul_i32 s50, s50, 14")
        a("s_min_u32 s51, s21, 13")
        a("s_add_u32 s50, s50, s51")
        a("s_mul_i32 s50, s50, %d", 56 * 1024)
        a("s_mul_i32 s51, s61, 7168")
        a("s_add_u32 s50, s50, s51")
        a("s_add_u32 s50, s50, 0x%x", BF + 4096)
        add64(a, 80, 4, off_sgpr=50)
        for i in range(1, 4): add64(a, 80 + 2 * i, 80, imm=14336 * i)
        for i in range(4): a("v_mov_b32 v%d, 0", BW + i)
        if prof == 4: a("s_mov_b32 s78, 0")
        a("s_mul_i32 s50, s22, 56")
        a("s_min_u32 s51, s21, 13")
        a("s_lshr_b32 s51, s51, 1")
        a("s_add_u32 s50, s50, s51")
        a("s_lshl_b32 s50, s50, 6")
        a("s_add_u32 s50, s50, 0x%x", ABF)
    WK = 32; V = 16
    PD = lambda k: BW + 36 + k % 4
    def landed(k, first, l):
        if not first: a("s_branch %sa", l)
        a.label(l)
        a("ds_read_b32 v3, v0")
        a("s_sub_u32 s25, s25, 1")
        a("s_cbranch_scc1 %s", abort)
        a("s_waitcnt lgkmcnt(0)")
        a.label(l + "a")
        a("v_cmp_ne_u32 vcc, 0, v3")
        a("s_bitcmp1_b32 vcc_lo, %d", k)
        a("s_cbranch_scc0 %s", l)
    a("s_cmp_eq_u32 s14, 7")
    a("s_cbranch_scc1 LA_w7")
    a("v_lshlrev_b32 v13, 16, v3")
    a("v_add_u32 v13, v13, v12")
    a("v_lshl_add_u32 v9, v7, 14, v13")
    a("s_mul_i32 s34, s22, 7")
    a("s_add_u32 s34, s34, s14")
    a("s_lshl_b32 s34, s34, 18")
    a("s_add_u32 s34, s34, s30")
    add64(a, 34, 66, off_sgpr=34)
    add64(a, 36, 34, imm=8192)
    a("s_mul_i32 s32, s20, 7")
    a("s_add_u32 s32, s32, s14")
    a("s_lshl_b32 s32, s32, 10")
    a("s_add_u32 s32, s32, 0x%x", MEMR)
    add64(a, 32, 4, off_sgpr=32)
    for r in range(4): a("v_mov_b32 v%d, -1", V + r)
    a("global_store_dwordx4 v2, %s, s[32:33] sc1", vr(V, 4))
    a("v_lshlrev_b32 v0, 2, v1")
    a("v_add_u32 v0, %d, v0", L_FL)
    a("v_mov_b32 v8, %d", pt.L_NON)
    a("v_cmp_gt_u32 vcc, 16, v1")
    a("v_cndmask_b32 v0, v8, v0")
    a("s_lshr_b32 s50, s60, 1")
    a("s_lshl_b32 s50, s50, 2")
    a("s_add_u32 s50, s50, %d", L_FL + 384)
    a("v_mov_b32 v8, s50")
    a("v_cmp_gt_u32 vcc, 17, v1")
    a("v_cndmask_b32 v0, v8, v0")
    a("v_and_b32 v8, 1, v3")
    a("v_lshrrev_b32 v13, 1, v3")
    a("s_cmp_ge_u32 s14, 4")
    a("s_cbranch_scc1 LA_i0")
    a("s_barrier")
    a.label("LA_i0")
    for m in range(16): a("global_load_dwordx4 %s, v9, s[%d:%d] offset:%d", vr(WK + m * 4, 4), 34 + 2 * (m & 1), 35 + 2 * (m & 1), 64 * (m >> 1))
    a("s_cmp_lt_u32 s14, 4")
    a("s_cbranch_scc1 LA_i1")
    a("s_setprio %d", pa)
    a("s_barrier")
    a.label("LA_i1")
    bptr()
    a("v_lshrrev_b32 v14, 2, v4")
    a("v_xor_b32 v14, v14, v13")
    a("v_lshlrev_b32 v14, 4, v14")
    a("v_lshl_add_u32 v14, v4, 6, v14")
    a("v_lshl_add_u32 v5, v8, 13, v14")
    a("v_add_u32 v5, %d, v5", slot[0])
    a("v_xor_b32 v6, 32, v5")
    a("s_lshl_b32 s36, s14, 11")
    a("s_add_u32 s36, s36, %d", sl[8])
    a("v_lshl_add_u32 v10, v8, 10, v14")
    a("v_add_u32 v10, s36, v10")
    a("v_xor_b32 v11, 32, v10")
    a("v_add_u32 v12, s36, v2")
    a("s_lshl_b32 s50, s14, 2")
    a("s_add_u32 s50, s50, %d", L_FL + 64)
    a("v_mov_b32 v1, s50")
    a("s_and_b32 s50, s60, 1")
    a("s_lshl_b32 s50, s50, 2")
    a("s_add_u32 s50, s50, s61")
    a("s_lshl_b32 s50, s50, 2")
    a("s_lshl_b32 s88, 0x0f0f, s50")
    a("s_cmp_eq_u32 s23, 0")
    a("s_cselect_b32 s89, -1, s88")
    a("s_mov_b32 s38, %s", f32(SCALE))
    for kd in range(8):
        a("s_waitcnt vmcnt(%d)", 14 - 2 * kd)
        for t in range(2): a("ds_write_b128 v12, %s offset:%d", vr(WK + (2 * kd + t) * 4, 4), 1024 * t)
        for c in range(2): a("ds_read_b128 %s, v%d", vr(WK + (2 * kd + c) * 4, 4), 10 + c)
    if prof == 4: a("s_memrealtime s[76:77]")
    landed(0, True, "LA_l0")
    if prof == 4: a("s_memrealtime s[90:91]")
    q = LQ(a)
    free = [(8, 224), (12, 224), (BW + 40, 224), (BW + 44, 224)] + [(AW + 96 + 4 * i, 192) for i in range(4)]
    buf = {}; nxt = [0]
    def rd(cur, lim):
        while nxt[0] < min(lim, cur + 1 + rdep):
            F = nxt[0]
            ok = [x for x in free if x[1] > F]
            if not ok: return
            x = min(ok, key=lambda y: y[1]); free.remove(x); buf[F] = x
            if F and not (F & 15):
                for r in (5, 6): a("v_add_u32 v%d, %d, v%d", r, slot[F >> 4] - slot[(F >> 4) - 1], r)
            q.issue(F, "ds_read_b128 %s, v%d offset:%d", vr(x[0], 4), 5 + (F & 1), ((F & 15) >> 1) * 1024)
            nxt[0] += 1
    def acc(ks): return V if ks & 1 else AW + 8 * ks
    def cvt_ops(ks):
        Rr = AW + 8 * ks; X = acc(ks); ops = []
        for d in range(4):
            for e in range(2):
                s0 = X + 8 * e + 2 * d
                ops.append([("v_mul_f32 v%d, s38, v%d", s0, s0), ("v_mul_f32 v%d, s38, v%d", s0 + 1, s0 + 1), ("v_cvt_pk_f16_f32 v%d, v%d, v%d", Rr + 2 * d + e, s0, s0 + 1)])
        for d in range(4): ops.append([("v_permlane16_swap_b32 v%d, v%d", Rr + 2 * d, Rr + 2 * d + 1)])
        return ops
    def bgo():
        if prof == 4: a("s_memrealtime s[78:79]")
        bload(range(5))
        a("ds_write_b32 v1, v0 offset:192")
        a("s_mov_b32 s89, -1")
    tail = []
    rd(-1, 16)
    for ks in range(14):
        ops = cvt_ops(ks - 1) if ks else []
        sched = {2: [0], 3: [1], 4: [2], 8: [3, 8], 9: [4], 10: [5, 9], 11: [6], 12: [7, 10], 13: [11]}
        if prof == 4:
            if ks: a("s_mov_b32 s%d, s40", 61 + ks); a("s_mov_b32 s%d, s25", 41 + ks if ks < 9 else 43 + ks)
            a("s_memtime s[40:41]")
        for m in range(16):
            F = ks * 16 + m
            q.wait(F)
            d = vr(acc(ks), 16)
            a("v_mfma_f32_32x32x16_bf16 %s, %s, %s, %s", d, vr(buf[F][0], 4), vr(WK + m * 4, 4), d if m else "0")
            if ops:
                for g in sched.get(m, []):
                    for o in ops[g]: a(*o)
            free.append(buf[F])
            if ks == 13: free.append((WK + m * 4, 224))
            row = {9: 7, 13: 8}.get(ks, ks if ks <= 5 else None)
            if m == 0 and row is not None: q.issue("pr", "ds_write_b32 v1, v0 offset:%d", 32 * row)
            if m == 13 and ks < 12 or (F == 0): q.issue("fl", "ds_read_b32 v3, v0")
            if m == 5 and ks < 13:
                q.wait("fl")
                a("v_cmp_ne_u32 vcc, 0, v3")
                a("v_readlane_b32 s50, v3, 17")
                if ks == 12: a("v_readlane_b32 s19, v3, 16")
            if m == 6 and ks < 13:
                a("s_bitcmp1_b32 vcc_lo, %d", ks + 1)
                a("s_cbranch_scc0 LA_l%d", ks + 1)
                a.label("LA_m%d" % (ks + 1))
                def slow(k=ks + 1):
                    landed(k, True, "LA_l%d" % k)
                    a("s_branch LA_m%d", k)
                tail.append(slow)
            rd(F, min(224, 16 * (ks + 1 + (m >= 6))))
            if m == 7 and k0 <= ks < 13:
                a("s_and_b32 s50, s50, s88")
                a("s_cmp_eq_u32 s50, s89")
                a("s_cbranch_scc1 LA_g%d", ks)
                a.label("LA_h%d" % ks)
                def go(k=ks):
                    a.label("LA_g%d" % k)
                    bgo()
                    a("s_waitcnt lgkmcnt(0)")
                    a("s_branch LA_h%d", k)
                tail.append(go)
    a.label("LA_e0")
    a("s_cmp_eq_u32 s89, -1")
    a("s_cbranch_scc1 LA_e1")
    a("ds_read_b32 v3, v0")
    a("s_sub_u32 s25, s25, 1")
    a("s_cbranch_scc1 %s", abort)
    a("s_waitcnt lgkmcnt(0)")
    a("v_readlane_b32 s50, v3, 17")
    a("s_and_b32 s50, s50, s88")
    a("s_cmp_eq_u32 s50, s89")
    a("s_cbranch_scc0 LA_e0")
    bgo()
    a.label("LA_e1")
    a("s_setprio 0")
    a("v_lshrrev_b32 v1, 4, v2")
    if prof == 4:
        a("s_mov_b32 s75, s40")
        a("s_memtime s[40:41]")
        a("s_memrealtime s[92:93]")
        a("s_waitcnt lgkmcnt(0)")
        for k in range(14): a("v_writelane_b32 v8, s%d, %d", 62 + k, k)
        a("v_writelane_b32 v8, s40, 14")
        a("v_writelane_b32 v8, s76, 30")
        a("v_writelane_b32 v8, s90, 31")
        for k in range(1, 14): a("v_writelane_b32 v8, s%d, %d", 41 + k if k < 9 else 43 + k, 16 + k)
        a("s_lshl_b32 s50, s20, 3")
        a("s_add_u32 s50, s50, s14")
        a("s_lshl_b32 s50, s50, 8")
        a("s_add_u32 s50, s50, 0x%x", POIS_END + 0x200000)
        a("v_lshlrev_b32 v9, 2, v1")
        a("v_add_u32 v9, s50, v9")
        a("global_store_dword v9, v8, s[4:5]")
    a("s_cmp_eq_u32 s23, 0")
    a("s_cbranch_scc1 LA_e2")
    bload([5] + hi)
    a.label("LA_e2")
    for o in cvt_ops(13):
        for x in o: a(*x)
    a("v_lshrrev_b32 v3, 4, v1")
    a("s_cmp_eq_u32 s61, 1")
    a("s_cbranch_scc1 LA_end")
    for i in range(56): a("v_swap_b32 v%d, v%d", AW + i, AW + 56 + i)
    a("s_branch LA_end")
    for f in tail: f()
    a.label("LA_w7")
    a("s_setprio %d", p7)
    a("v_and_b32 v13, 1, v3")
    a("v_lshl_add_u32 v8, v13, 17, v12")
    a("v_lshrrev_b32 v13, 1, v3")
    a("v_lshl_add_u32 v8, v13, 15, v8")
    a("v_lshl_add_u32 v8, v7, 13, v8")
    add64(a, 32, 64, off_sgpr=30)
    vq = []
    def half(i):
        add64(a, 34, 32, imm=((i >> 1) << 18) + (i & 1) * 8 * 8192)
        for kd in range(8):
            a("s_mov_b32 m0, %d", slot[i >> 1] + (i & 1) * 8192 + 960 * kd)
            a("global_load_lds_dwordx4 v8, s[34:35] offset:%d", 64 * kd)
            vq.append(i)
    def vwait(tag):
        last = max(k for k, t in enumerate(vq) if t == tag)
        a("s_waitcnt vmcnt(%d)", len(vq) - 1 - last)
        del vq[:last + 1]
    DEP = 7
    for i in range(4):
        if i == ni: a("s_barrier")
        half(i)
    pt.nonce_ld(a); vq.append("N")
    if ni == 4: a("s_barrier")
    issued = [4]
    bptr()
    a("v_lshlrev_b32 v10, 3, v1")
    a("v_add_u32 v12, 0x%x, v10", LNF)
    a("v_lshrrev_b32 v13, 3, v1")
    a("v_mul_u32_u24 v13, %d, v13", 7 * 64)
    a("v_and_b32 v14, 7, v1")
    a("v_lshl_add_u32 v13, v14, 3, v13")
    a("v_add_u32 v13, s50, v13")
    a("v_min_u32 v11, 6, v14")
    a("v_lshlrev_b32 v11, 2, v11")
    a("v_add_u32 v11, %d, v11", L_FL + 64)
    a("v_and_b32 v14, 31, v1")
    a("v_lshlrev_b32 v9, 7, v14")
    a("v_lshlrev_b32 v14, 2, v14")
    a("v_add_u32 v14, 0x%x, v14", RDY)
    a("v_lshrrev_b32 v10, 5, v1")
    a("v_mul_u32_u24 v10, 14336, v10")
    a("v_add_u32 v9, v9, v10")
    a("s_lshl_b32 s50, s20, 2")
    a("s_add_u32 s50, s50, 0x%x", RDY)
    a("v_mov_b32 v15, s50")
    a("v_mov_b32 v5, %d", L_FL)
    for i in range(16):
        vwait(i)
        if i == 4: pt.nonce_put(a, abort)
        if i & 1: a("ds_write_b32 v5, v5 offset:%d", 4 * (i >> 1))
        upto = min(16, i + 1 + ramp.get(i, DEP))
        while issued[0] < upto: half(issued[0]); issued[0] += 1
    def bpoll():
        a("global_load_dwordx2 v[16:17], v13, s[4:5] sc1")
        a("s_sub_u32 s25, s25, 1")
        a("s_cbranch_scc1 %s", abort)
        a("s_waitcnt vmcnt(0)")
        a("v_cmp_eq_u32 vcc, s19, v17")
        a("s_or_b32 vcc_lo, vcc_lo, 0x88888888")
        a("s_or_b32 vcc_hi, vcc_hi, 0x88888888")
        a("v_cmp_eq_u32 s[50:51], s19, v16")
        a("s_and_b64 s[50:51], s[50:51], vcc")
        a("v_mov_b32 v16, s50")
        a("v_mov_b32 v17, s51")
        a("ds_write_b64 v5, v[16:17] offset:384")
    def prog(row, l):
        a("ds_read_b32 v6, v11 offset:%d", 32 * row)
        a("s_waitcnt lgkmcnt(0)")
        a("v_cmp_eq_u32 vcc, 0, v6")
        a("s_cbranch_vccnz %s", l)
    for k in range(8, 14):
        l = "LA_f%d" % k
        a("s_branch %sa", l)
        a.label(l)
        bpoll()
        for kk in range(max(8, k - 2), k): a("ds_write_b32 v5, v5 offset:%d", 4 * kk)
        a.label(l + "a")
        prog(k - 8, l)
        if k == 8:
            a("s_or_b32 s50, s19, s17")
            a("v_mov_b32 v16, s50")
            a("s_mov_b64 exec, 1")
            a("global_store_dword v15, v16, s[4:5] sc1")
            a("s_mov_b64 exec, -1")
        if k >= 10:
            a("s_waitcnt vmcnt(16)")
            a("ds_write_b32 v5, v5 offset:%d", 4 * (k - 2))
        half(2 * k); half(2 * k + 1)
    a("s_waitcnt vmcnt(16)")
    a("ds_write_b32 v5, v5 offset:48")
    a.label("LA_p")
    bpoll()
    a("ds_write_b32 v5, v5 offset:52")
    a("s_cmp_eq_u32 s23, 0")
    a("s_cbranch_scc1 LA_q")
    a("s_cmp_eq_u64 s[50:51], -1")
    a("s_cbranch_scc0 LA_p")
    a.label("LA_p2")
    a("s_sub_u32 s25, s25, 1")
    a("s_cbranch_scc1 %s", abort)
    prog(6, "LA_p2")
    def pol2():
        a("global_load_dwordx2 v[18:19], v12, s[4:5] sc1")
        a("global_load_dword v20, v14, s[4:5] sc1")
    pol2()
    bload(range(6))
    bload(hi)
    if touch:
        a("s_mul_i32 s50, s61, 14336")
        a("s_add_u32 s50, s50, %d", 3 * 14 * 56 * 1024 + 1024 - 7168)
        a("s_sub_u32 s34, s80, s50")
        a("s_subb_u32 s35, s81, 0")
        for qq in range(3):
            for i in range(2):
                a("global_load_dword v21, v9, s[34:35] sc1")
                a("s_add_u32 s34, s34, %d", 28672 if i < 1 else 14 * 56 * 1024 - 28672); a("s_addc_u32 s35, s35, 0")
    a("s_waitcnt vmcnt(%d)", 28 + 6 * touch)
    a("s_branch LA_q1")
    a.label("LA_q")
    pol2()
    a("s_sub_u32 s25, s25, 1")
    a("s_cbranch_scc1 %s", abort)
    a("s_waitcnt vmcnt(0)")
    a.label("LA_q1")
    a("v_and_b32 v22, -2, v20")
    allnon(a, [18, 19, 22])
    a("v_cmp_ne_u32 vcc, 0, v18")
    a("s_cbranch_vccnz LA_q")
    a("v_cmp_ne_u32 vcc, s19, v20")
    a("s_or_b32 s50, vcc_lo, vcc_hi")
    a("s_cselect_b32 s50, 3, 1")
    a("v_mov_b32 v7, s50")
    a("ds_write2_b32 v5, v7, v7 offset0:%d offset1:%d", 16 + 7 * 8 + 7, 16 + 8 * 8 + 7)
    a("s_setprio 0")
    a("s_waitcnt lgkmcnt(0)")
    a.label("LA_end")

SM = "v_smfmac_f32_16x16x64_f16 %s, %s, %s, v5"
def emit_chain(a, prof=False, nv=64, ns=(0, 0, 0, 0), bpos=9, nb2=4, nb3=8, gpos=13, g2=1, pdel=1, p2=1, flag=1, fpos=5, dep=6, dep2=7, nb7=0, xp=0, abort="CH_abort", merged=True, dbgout=0, k0=1, pd=3, touch=1, rdep=8, bands=(), ni=4, ramp={0: 3, 1: 4, 2: 3}, pa=1, p7=0):
    P = Prof(a, prof)
    npf = nv + sum(ns)
    def spf(w):
        o = nv + sum(ns[:w - 4])
        for i in range(ns[w - 4]): a("s_load_dword s96, s[54:55], %d", (o + i) * 128)
    MODE = {"ST": "", "PX": ""}
    a.c("---- chain, role s20")
    a("s_lshr_b32 s21, s20, 1")
    a("s_and_b32 s22, s20, 1")
    a("s_cmp_lt_u32 s20, 28")
    a("s_cselect_b32 s23, 1, 0")
    a("s_mov_b32 s25, 0x100000")
    a("s_and_b32 s60, s14, 3")
    a("s_lshr_b32 s61, s14, 2")
    a("s_xor_b32 s61, s61, s22")
    a("s_xor_b32 s61, s61, 1")
    def breg(n): return BW + n * 8 if n < 6 else 32 + (n - 6) * 8
    def bload(ns_):
        for n in ns_:
            for w in range(2):
                b = 80 + 4 * (n & 1) + 2 * w
                a("global_load_dwordx4 %s, v2, s[%d:%d] offset:%d sc1", vr(breg(n) + w * 4, 4), b, b + 1, (n >> 1) * 1024 - 4096)
    hi = [10, 11, 12, 13, 6, 7, 8, 9]
    local_a(a, prof, abort, bload, hi, k0, pd, touch, rdep, bands, ni, ramp, pa, p7)
    def TS(k):
        if prof == 4: a("s_memrealtime s[%d:%d]", 64 + 2 * k, 65 + 2 * k)
    TS(0)
    a("s_mov_b32 s46, 0x00ff00ff")
    a("s_mov_b32 s47, 0x00ff00ff")
    add64(a, 26, 4, imm=MEMR)
    add64(a, 28, 4, imm=SR)
    for r in (30, 32, 58): a("s_mov_b64 s[%d:%d], s[26:27]", r, r + 1)
    for r in (34, 36): a("s_mov_b64 s[%d:%d], s[28:29]", r, r + 1)
    a("s_min_u32 s50, s14, 6")
    a("s_lshl_b32 s50, s50, 10")
    a("v_add_u32 v14, s50, v2")
    a("v_bfe_u32 v16, v14, 4, 3")
    a("v_mul_u32_u24 v16, 896, v16")
    a("v_lshrrev_b32 v17, 9, v14")
    a("v_lshl_add_u32 v16, v17, 6, v16")
    a("v_bfe_u32 v17, v14, 7, 1")
    a("v_lshl_add_u32 v16, v17, 5, v16")
    a("v_bfe_u32 v17, v14, 8, 1")
    a("v_lshl_add_u32 v16, v17, 3, v16")
    a("global_load_dwordx2 v[20:21], v16, s[12:13]")
    a("global_load_dwordx2 v[22:23], v16, s[12:13] offset:16")
    a("v_bfe_u32 v5, v4, 1, 1")
    a("v_mul_u32_u24 v5, 0xaaaa, v5")
    a("v_add_u32 v5, 0x4444, v5")
    a("v_lshrrev_b32 v6, 2, v4")
    a("v_lshlrev_b32 v6, 1, v6")
    a("v_and_b32 v7, 1, v4")
    a("v_add_u32 v6, v6, v7")
    a("v_lshlrev_b32 v6, 4, v6")
    a("v_lshl_add_u32 v6, v3, 7, v6")
    a("s_mul_i32 s50, s61, 3584")
    a("v_add_u32 v6, s50, v6")
    a("v_lshrrev_b32 v7, 2, v4")
    a("v_lshlrev_b32 v7, 7, v7")
    a("v_lshl_add_u32 v7, v3, 5, v7")
    a("v_and_b32 v8, 3, v4")
    a("v_lshl_add_u32 v7, v8, 2, v7")
    a("s_lshl_b32 s50, s14, 9")
    a("s_add_u32 s50, s50, %d", L_TAI)
    a("v_add_u32 v7, s50, v7")
    a("s_lshl_b32 s50, s60, 10")
    a("s_add_u32 s50, s50, %d", L_TB1)
    a("v_add_u32 v12, s50, v2")
    a("s_cmp_ge_u32 s14, 4")
    a("s_cbranch_scc1 CH_c4")
    a("s_lshr_b32 s50, s60, 1")
    a("s_lshl_b32 s50, s50, 10")
    a("s_and_b32 s51, s60, 1")
    a("s_lshl_b32 s51, s51, 3")
    a("s_add_u32 s50, s50, s51")
    a("s_add_u32 s50, s50, %d", L_TB2)
    a("v_add_u32 v8, s50, v2")
    a("s_lshl_b32 s50, s60, 10")
    a("s_add_u32 s50, s50, %d", L_RED)
    a("v_lshlrev_b32 v9, 2, v1")
    a("v_add_u32 v9, s50, v9")
    a("s_lshl_b32 s50, s22, 2")
    a("s_add_u32 s50, s50, s60")
    a("s_lshl_b32 s51, s50, 11")
    a("v_add_u32 v10, s51, v2")
    a("s_lshl_b32 s51, s50, 9")
    a("s_add_u32 s51, s51, 16384")
    a("v_lshlrev_b32 v11, 2, v1")
    a("v_add_u32 v11, s51, v11")
    a("s_lshl_b32 s50, s60, 12")
    a("v_add_u32 v13, s50, v2")
    a("s_branch CH_c5")
    a.label("CH_c4")
    a("v_mov_b32 v11, 0")
    a("v_and_b32 v16, 7, v4")
    a("s_cmp_eq_u32 s14, 5")
    a("s_cselect_b64 vcc, -1, 0")
    a("v_lshlrev_b32 v8, 4, v16")
    a("v_lshl_add_u32 v17, v3, 7, v8")
    a("v_and_b32 v18, 1, v3")
    a("v_lshl_add_u32 v8, v18, 8, v8")
    a("v_lshrrev_b32 v18, 1, v3")
    a("v_lshl_add_u32 v8, v18, 3, v8")
    a("v_cndmask_b32 v8, v17, v8")
    a("v_add_u32 v8, %d, v8", L_TAI)
    a("v_lshrrev_b32 v17, 1, v16")
    a("v_lshlrev_b32 v17, 2, v17")
    a("v_and_b32 v18, 1, v16")
    a("v_add_u32 v17, v17, v18")
    a("s_and_b32 s50, s21, 1")
    a("s_lshl_b32 s50, s50, 1")
    a("v_add_u32 v17, s50, v17")
    a("s_lshr_b32 s50, s21, 1")
    a("s_lshl_b32 s50, s50, 1")
    a("s_add_u32 s50, s50, s22")
    a("s_lshl_b32 s51, s50, 10")
    a("s_sub_u32 s52, 7, s14")
    a("s_lshl_b32 s52, s52, 9")
    a("s_add_u32 s51, s51, s52")
    a("v_lshlrev_b32 v9, 4, v17")
    a("v_lshrrev_b32 v18, 1, v3")
    a("v_lshl_add_u32 v9, v18, 8, v9")
    a("v_and_b32 v18, 1, v3")
    a("v_lshl_add_u32 v9, v18, 3, v9")
    a("v_add_u32 v9, s51, v9")
    a("s_lshl_b32 s51, s50, 8")
    a("s_add_u32 s51, s51, 16384")
    a("v_lshl_add_u32 v17, v3, 4, v17")
    a("v_lshlrev_b32 v18, 2, v17")
    a("v_add_u32 v18, s51, v18")
    a("v_cndmask_b32 v9, v9, v18")
    a("v_bfe_u32 v13, v1, 1, 1")
    a("v_lshlrev_b32 v13, 7, v13")
    a("v_and_b32 v16, 1, v1")
    a("v_lshl_add_u32 v13, v16, 3, v13")
    a("v_bfe_u32 v16, v1, 2, 2")
    a("v_lshl_add_u32 v13, v16, 5, v13")
    a("v_lshrrev_b32 v16, 5, v1")
    a("v_lshl_add_u32 v13, v16, 4, v13")
    a("v_bfe_u32 v16, v1, 4, 1")
    a("v_lshl_add_u32 v13, v16, 8, v13")
    a("s_mul_i32 s50, s22, 7168")
    a("s_lshl_b32 s51, s21, 9")
    a("s_add_u32 s50, s50, s51")
    a("v_add_u32 v13, s50, v13")
    a("v_min_u32 v10, %d, v1", max(nv - 1, 0))
    a("v_lshlrev_b32 v10, 7, v10")
    a("v_add_u32 v16, 2048, v8")
    a("v_cndmask_b32 v10, v10, v16")
    a.label("CH_c5")
    a("s_mul_i32 s50, s61, 7168")
    a("s_sub_u32 s50, 3584, s50")
    a("v_add_u32 v3, s50, v6")
    a("s_lshl_b32 s50, s20, 7")
    a("s_add_u32 s50, s50, %d", 192 * 1024)
    a("v_mov_b32 v4, s50")
    a("s_mul_i32 s42, s22, 7168")
    a("s_and_b32 s43, s14, 1")
    a("s_xor_b32 s43, s43, 1")
    a("s_mul_i32 s43, s43, 14336")
    a("s_add_u32 s42, s42, s43")
    a("s_add_u32 s42, s42, 0x%x", XF + 4096)
    add64(a, 42, 4, off_sgpr=42)
    a("s_sub_u32 s44, s20, 28")
    a("s_max_i32 s44, s44, 0")
    a("s_mul_i32 s44, s44, 7168")
    a("s_add_u32 s44, s44, 0x%x", XF + 2 * 28 * 1024)
    add64(a, 44, 4, off_sgpr=44)
    a("s_mov_b32 s24, 0")
    a("s_mov_b64 s[62:63], 0")
    a("s_min_u32 s38, s20, 27")
    a("s_mul_i32 s38, s38, %d", 16 * 1024)
    a("s_add_u32 s38, s38, 0x%x", UF)
    add64(a, 38, 4, off_sgpr=38)
    a("s_lshl_b32 s40, s21, 13")
    a("s_lshl_b32 s41, s22, 11")
    a("s_add_u32 s40, s40, s41")
    a("s_add_u32 s40, s40, 0x%x", TBX - 28 * 4096 + 2048)
    add64(a, 40, 4, off_sgpr=40)
    add64(a, 48, 4, imm=MEMX)
    a("s_mov_b64 s[54:55], s[38:39]")
    a("s_sub_u32 s56, s20, 28")
    a("s_max_i32 s56, s56, 0")
    a("s_mul_i32 s56, s56, %d", 7 * 16384)
    a("s_add_u32 s56, s56, 0x%x", UF + 2 * 28 * 16 * 1024)
    add64(a, 56, 4, off_sgpr=56)
    a("s_cmp_lg_u32 s23, 0")
    a("s_cbranch_scc1 CH_hs")
    NL = max(128 - npf, 1); NHP = (7 * NL + 319) // 320
    a("s_and_b32 s50, s20, 1")
    a("s_lshl_b32 s50, s50, 2")
    a("s_add_u32 s50, s50, s60")
    a("s_min_u32 s50, s50, 6")
    a("s_lshl_b32 s50, s50, 10")
    a("v_lshrrev_b32 v4, 5, v1")
    a("v_lshlrev_b32 v4, 9, v4")
    a("v_bfe_u32 v16, v1, 4, 1")
    a("v_lshl_add_u32 v4, v16, 7, v4")
    a("v_and_b32 v16, 7, v1")
    a("v_lshl_add_u32 v4, v16, 4, v4")
    a("v_bfe_u32 v16, v1, 3, 1")
    a("v_lshl_add_u32 v4, v16, 3, v4")
    a("v_add_u32 v4, s50, v4")
    a("v_add_u32 v13, s50, v2")
    a("s_sub_u32 s50, s20, 28")
    a("s_lshl_b32 s50, s50, 7")
    a("s_add_u32 s50, s50, %d", 192 * 1024)
    a("v_mov_b32 v11, s50")
    a("s_cmp_lg_u32 s14, 7")
    a("s_cbranch_scc1 CH_h7")
    a("v_min_u32 v10, 55, v1")
    a("v_lshlrev_b32 v10, 7, v10")
    a.label("CH_h7")
    for i in range(NHP):
        a("s_min_u32 s50, s14, 4")
        a("s_add_u32 s50, s50, %d", 5 * i)
        a("s_lshl_b32 s50, s50, 6")
        a("v_add_u32 v16, s50, v1")
        a("v_min_u32 v16, %d, v16", 7 * NL - 1)
        a("v_cvt_f32_u32 v17, v16")
        a("v_add_f32 v17, 0.5, v17")
        a("v_mul_f32 v17, %s, v17", f32(1.0 / NL))
        a("v_cvt_u32_f32 v17, v17")
        a("v_mul_u32_u24 v18, %d, v17", NL)
        a("v_sub_u32 v16, v16, v18")
        a("v_add_u32 v16, %d, v16", 128 - NL)
        a("v_lshlrev_b32 v16, 7, v16")
        a("v_lshl_add_u32 v%d, v17, 14, v16", BW + i)
    a.label("CH_hs")
    XR = EX; UR = EX; GX = EX + 16; GM = EX + 24
    def xload():
        for k in range(7):
            a("global_load_dwordx4 %s, v2, s[42:43] offset:%d sc1", vr(XR + 4 * k, 4), k * 1024 - 4096)
    a("s_mul_i32 s50, s14, %d", BWSZ)
    a("s_add_u32 s50, s50, %d", L_BW)
    a("v_add_u32 v15, s50, v2")
    add64(a, 52, 4, imm=UFL)
    a("v_min_u32 v16, 55, v1")
    a("v_lshlrev_b32 v16, 4, v16")
    a("s_lshl_b32 s50, s14, 10")
    a("v_add_u32 v17, s50, v16")
    a("s_mul_i32 s50, s20, 5120")
    add64(a, 50, 26, off_sgpr=50)
    a("v_min_u32 v19, 39, v1")
    a("v_lshlrev_b32 v19, 7, v19")
    a("global_load_dword v29, v19, s[50:51] sc1")
    a("global_load_dwordx4 v[24:27], v17, s[52:53] sc1")
    a("v_and_b32 v30, 7, v1")
    a("v_lshlrev_b32 v30, 2, v30")
    a("v_add_u32 v30, %d, v30", L_FL + 64)
    X = "CI"
    def skip(cond, l):
        a({"noA": "s_cmp_eq_u32 s14, 7", "noB": "s_cmp_eq_u32 s23, 0"}[cond])
        a("s_cbranch_scc1 %s%s", X, l)
    def row(r):
        l = a.newlabel("CR")
        a.label(l)
        a("ds_read_b32 v28, v30 offset:%d", 32 * r)
        a("s_sub_u32 s25, s25, 1")
        a("s_cbranch_scc1 %s", abort)
        a("s_waitcnt lgkmcnt(0)")
        a("v_cmp_eq_u32 vcc, 0, v28")
        a("s_cbranch_vccnz %s", l)
    TS(1)
    skip("noB", "h")
    skip("noA", "c2")
    a("s_cmp_ge_u32 s14, 3")
    a("s_cbranch_scc1 CIc1")
    for c in range(3):
        a.label(X + "c%d" % c)
        a("s_waitcnt vmcnt(%d)", 20 + (6 * touch if c == 2 else 0))
        for n in range(6): interleave(a, breg(n))
        TS(2)
        if c < 2: row(7 if c else 8)
        TS(3)
        for i, n in enumerate(hi):
            a("s_waitcnt vmcnt(%d)", 18 - 2 * i + (7 if c and i >= 4 else 0) + (6 * touch if c == 2 else 0))
            b = breg(n)
            if c == 2:
                for d in range(8): a("v_mov_b32 v%d, v%d", AW + 8 * (n - 6) + d, b + (d >> 1) + 4 * (d & 1))
            else:
                interleave(a, b)
                for hf in range(2):
                    a("ds_write_b128 v15, %s offset:%d", vr(b + 4 * hf, 4), (n - 6) * 2048 + hf * 1024)
            if i == 3 and c:
                a("s_waitcnt lgkmcnt(0)")
                xload()
        a("s_branch %s", X + ("wd" if c else "we"))
    a.label(X + "h")
    row(7)
    xload()
    a.label(X + "wd")
    row(8)
    a.label(X + "we")
    TS(4)
    a("v_readlane_b32 s97, v28, 7")
    a("s_lshr_b32 s97, s97, 1")
    skip("noA", "2")
    a("s_waitcnt vmcnt(2)")
    for d in range(4):
        a("v_lshlrev_b32 v18, 16, v%d", 20 + d)
        a("v_and_b32 v%d, 0xffff0000, v%d", 20 + d, 20 + d)
        a("v_cvt_pk_f16_f32 v%d, v18, v%d", 20 + d, 20 + d)
    a("ds_write_b128 v14, v[20:23]")
    a.label("CI2")
    a("v_mov_b32 v0, 0")
    a("s_waitcnt vmcnt(0) lgkmcnt(0)")
    if prof == 4:
        a("s_memrealtime s[94:95]")
        for w, r in ((4, 90), (2, 92), (6, 78)):
            a("s_cmp_eq_u32 s14, %d", w)
            a("s_cselect_b32 s98, s%d, s98", r)
    a("s_mov_b64 s[62:63], 0")
    a("s_branch CH_t1")
    a.label("CH_t0")
    a("global_load_dwordx4 v[24:27], v17, s[52:53] sc1")
    a("s_sub_u32 s25, s25, 1")
    a("s_cbranch_scc1 %s", abort)
    a("s_waitcnt vmcnt(0)")
    a.label("CH_t1")
    allnon(a, [24, 25, 26, 27])
    a("v_cmp_ne_u32 vcc, 0, v24")
    a("s_cbranch_vccnz CH_t0")
    if prof == 4:
        TS(5)
        a("s_waitcnt lgkmcnt(0)")
        for k in range(6): a("v_writelane_b32 v24, s%d, %d", 64 + 2 * k, k + 1)
        a("v_writelane_b32 v24, s92, 0")
        a("v_writelane_b32 v24, s94, 7")
        a("s_lshl_b32 s50, s20, 3")
        a("s_add_u32 s50, s50, s14")
        a("s_lshl_b32 s50, s50, 8")
        a("s_add_u32 s50, s50, 0x%x", POIS_END + 0x300000)
        a("v_lshlrev_b32 v25, 2, v1")
        a("v_add_u32 v25, s50, v25")
        a("global_store_dword v25, v24, s[4:5]")
    a("v_mov_b32 v%d, v16", STG + 8)
    for i in range(8): a("v_mov_b32 v%d, s19", STG + i)
    def slotptr(d, base, delta, stride):
        a("s_add_u32 s50, s24, %d", delta)
        a("s_and_b32 s50, s50, 3")
        a("s_mul_i32 s50, s50, %d", stride)
        add64(a, d, base, off_sgpr=50)
    def adv(r, n):
        if (xp & 1) and r in (38, 42, 44, 54, 56): return
        a("s_add_u32 s%d, s%d, %d", r, r, n); a("s_addc_u32 s%d, s%d, 0", r + 1, r + 1)
    def ptrs(w, first=False):
        if w != 4: slotptr(34, 28, 0, SR_STRIDE)
        if w >= 5: slotptr(36, 28, 3, SR_STRIDE)
        slotptr(30, 26, 1, MEMR_STRIDE)
        if w == 6: slotptr(32, 26, 3, MEMR_STRIDE)
        if w >= 6: adv(42, 28 * 1024)
        if w >= 4: adv(54, 28 * 16384)
        if first: return
        if w < 4: adv(38, 28 * 16384); adv(48, 8192)
        if w == 7: adv(40, 28 * 4096); adv(44, 28 * 1024)
        if w <= 4: adv(56, 28 * 16384)
    G1 = (GX, GX + 4, GM, GM + 1); G2 = (MFR + 24, STG + 12, EX + 26, EX + 27)
    def gather(G=G1):
        a("global_load_dwordx4 %s, v10, s[34:35] sc1", vr(G[0], 4))
        a("global_load_dwordx4 %s, v10, s[34:35] offset:1024 sc1", vr(G[1], 4))
        a("global_load_dword v%d, v11, s[34:35] sc1", G[2])
        a("global_load_dword v%d, v11, s[34:35] offset:256 sc1", G[3])
    def zero(r, n=4):
        for i in range(n): a("v_mov_b32 v%d, 0", r + i)
    def memx():
        a("ds_read2_b64 %s, v4 offset0:0 offset1:32", vr(STG, 4))
        a("s_waitcnt lgkmcnt(0)")
        a("global_store_dwordx4 v13, %s, s[48:49] sc1", vr(STG, 4))
    def tbx_read(d):
        for k in range(4):
            a("ds_read_b128 %s, v2 offset:%d", vr(d + 4 * k, 4), L_TB2 + k * 1024)
    def tbx_store(d):
        for k in range(4):
            a("global_store_dwordx4 v2, %s, s[40:41] offset:%d sc1", vr(d + 4 * k, 4), (k >> 1) * 4096 + (k & 1) * 1024 - 2048)

    class TB:
        def __init__(self, w, q):
            self.w = w; self.q = q
            self.loc = {n: BW + 8 * n for n in range(6)}
            if w == 7:
                for n in range(6, 14): self.loc[n] = AW + 8 * (n - 6)
                self.pend = []; self.order = list(range(14))
            else:
                self.pend = list(range(6, 14))
                self.order = [6, 0, 7, 1, 8, 2, 9, 3, 10, 4, 11, 5, 12, 13]
            self.lds = set(self.pend); self.pos = 0
        def stage(self, slot):
            if not self.pend: return
            n = self.pend.pop(0); self.loc[n] = slot
            for hf in range(2):
                self.q.issue(("B", n), "ds_read_b128 %s, v15 offset:%d", vr(slot + 4 * hf, 4), (n - 6) * 2048 + hf * 1024)
        def late(self):
            self.order = [0, 1, 2, 6, 3, 7, 4, 8, 5, 9, 10, 11, 12, 13]
        def run(self, upto, hooks={}):
            while self.pos < upto:
                n = self.order[self.pos]
                self.q.wait(("M", n >> 1))
                if n in self.lds: self.q.wait(("B", n))
                a(SM, vr(ACC1 if n & 1 else ACC0, 4), vr(MFR + 4 * (n >> 1), 4), vr(self.loc[n], 8))
                if n in self.lds: self.stage(self.loc[n])
                if self.pos in hooks: hooks[self.pos]()
                self.pos += 1
    TBO = MFR; TPR = MFR + 8; PX = MFR + 12; PM = MFR + 16; T0 = MFR + 18; T1 = MFR + 19; RZ = MFR + 20
    ONE = STG; ZA = STG + 8
    def tb_cvt(d):
        for b, acc in enumerate((ACC0, ACC1)):
            a("v_cvt_pk_f16_f32 v%d, v%d, v%d", d + 2 * b, acc, acc + 1)
            a("v_cvt_pk_f16_f32 v%d, v%d, v%d", d + 2 * b + 1, acc + 2, acc + 3)
    def tb_give(d=TBO):
        tb_cvt(d)
        a("ds_write_b128 v12, %s", vr(d, 4))
        a("s_waitcnt lgkmcnt(0)")
        P("TB done")
    def tb_take1():
        a("s_barrier")
        a("ds_read_b128 %s, v12", vr(TPR, 4))
    def tb_take2():
        a("s_waitcnt lgkmcnt(0)")
        for d in range(4): a("v_pk_add_f16 v%d, v%d, v%d", TBO + d, TBO + d, TPR + d)
    def tb_take3():
        for b in range(2): a("ds_write_b64 v8, %s offset:%d", vr(TBO + 2 * b, 2), b * 2048)
    def mread(q, n):
        q.issue(("O", n) if n < 7 else ("M", n - 7), "ds_read_b128 %s, v%d offset:%d", vr(MFR + 4 * (n % 7), 4), 3 if n < 7 else 6, (n % 7) * 512)

    FLG = 192 * 1024
    class _N:
        def __call__(self, *x): pass
    def wave_loop(w, hp):
        pv = w < 4; N = MODE["PX"] + ("H%d" if hp else "C%d") % w
        ST = MODE["ST"]
        uchk = merged and hp and w == 4
        def ufl_ld(delta):
            a("s_add_u32 s50, s24, %d", delta)
            a("s_min_u32 s50, s50, 63")
            a("s_lshl_b32 s50, s50, 11")
            add64(a, 50, 52, off_sgpr=50)
            for k in range(2): a("global_load_dwordx4 %s, v%d, s[50:51] offset:%d sc1", vr(STG + 4 * k, 4), STG + 8, 1024 * k)
        TA = GX if pv else ACC0
        W7 = AW + 64
        r = {7: W7}.get(w, EX); r2 = r + 8; t = MFR
        pol = w != 6
        tail = []
        def poll(r):
            a("global_load_dwordx4 %s, v14, s[58:59] offset:-3584 sc1", vr(r, 4))
            a("global_load_dwordx4 %s, v14, s[58:59] offset:3584 sc1", vr(r + 4, 4))
        def newtb(q0, q):
            if hp: return None
            tb = TB(w, q0)
            if w < 6: tb.stage(STG); tb.stage(STG + 8)
            tb.q = q
            return tb
        def pre():
            newtb(LQ(a), None)
            if w != 7: zero(TA)
            if (pv or w == 7) and not hp: zero(ACC0); zero(ACC1)
            a("s_setprio 1")
        def mchk(x, lab):
            for d in range(4): a("v_pk_add_f16 v%d, v%d, v%d", t + d, x + d, x + 4 + d)
            a("ds_write_b128 v14, %s", vr(t, 4))
            a("v_pk_maximum3_f16 v%d, v%d, v%d, v%d", t + 4, t, t + 1, t + 2)
            a("v_pk_maximum3_f16 v%d, v%d, v%d, v%d", t + 4, t + 4, t + 3, t + 3)
            a("v_cmp_u_f16 vcc, v%d, v%d", t + 4, t + 4)
            a("s_cbranch_vccnz %s", lab)
        a.label(N + "_entry")
        ptrs(w, True)
        pre()
        a("s_branch %s_top", N)
        a.raw(".p2align 6")
        a.label(N + "_loop")
        if pol:
            a("s_waitcnt vmcnt(%d)", 2 if p2 else 0)
            mchk(r, N + "_mre")
            def mre():
                a.label(N + "_mre")
                poll(r)
                P("M re")
                if prof: a("s_add_u32 s62, s62, 1")
                a("s_sub_u32 s25, s25, 1")
                a("s_cbranch_scc1 %s", abort)
                if p2:
                    a("s_waitcnt vmcnt(2) lgkmcnt(0)")
                    mchk(r2, N + "_mre2")
                    a("s_branch %s_got", N)
                    a.label(N + "_mre2")
                    poll(r2)
                a("s_waitcnt lgkmcnt(0)")
                a("s_branch %s_loop", N)
            tail.append(mre)
        else:
            a("s_waitcnt vmcnt(0)")
        a.label(N + "_got")
        P("mem got")
        a.label(N + "_top")
        a("s_cmp_eq_u32 s24, 63")
        a("s_waitcnt lgkmcnt(0)")
        a("s_barrier")
        P("top")
        a("s_cbranch_scc1 %s_fin", N)
        q = LQ(a)
        tb = newtb(LQ(_N()), q)
        if w != 7:
            dp = dep if pv else dep2
            for n in range(dp): mread(q, n)
            for n in range(14):
                if n == 0: P("a pre")
                q.wait(("O", n) if n < 7 else ("M", n - 7))
                a(SM, vr(TA, 4), vr(MFR + 4 * (n % 7), 4), vr(AW + n * 8, 8))
                if n in (0, 2, 4, 6, 8, 10, 13): P("a%d" % n)
                if n + dp < 14: mread(q, n + dp)
            if pv and not hp:
                for k in range(2): a("global_load_dwordx4 %s, v13, s[38:39] offset:%d sc1", vr(UR + 4 * k, 4), k * 1024)
            a("v_cvt_pk_f16_f32 v%d, v%d, v%d", TA, TA, TA + 2)
            a("v_cvt_pk_f16_f32 v%d, v%d, v%d", TA + 1, TA + 1, TA + 3)
            q.issue("T", "ds_write2_b32 v7, v%d, v%d offset0:0 offset1:4", TA, TA + 1)
            if pv:
                a("s_setprio 0")
                if hp:
                    if not (xp & 2): memx()
                else:
                    for k in range(2, 4): a("global_load_dwordx4 %s, v13, s[38:39] offset:%d sc1", vr(UR + 4 * k, 4), k * 1024)
                    tb.run(nb2)
            if uchk:
                a.label(N + "_uc")
                allnon(a, [STG + i for i in range(8)])
                a("v_cmp_ne_u32 vcc, 0, v%d", STG)
                a("s_cbranch_vccnz %s_ure", N)
                def ure():
                    a.label(N + "_ure")
                    ufl_ld(3)
                    a("s_sub_u32 s25, s25, 1")
                    a("s_cbranch_scc1 %s", abort)
                    a("s_waitcnt vmcnt(0)")
                    a("s_branch %s_uc", N)
                tail.append(ure)
            q.wait("T")
            if w == 5: a("s_waitcnt vmcnt(0)")
        elif hp:
            a("global_load_dword v%d, v10, s[44:45] sc1", BW + 28)
        else:
            a("s_setprio 0")
            if nv > 0: a("global_load_dword v4, v10, s[54:55] sc1")
            tbx_read(STG)
            a("s_waitcnt lgkmcnt(0)")
            if not (xp & 2): tbx_store(STG)
            for n in range(7, 14): mread(q, n)
            tb.run(nb7)
        P("TA done")
        a("s_barrier")
        P("bar2")
        def pubS():
            a("s_barrier")
            P("pubS")
        def gath():
            P("G iss")
            gather()
        if w >= 5:
            a("s_setprio %d", p7)
            ring = {5: [EX + 4 * k for k in range(7)], 6: [STG, STG + 4, STG + 8, STG + 12, ACC1], 7: [W7 + 16 + 4 * k for k in range(7)]}[w]
            SA = W7 + 44 if w == 7 else ACC0
            D = len(ring)
            def trd(k):
                if w == 5: q.issue(("S", k), "ds_read2_b64 %s, v%d offset0:%d offset1:%d", vr(ring[k], 4), 8 if k < 4 else 10, (k & 3) * 64, (k & 3) * 64 + 16)
                else: q.issue(("S", k), "ds_read_b128 %s, v8 offset:%d", vr(ring[k % D], 4), k * 512)
            for k in range(min(D, 7)): trd(k)
            for k in range(7):
                q.wait(("S", k))
                a("v_mfma_f32_16x16x32_f16 %s, %s, %s, %s", vr(SA, 4), vr((MFR if w == 5 else XR) + 4 * k, 4), vr(ring[k % D], 4), vr(SA, 4) if k else "0")
                if k + D < 7: trd(k + D)
            o = ring[2]
            a("s_mov_b64 exec, s[46:47]")
            a("v_mov_b32 v%d, -1", o + 2)
            if w == 5:
                a("v_cvt_pk_f16_f32 v%d, v%d, v%d", o, ACC0, ACC0 + 1)
                a("global_store_dword v9, v%d, s[34:35] %s", o, ST)
                a("global_store_dword v9, v%d, s[36:37] %s", o + 2, ST)
            else:
                a("v_mov_b32 v%d, -1", o + 3)
                a("v_cvt_pk_f16_f32 v%d, v%d, v%d", o, SA, SA + 1)
                a("v_cvt_pk_f16_f32 v%d, v%d, v%d", o + 1, SA + 2, SA + 3)
                a("global_store_dwordx2 v9, %s, s[34:35] %s", vr(o, 2), ST)
                a("global_store_dwordx2 v9, %s, s[36:37] %s", vr(o + 2, 2), ST)
            a("s_mov_b64 exec, -1")
            a("s_setprio 0")
            P("S pub")
            pubS()
            if not hp:
                if w == 6: tb.stage(STG)
                if w < 7: zero(ACC0); zero(ACC1)
                if w == 6:
                    tb.late()
                    tb.stage(STG + 8)
                tb.run(14)
                tb_give()
                a("s_barrier")
                if w >= 6: xload()
                if w != 6: spf(w)
        elif hp:
            if w == 4: a("s_setprio 0")
            pubS()
        elif pv: tb.run(nb3); pubS(); tb.run(14, {gpos: gath})
        else:
            a("s_setprio 0")
            zero(ACC0); zero(ACC1)
            tb.run(14, {bpos: pubS})
            tb_give()
            spf(4)
            a("s_barrier")
        if hp:
            if w <= 4:
                for i in range(NHP): a("global_load_dword v%d, v%d, s[56:57] sc1", EX + i, BW + i)
                if uchk: ufl_ld(4)
            elif w >= 6: xload()
            elif flag:
                for i in range(flag - 1): a("global_load_dword v%d, v11, s[26:27] sc1", EX + i)
                a.label(N + "_fl")
                a("s_sub_u32 s25, s25, 1")
                a("s_cbranch_scc1 %s", abort)
                for i in range(flag):
                    a("global_load_dword v%d, v11, s[26:27] sc1", EX + (i + flag - 1) % flag)
                    a("s_waitcnt vmcnt(%d)", flag - 1)
                    a("v_cmp_gt_i32 vcc, s24, v%d", EX + i)
                    if i < flag - 1: a("s_cbranch_vccz %s_fd", N)
                    else: a("s_cbranch_vccnz %s_fl", N)
                a.label(N + "_fd")
            if flag: a("s_barrier")
        if pv and not hp:
            for i in range(8): a("v_mov_b32 v%d, 0x3c003c00", ONE + i)
            zero(ZA)
            if gpos == 14: gath()
            tb_cvt(TBO)
            zero(TBO + 4, 2); zero(PM + 1, 1)
            zero(ACC0); zero(ACC1)
            if w == 3: a("v_mov_b32 v%d, s24", RZ)
            if gpos == 15: gath()
            if g2: gather(G2)
            P("II")
            def gchk(G, lab):
                for d in range(4): a("v_pk_add_f16 v%d, v%d, v%d", PX + d, G[0] + d, G[1] + d)
                a("v_pk_add_f16 v%d, v%d, v%d", PM, G[2], G[3])
                a("v_pk_maximum3_f16 v%d, v%d, v%d, v%d", T0, PX, PX + 1, PX + 2)
                a("v_pk_maximum3_f16 v%d, v%d, v%d, v%d", T0, T0, PX + 3, PM)
                a("v_pk_maximum3_f16 v%d, v%d, v%d, v%d op_sel:[0,1,0] op_sel_hi:[1,0,1]", T0, T0, T0, T0)
                a("v_mov_b32 v%d, v%d", T1, T0)
                a("v_cmp_u_f16 vcc, v%d, v%d", T0, T0)
                a("v_permlane32_swap_b32 v%d, v%d", T0, T1)
                a("v_pk_max_f16 v%d, v%d, v%d", T0, T0, T1)
                a("v_mov_b32 v%d, v%d", T1, T0)
                a("s_cbranch_vccnz %s", lab)
            a.label(N + "_sp")
            a("s_waitcnt vmcnt(%d)", 4 if g2 else 0)
            gchk(G1, N + "_gre")
            def gre():
                a.label(N + "_gre")
                P("G re")
                if prof: a("s_add_u32 s63, s63, 1")
                gather()
                a("s_sub_u32 s25, s25, 1")
                a("s_cbranch_scc1 %s", abort)
                if g2:
                    a("s_waitcnt vmcnt(4)")
                    gchk(G2, N + "_gre2")
                    a("s_branch %s_sok", N)
                    a.label(N + "_gre2")
                    gather(G2)
                a("s_branch %s_sp", N)
            tail.append(gre)
            a.label(N + "_sok")
            P("S got")
            a("v_permlane16_swap_b32 v%d, v%d", T0, T1)
            a("v_pk_max_f16 v%d, v%d, v%d", T0, T0, T1)
            for x in (PM, PX, PX + 1, PX + 2, PX + 3):
                a("v_pk_add_f16 v%d, v%d, v%d neg_lo:[0,1] neg_hi:[0,1]", x, x, T0)
            nex = [0]
            def ex(x, hi):
                a("v_exp_f16_sdwa v%d, v%d dst_sel:WORD_%d dst_unused:UNUSED_PRESERVE src0_sel:WORD_%d", x, x, hi, hi)
                if w == 3 and flag and nex[0] == fpos: a("global_store_dword v4, v%d, s[26:27] %s", RZ, ST)
                nex[0] += 1
            S2 = "v_smfmac_f32_16x16x32_f16 %s, %s, %s, v5"
            ex(PM, 0); ex(PX, 0)
            tb_take1()
            P("bar3")
            ex(PM, 1); ex(PX + 1, 0); ex(PX, 1)
            a(S2, vr(ZA, 4), vr(PM, 2), vr(ONE, 4))
            ex(PX + 2, 0); ex(PX + 1, 1); ex(PX + 3, 0); ex(PX + 2, 1); ex(PX + 3, 1)
            a(SM, vr(ZA, 4), vr(PX, 4), vr(ONE, 8))
            a(SM, vr(ACC0, 4), vr(PX, 4), vr(UR, 8))
            a(SM, vr(ACC1, 4), vr(PX, 4), vr(UR + 8, 8))
            tb_take2()
            a(S2, vr(ACC0, 4), vr(PM, 2), vr(TBO, 4))
            a(S2, vr(ACC1, 4), vr(PM, 2), vr(TBO + 2, 4))
            for i in range(4): a("v_rcp_f32 v%d, v%d", RZ + i, ZA + i)
            for b, acc in enumerate((ACC0, ACC1)):
                a("v_pk_mul_f32 %s, %s, %s", vr(acc, 2), vr(acc, 2), vr(RZ, 2))
                a("v_pk_fma_f32 %s, %s, %s, %s", vr(acc, 2), vr(acc + 2, 2), vr(RZ + 2, 2), vr(acc, 2))
                a("ds_write2st64_b32 v9, v%d, v%d offset0:%d offset1:%d", acc, acc + 1, b, 2 + b)
            tb_take3()
            a("s_waitcnt lgkmcnt(2)")
            P("red wr")
        if not hp:
            a("s_barrier")
            if w == 6:
                R = MFR
                for k in range(4): a("ds_read_b128 %s, v2 offset:%d", vr(R + 4 * k, 4), L_RED + k * 1024)
                a("v_mov_b32 v%d, -1", R + 16)
                a("v_mov_b32 v%d, -1", R + 17)
                a("s_waitcnt lgkmcnt(2)")
                for d in (0, 2): a("v_pk_add_f32 %s, %s, %s", vr(R + d, 2), vr(R + d, 2), vr(R + 4 + d, 2))
                a("s_waitcnt lgkmcnt(1)")
                for d in (0, 2): a("v_pk_add_f32 %s, %s, %s", vr(R + d, 2), vr(R + d, 2), vr(R + 8 + d, 2))
                a("s_waitcnt lgkmcnt(0)")
                for d in (0, 2): a("v_pk_add_f32 %s, %s, %s", vr(R + d, 2), vr(R + d, 2), vr(R + 12 + d, 2))
                a("v_cvt_pk_f16_f32 v%d, v%d, v%d", R, R, R + 1)
                a("v_cvt_pk_f16_f32 v%d, v%d, v%d", R + 1, R + 2, R + 3)
                a("global_store_dwordx2 v13, %s, s[30:31] %s", vr(R, 2), ST)
                a("global_store_dwordx2 v13, %s, s[32:33] %s", vr(R + 16, 2), ST)
                P("mem pub")
                spf(6)
            a("s_barrier")
        a("s_add_u32 s58, s30, 3584"); a("s_addc_u32 s59, s31, 0")
        pd = 0 if hp else pdel
        def p1(): poll(r); P("M iss")
        if pol and pd == 0: p1()
        a("s_add_u32 s24, s24, 1")
        ptrs(w)
        if pol and pd == 1: p1()
        if pv and not hp: a("s_waitcnt vmcnt(%d)", 0 if pd == 2 else 2)
        pre()
        if pol and pd == 2: p1()
        if P.on:
            a("s_waitcnt lgkmcnt(0)")
            P.flush()
        if pol and p2: poll(r2)
        a("s_branch %s_loop", N)
        for f in tail: f()
        a.label(N + "_fin")
        a("s_setprio 0")
        a("s_waitcnt vmcnt(0)")
        if hp:
            if pv: memx()
            a("s_branch CH_fin")
            return
        q = LQ(a)
        tb = newtb(LQ(_N()), q)
        for n in range(7, 14): mread(q, n)
        if w == 7: tbx_read(W7)
        if w == 6: tb.stage(STG); tb.stage(STG + 8)
        if w in (4, 5, 6): zero(ACC1)
        q.all()
        if w == 7: tbx_store(W7); adv(40, 28 * 4096)
        tb.run(14)
        if pv:
            tb_cvt(TBO); tb_take1(); tb_take2(); tb_take3()
            a("s_waitcnt lgkmcnt(0)")
        else:
            tb_give()
            a("s_barrier")
        a("s_barrier")
        if w == 7:
            tbx_read(MFR)
            a("s_waitcnt lgkmcnt(0)")
            tbx_store(MFR)
        a("s_branch CH_fin")
    if merged:
        a("s_cmp_lg_u32 s97, 0")
        a("s_cbranch_scc1 CH_mixed")
    for px, st in ((("", ""), ("X", "sc1")) if merged else (("", ""),)):
        MODE["PX"] = px; MODE["ST"] = st
        if px: a.label("CH_mixed")
        for hp in (0, 1):
            H = px + ("H" if hp else "C")
            if hp: a.label(px + "CH_hdisp")
            else:
                a("s_cmp_eq_u32 s23, 0")
                a("s_cbranch_scc1 %sCH_hdisp", px)
            for w in (3, 4, 5, 6, 7):
                a("s_cmp_eq_u32 s14, %d", w)
                a("s_cbranch_scc1 %s%d_entry", H, w)
            for w in (0, 3, 4, 5, 6, 7): wave_loop(w, hp)
    a.label("CH_fin")
    a("s_waitcnt vmcnt(0)")
    if dbgout:
        a("s_or_b32 s50, s20, s14")
        a("s_cmp_lg_u32 s50, 1")
        a("s_cbranch_scc1 CH_nodbg")
        a("s_cmp_lg_u32 s20, 0")
        a("s_cbranch_scc1 CH_nodbg")
        a("s_mov_b32 s52, s100")
        a("v_readlane_b32 s50, v0, 1")
        a("v_readlane_b32 s51, v0, 63")
        a("s_sub_u32 s52, s100, s52")
        a("s_sub_u32 s50, s50, s100")
        a("s_sub_u32 s51, s51, s100")
        a("s_sub_u32 s53, s64, s98")
        a("v_mov_b32 v16, s52"); a("v_mov_b32 v17, s50"); a("v_mov_b32 v18, s51"); a("v_mov_b32 v19, s53")
        a("s_sub_u32 s53, s66, s100")
        a("v_mov_b32 v20, s53")
        a("v_mov_b32 v21, 0")
        a("global_store_dwordx4 v21, v[16:19], s[10:11]")
        a("global_store_dword v21, v20, s[10:11] offset:16")
        a.label("CH_nodbg")
    if prof:
        a("s_lshl_b32 s50, s20, 3")
        a("s_add_u32 s50, s50, s14")
        a("s_lshl_b32 s50, s50, 8")
        a("s_add_u32 s50, s50, 0x%x", POIS_END)
        add64(a, 50, 4, off_sgpr=50)
        if prof == 4:
            a("s_bitcmp1_b32 s14, 0")
            a("s_cselect_b32 s98, s100, s98")
            a("s_cmp_eq_u32 s14, 3")
            a("s_cselect_b32 s98, s94, s98")
            a("s_memrealtime s[94:95]")
            a("s_waitcnt lgkmcnt(0)")
            a("s_cmp_eq_u32 s14, 5")
            a("s_cselect_b32 s98, s66, s98")
            a("s_cmp_eq_u32 s14, 7")
            a("s_cselect_b32 s98, s94, s98")
            a("v_writelane_b32 v%d, s98, 0", VP)
        else:
            a("v_writelane_b32 v%d, s62, 22", VP)
            a("v_writelane_b32 v%d, s63, 23", VP)
        a("v_lshlrev_b32 v16, 2, v1")
        a("global_store_dword v16, v%d, s[50:51]", VP)
    return P.names
```

```python
from common import *
import chain, ut, g1, g2, ft, pt
from pt import L_TK, MAIN_LDS
FSPLIT = 60
N_G1, N_G2, N_F = 224, 224, 4 * FSPLIT + 8 * (64 - FSPLIT)
KN = "parallel_sum__memory_aug_recurrent_mem_tr__dense_activation_relu__prompt_kernel"
def only(a, w, l):
    a("s_cmp_lg_u32 s14, %d", w)
    a("s_cbranch_scc1 %s", l)
def emit_main(a, prof=0, force_mixed=False, gate=2, g0=34, npre=0, nlook=3, tch=1, **kw):
    def T(k):
        if prof and k >= 20:
            l = a.newlabel("ST")
            if k >= 23: a("s_cmp_lg_u32 s26, 0"); a("s_cbranch_scc1 %s", l)
            a("s_memrealtime s[60:61]"); a("s_waitcnt lgkmcnt(0)"); a("v_writelane_b32 v5, s60, %d", k)
            a.label(l)
        elif prof: a("s_memrealtime s[%d:%d]", 76 + 2 * k, 77 + 2 * k)
    a.raw(".p2align 8")
    a.label(KN)
    a("s_cmp_ge_u32 s2, 256")
    a("s_cbranch_scc1 M_end")
    a("s_load_dwordx2 s[10:11], s[0:1], 88")
    a("s_memrealtime s[18:19]")
    a("s_getreg_b32 s16, hwreg(HW_REG_XCC_ID)")
    a("s_getreg_b32 s15, hwreg(HW_REG_HW_ID)")
    a("s_and_b32 s16, s16, 7")
    pt.load_ptrs(a)
    main_prologue(a)
    if prof: a("s_memtime s[98:99]"); a("s_mov_b32 s100, s18"); a("s_mov_b32 s76, s18")
    T(20)
    a("s_or_b32 s18, s18, 0x40000000")
    a("s_and_b32 s18, s18, 0x7ffffffe")
    a("s_mov_b32 s19, 0")
    a("s_mov_b32 s17, 0")
    a("s_mov_b32 s101, 0")
    if force_mixed:
        a("s_bfe_u32 s20, s2, 0x10003")
        a("s_or_b32 s16, s16, s20")
    a("s_lshl_b32 s21, s16, 5")
    a("s_cmp_eq_u32 s14, 0")
    a("s_cbranch_scc1 M_s0")
    if tch:
        a("s_bfe_u32 s22, s15, 0x2000d")
        a("s_bfe_u32 s23, s15, 0x30008")
        a("s_lshl_b32 s22, s22, 3")
        a("s_add_u32 s22, s22, s23")
        a("v_lshrrev_b32 v6, 2, v1")
        a("v_lshlrev_b32 v6, 13, v6")
        a("v_and_b32 v7, 3, v1")
        a("v_lshl_add_u32 v6, v7, 7, v6")
        a("s_sub_u32 s23, s14, 1")
        a("s_cmp_lg_u32 s16, 0")
        a("s_cbranch_scc1 M_t1")
        a("s_and_b32 s24, s22, 1")
        a("s_lshr_b32 s25, s22, 1")
        a("s_lshl_b32 s25, s25, 9")
        a("s_cmp_eq_u32 s14, 7")
        a("s_cbranch_scc1 M_t0")
        a("s_mul_i32 s24, s24, 14")
        a("s_add_u32 s24, s24, s23")
        a("s_add_u32 s24, s24, 8")
        a("s_lshl_b32 s24, s24, 17")
        a("s_add_u32 s24, s24, s25")
        add64(a, 24, 66, off_sgpr=24)
        a("s_branch M_t9")
        a.label("M_t0")
        a("s_lshl_b32 s24, s24, 18")
        a("s_add_u32 s24, s24, s25")
        add64(a, 24, 64, off_sgpr=24)
        a("global_load_dword v102, v6, s[24:25]")
        a("v_add_u32 v6, 0x20000, v6")
        a("s_branch M_t9")
        a.label("M_t1")
        a("s_add_u32 s22, s22, s21")
        a("s_sub_u32 s22, s22, 32")
        a("s_lshr_b32 s26, s22, 1")
        a("s_mul_i32 s27, s26, 147")
        a("s_lshr_b32 s27, s27, 10")
        a("s_mul_i32 s28, s27, 7")
        a("s_sub_u32 s28, s26, s28")
        a("s_and_b32 s29, s22, 1")
        a("s_and_b32 s30, s23, 1")
        a("s_cmp_ge_u32 s23, 2")
        a("s_cbranch_scc1 M_t2")
        a("s_mul_i32 s24, s29, 7")
        a("s_add_u32 s24, s24, s28")
        a("s_lshl_b32 s24, s24, 1")
        a("s_add_u32 s24, s24, s30")
        a("s_lshl_b32 s24, s24, 17")
        a("s_lshl_b32 s25, s27, 9")
        a("s_add_u32 s24, s24, s25")
        add64(a, 24, 68, off_sgpr=24)
        a("s_branch M_t9")
        a.label("M_t2")
        a("s_cmp_ge_u32 s23, 4")
        a("s_cbranch_scc1 M_t3")
        a("s_lshl_b32 s24, s27, 2")
        a("s_lshl_b32 s25, s29, 1")
        a("s_add_u32 s24, s24, s25")
        a("s_add_u32 s24, s24, s30")
        a("s_mul_i32 s24, s24, %d", 64 * 896)
        a("s_lshl_b32 s25, s28, 7")
        a("s_add_u32 s24, s24, s25")
        add64(a, 24, 70, off_sgpr=24)
        a("v_mul_u32_u24 v6, 896, v1")
        a("s_branch M_t9")
        a.label("M_t3")
        a("s_cmp_ge_u32 s22, 128")
        a("s_cbranch_scc1 M_ta")
        a("s_cmp_eq_u32 s14, 7")
        a("s_cbranch_scc1 M_ta")
        a("s_lshl_b32 s24, s22, 1")
        a("s_add_u32 s24, s24, s30")
        a("s_mul_i32 s24, s24, 7168")
        add64(a, 24, 6, off_sgpr=24)
        a("v_min_u32 v6, 55, v1")
        a("v_lshlrev_b32 v6, 7, v6")
        a.label("M_t9")
        a("global_load_dword v102, v6, s[24:25]")
        a.label("M_ta")
        if tch > 1:
            a("s_cmp_eq_u32 s16, 0")
            a("s_cbranch_scc1 M_tk")
            a("s_cmp_lt_u32 s14, 4")
            a("s_cbranch_scc1 M_tk")
            a("s_and_b32 s24, s14, 3")
            a("s_mul_i32 s24, s24, 112")
            a("s_lshr_b32 s25, s22, 1")
            a("s_add_u32 s24, s24, s25")
            a("s_lshl_b32 s24, s24, 13")
            a("s_bitcmp1_b32 s22, 0")
            a("s_cselect_b32 s26, s64, s66")
            a("s_cselect_b32 s27, s65, s67")
            add64(a, 24, 26, off_sgpr=24)
            a("v_lshlrev_b32 v6, 7, v1")
            a("global_load_dword v102, v6, s[24:25]")
    a("s_branch M_tk")
    a.label("M_s0")
    a("v_and_b32 v6, 31, v1")
    a("v_lshlrev_b32 v6, 2, v6")
    a("v_add_u32 v6, %d, v6", L_TK)
    a("v_mov_b32 v7, 0")
    a("ds_write_b32 v6, v7")
    a.label("M_tk")
    T(21)
    only(a, 0, "M_r1")
    a("v_mov_b32 v6, s21")
    a("v_mov_b32 v7, 1")
    a("s_mov_b64 exec, 1")
    a("global_atomic_add v8, v6, v7, s[10:11] sc0 sc1")
    a("s_mov_b64 exec, -1")
    a("v_lshlrev_b32 v9, 3, v1")
    a("v_add_u32 v9, %d, v9", chain.L_FL)
    a("v_mov_b32 v10, 0")
    a("v_mov_b32 v11, 0")
    a("ds_write_b64 v9, v[10:11]")
    a("s_mov_b64 exec, 1")
    a("v_mov_b32 v6, %d", L_TK + 32)
    a("v_mov_b32 v7, %d", C_NON * 4)
    a("v_mov_b32 v10, s18")
    a("s_waitcnt vmcnt(0)")
    a("ds_write_b32 v6, v8")
    a("v_cmp_eq_u32 vcc, s19, v8")
    a("s_cbranch_vccz M_r0")
    a("global_atomic_cmpswap v7, v[10:11], s[10:11] sc1")
    a.label("M_r0")
    a("s_mov_b64 exec, -1")
    a.label("M_r1")
    a("s_waitcnt lgkmcnt(0)")
    a("s_barrier")
    a("v_mov_b32 v6, %d", L_TK + 32)
    a("ds_read_b32 v8, v6")
    a("s_waitcnt lgkmcnt(0)")
    a("v_readfirstlane_b32 s20, v8")
    a("s_cmp_lt_u32 s20, 32")
    a("s_cbranch_scc1 M_r2")
    a("s_cmp_eq_u32 s17, 0")
    a("s_cbranch_scc1 M_chk")
    a("s_branch M_acq")
    a.label("M_r2")
    a("s_cmp_eq_u32 s21, 0")
    a("s_cbranch_scc1 M_chain")
    a("s_add_u32 s20, s20, s21")
    a("s_sub_u32 s20, s20, 32")
    T(22)
    a.label("M_ab")
    def look():
        a("s_lshr_b32 s21, s20, 5")
        a("s_lshl_b32 s21, s21, 2")
        a("s_add_u32 s21, s21, %d", pt.L_UM)
        a("s_lshl_b32 s22, 1, s20")
        a("v_mov_b32 v6, s21")
        a("v_mov_b32 v7, s22")
        a("ds_or_b32 v6, v7")
        a("v_and_b32 v6, 7, v1")
        a("v_lshlrev_b32 v6, 5, v6")
        a("s_mov_b32 s22, %d", nlook)
        a.label("M_l0")
        a("global_load_dword v8, v6, s[10:11] sc1")
        a("s_waitcnt vmcnt(0)")
        a("v_cmp_gt_u32 vcc, 32, v8")
        a("s_and_b32 s21, vcc_lo, 0xff")
        a("s_cbranch_scc0 M_l1")
        a("s_sub_u32 s22, s22, 1")
        a("s_cbranch_scc0 M_l0")
        a.label("M_l1")
        a("v_mov_b32 v6, %d", L_TK + 36)
        a("v_mov_b32 v9, s21")
        a("ds_write_b32 v6, v9")
        a("s_waitcnt lgkmcnt(0)")
    def w7():
        a("s_cmp_eq_u32 s26, 0")
        a("s_cbranch_scc1 M_w7b")
        a("s_mov_b32 s44, s20")
        a("s_mov_b32 s42, %d", pt.L_WT)
        a.label("M_w7a")
        pt.wtask(a)
        a("s_add_u32 s44, s44, 224")
        a("s_cmp_lt_u32 s44, 392")
        a("s_cbranch_scc1 M_w7a")
        a("s_branch P_abend")
        a.label("M_w7b")
        a("s_cmp_ge_u32 s20, 128")
        a("s_cbranch_scc1 M_w7c")
        pt.emit_ln(a)
        T(2)
        a.label("M_w7c")
        look()
        T(3)
    a("s_mov_b32 s26, 0")
    a.label("M_ab2")
    pt.emit_p(a, T, w7)
    a("s_cmp_eq_u32 s26, 0")
    a("s_cbranch_scc1 M_ab3")
    a("s_mov_b32 s38, %d", C_P * 4)
    signal(a, 38)
    if prof:
        a("s_waitcnt lgkmcnt(0)")
        a("v_mov_b32 v8, v5")
        for k in range(7): a("v_writelane_b32 v8, s%d, %d", 76 + 2 * k, k)
        for k in range(3): a("v_writelane_b32 v8, s%d, %d", 92 + 2 * k, 7 + k)
        a("s_lshl_b32 s60, s20, 3")
        a("s_add_u32 s60, s60, s14")
        a("s_lshl_b32 s60, s60, 8")
        a("s_add_u32 s60, s60, 0x%x", POIS_END + 0x100000)
        add64(a, 60, 4, off_sgpr=60)
        a("v_lshlrev_b32 v9, 2, v1")
        a("global_store_dword v9, v8, s[60:61]")
    a("s_branch M_u")
    a.label("M_ab3")
    if prof:
        a("s_waitcnt lgkmcnt(0)")
        a("s_mov_b32 s84, s78"); a("s_mov_b32 s86, s80"); a("s_mov_b32 s88, s82")
    a("s_barrier")
    a("v_mov_b32 v6, %d", L_TK + 36)
    a("ds_read_b32 v8, v6")
    a("v_and_b32 v6, 7, v1")
    a("v_lshlrev_b32 v6, 2, v6")
    a("v_add_u32 v6, %d, v6", pt.L_UM)
    a("ds_read_b32 v9, v6")
    a("s_waitcnt lgkmcnt(0)")
    a("v_readfirstlane_b32 s16, v8")
    a("s_and_b32 s21, s16, 0xfe")
    a("s_or_b32 s21, s21, s101")
    a("s_cbranch_scc0 M_uph")
    a.label("M_cl")
    a("s_cmp_eq_u32 s101, 0")
    a("s_cbranch_scc1 M_chk")
    a("s_ff1_i32_b32 s21, s101")
    a("s_bitset0_b32 s101, s21")
    a("v_readlane_b32 s20, v0, s21")
    a("s_lshl_b32 s21, s21, 5")
    a("s_add_u32 s20, s20, s21")
    a("s_sub_u32 s20, s20, 32")
    a("s_branch M_ab")
    a.label("M_chain")
    names = chain.emit_chain(a, prof, abort="M_end", **kw)
    a("v_lshrrev_b32 v3, 4, v1")
    a("v_and_b32 v4, 15, v1")
    a("s_branch M_acq")
    a.label("M_chk")
    a("s_barrier")
    only(a, 7, "M_n1")
    pt.nonce_ld(a)
    a("s_waitcnt vmcnt(0)")
    pt.nonce_put(a, "M_end")
    a.label("M_n1")
    only(a, 0, "M_c1")
    a("v_lshlrev_b32 v6, 5, v1")
    a("v_mov_b32 v7, 1")
    a("v_mov_b32 v8, 64")
    a("v_lshlrev_b32 v9, 2, v1")
    a("v_add_u32 v9, %d, v9", L_TK)
    a("s_mov_b64 exec, 0xff")
    a("global_load_dword v8, v6, s[10:11] sc1")
    a("s_waitcnt vmcnt(0)")
    a("v_cmp_gt_u32 vcc, 32, v8")
    a("s_and_b32 exec_lo, vcc_lo, 0xfe")
    a("s_cbranch_scc0 M_c1x")
    a("global_atomic_add v8, v6, v7, s[10:11] sc0 sc1")
    a("s_waitcnt vmcnt(0)")
    a.label("M_c1x")
    a("s_mov_b32 exec_lo, 0xff")
    a("ds_write_b32 v9, v8")
    a("s_mov_b64 exec, -1")
    a.label("M_c1")
    a("s_waitcnt lgkmcnt(0)")
    a("s_barrier")
    a("v_and_b32 v6, 7, v1")
    a("v_lshlrev_b32 v6, 2, v6")
    a("v_add_u32 v6, %d, v6", L_TK)
    a("ds_read_b32 v0, v6")
    a("ds_read_b32 v9, v6 offset:%d", pt.L_UM - L_TK)
    pt.nonce_get(a, 8, "M_end")
    a("v_cmp_gt_u32 vcc, 32, v0")
    a("s_mov_b32 s16, vcc_lo")
    a("s_and_b32 s101, vcc_lo, 0xfe")
    a("s_cbranch_scc1 M_cl")
    a.label("M_uph")
    a("v_mov_b32 v0, v9")
    a("s_mov_b32 s17, -1")
    a.label("M_u")
    a("s_cmp_lg_u32 s101, 0")
    a("s_cbranch_scc1 M_u0")
    a("s_add_u32 s17, s17, 1")
    a("s_cmp_eq_u32 s17, 7")
    a("s_cbranch_scc1 M_u1")
    a("v_readlane_b32 s101, v0, s17")
    a("s_branch M_u")
    a.label("M_u0")
    a("s_ff1_i32_b32 s21, s101")
    a("s_bitset0_b32 s101, s21")
    a("s_lshl_b32 s20, s17, 5")
    a("s_add_u32 s20, s20, s21")
    ut.emit_u(a, "M_end", T)
    a("s_mov_b32 s26, 1")
    a("s_barrier")
    a("s_branch M_ab2")
    a.label("M_u1")
    a("s_mov_b32 s21, 0")
    a("s_mov_b32 s17, 1")
    a("s_bitcmp1_b32 s16, 0")
    a("s_cbranch_scc1 M_tk")
    a.label("M_acq")
    a("s_mov_b32 s25, 0x400000")
    only(a, 0, "M_next")
    a("s_mov_b32 s21, %d", C_P * 4)
    wait_cnt(a, 21, 224, "M_end")
    a("buffer_inv sc1")
    a.label("M_next")
    a("s_barrier")
    only(a, 0, "M_q1")
    a("v_mov_b32 v6, %d", C_Q * 4)
    a("v_mov_b32 v7, 1")
    a("s_mov_b64 exec, 1")
    a("global_atomic_add v8, v6, v7, s[10:11] sc0 sc1")
    a("v_mov_b32 v6, %d", L_TK)
    a("s_waitcnt vmcnt(0)")
    a("ds_write_b32 v6, v8")
    a("s_mov_b64 exec, -1")
    a("s_waitcnt lgkmcnt(0)")
    a.label("M_q1")
    a("s_barrier")
    a("v_mov_b32 v6, %d", L_TK)
    a("ds_read_b32 v8, v6")
    a("s_waitcnt lgkmcnt(0)")
    a("v_readfirstlane_b32 s15, v8")
    a("s_mov_b32 s25, 0x400000")
    a("s_cmp_lt_u32 s15, %d", N_G1)
    a("s_cbranch_scc0 M_d2")
    a("s_mul_i32 s20, s15, 2341")
    a("s_lshr_b32 s20, s20, 16")
    a("s_mul_i32 s21, s20, 28")
    a("s_sub_u32 s21, s15, s21")
    g1.emit_g1(a, first=8)
    a("s_branch M_next")
    a.label("M_d2")
    a("s_sub_u32 s20, s15, %d", N_G1)
    a("s_cmp_lt_u32 s20, %d", N_G2)
    a("s_cbranch_scc0 M_d3")
    only(a, 0, "M_d2w")
    a("s_mul_i32 s21, s20, 2341")
    a("s_lshr_b32 s21, s21, 16")
    g1_cnt(a, 21, 21)
    wait_cnt(a, 21, 28, "M_end")
    a.label("M_d2w")
    a("s_barrier")
    g2.emit_g2(a)
    a("s_branch M_next")
    a.label("M_d3")
    a("s_sub_u32 s20, s20, %d", N_G2)
    a("s_cmp_lt_u32 s20, %d", N_F)
    a("s_cbranch_scc0 M_end")
    for nb in (2, 1):
        X = "M%d" % nb
        def pre():
            if g0:
                only(a, 3, X + "_fg")
                a("s_mul_i32 s50, s21, %d", (57 - g0) * 1024 // 63)
                a("s_lshr_b32 s50, s50, 10")
                a("s_add_u32 s50, s50, %d", g0)
                a("s_lshl_b32 s50, s50, 13")
                a("s_add_u32 s50, s50, 0x%x", MEMX)
                add64(a, 50, 4, off_sgpr=50)
                a("v_mov_b32 v8, 128")
                a.label(X + "_fgl")
                a("global_load_dword v9, v8, s[50:51] sc1")
                a("s_sub_u32 s25, s25, 1")
                a("s_cbranch_scc1 M_end")
                a("s_waitcnt vmcnt(0)")
                a("v_cmp_eq_u32 vcc, -1, v9")
                a("s_cbranch_vccnz %s_fgl", X)
                a.label(X + "_fg")
            a("s_cmp_gt_u32 s14, 2")
            a("s_cbranch_scc1 %s_fw", X)
            a("s_cmp_eq_u32 s14, 2")
            a("s_cbranch_scc1 %s_fw2", X)
            a("s_lshl_b32 s50, s21, 1")
            a("s_add_u32 s50, s50, s14")
            a("s_lshl_b32 s50, s50, 10")
            wait_ufl(a, 50, "M_end", t=16)
            a("s_branch %s_fw", X)
            a.label(X + "_fw2")
            a("s_lshr_b32 s50, s21, 1")
            g2_cnt(a, 50, 50, 51)
            wait_cnt(a, 50, 7, "M_end")
            a.label(X + "_fw")
        if nb == 2:
            a("s_cmp_ge_u32 s20, %d", 4 * FSPLIT)
            a("s_cbranch_scc1 M_d4")
            a("s_lshr_b32 s21, s20, 2")
            a("s_bfe_u32 s22, s20, 0x10001")
            a("s_and_b32 s23, s20, 1")
        else:
            a.label("M_d4")
            a("s_add_u32 s21, s20, %d", 4 * FSPLIT)
            a("s_lshr_b32 s21, s21, 3")
            a("s_bfe_u32 s22, s20, 0x10002")
            a("s_and_b32 s23, s20, 3")
        ft.emit_f(a, "M_end", nb, pre, prof, gate)
        a("s_branch M_next")
    a.label("M_end")
    a("s_endpgm")
    return names
```

```python
from common import *
def emit_g1(a, SC="sc1", first=0):
    XR = 16; WR = 128; ACC = 160; OUTR = 192
    PB = 28 * 1024
    a.c("---- G1 task")
    a("s_lshl_b32 s22, s20, 3")
    a("s_add_u32 s22, s22, s14")
    a("s_lshl_b32 s23, s14, 12")
    a("v_add_u32 v8, s23, v2")
    a("s_mov_b32 s24, %d", first)
    a("s_mov_b32 s25, 0")
    def stage():
        l = a.newlabel("G1s");
        a("s_cmp_ge_u32 s24, 18")
        a("s_cbranch_scc1 %s", l)
        a("s_cmp_eq_u32 s14, 7")
        a("s_cbranch_scc1 %s", l)
        a("s_lshl_b32 s26, s21, 3")
        a("s_add_u32 s26, s26, s24")
        a("s_add_u32 s27, s26, 216")
        a("s_cmp_ge_u32 s24, 8")
        a("s_cselect_b32 s26, s27, s26")
        a("s_lshl_b32 s27, s21, 1")
        a("s_add_u32 s27, s27, s24")
        a("s_add_u32 s27, s27, 432")
        a("s_cmp_ge_u32 s24, 16")
        a("s_cselect_b32 s26, s27, s26")
        a("s_mul_i32 s26, s26, %d", PB)
        a("s_add_u32 s26, s26, 0x%x", WALL)
        a("s_add_u32 s26, s4, s26")
        a("s_addc_u32 s27, s5, 0")
        a("s_add_u32 m0, s25, s23")
        for k in range(4):
            a("global_load_lds_dwordx4 v8, s[26:27] offset:%d", 1024 * k)
        a.label(l)
        a("s_add_u32 s24, s24, 1")
        a("s_add_u32 s25, s25, %d", PB)
        a("s_cmp_eq_u32 s25, %d", 3 * PB)
        a("s_cselect_b32 s25, 0, s25")
    a("s_barrier")
    stage(); stage()
    a("s_mul_i32 s28, s22, %d", 28 * 1024)
    a("s_add_u32 s28, s28, 0x%x", XF + 4096)
    add64(a, 28, 4, off_sgpr=28)
    for f in range(28):
        if f and f % 8 == 0:
            a("s_add_u32 s28, s28, 8192"); a("s_addc_u32 s29, s29, 0")
        a("global_load_dwordx4 %s, v2, s[28:29] offset:%d", vr(XR + 4 * f, 4), (f % 8) * 1024 - 4096)
    a("s_waitcnt vmcnt(0)")
    a("s_mov_b32 s30, %d", first)
    a("s_mov_b32 s31, 0")
    a("v_add_u32 v9, %d, v2", 1024)
    a("v_add_u32 v10, %d, v2", 14 * 1024)
    a("v_add_u32 v11, %d, v2", 56 * 1024)
    def body(kind, lim):
        L = a.newlabel("G1" + kind)
        a.label(L)
        a("s_waitcnt vmcnt(%d)", 4 if kind == "H" else 8)
        a("s_barrier")
        stage()
        a("v_add_u32 v12, s31, v2")
        for i in range(16): a("v_mov_b32 v%d, 0", ACC + i)
        def rd(ks):
            for b in range(2):
                a("ds_read_b128 %s, v12 offset:%d", vr(WR + (ks % 3) * 8 + b * 4, 4), (b * 14 + ks) * 1024)
        rd(0); rd(1)
        if kind == "U":
            a("s_lshl_b32 s32, s21, 3")
            a("s_add_u32 s32, s32, s30")
            a("s_mul_i32 s33, s32, 2341")
            a("s_lshr_b32 s33, s33, 16")
            a("s_mul_i32 s34, s33, 28")
            a("s_sub_u32 s34, s32, s34")
            a("s_mul_i32 s35, s22, 14")
            a("s_lshr_b32 s32, s34, 1")
            a("s_add_u32 s35, s35, s32")
            a("s_lshl_b32 s35, s35, 3")
            a("s_add_u32 s35, s35, s33")
            a("s_lshl_b32 s35, s35, 1")
            a("s_and_b32 s34, s34, 1")
            a("s_add_u32 s35, s35, s34")
            a("s_lshl_b32 s35, s35, 11")
            a("s_add_u32 s35, s35, 0x%x", UF)
        elif kind == "Q":
            a("s_lshl_b32 s32, s21, 3")
            a("s_add_u32 s32, s32, s30")
            a("s_sub_u32 s32, s32, 8")
            a("s_mul_i32 s33, s32, 4682")
            a("s_lshr_b32 s33, s33, 16")
            a("s_mul_i32 s34, s33, 14")
            a("s_sub_u32 s34, s32, s34")
            a("s_lshl_b32 s35, s22, 4")
            a("s_add_u32 s35, s35, s33")
            a("s_mul_i32 s35, s35, 28")
            a("s_add_u32 s35, s35, s34")
            a("s_lshl_b32 s35, s35, 10")
            a("s_add_u32 s35, s35, 0x%x", QF)
        else:
            a("s_mul_i32 s35, s22, 112")
            a("s_lshl_b32 s32, s21, 1")
            a("s_add_u32 s35, s35, s32")
            a("s_add_u32 s35, s35, s30")
            a("s_sub_u32 s35, s35, 16")
            a("s_lshl_b32 s35, s35, 10")
            a("s_add_u32 s35, s35, 0x%x", HF)
        add64(a, 36, 4, off_sgpr=35)
        for ks in range(14):
            if ks + 2 < 14:
                rd(ks + 2); a("s_waitcnt lgkmcnt(4)")
            elif ks == 12: a("s_waitcnt lgkmcnt(2)")
            else: a("s_waitcnt lgkmcnt(0)")
            for b in range(2):
                for tt in range(2):
                    d = vr(ACC + (tt * 2 + b) * 4, 4); x = vr(XR + (tt * 14 + ks) * 4, 4); w = vr(WR + (ks % 3) * 8 + b * 4, 4)
                    if kind == "U": a("v_mfma_f32_16x16x32_f16 %s, %s, %s, %s", d, x, w, d)
                    else: a("v_mfma_f32_16x16x32_f16 %s, %s, %s, %s", d, w, x, d)
        a("s_add_u32 s30, s30, 1")
        a("s_add_u32 s31, s31, %d", PB)
        a("s_cmp_eq_u32 s31, %d", 3 * PB)
        a("s_cselect_b32 s31, 0, s31")
        for o in range(2):
            if kind == "Q":
                for r in range(4): a("v_cvt_pk_f16_f32 v%d, v%d, v%d", OUTR + o * 4 + r, ACC + o * 8 + r, ACC + o * 8 + 4 + r)
            for hf in range(2):
                if kind == "Q": break
                d = ACC + (o * 2 + hf) * 4
                if kind == "H":
                    for r in range(4): a("v_max_f32 v%d, 0, v%d", d + r, d + r)
                o0, o1 = (hf, 2 + hf) if kind == "U" else (2 * hf, 2 * hf + 1)
                a("v_cvt_pk_f16_f32 v%d, v%d, v%d", OUTR + o * 4 + o0, d, d + 1)
                a("v_cvt_pk_f16_f32 v%d, v%d, v%d", OUTR + o * 4 + o1, d + 2, d + 3)
            va = 2 if o == 0 else {"U": 9, "Q": 10, "H": 11}[kind]
            a("global_store_dwordx4 v%d, %s, s[36:37] %s" + nt(4096), va, vr(OUTR + o * 4, 4), SC)
        a("s_cmp_lt_u32 s30, %d", lim)
        a("s_cbranch_scc1 %s", L)
    body("Q", 16)
    body("H", 18)
    g1_cnt(a, 38, 20)
    signal(a, 38)

def emit_g1_kernel(a):
    a.raw(".p2align 8")
    a.label("g1_kernel")
    a("s_cmp_ge_u32 s2, 224")
    a("s_cbranch_scc1 G1_end")
    main_prologue(a)
    a("s_and_b32 s20, s2, 7")
    a("s_lshr_b32 s21, s2, 3")
    emit_g1(a)
    a.label("G1_end")
    a("s_endpgm")
```

```python
from common import *
from k1 import transp_perm, transp_cvt, SCALE
L_WT = 32768 + 7 * 16384
L_TK = L_WT + 14336
MAIN_LDS = L_TK + 128
L_UM = L_TK + 64
L_NON = L_TK + 48
def load_ptrs(a):
    a("s_load_dwordx8 s[64:71], s[0:1], 16")
    a("s_load_dwordx4 s[72:75], s[0:1], 64")
def nonce_ld(a):
    a("v_mov_b32 v101, %d", C_NON * 4)
    a("global_load_dword v100, v101, s[10:11] sc1")
def nonce_put(a, abort):
    l = a.newlabel("NP")
    a("s_mov_b32 s18, 0x100000")
    a("s_branch %sa", l)
    a.label(l)
    nonce_ld(a)
    a("s_sub_u32 s18, s18, 1")
    a("s_cbranch_scc1 %s", abort)
    a("s_waitcnt vmcnt(0)")
    a.label(l + "a")
    a("v_readfirstlane_b32 s19, v100")
    a("s_cmp_eq_u32 s19, 0")
    a("s_cbranch_scc1 %s", l)
    a("v_mov_b32 v101, %d", L_NON)
    a("ds_write_b32 v101, v100")
def nonce_get(a, v, abort):
    l = a.newlabel("NG")
    a("s_mov_b32 s18, 0x1000000")
    a.label(l)
    a("v_mov_b32 v%d, %d", v, L_NON)
    a("ds_read_b32 v%d, v%d", v, v)
    a("s_sub_u32 s18, s18, 1")
    a("s_cbranch_scc1 %s", abort)
    a("s_waitcnt lgkmcnt(0)")
    a("v_readfirstlane_b32 s19, v%d", v)
    a("s_cmp_eq_u32 s19, 0")
    a("s_cbranch_scc1 %s", l)
def lanes(a):
    a("v_and_b32 v12, 3, v1")
    a("v_xor_b32 v12, v12, v3")
    a("v_lshlrev_b32 v12, 4, v12")
    a("v_lshrrev_b32 v14, 2, v4")
    a("v_xor_b32 v14, v14, v3")
    a("v_lshlrev_b32 v14, 4, v14")
    a("v_lshl_add_u32 v14, v4, 6, v14")

def wtask(a):
    a("s_cmp_ge_u32 s44, 196")
    a("s_cselect_b32 s45, 196, 0")
    a("s_cselect_b32 s46, 1, 0")
    a("s_sub_u32 s45, s44, s45")
    a("s_mul_i32 s47, s45, 147")
    a("s_lshr_b32 s47, s47, 10")
    a("s_mul_i32 s48, s47, 7")
    a("s_sub_u32 s48, s45, s48")
    a("s_cmp_eq_u32 s46, 0")
    a("s_cselect_b32 s49, s48, s47")
    a("s_cselect_b32 s50, s47, s48")
    a("s_movk_i32 s51, 896")
    a("s_cselect_b32 s51, 3584, s51")
    a("s_cselect_b32 s52, s72, s74")
    a("s_cselect_b32 s53, s73, s75")
    a("s_cselect_b32 s54, 14, 56")
    a("s_mov_b32 s55, 0x%x", W2F)
    a("s_cselect_b32 s55, 0x%x, s55", W1F)
    a("s_mul_i32 s56, s49, s51")
    a("s_lshl_b32 s56, s56, 6")
    a("s_lshl_b32 s57, s50, 7")
    a("s_add_u32 s56, s56, s57")
    add64(a, 52, 52, off_sgpr=56)
    a("v_mul_lo_u32 v9, v3, s51")
    a("v_lshlrev_b32 v9, 3, v9")
    a("v_lshl_add_u32 v9, v4, 3, v9")
    for e in range(16):
        if e == 8:
            a("s_mul_i32 s56, s51, 24")
            add64(a, 52, 52, off_sgpr=56)
        a("global_load_dwordx2 %s, v9, s[52:53]", vr(16 + 2 * e, 2))
        add64(a, 52, 52, off_sgpr=51)
    a("v_lshrrev_b32 v8, 3, v4")
    a("v_lshlrev_b32 v8, 1, v8")
    a("v_and_b32 v11, 1, v4")
    a("v_add_u32 v8, v8, v11")
    a("v_lshlrev_b32 v8, 10, v8")
    a("v_bfe_u32 v11, v4, 1, 2")
    a("v_lshl_add_u32 v8, v11, 6, v8")
    a("v_lshl_add_u32 v8, v3, 8, v8")
    a("v_add_u32 v8, s42, v8")
    a("v_add_u32 v13, s42, v2")
    a("s_mul_i32 s56, s50, s54")
    a("s_lshl_b32 s56, s56, 2")
    a("s_lshl_b32 s57, s49, 1")
    a("s_add_u32 s56, s56, s57")
    a("s_lshl_b32 s56, s56, 10")
    a("s_add_u32 s56, s56, s55")
    add64(a, 58, 4, off_sgpr=56)
    a("s_lshl_b32 s54, s54, 10")
    a("v_add_u32 v9, s54, v2")
    a("v_add_u32 v10, s54, v9")
    a("v_add_u32 v11, s54, v10")
    for hlf in range(2):
        a("s_waitcnt vmcnt(%d)", 8 if hlf == 0 else 0)
        transp_cvt(a, 48 + 16 * hlf, 16 + 16 * hlf, 80)
        for r in range(4):
            a("ds_write_b128 v8, %s offset:%d", vr(48 + 16 * hlf + 4 * r, 4), hlf * 4096 + 16 * r)
    a("s_waitcnt lgkmcnt(0)")
    for f in range(8): a("ds_read_b128 %s, v13 offset:%d", vr(16 + 4 * f, 4), f * 1024)
    for f in range(8):
        a("s_waitcnt lgkmcnt(%d)", 7 - f)
        a("global_store_dwordx4 v%d, %s, s[58:59] offset:%d sc1", [2, 9, 10, 11][f & 3], vr(16 + 4 * f, 4), (f >> 2) * 1024)

def emit_p(a, T=lambda k: None, w7=None):
    a.c("---- product task")
    lanes(a)
    a("s_mov_b32 s40, 0x05040100")
    a("s_mov_b32 s41, 0x07060302")
    a("s_lshr_b32 s25, s20, 1")
    a("s_mul_i32 s27, s25, 147")
    a("s_lshr_b32 s27, s27, 10")
    a("s_mul_i32 s24, s27, 7")
    a("s_sub_u32 s24, s25, s24")
    a("s_and_b32 s25, s20, 1")
    a("s_mul_i32 s25, s25, 7")
    a("s_add_u32 s25, s25, s14")
    a("v_bfe_u32 v7, v1, 2, 2")
    a("v_lshlrev_b32 v13, 16, v3")
    a("v_add_u32 v13, v13, v12")
    a("v_lshl_add_u32 v6, v7, 13, v13")
    a("v_lshl_add_u32 v7, v7, 14, v13")
    a("s_lshl_b32 s30, s27, 9")
    a("s_cmp_eq_u32 s26, 0")
    a("s_cselect_b32 s28, s68, s64")
    a("s_cselect_b32 s29, s69, s65")
    a("s_cselect_b64 vcc, -1, 0")
    a("v_cndmask_b32 v15, v14, v2")
    a("s_cbranch_scc1 P_stB")
    a("s_lshr_b32 s31, s14, 1")
    a("s_lshr_b32 s32, s31, 1")
    a("s_lshl_b32 s32, s32, 5")
    a("s_and_b32 s33, s31, 1")
    a("s_add_u32 s32, s32, s33")
    a("s_lshl_b32 s33, s24, 6")
    a("s_add_u32 s32, s32, s33")
    a("s_lshl_b32 s32, s32, 13")
    a("s_add_u32 s32, s32, s30")
    a("s_and_b32 s33, s14, 1")
    a("s_lshl_b32 s34, s33, 8")
    a("s_add_u32 s32, s32, s34")
    add64(a, 34, 66, off_sgpr=32)
    a("s_lshl_b32 s36, s14, 12")
    for k in range(4):
        a("s_add_u32 m0, s36, %d", 960 * k)
        a("global_load_lds_dwordx4 v7, s[34:35] offset:%d", 64 * k)
    a("v_mov_b32 v8, 0")
    a("s_branch P_rows")
    a.label("P_stB")
    a("s_mul_i32 s32, s27, 229376")
    a("s_mul_i32 s33, s14, %d", 32 * 896)
    a("s_add_u32 s32, s32, s33")
    a("s_lshl_b32 s33, s24, 7")
    a("s_add_u32 s32, s32, s33")
    add64(a, 34, 70, off_sgpr=32)
    a("v_mul_u32_u24 v9, %d, v3", 8 * 896)
    a("v_lshl_add_u32 v9, v4, 3, v9")
    a("v_add_u32 v10, %d, v9", 4 * 896)
    for e in range(8):
        a("global_load_dwordx2 %s, v%d, s[34:35] offset:%d", vr(216 + 2 * e, 2), 9 if e < 4 else 10, (e & 3) * 896)
    a("v_lshrrev_b32 v8, 3, v4")
    a("v_lshlrev_b32 v8, 1, v8")
    a("v_and_b32 v11, 1, v4")
    a("v_add_u32 v8, v8, v11")
    a("v_lshlrev_b32 v8, 13, v8")
    a("v_bfe_u32 v11, v4, 1, 2")
    a("v_lshl_add_u32 v8, v11, 6, v8")
    a("v_lshl_add_u32 v8, v3, 8, v8")
    a("s_lshl_b32 s36, s14, 10")
    a("v_add_u32 v8, s36, v8")
    a.label("P_rows")
    T(23)
    a("s_barrier")
    a("s_lshl_b32 s32, s25, 18")
    a("s_add_u32 s32, s32, s30")
    add64(a, 36, 28, off_sgpr=32)
    a("s_lshl_b32 s42, s14, 14")
    a("s_add_u32 s42, s42, 32768")
    a("s_cmp_eq_u32 s14, 7")
    a("s_cbranch_scc1 P_norows")
    for n in range(16):
        t, kd_ = n >> 3, n & 7
        a("s_add_u32 m0, s42, %d", t * 8192 + 960 * kd_)
        a("global_load_lds_dwordx4 v6, s[36:37] offset:%d", 64 * kd_)
        if n == 7:
            a("s_add_u32 s36, s36, 0x%x", 4 * 8192)
            a("s_addc_u32 s37, s37, 0")
    T(24)
    a("s_waitcnt vmcnt(16)")
    T(25)
    a("s_branch P_stage")
    a.label("P_norows")
    a("s_lshl_b32 s43, s26, 8")
    a("s_add_u32 s43, s43, s20")
    a("s_cmp_lt_u32 s43, 128")
    a("s_cbranch_scc0 P_nl")
    a("s_mul_i32 s36, s20, %d", 16 * 896)
    add64(a, 36, 6, off_sgpr=36)
    a("v_lshrrev_b32 v6, 2, v1")
    a("v_mul_u32_u24 v6, 896, v6")
    a("v_add_u32 v6, v6, v12")
    for ks in range(14):
        a("s_mov_b32 m0, %d", L_WT + 960 * ks)
        a("global_load_lds_dwordx4 v6, s[36:37] offset:%d", ks * 64)
    nonce_ld(a)
    a("s_waitcnt vmcnt(15)")
    a("s_branch P_stage")
    a.label("P_nl")
    nonce_ld(a)
    a("s_waitcnt vmcnt(1)")
    a.label("P_stage")
    a("s_cmp_lg_u32 s26, 0")
    a("s_cbranch_scc1 P_staged")
    transp_perm(a, 200, 216, 40, 41)
    for r in range(4):
        a("ds_write_b128 v8, %s offset:%d", vr(200 + 4 * r, 4), 16 * r)
    a.label("P_staged")
    a("s_waitcnt lgkmcnt(0)")
    a("s_barrier")
    T(1)
    a("s_cmp_eq_u32 s14, 7")
    a("s_cbranch_scc1 P_w7")
    OUT = 16; ACC = 32; RR = 64; CR = 128
    for f in range(32): a("ds_read_b128 %s, v15 offset:%d", vr(CR + 4 * f, 4), f * 1024)
    a("v_add_u32 v14, s42, v14")
    a("s_cmp_eq_u32 s26, 0")
    a("s_cselect_b32 s38, 1.0, %s", f32(SCALE))
    a("s_lshl_b32 s33, s24, 2")
    a("s_mul_i32 s32, s27, 28")
    a("s_add_u32 s32, s32, s33")
    a("s_add_u32 s32, s32, 448")
    a("s_lshr_b32 s34, s27, 1")
    a("s_mul_i32 s34, s34, 28")
    a("s_add_u32 s34, s34, s33")
    a("s_lshl_b32 s34, s34, 1")
    a("s_and_b32 s33, s27, 1")
    a("s_add_u32 s34, s34, s33")
    a("s_movk_i32 s39, %d", 14 * 1024)
    a("s_cmp_eq_u32 s26, 0")
    a("s_cselect_b32 s32, s34, s32")
    a("s_cselect_b32 s39, %d, s39", 28 * 1024)
    a("s_mul_i32 s32, s32, 14")
    a("s_add_u32 s32, s32, s25")
    a("s_lshl_b32 s32, s32, 10")
    a("s_add_u32 s32, s32, 0x%x", WALL)
    add64(a, 44, 4, off_sgpr=32)
    a("v_add_u32 v9, s39, v2")
    a("v_add_u32 v10, s39, v9")
    a("v_add_u32 v11, s39, v10")
    a("s_mul_i32 s32, s26, 224")
    a("s_add_u32 s32, s32, s20")
    a("s_lshl_b32 s32, s32, 5")
    a("s_lshl_b32 s33, s14, 2")
    a("s_add_u32 s32, s32, s33")
    a("s_add_u32 s32, s32, 0x%x", ABF)
    add64(a, 46, 4, off_sgpr=32)
    a("v_mov_b32 v13, 0")
    for b in range(2):
        a("s_waitcnt vmcnt(%d)", 0 if b else 8)
        for f in range(8 * b, 8 * b + 8): a("ds_read_b128 %s, v14 offset:%d", vr(RR + 4 * f, 4), f * 1024)
        for kd_ in range(8):
            a("s_waitcnt lgkmcnt(%d)", 7 - kd_)
            for ct in range(4):
                d = vr(ACC + (b * 4 + ct) * 4, 4)
                a("v_mfma_f32_16x16x32_bf16 %s, %s, %s, %s", d, vr(RR + (b * 8 + kd_) * 4, 4), vr(CR + (ct * 8 + kd_) * 4, 4), d if kd_ else "0")
    T(2)
    for ct in range(4):
        o = OUT + ct * 4
        for b in range(2):
            d = ACC + (b * 4 + ct) * 4
            for r in range(4): a("v_mul_f32 v%d, s38, v%d", d + r, d + r)
            a("v_cvt_pk_f16_f32 v%d, v%d, v%d", o + 2 * b, d, d + 1)
            a("v_cvt_pk_f16_f32 v%d, v%d, v%d", o + 2 * b + 1, d + 2, d + 3)
        a("global_store_dwordx4 v%d, %s, s[44:45] sc1", [2, 9, 10, 11][ct], vr(o, 4))
    nonce_get(a, 8, "M_end")
    a("s_waitcnt vmcnt(0)")
    a("s_mov_b64 exec, 1")
    a("global_store_dword v13, v8, s[46:47] sc1")
    a("s_mov_b64 exec, -1")
    T(3)
    a("s_branch P_abend")
    a.label("P_w7")
    a("s_waitcnt vmcnt(0)")
    nonce_put(a, "M_end")
    if w7: w7()
    a.label("P_abend")

def emit_ln(a):
    a("v_add_u32 v14, %d, v14", L_WT)
    X = 16
    a("s_waitcnt vmcnt(0)")
    for ks in range(14): a("ds_read_b128 %s, v14 offset:%d", vr(X + 4 * ks, 4), ks * 1024)
    F = 80
    for d in range(56):
        if d % 4 == 0: a("s_waitcnt lgkmcnt(%d)", 13 - d // 4)
        a("v_lshlrev_b32 v%d, 16, v%d", F + 2 * d, X + d)
        a("v_and_b32 v%d, 0xffff0000, v%d", F + 2 * d + 1, X + d)
    def allred(acc, tmp):
        a("v_pk_add_f32 v[8:9], v[8:9], v[10:11]")
        a("v_add_f32 v8, v8, v9")
        a("v_mov_b32 v%d, v%d", tmp, acc)
        a("v_permlane32_swap_b32 v%d, v%d", acc, tmp)
        a("v_add_f32 v%d, v%d, v%d", acc, acc, tmp)
        a("v_mov_b32 v%d, v%d", tmp, acc)
        a("v_permlane16_swap_b32 v%d, v%d", acc, tmp)
        a("v_add_f32 v%d, v%d, v%d", acc, acc, tmp)
    P = lambda d: vr(F + 2 * d, 2)
    A = lambda d: vr(8 + 2 * (d & 1), 2)
    for d in range(2): a("v_pk_add_f32 %s, %s, %s", A(d), P(d), P(d + 2))
    for d in range(4, 56): a("v_pk_add_f32 %s, %s, %s", A(d), A(d), P(d))
    allred(8, 9)
    a("v_mul_f32 v12, %s, v8", f32(-1.0 / 448))
    a("v_mov_b32 v13, v12")
    for d in range(56): a("v_pk_add_f32 %s, %s, v[12:13]", P(d), P(d))
    for d in range(2): a("v_pk_mul_f32 %s, %s, %s", A(d), P(d), P(d))
    for d in range(2, 56): a("v_pk_fma_f32 %s, %s, %s, %s", A(d), P(d), P(d), A(d))
    allred(8, 9)
    a("v_mov_b32 v12, %s", f32(1e-5))
    a("v_fmac_f32 v12, %s, v8", f32(1.0 / 448))
    a("v_sqrt_f32 v12, v12")
    a("v_rcp_f32 v12, v12")
    a("s_mul_i32 s36, s20, %d", 14 * 1024)
    a("s_add_u32 s36, s36, 0x%x", XF + 4096)
    add64(a, 36, 4, off_sgpr=36)
    a("v_mov_b32 v13, v12")
    for ks in range(14):
        if ks == 8:
            a("s_add_u32 s36, s36, 8192"); a("s_addc_u32 s37, s37, 0")
        for d in range(4 * ks, 4 * ks + 4): a("v_pk_mul_f32 %s, %s, v[12:13]", P(d), P(d))
        for d in range(4 * ks, 4 * ks + 4): a("v_cvt_pk_f16_f32 v%d, v%d, v%d", X + d, F + 2 * d, F + 2 * d + 1)
        a("global_store_dwordx4 v2, %s, s[36:37] offset:%d sc1", vr(X + 4 * ks, 4), (ks & 7) * 1024 - 4096)
    a("s_lshl_b32 s36, s20, 2")
    a("s_add_u32 s36, s36, 0x%x", LNF)
    a("v_mov_b32 v8, s36")
    a("v_mov_b32 v9, s19")
    a("s_waitcnt vmcnt(0)")
    a("s_mov_b64 exec, 1")
    a("global_store_dword v8, v9, s[4:5] sc1")
    a("s_mov_b64 exec, -1")
```

```python
from common import *
MF = "v_mfma_f32_16x16x32_f16 %s, %s, %s, %s"
def emit_u(a, abort, T=lambda k: None):
    WR = 16; XR = (128, 184); ACC = 240; OUT = 248
    a.c("---- U task")
    a("s_mul_i32 s33, s20, 2341")
    a("s_lshr_b32 s33, s33, 16")
    a("s_mul_i32 s34, s33, 28")
    a("s_sub_u32 s34, s20, s34")
    a("s_mul_i32 s21, s33, 14")
    a("s_lshr_b32 s22, s34, 2")
    a("s_add_u32 s21, s21, s22")
    a("s_lshl_b32 s21, s21, 6")
    a("s_add_u32 s21, s21, 0x%x", ABF)
    a("v_and_b32 v8, 1, v3")
    a("v_mul_u32_u24 v8, %d, v8", 7 * 64)
    a("v_lshl_add_u32 v8, v4, 2, v8")
    a("v_add_u32 v8, s21, v8")
    a("v_lshlrev_b32 v9, 3, v1")
    a("v_add_u32 v9, 0x%x, v9", LNF)
    a("s_mov_b32 s25, 0x400000")
    lw = a.newlabel("UW")
    a("s_cmp_lg_u32 s14, 0")
    a("s_cbranch_scc1 %sb", lw)
    a.label(lw)
    a("global_load_dword v12, v8, s[4:5] sc1")
    a("global_load_dwordx2 v[10:11], v9, s[4:5] sc1")
    a("s_sub_u32 s25, s25, 1")
    a("s_cbranch_scc1 %s", abort)
    a("s_waitcnt vmcnt(0)")
    allnon(a, [10, 11])
    a("v_cmp_ne_u32 vcc, 0, v10")
    a("s_cbranch_vccnz %s", lw)
    a("v_cmp_eq_u32 vcc, s19, v12")
    a("s_or_b32 vcc_lo, vcc_lo, 0x80808080")
    a("s_cmp_eq_u32 vcc_lo, -1")
    a("s_cbranch_scc0 %s", lw)
    a.label(lw + "b")
    a("s_barrier")
    T(8)
    a("s_min_u32 s21, s14, 6")
    a("s_lshl_b32 s21, s21, 12")
    a("v_add_u32 v8, s21, v2")
    a("s_mul_i32 s26, s20, %d", 28 * 1024)
    a("s_add_u32 s26, s26, 0x%x", BF)
    add64(a, 26, 4, off_sgpr=26)
    for k in range(4): a("global_load_dwordx4 %s, v8, s[26:27] offset:%d sc1", vr(XR[1] + 4 * k, 4), 1024 * k)
    a("s_mul_i32 s28, s14, %d", 14 * 1024)
    a("s_add_u32 s28, s28, 0x%x", XF + 4096)
    add64(a, 28, 4, off_sgpr=28)
    a("v_add_u32 v9, 8192, v2")
    def xld(b):
        for ks in range(14):
            a("global_load_dwordx4 %s, v%d, s[28:29] offset:%d sc1", vr(XR[b] + 4 * ks, 4), 2 if ks < 8 else 9, (ks & 7) * 1024 - 4096)
        a("s_add_u32 s28, s28, %d", 8 * 14 * 1024); a("s_addc_u32 s29, s29, 0")
    xld(0)
    a("s_lshr_b32 s22, s14, 1")
    a("s_and_b32 s23, s14, 1")
    a("s_mul_i32 s35, s22, 14")
    a("s_lshr_b32 s32, s34, 1")
    a("s_add_u32 s35, s35, s32")
    a("s_lshl_b32 s35, s35, 3")
    a("s_add_u32 s35, s35, s33")
    a("s_lshl_b32 s35, s35, 1")
    a("s_and_b32 s34, s34, 1")
    a("s_add_u32 s35, s35, s34")
    a("s_lshl_b32 s35, s35, 1")
    a("s_add_u32 s35, s35, s23")
    a("s_lshl_b32 s35, s35, 10")
    a("s_add_u32 s35, s35, 0x%x", UF)
    add64(a, 30, 4, off_sgpr=35)
    a("s_lshl_b32 s36, s20, 1")
    a("s_add_u32 s36, s36, s23")
    a("s_lshl_b32 s36, s36, 8")
    a("s_mul_i32 s32, s22, %d", 112 * 1024)
    a("s_add_u32 s32, s32, s36")
    a("s_add_u32 s32, s32, 0x%x", TBX)
    add64(a, 32, 4, off_sgpr=32)
    a("s_min_u32 s36, s36, %d", 31 * 256)
    a("s_lshl_b32 s34, s22, 13")
    a("s_add_u32 s34, s34, s36")
    a("s_add_u32 s34, s34, 0x%x", MEMX)
    add64(a, 34, 4, off_sgpr=34)
    a("s_lshl_b32 s36, s14, 10")
    a("s_lshl_b32 s37, s20, 2")
    a("s_add_u32 s36, s36, s37")
    a("s_add_u32 s36, s36, 0x%x", UFL)
    add64(a, 36, 4, off_sgpr=36)
    for r in range(4): a("v_mov_b32 v%d, -1", 12 + r)
    a("v_mov_b32 v10, 0")
    a("s_mov_b32 s24, 0")
    a("v_mov_b32 v11, s19")
    a("s_waitcnt vmcnt(14)")
    for k in range(4): a("ds_write_b128 v8, %s offset:%d", vr(XR[1] + 4 * k, 4), 1024 * k)
    a("s_waitcnt lgkmcnt(0)")
    a("s_barrier")
    for f in range(28): a("ds_read_b128 %s, v2 offset:%d", vr(WR + 4 * f, 4), f * 1024)
    a("s_waitcnt vmcnt(0) lgkmcnt(0)")
    T(9)
    L = a.newlabel("UT")
    a.label(L)
    for b in range(2):
        if b:
            sk = a.newlabel("UTs")
            a("s_cmp_eq_u32 s24, 7")
            a("s_cbranch_scc1 %s", sk)
        xld(1 - b)
        if b: a.label(sk)
        for ks in range(14):
            for w in range(2):
                d = vr(ACC + 4 * w, 4)
                a(MF, d, vr(XR[b] + 4 * ks, 4), vr(WR + (w * 14 + ks) * 4, 4), d if ks else "0")
        a("s_mov_b64 exec, 0xffff")
        a("global_store_dwordx4 v2, v[12:15], s[32:33] sc1")
        l = a.newlabel("UTm")
        a("s_cmp_ge_u32 s20, 14")
        a("s_cbranch_scc1 %s", l)
        a("global_store_dwordx4 v2, v[12:15], s[34:35] sc1")
        a.label(l)
        a("s_mov_b64 exec, -1")
        for w in range(2):
            a("v_cvt_pk_f16_f32 v%d, v%d, v%d", OUT + w, ACC + 4 * w, ACC + 4 * w + 1)
            a("v_cvt_pk_f16_f32 v%d, v%d, v%d", OUT + 2 + w, ACC + 4 * w + 2, ACC + 4 * w + 3)
        a("global_store_dwordx4 v2, %s, s[30:31] sc1", vr(OUT, 4))
        for r, n in ((30, 4 * 14 * 32768), (32, 4 * 112 * 1024), (34, 4 * 8192)):
            a("s_add_u32 s%d, s%d, %d", r, r, n); a("s_addc_u32 s%d, s%d, 0", r + 1, r + 1)
        a("s_waitcnt vmcnt(0)")
        a("s_mov_b64 exec, 1")
        a("global_store_dword v10, v11, s[36:37] sc1")
        a("s_mov_b64 exec, -1")
        a("s_add_u32 s36, s36, 8192"); a("s_addc_u32 s37, s37, 0")
    a("s_add_u32 s24, s24, 1")
    a("s_cmp_lt_u32 s24, 8")
    a("s_cbranch_scc1 %s", L)
    T(10)
```

```python
import sys; sys.path.insert(0,"gen")
import build, fusedK
BEST = dict(wo=156,wm=14,wr=64,ntb=64+1024,qt=9,g2=0,fpos=7,bpos=7,rot=0,n0=2,ramp={0:1,1:4,2:3},ni=2,touch=0,p2=0,gpos=16,pdel=2,flag=3,nv=54,ns=(14,14,0,14))
def mk(out, **kw):
    k = dict(BEST); k.update(kw)
    names = []
    build.build(out, [(fusedK.KN, lambda a: names.extend(fusedK.emit_main(a, **k)), 256, 512, fusedK.MAIN_LDS)])
    if k.get("prof"): open(out, "a").write("; names " + ",".join(names) + "\n")
if __name__ == "__main__":
    for i, arg in enumerate(sys.argv[1:]):
        if arg.startswith("final"): mk("parallel_sum__memory_aug_recurrent_mem_tr__dense_activation_relu__prompt.s", **eval("dict(%s)" % arg[6:]))
        else: mk("m%d.s" % i, **eval("dict(%s)" % arg))
```

```python
from common import *
L_MEMI = 0; L_TAI = 7168; L_RED = 11264; L_TB1 = 15360; L_TB2 = 19456; L_BW = 23552; BWSZ = 16384
CHAIN_LDS = L_BW + 7 * BWSZ
MFR = 16; ACC0 = 44; ACC1 = 48; STG = 52; EX = 68; BW = 96; AW = 144
VP = 0

class Prof:
    def __init__(self, a, on, step=40): self.a = a; self.on = on; self.step = step; self.names = ["top"] if on else []
    def __call__(self, name):
        if not self.on or (self.on in (1, 4) and name != "top"): return
        if self.on == 4:
            self.a("s_memtime s[64:65]"); self.a("s_memrealtime s[66:67]"); return
        if (self.on == 3) != name.startswith("a") and name not in ("top", "TA done", "bar2"): return
        if name not in self.names: self.names.append(name)
        k = self.names.index(name)
        assert k < 16
        self.a("s_memtime s[%d:%d]", 64 + 2 * k, 65 + 2 * k)
    def flush(self, n=16):
        if not self.on: return
        a = self.a
        if self.on == 4:
            a("s_bitcmp1_b32 s14, 0")
            a("s_cselect_b32 s64, s66, s64")
            a("s_mov_b32 m0, s24")
            a("v_writelane_b32 v%d, s64, m0", VP)
            return
        l = a.newlabel("PF")
        a("s_cmp_lg_u32 s24, %d", self.step + 1)
        a("s_cbranch_scc1 %s", l)
        for k in range(n): a("v_writelane_b32 v%d, s%d, %d", VP, 64 + 2 * k, k)
        a.label(l)
        for st, ln in ((10, 20), (60, 21)):
            l = a.newlabel("PF")
            a("s_cmp_lg_u32 s24, %d", st)
            a("s_cbranch_scc1 %s", l)
            a("v_writelane_b32 v%d, s64, %d", VP, ln)
            a.label(l)

class LQ:
    def __init__(self, a): self.a = a; self.q = []
    def issue(self, tag, txt, *args): self.a(txt, *args); self.q.append(tag)
    def wait(self, tag):
        if tag not in self.q: return
        last = max(k for k, t in enumerate(self.q) if t == tag)
        self.a("s_waitcnt lgkmcnt(%d)", len(self.q) - 1 - last)
        self.q = self.q[last + 1:]
    def all(self): self.a("s_waitcnt lgkmcnt(0)"); self.q = []

def interleave(a, b):
    a("v_swap_b32 v%d, v%d", b + 1, b + 4)
    a("v_swap_b32 v%d, v%d", b + 3, b + 5)
    a("v_swap_b32 v%d, v%d", b + 2, b + 4)
    a("v_swap_b32 v%d, v%d", b + 5, b + 6)

L_FL = L_BW + 8 * BWSZ
def local_a(a, prof, abort, bload, hi, k0, pd, touch, rdep, bands, ni, ramp, pa, p7, sconst):
    import pt
    from k1 import SCALE
    R = lambda i: L_BW + i * BWSZ
    sl = [R(0), R(1), R(2), 0, R(7), R(4), R(5), R(6), R(3)]
    slot = {k: sl[k % 9] for k in range(14)}
    pt.lanes(a)
    a("v_bfe_u32 v7, v1, 2, 2")
    a("s_lshl_b32 s30, s21, 9")
    def bptr():
        a("s_lshl_b32 s50, s22, 2")
        a("s_add_u32 s50, s50, s60")
        a("s_mul_i32 s50, s50, 14")
        a("s_min_u32 s51, s21, 13")
        a("s_add_u32 s50, s50, s51")
        a("s_mul_i32 s50, s50, %d", 56 * 1024)
        a("s_mul_i32 s51, s61, 7168")
        a("s_add_u32 s50, s50, s51")
        a("s_add_u32 s50, s50, 0x%x", BF + 4096)
        add64(a, 80, 4, off_sgpr=50)
        for i in range(1, 4): add64(a, 80 + 2 * i, 80, imm=14336 * i)
        for i in range(4): a("v_mov_b32 v%d, 0", BW + i)
        if prof == 4: a("s_mov_b32 s78, 0")
        a("s_mul_i32 s50, s22, 56")
        a("s_min_u32 s51, s21, 13")
        a("s_lshr_b32 s51, s51, 1")
        a("s_add_u32 s50, s50, s51")
        a("s_lshl_b32 s50, s50, 6")
        a("s_add_u32 s50, s50, 0x%x", ABF)
    WK = 32; V = 16
    PD = lambda k: BW + 36 + k % 4
    def landed(k, first, l):
        if not first: a("s_branch %sa", l)
        a.label(l)
        a("ds_read_b32 v3, v0")
        a("s_sub_u32 s25, s25, 1")
        a("s_cbranch_scc1 %s", abort)
        a("s_waitcnt lgkmcnt(0)")
        a.label(l + "a")
        a("v_cmp_ne_u32 vcc, 0, v3")
        a("s_bitcmp1_b32 vcc_lo, %d", k)
        a("s_cbranch_scc0 %s", l)
    a("s_cmp_eq_u32 s14, 7")
    a("s_cbranch_scc1 LA_w7")
    a("v_lshlrev_b32 v13, 16, v3")
    a("v_add_u32 v13, v13, v12")
    a("v_lshl_add_u32 v9, v7, 14, v13")
    a("s_mul_i32 s34, s22, 7")
    a("s_add_u32 s34, s34, s14")
    a("s_lshl_b32 s34, s34, 18")
    a("s_add_u32 s34, s34, s30")
    add64(a, 34, 66, off_sgpr=34)
    add64(a, 36, 34, imm=8192)
    a("s_mul_i32 s32, s20, 7")
    a("s_add_u32 s32, s32, s14")
    a("s_lshl_b32 s32, s32, 10")
    a("s_add_u32 s32, s32, 0x%x", MEMR)
    add64(a, 32, 4, off_sgpr=32)
    for r in range(4): a("v_mov_b32 v%d, -1", V + r)
    a("global_store_dwordx4 v2, %s, s[32:33] sc1", vr(V, 4))
    a("v_lshlrev_b32 v0, 2, v1")
    a("v_add_u32 v0, %d, v0", L_FL)
    a("v_mov_b32 v8, %d", pt.L_NON)
    a("v_cmp_gt_u32 vcc, 16, v1")
    a("v_cndmask_b32 v0, v8, v0")
    a("s_lshr_b32 s50, s60, 1")
    a("s_lshl_b32 s50, s50, 2")
    a("s_add_u32 s50, s50, %d", L_FL + 384)
    a("v_mov_b32 v8, s50")
    a("v_cmp_gt_u32 vcc, 17, v1")
    a("v_cndmask_b32 v0, v8, v0")
    a("v_and_b32 v8, 1, v3")
    a("v_lshrrev_b32 v13, 1, v3")
    a("s_cmp_ge_u32 s14, 4")
    a("s_cbranch_scc1 LA_i0")
    a("s_barrier")
    a.label("LA_i0")
    for m in range(16): a("global_load_dwordx4 %s, v9, s[%d:%d] offset:%d", vr(WK + m * 4, 4), 34 + 2 * (m & 1), 35 + 2 * (m & 1), 64 * (m >> 1))
    a("s_cmp_lt_u32 s14, 4")
    a("s_cbranch_scc1 LA_i1")
    a("s_setprio %d", pa)
    a("s_barrier")
    a.label("LA_i1")
    bptr()
    a("v_lshrrev_b32 v14, 2, v4")
    a("v_xor_b32 v14, v14, v13")
    a("v_lshlrev_b32 v14, 4, v14")
    a("v_lshl_add_u32 v14, v4, 6, v14")
    a("v_lshl_add_u32 v5, v8, 13, v14")
    a("v_add_u32 v5, %d, v5", slot[0])
    a("v_xor_b32 v6, 32, v5")
    a("s_lshl_b32 s36, s14, 11")
    a("s_add_u32 s36, s36, %d", sl[8])
    a("v_lshl_add_u32 v10, v8, 10, v14")
    a("v_add_u32 v10, s36, v10")
    a("v_xor_b32 v11, 32, v10")
    a("v_add_u32 v12, s36, v2")
    a("s_lshl_b32 s50, s14, 2")
    a("s_add_u32 s50, s50, %d", L_FL + 64)
    a("v_mov_b32 v1, s50")
    a("s_and_b32 s50, s60, 1")
    a("s_lshl_b32 s50, s50, 2")
    a("s_add_u32 s50, s50, s61")
    a("s_lshl_b32 s50, s50, 2")
    a("s_lshl_b32 s88, 0x0f0f, s50")
    a("s_cmp_eq_u32 s23, 0")
    a("s_cselect_b32 s89, -1, s88")
    a("s_mov_b32 s96, %s", f32(SCALE))
    sconst()
    for kd in range(8):
        a("s_waitcnt vmcnt(%d)", 14 - 2 * kd)
        for t in range(2): a("ds_write_b128 v12, %s offset:%d", vr(WK + (2 * kd + t) * 4, 4), 1024 * t)
        for c in range(2): a("ds_read_b128 %s, v%d", vr(WK + (2 * kd + c) * 4, 4), 10 + c)
    if prof == 4: a("s_memrealtime s[76:77]")
    landed(0, True, "LA_l0")
    if prof == 4: a("s_memrealtime s[90:91]")
    q = LQ(a)
    free = [(8, 224), (12, 224), (BW + 40, 224), (BW + 44, 224)] + [(AW + 96 + 4 * i, 192) for i in range(4)]
    buf = {}; nxt = [0]
    def rd(cur, lim):
        while nxt[0] < min(lim, cur + 1 + rdep):
            F = nxt[0]
            ok = [x for x in free if x[1] > F]
            if not ok: return
            x = min(ok, key=lambda y: y[1]); free.remove(x); buf[F] = x
            if F and not (F & 15):
                for r in (5, 6): a("v_add_u32 v%d, %d, v%d", r, slot[F >> 4] - slot[(F >> 4) - 1], r)
            q.issue(F, "ds_read_b128 %s, v%d offset:%d", vr(x[0], 4), 5 + (F & 1), ((F & 15) >> 1) * 1024)
            nxt[0] += 1
    def acc(ks): return V if ks & 1 else AW + 8 * ks
    def cvt_ops(ks):
        Rr = AW + 8 * ks; X = acc(ks); ops = []
        for d in range(4):
            for e in range(2):
                s0 = X + 8 * e + 2 * d
                ops.append([("v_mul_f32 v%d, s96, v%d", s0, s0), ("v_mul_f32 v%d, s96, v%d", s0 + 1, s0 + 1), ("v_cvt_pk_f16_f32 v%d, v%d, v%d", Rr + 2 * d + e, s0, s0 + 1)])
        for d in range(4): ops.append([("v_permlane16_swap_b32 v%d, v%d", Rr + 2 * d, Rr + 2 * d + 1)])
        return ops
    def bgo():
        if prof == 4: a("s_memrealtime s[78:79]")
        bload(range(5))
        a("ds_write_b32 v1, v0 offset:192")
        a("s_mov_b32 s89, -1")
    tail = []
    rd(-1, 16)
    for ks in range(14):
        ops = cvt_ops(ks - 1) if ks else []
        sched = {2: [0], 3: [1], 4: [2], 8: [3, 8], 9: [4], 10: [5, 9], 11: [6], 12: [7, 10], 13: [11]}
        for m in range(16):
            F = ks * 16 + m
            q.wait(F)
            d = vr(acc(ks), 16)
            a("v_mfma_f32_32x32x16_bf16 %s, %s, %s, %s", d, vr(buf[F][0], 4), vr(WK + m * 4, 4), d if m else "0")
            if ops:
                for g in sched.get(m, []):
                    for o in ops[g]: a(*o)
            free.append(buf[F])
            if ks == 13: free.append((WK + m * 4, 224))
            row = {9: 7, 13: 8}.get(ks, ks if ks <= 5 else None)
            if m == 0 and row is not None: q.issue("pr", "ds_write_b32 v1, v0 offset:%d", 32 * row)
            if m == 13 and ks < 12 or (F == 0): q.issue("fl", "ds_read_b32 v3, v0")
            if m == 5 and ks < 13:
                q.wait("fl")
                a("v_cmp_ne_u32 vcc, 0, v3")
                a("v_readlane_b32 s50, v3, 17")
                if ks == 12: a("v_readlane_b32 s19, v3, 16")
            if m == 6 and ks < 13:
                a("s_bitcmp1_b32 vcc_lo, %d", ks + 1)
                a("s_cbranch_scc0 LA_l%d", ks + 1)
                a.label("LA_m%d" % (ks + 1))
                def slow(k=ks + 1):
                    landed(k, True, "LA_l%d" % k)
                    a("s_branch LA_m%d", k)
                tail.append(slow)
            rd(F, min(224, 16 * (ks + 1 + (m >= 6))))
            if m == 7 and k0 <= ks < 13:
                a("s_and_b32 s50, s50, s88")
                a("s_cmp_eq_u32 s50, s89")
                a("s_cbranch_scc1 LA_g%d", ks)
                a.label("LA_h%d" % ks)
                def go(k=ks):
                    a.label("LA_g%d" % k)
                    bgo()
                    a("s_waitcnt lgkmcnt(0)")
                    a("s_branch LA_h%d", k)
                tail.append(go)
    a.label("LA_e0")
    a("s_cmp_eq_u32 s89, -1")
    a("s_cbranch_scc1 LA_e1")
    a("ds_read_b32 v3, v0")
    a("s_sub_u32 s25, s25, 1")
    a("s_cbranch_scc1 %s", abort)
    a("s_waitcnt lgkmcnt(0)")
    a("v_readlane_b32 s50, v3, 17")
    a("s_and_b32 s50, s50, s88")
    a("s_cmp_eq_u32 s50, s89")
    a("s_cbranch_scc0 LA_e0")
    bgo()
    a.label("LA_e1")
    a("s_setprio 0")
    a("v_lshrrev_b32 v1, 4, v2")
    if prof == 4: a("s_memrealtime s[92:93]")
    a("s_cmp_eq_u32 s23, 0")
    a("s_cbranch_scc1 LA_e2")
    bload([5] + hi)
    a.label("LA_e2")
    for o in cvt_ops(13):
        for x in o: a(*x)
    a("v_lshrrev_b32 v3, 4, v1")
    a("s_cmp_lt_u32 s14, 4")
    a("s_cbranch_scc1 LA_end")
    for i in range(56): a("v_swap_b32 v%d, v%d", AW + i, AW + 56 + i)
    a("s_branch LA_end")
    for f in tail: f()
    a.label("LA_w7")
    a("s_setprio %d", p7)
    a("v_and_b32 v13, 1, v3")
    a("v_lshl_add_u32 v8, v13, 17, v12")
    a("v_lshrrev_b32 v13, 1, v3")
    a("v_lshl_add_u32 v8, v13, 15, v8")
    a("v_lshl_add_u32 v8, v7, 13, v8")
    a("s_mul_i32 s31, s22, %d", 7 << 18)
    a("s_add_u32 s32, s30, s31")
    add64(a, 32, 64, off_sgpr=32)
    a("s_sub_u32 s31, %d, s31", 7 << 18)
    a("s_add_u32 s30, s30, s31")
    add64(a, 30, 64, off_sgpr=30)
    vq = []
    def half(i):
        add64(a, 34, 32 if i < 14 else 30, imm=(((i >> 1) % 7) << 18) + (i & 1) * 8 * 8192)
        for kd in range(8):
            a("s_mov_b32 m0, %d", slot[i >> 1] + (i & 1) * 8192 + 960 * kd)
            a("global_load_lds_dwordx4 v8, s[34:35] offset:%d", 64 * kd)
            vq.append(i)
    def vwait(tag):
        last = max(k for k, t in enumerate(vq) if t == tag)
        a("s_waitcnt vmcnt(%d)", len(vq) - 1 - last)
        del vq[:last + 1]
    DEP = 7
    for i in range(4):
        if i == ni: a("s_barrier")
        half(i)
    pt.nonce_ld(a); vq.append("N")
    if ni == 4: a("s_barrier")
    issued = [4]
    bptr()
    a("v_lshlrev_b32 v10, 3, v1")
    a("s_lshl_b32 s51, s20, 9")
    a("s_add_u32 s51, s51, 0x%x", LNF)
    a("v_add_u32 v12, s51, v10")
    a("v_lshrrev_b32 v13, 3, v1")
    a("v_mul_u32_u24 v13, %d, v13", 7 * 64)
    a("v_and_b32 v14, 7, v1")
    a("v_lshl_add_u32 v13, v14, 3, v13")
    a("v_add_u32 v13, s50, v13")
    a("v_min_u32 v11, 6, v14")
    a("v_lshlrev_b32 v11, 2, v11")
    a("v_add_u32 v11, %d, v11", L_FL + 64)
    a("v_and_b32 v14, 31, v1")
    a("v_lshlrev_b32 v9, 7, v14")
    a("v_lshlrev_b32 v14, 2, v14")
    a("v_add_u32 v14, 0x%x, v14", RDY)
    a("v_lshrrev_b32 v10, 5, v1")
    a("v_mul_u32_u24 v10, 14336, v10")
    a("v_add_u32 v9, v9, v10")
    a("s_lshl_b32 s50, s20, 2")
    a("s_add_u32 s50, s50, 0x%x", RDY)
    a("v_mov_b32 v15, s50")
    a("v_mov_b32 v5, %d", L_FL)
    for i in range(16):
        vwait(i)
        if i == 4: pt.nonce_put(a, abort)
        if i & 1: a("ds_write_b32 v5, v5 offset:%d", 4 * (i >> 1))
        upto = min(16, i + 1 + ramp.get(i, DEP))
        while issued[0] < upto: half(issued[0]); issued[0] += 1
    def bpoll():
        a("global_load_dwordx2 v[16:17], v13, s[4:5] sc1")
        a("s_sub_u32 s25, s25, 1")
        a("s_cbranch_scc1 %s", abort)
        a("s_waitcnt vmcnt(0)")
        a("v_cmp_eq_u32 vcc, s19, v17")
        a("s_or_b32 vcc_lo, vcc_lo, 0x88888888")
        a("s_or_b32 vcc_hi, vcc_hi, 0x88888888")
        a("v_cmp_eq_u32 s[50:51], s19, v16")
        a("s_and_b64 s[50:51], s[50:51], vcc")
        a("v_mov_b32 v16, s50")
        a("v_mov_b32 v17, s51")
        a("ds_write_b64 v5, v[16:17] offset:384")
    def prog(row, l):
        a("ds_read_b32 v6, v11 offset:%d", 32 * row)
        a("s_waitcnt lgkmcnt(0)")
        a("v_cmp_eq_u32 vcc, 0, v6")
        a("s_cbranch_vccnz %s", l)
    for k in range(8, 14):
        l = "LA_f%d" % k
        a("s_branch %sa", l)
        a.label(l)
        bpoll()
        for kk in range(max(8, k - 2), k): a("ds_write_b32 v5, v5 offset:%d", 4 * kk)
        a.label(l + "a")
        prog(k - 8, l)
        if k == 8:
            a("s_or_b32 s50, s19, s17")
            a("v_mov_b32 v16, s50")
            a("s_mov_b64 exec, 1")
            a("global_store_dword v15, v16, s[4:5] sc1")
            a("s_mov_b64 exec, -1")
        if k >= 10:
            a("s_waitcnt vmcnt(16)")
            a("ds_write_b32 v5, v5 offset:%d", 4 * (k - 2))
        half(2 * k); half(2 * k + 1)
    a("s_waitcnt vmcnt(16)")
    a("ds_write_b32 v5, v5 offset:48")
    a.label("LA_p")
    bpoll()
    a("ds_write_b32 v5, v5 offset:52")
    a("s_cmp_eq_u32 s23, 0")
    a("s_cbranch_scc1 LA_q")
    a("s_cmp_eq_u64 s[50:51], -1")
    a("s_cbranch_scc0 LA_p")
    a.label("LA_p2")
    a("s_sub_u32 s25, s25, 1")
    a("s_cbranch_scc1 %s", abort)
    prog(6, "LA_p2")
    def pol2():
        a("global_load_dwordx2 v[18:19], v12, s[4:5] sc1")
        a("global_load_dword v20, v14, s[4:5] sc1")
    pol2()
    bload(range(6))
    bload(hi)
    if touch:
        a("s_mul_i32 s50, s61, 14336")
        a("s_add_u32 s50, s50, %d", 3 * 14 * 56 * 1024 + 1024 - 7168)
        a("s_sub_u32 s34, s80, s50")
        a("s_subb_u32 s35, s81, 0")
        for qq in range(3):
            for i in range(2):
                a("global_load_dword v21, v9, s[34:35] sc1")
                a("s_add_u32 s34, s34, %d", 28672 if i < 1 else 14 * 56 * 1024 - 28672); a("s_addc_u32 s35, s35, 0")
    a("s_waitcnt vmcnt(%d)", 28 + 6 * touch)
    a("s_branch LA_q1")
    a.label("LA_q")
    pol2()
    a("s_sub_u32 s25, s25, 1")
    a("s_cbranch_scc1 %s", abort)
    a("s_waitcnt vmcnt(0)")
    a.label("LA_q1")
    a("v_and_b32 v22, -2, v20")
    allnon(a, [18, 19, 22])
    a("v_cmp_ne_u32 vcc, 0, v18")
    a("s_cbranch_vccnz LA_q")
    a("v_cmp_ne_u32 vcc, s19, v20")
    a("s_or_b32 s50, vcc_lo, vcc_hi")
    a("s_cselect_b32 s50, 3, 1")
    a("v_mov_b32 v7, s50")
    a("ds_write2_b32 v5, v7, v7 offset0:%d offset1:%d", 16 + 7 * 8 + 7, 16 + 8 * 8 + 7)
    a("s_lshr_b32 s97, s50, 1")
    a("s_setprio 0")
    sconst()
    a("s_waitcnt lgkmcnt(0)")
    a.label("LA_end")

SM = "v_smfmac_f32_16x16x64_f16 %s, %s, %s, v5"
def emit_chain(a, prof=False, nv=64, ns=(0, 0, 0, 0), bpos=9, nb2=4, nb3=8, gpos=13, g2=1, pdel=1, p2=1, flag=1, fpos=5, dep=6, dep2=7, nb7=0, xp=0, abort="CH_abort", merged=True, dbgout=0, k0=1, pd=3, touch=1, rdep=8, bands=(), ni=4, ramp={0: 3, 1: 4, 2: 3}, pa=1, p7=0, ctouch=1):
    P = Prof(a, prof)
    npf = nv + sum(ns)
    def spf(w):
        o = nv + sum(ns[:w - 4])
        for i in range(ns[w - 4]): a("s_load_dword s96, s[54:55], %d", (o + i) * 128)
    MODE = {"ST": "", "PX": ""}
    a.c("---- chain, role s20")
    a("s_lshr_b32 s21, s20, 1")
    a("s_and_b32 s22, s20, 1")
    a("s_cmp_lt_u32 s20, 28")
    a("s_cselect_b32 s23, 1, 0")
    a("s_mov_b32 s25, 0x100000")
    a("s_and_b32 s60, s14, 3")
    a("s_lshr_b32 s61, s14, 2")
    a("s_xor_b32 s61, s61, s22")
    a("s_xor_b32 s61, s61, 1")
    def breg(n): return BW + n * 8 if n < 6 else 32 + (n - 6) * 8
    def bload(ns_):
        for n in ns_:
            for w in range(2):
                b = 80 + 4 * (n & 1) + 2 * w
                a("global_load_dwordx4 %s, v2, s[%d:%d] offset:%d sc1", vr(breg(n) + w * 4, 4), b, b + 1, (n >> 1) * 1024 - 4096)
    hi = [10, 11, 12, 13, 6, 7, 8, 9]
    def sconst():
        a("s_mov_b32 s46, 0x00ff00ff")
        a("s_mov_b32 s47, 0x00ff00ff")
        add64(a, 26, 4, imm=MEMR)
        add64(a, 28, 4, imm=SR)
        for r in (30, 32, 58): a("s_mov_b64 s[%d:%d], s[26:27]", r, r + 1)
        for r in (34, 36): a("s_mov_b64 s[%d:%d], s[28:29]", r, r + 1)
        a("s_mul_i32 s42, s22, 7168")
        a("s_and_b32 s43, s14, 1")
        a("s_xor_b32 s43, s43, 1")
        a("s_mul_i32 s43, s43, 14336")
        a("s_add_u32 s42, s42, s43")
        a("s_add_u32 s42, s42, 0x%x", XF + 4096)
        add64(a, 42, 4, off_sgpr=42)
        a("s_sub_u32 s44, s20, 28")
        a("s_max_i32 s44, s44, 0")
        a("s_mul_i32 s44, s44, 7168")
        a("s_add_u32 s44, s44, 0x%x", XF + 2 * 28 * 1024)
        add64(a, 44, 4, off_sgpr=44)
        a("s_mov_b32 s24, 0")
        a("s_mov_b64 s[62:63], 0")
        a("s_min_u32 s38, s20, 27")
        a("s_mul_i32 s38, s38, %d", 16 * 1024)
        a("s_add_u32 s38, s38, 0x%x", UF)
        add64(a, 38, 4, off_sgpr=38)
        a("s_lshl_b32 s40, s21, 13")
        a("s_lshl_b32 s41, s22, 11")
        a("s_add_u32 s40, s40, s41")
        a("s_add_u32 s40, s40, 0x%x", TBX - 28 * 4096 + 2048)
        add64(a, 40, 4, off_sgpr=40)
        add64(a, 48, 4, imm=MEMX)
        a("s_mov_b64 s[54:55], s[38:39]")
        a("s_sub_u32 s56, s20, 28")
        a("s_max_i32 s56, s56, 0")
        a("s_mul_i32 s56, s56, %d", 7 * 16384)
        a("s_add_u32 s56, s56, 0x%x", UF + 2 * 28 * 16 * 1024)
        add64(a, 56, 4, off_sgpr=56)
        add64(a, 52, 4, imm=UFL)
    local_a(a, prof, abort, bload, hi, k0, pd, touch, rdep, bands, ni, ramp, pa, p7, sconst)
    def TS(k):
        if prof == 4: a("s_memrealtime s[%d:%d]", 64 + 2 * k, 65 + 2 * k)
    TS(0)
    a("s_min_u32 s50, s14, 6")
    a("s_lshl_b32 s50, s50, 10")
    a("v_add_u32 v14, s50, v2")
    a("s_sub_u32 s50, s14, 3")
    a("s_cmp_ge_u32 s50, 4")
    a("s_cbranch_scc1 CH_m0")
    a("v_bfe_u32 v16, v14, 4, 3")
    a("v_mul_u32_u24 v16, 896, v16")
    a("v_lshrrev_b32 v17, 9, v14")
    a("v_lshl_add_u32 v16, v17, 6, v16")
    a("v_bfe_u32 v17, v14, 7, 1")
    a("v_lshl_add_u32 v16, v17, 5, v16")
    a("v_bfe_u32 v17, v14, 8, 1")
    a("v_lshl_add_u32 v16, v17, 3, v16")
    a("global_load_dwordx2 v[20:21], v16, s[12:13]")
    a("global_load_dwordx2 v[22:23], v16, s[12:13] offset:16")
    a("s_cmp_eq_u32 s14, 3")
    a("s_cbranch_scc1 CH_m0")
    a("global_load_dwordx2 v[24:25], v16, s[12:13] offset:-512")
    a("global_load_dwordx2 v[26:27], v16, s[12:13] offset:-496")
    a.label("CH_m0")
    a("v_bfe_u32 v5, v4, 1, 1")
    a("v_mul_u32_u24 v5, 0xaaaa, v5")
    a("v_add_u32 v5, 0x4444, v5")
    a("v_lshrrev_b32 v6, 2, v4")
    a("v_lshlrev_b32 v6, 1, v6")
    a("v_and_b32 v7, 1, v4")
    a("v_add_u32 v6, v6, v7")
    a("v_lshlrev_b32 v6, 4, v6")
    a("v_lshl_add_u32 v6, v3, 7, v6")
    a("s_mul_i32 s50, s61, 3584")
    a("v_add_u32 v6, s50, v6")
    a("v_lshrrev_b32 v7, 2, v4")
    a("v_lshlrev_b32 v7, 7, v7")
    a("v_lshl_add_u32 v7, v3, 5, v7")
    a("v_and_b32 v8, 3, v4")
    a("v_lshl_add_u32 v7, v8, 2, v7")
    a("s_lshl_b32 s50, s14, 9")
    a("s_add_u32 s50, s50, %d", L_TAI)
    a("v_add_u32 v7, s50, v7")
    a("s_lshl_b32 s50, s60, 10")
    a("s_add_u32 s50, s50, %d", L_TB1)
    a("v_add_u32 v12, s50, v2")
    a("s_cmp_ge_u32 s14, 4")
    a("s_cbranch_scc1 CH_c4")
    a("s_lshr_b32 s50, s60, 1")
    a("s_lshl_b32 s50, s50, 10")
    a("s_and_b32 s51, s60, 1")
    a("s_lshl_b32 s51, s51, 3")
    a("s_add_u32 s50, s50, s51")
    a("s_add_u32 s50, s50, %d", L_TB2)
    a("v_add_u32 v8, s50, v2")
    a("s_lshl_b32 s50, s60, 10")
    a("s_add_u32 s50, s50, %d", L_RED)
    a("v_lshlrev_b32 v9, 2, v1")
    a("v_add_u32 v9, s50, v9")
    a("s_lshl_b32 s50, s22, 2")
    a("s_add_u32 s50, s50, s60")
    a("s_lshl_b32 s51, s50, 11")
    a("v_add_u32 v10, s51, v2")
    a("s_lshl_b32 s51, s50, 9")
    a("s_add_u32 s51, s51, 16384")
    a("v_lshlrev_b32 v11, 2, v1")
    a("v_add_u32 v11, s51, v11")
    a("s_lshl_b32 s50, s60, 12")
    a("v_add_u32 v13, s50, v2")
    a("s_branch CH_c5")
    a.label("CH_c4")
    a("v_mov_b32 v11, 0")
    a("v_and_b32 v16, 7, v4")
    a("s_cmp_eq_u32 s14, 5")
    a("s_cselect_b64 vcc, -1, 0")
    a("v_lshlrev_b32 v8, 4, v16")
    a("v_lshl_add_u32 v17, v3, 7, v8")
    a("v_and_b32 v18, 1, v3")
    a("v_lshl_add_u32 v8, v18, 8, v8")
    a("v_lshrrev_b32 v18, 1, v3")
    a("v_lshl_add_u32 v8, v18, 3, v8")
    a("v_cndmask_b32 v8, v17, v8")
    a("v_add_u32 v8, %d, v8", L_TAI)
    a("v_lshrrev_b32 v17, 1, v16")
    a("v_lshlrev_b32 v17, 2, v17")
    a("v_and_b32 v18, 1, v16")
    a("v_add_u32 v17, v17, v18")
    a("s_and_b32 s50, s21, 1")
    a("s_lshl_b32 s50, s50, 1")
    a("v_add_u32 v17, s50, v17")
    a("s_lshr_b32 s50, s21, 1")
    a("s_lshl_b32 s50, s50, 1")
    a("s_add_u32 s50, s50, s22")
    a("s_lshl_b32 s51, s50, 1")
    a("s_add_u32 s51, s51, 7")
    a("s_sub_u32 s51, s51, s14")
    a("s_lshl_b32 s51, s51, 9")
    a("v_lshlrev_b32 v9, 4, v17")
    a("v_lshrrev_b32 v18, 1, v3")
    a("v_lshl_add_u32 v9, v18, 8, v9")
    a("v_and_b32 v18, 1, v3")
    a("v_lshl_add_u32 v9, v18, 3, v9")
    a("v_add_u32 v9, s51, v9")
    a("s_lshl_b32 s51, s50, 8")
    a("s_add_u32 s51, s51, 16384")
    a("v_lshl_add_u32 v17, v3, 4, v17")
    a("v_lshlrev_b32 v18, 2, v17")
    a("v_add_u32 v18, s51, v18")
    a("v_cndmask_b32 v9, v9, v18")
    a("v_bfe_u32 v13, v1, 1, 1")
    a("v_lshlrev_b32 v13, 7, v13")
    a("v_and_b32 v16, 1, v1")
    a("v_lshl_add_u32 v13, v16, 3, v13")
    a("v_bfe_u32 v16, v1, 2, 2")
    a("v_lshl_add_u32 v13, v16, 5, v13")
    a("v_lshrrev_b32 v16, 5, v1")
    a("v_lshl_add_u32 v13, v16, 4, v13")
    a("v_bfe_u32 v16, v1, 4, 1")
    a("v_lshl_add_u32 v13, v16, 8, v13")
    a("s_mul_i32 s50, s22, 7168")
    a("s_lshl_b32 s51, s21, 9")
    a("s_add_u32 s50, s50, s51")
    a("v_add_u32 v13, s50, v13")
    a("v_min_u32 v10, %d, v1", max(nv - 1, 0))
    a("v_lshlrev_b32 v10, 7, v10")
    a("v_add_u32 v16, 2048, v8")
    a("v_cndmask_b32 v10, v10, v16")
    a.label("CH_c5")
    a("s_mul_i32 s50, s61, 7168")
    a("s_sub_u32 s50, 3584, s50")
    a("v_add_u32 v3, s50, v6")
    a("s_lshl_b32 s50, s20, 7")
    a("s_add_u32 s50, s50, %d", 192 * 1024)
    a("v_mov_b32 v4, s50")
    a("s_cmp_lg_u32 s23, 0")
    a("s_cbranch_scc1 CH_hs")
    NL = max(128 - npf, 1); NHP = (7 * NL + 319) // 320
    a("s_and_b32 s50, s20, 1")
    a("s_lshl_b32 s50, s50, 2")
    a("s_add_u32 s50, s50, s60")
    a("s_min_u32 s50, s50, 6")
    a("s_lshl_b32 s50, s50, 10")
    a("v_lshrrev_b32 v4, 5, v1")
    a("v_lshlrev_b32 v4, 9, v4")
    a("v_bfe_u32 v16, v1, 4, 1")
    a("v_lshl_add_u32 v4, v16, 7, v4")
    a("v_and_b32 v16, 7, v1")
    a("v_lshl_add_u32 v4, v16, 4, v4")
    a("v_bfe_u32 v16, v1, 3, 1")
    a("v_lshl_add_u32 v4, v16, 3, v4")
    a("v_add_u32 v4, s50, v4")
    a("v_add_u32 v13, s50, v2")
    a("s_sub_u32 s50, s20, 28")
    a("s_lshl_b32 s50, s50, 7")
    a("s_add_u32 s50, s50, %d", 192 * 1024)
    a("v_mov_b32 v11, s50")
    a("s_cmp_lg_u32 s14, 7")
    a("s_cbranch_scc1 CH_h7")
    a("v_min_u32 v10, 55, v1")
    a("v_lshlrev_b32 v10, 7, v10")
    a.label("CH_h7")
    for i in range(NHP):
        a("s_min_u32 s50, s14, 4")
        a("s_add_u32 s50, s50, %d", 5 * i)
        a("s_lshl_b32 s50, s50, 6")
        a("v_add_u32 v16, s50, v1")
        a("v_min_u32 v16, %d, v16", 7 * NL - 1)
        a("v_cvt_f32_u32 v17, v16")
        a("v_add_f32 v17, 0.5, v17")
        a("v_mul_f32 v17, %s, v17", f32(1.0 / NL))
        a("v_cvt_u32_f32 v17, v17")
        a("v_mul_u32_u24 v18, %d, v17", NL)
        a("v_sub_u32 v16, v16, v18")
        a("v_add_u32 v16, %d, v16", 128 - NL)
        a("v_lshlrev_b32 v16, 7, v16")
        a("v_lshl_add_u32 v%d, v17, 14, v16", BW + i)
    a.label("CH_hs")
    XR = EX; UR = EX; GX = EX + 16; GM = EX + 24
    def xload():
        for k in range(7):
            a("global_load_dwordx4 %s, v2, s[42:43] offset:%d sc1", vr(XR + 4 * k, 4), k * 1024 - 4096)
    a("s_mul_i32 s50, s14, %d", BWSZ)
    a("s_add_u32 s50, s50, %d", L_BW)
    a("v_add_u32 v15, s50, v2")
    a("v_min_u32 v16, 55, v1")
    a("v_lshlrev_b32 v16, 4, v16")
    a("v_and_b32 v30, 7, v1")
    a("v_lshlrev_b32 v30, 2, v30")
    a("v_add_u32 v30, %d, v30", L_FL + 64 + 8 * 32)
    a("s_cmp_ge_u32 s14, 3")
    a("s_cselect_b32 s50, 32, 0")
    a("v_subrev_u32 v31, s50, v30")
    X = "CI"
    def skip(cond, l):
        a({"noA": "s_cmp_eq_u32 s14, 7", "noB": "s_cmp_eq_u32 s23, 0"}[cond])
        a("s_cbranch_scc1 %s%s", X, l)
    def row(v):
        l = a.newlabel("CR")
        a.label(l)
        a("ds_read_b32 v28, v%d", v)
        a("s_sub_u32 s25, s25, 1")
        a("s_cbranch_scc1 %s", abort)
        a("s_waitcnt lgkmcnt(0)")
        a("v_cmp_eq_u32 vcc, 0, v28")
        a("s_cbranch_vccnz %s", l)
    TS(1)
    skip("noA", "c1")
    row(31)
    a("v_readlane_b32 s97, v28, 7")
    a("s_lshr_b32 s97, s97, 1")
    TS(2)
    for c in range(2):
        a.label(X + "c%d" % c)
        skip("noB", "h")
        a("s_waitcnt vmcnt(16)")
        for n in range(6): interleave(a, breg(n))
        TS(3)
        for i, n in enumerate(hi):
            a("s_waitcnt vmcnt(%d)", 14 - 2 * i)
            b = breg(n)
            if c:
                for d in range(8): a("v_mov_b32 v%d, v%d", AW + 8 * (n - 6) + d, b + (d >> 1) + 4 * (d & 1))
            else:
                interleave(a, b)
                for hf in range(2):
                    a("ds_write_b128 v15, %s offset:%d", vr(b + 4 * hf, 4), (n - 6) * 2048 + hf * 1024)
        if c == 0: a("s_branch %sh", X)
    a.label(X + "h")
    TS(4)
    a("s_cmp_lt_u32 s14, 3")
    a("s_cbranch_scc1 CI2")
    a("s_waitcnt lgkmcnt(0)")
    a("s_cmp_lt_u32 s14, 6")
    a("s_cbranch_scc1 CIx")
    xload()
    a.label("CIx")
    a("s_cmp_lg_u32 s60, 3")
    a("s_cbranch_scc1 CIu")
    a("s_lshr_b32 s50, s14, 2")
    a("s_lshl_b32 s50, s50, 12")
    a("v_add_u32 v17, s50, v16")
    a.label("CH_t0")
    for k in range(4): a("global_load_dwordx4 %s, v17, s[52:53] offset:%d sc1", vr(32 + 4 * k, 4), 1024 * k)
    a("s_sub_u32 s25, s25, 1")
    a("s_cbranch_scc1 %s", abort)
    a("s_waitcnt vmcnt(0)")
    allnon(a, list(range(32, 48)))
    a("v_cmp_ne_u32 vcc, 0, v32")
    a("s_cbranch_vccnz CH_t0")
    a.label("CIu")
    row(30)
    a("s_cmp_lg_u32 s14, 7")
    a("s_cbranch_scc1 CIm")
    a("s_mul_i32 s50, s20, 5120")
    add64(a, 50, 26, off_sgpr=50)
    a("v_min_u32 v19, 39, v1")
    a("v_lshlrev_b32 v19, 7, v19")
    a("global_load_dword v29, v19, s[50:51] sc1")
    if ctouch:
        a("s_getpc_b64 s[50:51]")
        a("s_and_b32 s64, s20, 3")
        a("s_lshl_b32 s64, s64, 13")
        a("v_lshlrev_b32 v19, 7, v1")
        a("v_add_u32 v19, s64, v19")
        a("global_load_dword v29, v19, s[50:51]")
    a("s_branch CI2")
    a.label("CIm")
    a("s_waitcnt vmcnt(0)")
    def m0cvt(r):
        for d in range(4):
            a("v_lshlrev_b32 v18, 16, v%d", r + d)
            a("v_and_b32 v%d, 0xffff0000, v%d", r + d, r + d)
            a("v_cvt_pk_f16_f32 v%d, v18, v%d", r + d, r + d)
    m0cvt(20)
    a("ds_write_b128 v14, v[20:23]")
    a("s_cmp_eq_u32 s14, 3")
    a("s_cbranch_scc1 CI2")
    m0cvt(24)
    a("v_subrev_u32 v18, 4096, v14")
    a("ds_write_b128 v18, v[24:27]")
    a.label("CI2")
    a("v_mov_b32 v0, 0")
    a("s_waitcnt vmcnt(0) lgkmcnt(0)")
    if prof == 4:
        a("s_memrealtime s[94:95]")
        for w, r in ((4, 90), (2, 92), (6, 78)):
            a("s_cmp_eq_u32 s14, %d", w)
            a("s_cselect_b32 s98, s%d, s98", r)
    if prof == 4:
        TS(5)
        a("s_waitcnt lgkmcnt(0)")
        for k in range(6): a("v_writelane_b32 v24, s%d, %d", 64 + 2 * k, k + 1)
        a("v_writelane_b32 v24, s92, 0")
        a("v_writelane_b32 v24, s94, 7")
        a("v_writelane_b32 v24, s76, 8")
        a("v_writelane_b32 v24, s90, 9")
        a("s_lshl_b32 s50, s20, 3")
        a("s_add_u32 s50, s50, s14")
        a("s_lshl_b32 s50, s50, 8")
        a("s_add_u32 s50, s50, 0x%x", POIS_END + 0x300000)
        a("v_lshlrev_b32 v25, 2, v1")
        a("v_add_u32 v25, s50, v25")
        a("global_store_dword v25, v24, s[4:5]")
    a("v_mov_b32 v%d, v16", STG + 8)
    for i in range(8): a("v_mov_b32 v%d, s19", STG + i)
    def slotptr(d, base, delta, stride):
        a("s_add_u32 s50, s24, %d", delta)
        a("s_and_b32 s50, s50, 3")
        a("s_mul_i32 s50, s50, %d", stride)
        add64(a, d, base, off_sgpr=50)
    def adv(r, n):
        if (xp & 1) and r in (38, 42, 44, 54, 56): return
        a("s_add_u32 s%d, s%d, %d", r, r, n); a("s_addc_u32 s%d, s%d, 0", r + 1, r + 1)
    def ptrs(w, first=False):
        if w != 4: slotptr(34, 28, 0, SR_STRIDE)
        if w >= 5: slotptr(36, 28, 3, SR_STRIDE)
        slotptr(30, 26, 1, MEMR_STRIDE)
        if w == 6: slotptr(32, 26, 3, MEMR_STRIDE)
        if w >= 6: adv(42, 28 * 1024)
        if w >= 4: adv(54, 28 * 16384)
        if first: return
        if w < 4: adv(38, 28 * 16384); adv(48, 8192)
        if w == 7: adv(40, 28 * 4096); adv(44, 28 * 1024)
        if w <= 4: adv(56, 28 * 16384)
    G1 = (GX, GX + 4, GM, GM + 1); G2 = (MFR + 24, STG + 12, EX + 26, EX + 27)
    def gather(G=G1):
        a("global_load_dwordx4 %s, v10, s[34:35] sc1", vr(G[0], 4))
        a("global_load_dwordx4 %s, v10, s[34:35] offset:1024 sc1", vr(G[1], 4))
        a("global_load_dword v%d, v11, s[34:35] sc1", G[2])
        a("global_load_dword v%d, v11, s[34:35] offset:256 sc1", G[3])
    def zero(r, n=4):
        for i in range(n): a("v_mov_b32 v%d, 0", r + i)
    def memx():
        a("ds_read2_b64 %s, v4 offset0:0 offset1:32", vr(STG, 4))
        a("s_waitcnt lgkmcnt(0)")
        a("global_store_dwordx4 v13, %s, s[48:49] sc1", vr(STG, 4))
    def tbx_read(d):
        for k in range(4):
            a("ds_read_b128 %s, v2 offset:%d", vr(d + 4 * k, 4), L_TB2 + k * 1024)
    def tbx_store(d):
        for k in range(4):
            a("global_store_dwordx4 v2, %s, s[40:41] offset:%d sc1", vr(d + 4 * k, 4), (k >> 1) * 4096 + (k & 1) * 1024 - 2048)

    class TB:
        def __init__(self, w, q):
            self.w = w; self.q = q
            self.loc = {n: BW + 8 * n for n in range(6)}
            if w == 7:
                for n in range(6, 14): self.loc[n] = AW + 8 * (n - 6)
                self.pend = []; self.order = list(range(14))
            else:
                self.pend = list(range(6, 14))
                self.order = [6, 0, 7, 1, 8, 2, 9, 3, 10, 4, 11, 5, 12, 13]
            self.lds = set(self.pend); self.pos = 0
        def stage(self, slot):
            if not self.pend: return
            n = self.pend.pop(0); self.loc[n] = slot
            for hf in range(2):
                self.q.issue(("B", n), "ds_read_b128 %s, v15 offset:%d", vr(slot + 4 * hf, 4), (n - 6) * 2048 + hf * 1024)
        def late(self):
            self.order = [0, 1, 2, 6, 3, 7, 4, 8, 5, 9, 10, 11, 12, 13]
        def run(self, upto, hooks={}):
            while self.pos < upto:
                n = self.order[self.pos]
                self.q.wait(("M", n >> 1))
                if n in self.lds: self.q.wait(("B", n))
                a(SM, vr(ACC1 if n & 1 else ACC0, 4), vr(MFR + 4 * (n >> 1), 4), vr(self.loc[n], 8))
                if n in self.lds: self.stage(self.loc[n])
                if self.pos in hooks: hooks[self.pos]()
                self.pos += 1
    TBO = MFR; TPR = MFR + 8; PX = MFR + 12; PM = MFR + 16; T0 = MFR + 18; T1 = MFR + 19; RZ = MFR + 20
    ONE = STG; ZA = STG + 8
    def tb_cvt(d):
        for b, acc in enumerate((ACC0, ACC1)):
            a("v_cvt_pk_f16_f32 v%d, v%d, v%d", d + 2 * b, acc, acc + 1)
            a("v_cvt_pk_f16_f32 v%d, v%d, v%d", d + 2 * b + 1, acc + 2, acc + 3)
    def tb_give(d=TBO):
        tb_cvt(d)
        a("ds_write_b128 v12, %s", vr(d, 4))
        a("s_waitcnt lgkmcnt(0)")
        P("TB done")
    def tb_take1():
        a("s_barrier")
        a("ds_read_b128 %s, v12", vr(TPR, 4))
    def tb_take2():
        a("s_waitcnt lgkmcnt(0)")
        for d in range(4): a("v_pk_add_f16 v%d, v%d, v%d", TBO + d, TBO + d, TPR + d)
    def tb_take3():
        for b in range(2): a("ds_write_b64 v8, %s offset:%d", vr(TBO + 2 * b, 2), b * 2048)
    def mread(q, n):
        q.issue(("O", n) if n < 7 else ("M", n - 7), "ds_read_b128 %s, v%d offset:%d", vr(MFR + 4 * (n % 7), 4), 3 if n < 7 else 6, (n % 7) * 512)

    FLG = 192 * 1024
    class _N:
        def __call__(self, *x): pass
    def wave_loop(w, hp):
        pv = w < 4; N = MODE["PX"] + ("H%d" if hp else "C%d") % w
        ST = MODE["ST"]
        uchk = merged and hp and w == 4
        def ufl_ld(delta):
            a("s_add_u32 s50, s24, %d", delta)
            a("s_min_u32 s50, s50, 63")
            a("s_lshl_b32 s50, s50, 11")
            add64(a, 50, 52, off_sgpr=50)
            for k in range(2): a("global_load_dwordx4 %s, v%d, s[50:51] offset:%d sc1", vr(STG + 4 * k, 4), STG + 8, 1024 * k)
        TA = GX if pv else ACC0
        W7 = AW + 64
        r = {7: W7}.get(w, EX); r2 = r + 8; t = MFR
        pol = w != 6
        tail = []
        def poll(r):
            a("global_load_dwordx4 %s, v14, s[58:59] offset:-3584 sc1", vr(r, 4))
            a("global_load_dwordx4 %s, v14, s[58:59] offset:3584 sc1", vr(r + 4, 4))
        def newtb(q0, q):
            if hp: return None
            tb = TB(w, q0)
            if w < 6: tb.stage(STG); tb.stage(STG + 8)
            tb.q = q
            return tb
        def pre():
            newtb(LQ(a), None)
            if w != 7: zero(TA)
            if (pv or w == 7) and not hp: zero(ACC0); zero(ACC1)
            a("s_setprio 1")
        def mchk(x, lab):
            for d in range(4): a("v_pk_add_f16 v%d, v%d, v%d", t + d, x + d, x + 4 + d)
            a("ds_write_b128 v14, %s", vr(t, 4))
            a("v_pk_maximum3_f16 v%d, v%d, v%d, v%d", t + 4, t, t + 1, t + 2)
            a("v_pk_maximum3_f16 v%d, v%d, v%d, v%d", t + 4, t + 4, t + 3, t + 3)
            a("v_cmp_u_f16 vcc, v%d, v%d", t + 4, t + 4)
            a("s_cbranch_vccnz %s", lab)
        a.label(N + "_entry")
        ptrs(w, True)
        pre()
        a("s_branch %s_top", N)
        a.raw(".p2align 6")
        a.label(N + "_loop")
        if pol:
            a("s_waitcnt vmcnt(%d)", 2 if p2 else 0)
            mchk(r, N + "_mre")
            def mre():
                a.label(N + "_mre")
                poll(r)
                P("M re")
                if prof: a("s_add_u32 s62, s62, 1")
                a("s_sub_u32 s25, s25, 1")
                a("s_cbranch_scc1 %s", abort)
                if p2:
                    a("s_waitcnt vmcnt(2) lgkmcnt(0)")
                    mchk(r2, N + "_mre2")
                    a("s_branch %s_got", N)
                    a.label(N + "_mre2")
                    poll(r2)
                a("s_waitcnt lgkmcnt(0)")
                a("s_branch %s_loop", N)
            tail.append(mre)
        else:
            a("s_waitcnt vmcnt(0)")
        a.label(N + "_got")
        P("mem got")
        a.label(N + "_top")
        a("s_cmp_eq_u32 s24, 63")
        a("s_waitcnt lgkmcnt(0)")
        a("s_barrier")
        P("top")
        a("s_cbranch_scc1 %s_fin", N)
        q = LQ(a)
        tb = newtb(LQ(_N()), q)
        if w != 7:
            dp = dep if pv else dep2
            for n in range(dp): mread(q, n)
            for n in range(14):
                if n == 0: P("a pre")
                q.wait(("O", n) if n < 7 else ("M", n - 7))
                a(SM, vr(TA, 4), vr(MFR + 4 * (n % 7), 4), vr(AW + n * 8, 8))
                if n in (0, 2, 4, 6, 8, 10, 13): P("a%d" % n)
                if n + dp < 14: mread(q, n + dp)
            if pv and not hp:
                for k in range(2): a("global_load_dwordx4 %s, v13, s[38:39] offset:%d sc1", vr(UR + 4 * k, 4), k * 1024)
            a("v_cvt_pk_f16_f32 v%d, v%d, v%d", TA, TA, TA + 2)
            a("v_cvt_pk_f16_f32 v%d, v%d, v%d", TA + 1, TA + 1, TA + 3)
            q.issue("T", "ds_write2_b32 v7, v%d, v%d offset0:0 offset1:4", TA, TA + 1)
            if pv:
                a("s_setprio 0")
                if hp:
                    if not (xp & 2): memx()
                else:
                    for k in range(2, 4): a("global_load_dwordx4 %s, v13, s[38:39] offset:%d sc1", vr(UR + 4 * k, 4), k * 1024)
                    tb.run(nb2)
            if uchk:
                a.label(N + "_uc")
                allnon(a, [STG + i for i in range(8)])
                a("v_cmp_ne_u32 vcc, 0, v%d", STG)
                a("s_cbranch_vccnz %s_ure", N)
                def ure():
                    a.label(N + "_ure")
                    ufl_ld(3)
                    a("s_sub_u32 s25, s25, 1")
                    a("s_cbranch_scc1 %s", abort)
                    a("s_waitcnt vmcnt(0)")
                    a("s_branch %s_uc", N)
                tail.append(ure)
            q.wait("T")
            if w == 5: a("s_waitcnt vmcnt(0)")
        elif hp:
            a("global_load_dword v%d, v10, s[44:45] sc1", BW + 28)
        else:
            a("s_setprio 0")
            if nv > 0: a("global_load_dword v4, v10, s[54:55] sc1")
            tbx_read(STG)
            a("s_waitcnt lgkmcnt(0)")
            if not (xp & 2): tbx_store(STG)
            for n in range(7, 14): mread(q, n)
            tb.run(nb7)
        P("TA done")
        a("s_barrier")
        P("bar2")
        def pubS():
            a("s_barrier")
            P("pubS")
        def gath():
            P("G iss")
            gather()
        if w >= 5:
            a("s_setprio %d", p7)
            ring = {5: [EX + 4 * k for k in range(7)], 6: [STG, STG + 4, STG + 8, STG + 12, ACC1], 7: [W7 + 16 + 4 * k for k in range(7)]}[w]
            SA = W7 + 44 if w == 7 else ACC0
            D = len(ring)
            def trd(k):
                if w == 5: q.issue(("S", k), "ds_read2_b64 %s, v%d offset0:%d offset1:%d", vr(ring[k], 4), 8 if k < 4 else 10, (k & 3) * 64, (k & 3) * 64 + 16)
                else: q.issue(("S", k), "ds_read_b128 %s, v8 offset:%d", vr(ring[k % D], 4), k * 512)
            for k in range(min(D, 7)): trd(k)
            for k in range(7):
                q.wait(("S", k))
                a("v_mfma_f32_16x16x32_f16 %s, %s, %s, %s", vr(SA, 4), vr((MFR if w == 5 else XR) + 4 * k, 4), vr(ring[k % D], 4), vr(SA, 4) if k else "0")
                if k + D < 7: trd(k + D)
            o = ring[2]
            a("s_mov_b64 exec, s[46:47]")
            a("v_mov_b32 v%d, -1", o + 2)
            if w == 5:
                a("v_cvt_pk_f16_f32 v%d, v%d, v%d", o, ACC0, ACC0 + 1)
                a("global_store_dword v9, v%d, s[34:35] %s", o, ST)
                a("global_store_dword v9, v%d, s[36:37] %s", o + 2, ST)
            else:
                a("v_mov_b32 v%d, -1", o + 3)
                a("v_cvt_pk_f16_f32 v%d, v%d, v%d", o, SA, SA + 1)
                a("v_cvt_pk_f16_f32 v%d, v%d, v%d", o + 1, SA + 2, SA + 3)
                a("global_store_dwordx2 v9, %s, s[34:35] %s", vr(o, 2), ST)
                a("global_store_dwordx2 v9, %s, s[36:37] %s", vr(o + 2, 2), ST)
            a("s_mov_b64 exec, -1")
            a("s_setprio 0")
            P("S pub")
            pubS()
            if not hp:
                if w == 6: tb.stage(STG)
                if w < 7: zero(ACC0); zero(ACC1)
                if w == 6:
                    tb.late()
                    tb.stage(STG + 8)
                tb.run(14)
                tb_give()
                a("s_barrier")
                if w >= 6: xload()
                if w != 6: spf(w)
        elif hp:
            if w == 4: a("s_setprio 0")
            pubS()
        elif pv: tb.run(nb3); pubS(); tb.run(14, {gpos: gath})
        else:
            a("s_setprio 0")
            zero(ACC0); zero(ACC1)
            tb.run(14, {bpos: pubS})
            tb_give()
            spf(4)
            a("s_barrier")
        if hp:
            if w <= 4:
                for i in range(NHP): a("global_load_dword v%d, v%d, s[56:57] sc1", EX + i, BW + i)
                if uchk: ufl_ld(4)
            elif w >= 6: xload()
            elif flag:
                for i in range(flag - 1): a("global_load_dword v%d, v11, s[26:27] sc1", EX + i)
                a.label(N + "_fl")
                a("s_sub_u32 s25, s25, 1")
                a("s_cbranch_scc1 %s", abort)
                for i in range(flag):
                    a("global_load_dword v%d, v11, s[26:27] sc1", EX + (i + flag - 1) % flag)
                    a("s_waitcnt vmcnt(%d)", flag - 1)
                    a("v_cmp_gt_i32 vcc, s24, v%d", EX + i)
                    if i < flag - 1: a("s_cbranch_vccz %s_fd", N)
                    else: a("s_cbranch_vccnz %s_fl", N)
                a.label(N + "_fd")
            if flag: a("s_barrier")
        if pv and not hp:
            for i in range(8): a("v_mov_b32 v%d, 0x3c003c00", ONE + i)
            zero(ZA)
            if gpos == 14: gath()
            tb_cvt(TBO)
            zero(TBO + 4, 2); zero(PM + 1, 1)
            zero(ACC0); zero(ACC1)
            if w == 3: a("v_mov_b32 v%d, s24", RZ)
            if gpos == 15: gath()
            if g2: gather(G2)
            P("II")
            def gchk(G, lab):
                for d in range(4): a("v_pk_add_f16 v%d, v%d, v%d", PX + d, G[0] + d, G[1] + d)
                a("v_pk_add_f16 v%d, v%d, v%d", PM, G[2], G[3])
                a("v_pk_maximum3_f16 v%d, v%d, v%d, v%d", T0, PX, PX + 1, PX + 2)
                a("v_pk_maximum3_f16 v%d, v%d, v%d, v%d", T0, T0, PX + 3, PM)
                a("v_pk_maximum3_f16 v%d, v%d, v%d, v%d op_sel:[0,1,0] op_sel_hi:[1,0,1]", T0, T0, T0, T0)
                a("v_mov_b32 v%d, v%d", T1, T0)
                a("v_cmp_u_f16 vcc, v%d, v%d", T0, T0)
                a("v_permlane32_swap_b32 v%d, v%d", T0, T1)
                a("v_pk_max_f16 v%d, v%d, v%d", T0, T0, T1)
                a("v_mov_b32 v%d, v%d", T1, T0)
                a("s_cbranch_vccnz %s", lab)
            a.label(N + "_sp")
            a("s_waitcnt vmcnt(%d)", 4 if g2 else 0)
            gchk(G1, N + "_gre")
            def gre():
                a.label(N + "_gre")
                P("G re")
                if prof: a("s_add_u32 s63, s63, 1")
                gather()
                a("s_sub_u32 s25, s25, 1")
                a("s_cbranch_scc1 %s", abort)
                if g2:
                    a("s_waitcnt vmcnt(4)")
                    gchk(G2, N + "_gre2")
                    a("s_branch %s_sok", N)
                    a.label(N + "_gre2")
                    gather(G2)
                a("s_branch %s_sp", N)
            tail.append(gre)
            a.label(N + "_sok")
            P("S got")
            a("v_permlane16_swap_b32 v%d, v%d", T0, T1)
            a("v_pk_max_f16 v%d, v%d, v%d", T0, T0, T1)
            for x in (PM, PX, PX + 1, PX + 2, PX + 3):
                a("v_pk_add_f16 v%d, v%d, v%d neg_lo:[0,1] neg_hi:[0,1]", x, x, T0)
            nex = [0]
            def ex(x, hi):
                a("v_exp_f16_sdwa v%d, v%d dst_sel:WORD_%d dst_unused:UNUSED_PRESERVE src0_sel:WORD_%d", x, x, hi, hi)
                if w == 3 and flag and nex[0] == fpos: a("global_store_dword v4, v%d, s[26:27] %s", RZ, ST)
                nex[0] += 1
            S2 = "v_smfmac_f32_16x16x32_f16 %s, %s, %s, v5"
            ex(PM, 0); ex(PX, 0)
            tb_take1()
            P("bar3")
            ex(PM, 1); ex(PX + 1, 0); ex(PX, 1)
            a(S2, vr(ZA, 4), vr(PM, 2), vr(ONE, 4))
            ex(PX + 2, 0); ex(PX + 1, 1); ex(PX + 3, 0); ex(PX + 2, 1); ex(PX + 3, 1)
            a(SM, vr(ZA, 4), vr(PX, 4), vr(ONE, 8))
            a(SM, vr(ACC0, 4), vr(PX, 4), vr(UR, 8))
            a(SM, vr(ACC1, 4), vr(PX, 4), vr(UR + 8, 8))
            tb_take2()
            a(S2, vr(ACC0, 4), vr(PM, 2), vr(TBO, 4))
            a(S2, vr(ACC1, 4), vr(PM, 2), vr(TBO + 2, 4))
            for i in range(4): a("v_rcp_f32 v%d, v%d", RZ + i, ZA + i)
            for b, acc in enumerate((ACC0, ACC1)):
                a("v_pk_mul_f32 %s, %s, %s", vr(acc, 2), vr(acc, 2), vr(RZ, 2))
                a("v_pk_fma_f32 %s, %s, %s, %s", vr(acc, 2), vr(acc + 2, 2), vr(RZ + 2, 2), vr(acc, 2))
                a("ds_write2st64_b32 v9, v%d, v%d offset0:%d offset1:%d", acc, acc + 1, b, 2 + b)
            tb_take3()
            a("s_waitcnt lgkmcnt(2)")
            P("red wr")
        if not hp:
            a("s_barrier")
            if w == 6:
                R = MFR
                for k in range(4): a("ds_read_b128 %s, v2 offset:%d", vr(R + 4 * k, 4), L_RED + k * 1024)
                a("v_mov_b32 v%d, -1", R + 16)
                a("v_mov_b32 v%d, -1", R + 17)
                a("s_waitcnt lgkmcnt(2)")
                for d in (0, 2): a("v_pk_add_f32 %s, %s, %s", vr(R + d, 2), vr(R + d, 2), vr(R + 4 + d, 2))
                a("s_waitcnt lgkmcnt(1)")
                for d in (0, 2): a("v_pk_add_f32 %s, %s, %s", vr(R + d, 2), vr(R + d, 2), vr(R + 8 + d, 2))
                a("s_waitcnt lgkmcnt(0)")
                for d in (0, 2): a("v_pk_add_f32 %s, %s, %s", vr(R + d, 2), vr(R + d, 2), vr(R + 12 + d, 2))
                a("v_cvt_pk_f16_f32 v%d, v%d, v%d", R, R, R + 1)
                a("v_cvt_pk_f16_f32 v%d, v%d, v%d", R + 1, R + 2, R + 3)
                a("global_store_dwordx2 v13, %s, s[30:31] %s", vr(R, 2), ST)
                a("global_store_dwordx2 v13, %s, s[32:33] %s", vr(R + 16, 2), ST)
                P("mem pub")
                spf(6)
            a("s_barrier")
        a("s_add_u32 s58, s30, 3584"); a("s_addc_u32 s59, s31, 0")
        pd = 0 if hp else pdel
        def p1(): poll(r); P("M iss")
        if pol and pd == 0: p1()
        a("s_add_u32 s24, s24, 1")
        ptrs(w)
        if pol and pd == 1: p1()
        if pv and not hp: a("s_waitcnt vmcnt(%d)", 0 if pd == 2 else 2)
        pre()
        if pol and pd == 2: p1()
        if P.on:
            a("s_waitcnt lgkmcnt(0)")
            P.flush()
        if pol and p2: poll(r2)
        a("s_branch %s_loop", N)
        for f in tail: f()
        a.label(N + "_fin")
        a("s_setprio 0")
        a("s_waitcnt vmcnt(0)")
        if hp:
            if pv: memx()
            a("s_branch CH_fin")
            return
        q = LQ(a)
        tb = newtb(LQ(_N()), q)
        for n in range(7, 14): mread(q, n)
        if w == 7: tbx_read(W7)
        if w == 6: tb.stage(STG); tb.stage(STG + 8)
        if w in (4, 5, 6): zero(ACC1)
        q.all()
        if w == 7: tbx_store(W7); adv(40, 28 * 4096)
        tb.run(14)
        if pv:
            tb_cvt(TBO); tb_take1(); tb_take2(); tb_take3()
            a("s_waitcnt lgkmcnt(0)")
        else:
            tb_give()
            a("s_barrier")
        a("s_barrier")
        if w == 7:
            tbx_read(MFR)
            a("s_waitcnt lgkmcnt(0)")
            tbx_store(MFR)
        a("s_branch CH_fin")
    if merged:
        a("s_cmp_lg_u32 s97, 0")
        a("s_cbranch_scc1 CH_mixed")
    for px, st in ((("", ""), ("X", "sc1")) if merged else (("", ""),)):
        MODE["PX"] = px; MODE["ST"] = st
        if px: a.label("CH_mixed")
        for hp in (0, 1):
            H = px + ("H" if hp else "C")
            if hp: a.label(px + "CH_hdisp")
            else:
                a("s_cmp_eq_u32 s23, 0")
                a("s_cbranch_scc1 %sCH_hdisp", px)
            for w in (3, 4, 5, 6, 7):
                a("s_cmp_eq_u32 s14, %d", w)
                a("s_cbranch_scc1 %s%d_entry", H, w)
            for w in (0, 3, 4, 5, 6, 7): wave_loop(w, hp)
    a.label("CH_fin")
    a("s_waitcnt vmcnt(0)")
    if dbgout:
        a("s_or_b32 s50, s20, s14")
        a("s_cmp_lg_u32 s50, 1")
        a("s_cbranch_scc1 CH_nodbg")
        a("s_cmp_lg_u32 s20, 0")
        a("s_cbranch_scc1 CH_nodbg")
        a("s_mov_b32 s52, s100")
        a("v_readlane_b32 s50, v0, 1")
        a("v_readlane_b32 s51, v0, 63")
        a("s_sub_u32 s52, s100, s52")
        a("s_sub_u32 s50, s50, s100")
        a("s_sub_u32 s51, s51, s100")
        a("s_sub_u32 s53, s64, s98")
        a("v_mov_b32 v16, s52"); a("v_mov_b32 v17, s50"); a("v_mov_b32 v18, s51"); a("v_mov_b32 v19, s53")
        a("s_sub_u32 s53, s66, s100")
        a("v_mov_b32 v20, s53")
        a("v_mov_b32 v21, 0")
        a("global_store_dwordx4 v21, v[16:19], s[10:11]")
        a("global_store_dword v21, v20, s[10:11] offset:16")
        a.label("CH_nodbg")
    if prof:
        a("s_lshl_b32 s50, s20, 3")
        a("s_add_u32 s50, s50, s14")
        a("s_lshl_b32 s50, s50, 8")
        a("s_add_u32 s50, s50, 0x%x", POIS_END)
        add64(a, 50, 4, off_sgpr=50)
        if prof == 4:
            a("s_bitcmp1_b32 s14, 0")
            a("s_cselect_b32 s98, s100, s98")
            a("s_cmp_eq_u32 s14, 3")
            a("s_cselect_b32 s98, s94, s98")
            a("s_memrealtime s[94:95]")
            a("s_waitcnt lgkmcnt(0)")
            a("s_cmp_eq_u32 s14, 5")
            a("s_cselect_b32 s98, s66, s98")
            a("s_cmp_eq_u32 s14, 7")
            a("s_cselect_b32 s98, s94, s98")
            a("v_writelane_b32 v%d, s98, 0", VP)
        else:
            a("v_writelane_b32 v%d, s62, 22", VP)
            a("v_writelane_b32 v%d, s63, 23", VP)
        a("v_lshlrev_b32 v16, 2, v1")
        a("global_store_dword v16, v%d, s[50:51]", VP)
    return P.names
```

```python
from common import *
import chain, ut, g1, g2, ft, pt
from pt import L_TK, MAIN_LDS
FSPLIT = 60
N_G1, N_G2, N_F = 224, 224, 4 * FSPLIT + 8 * (64 - FSPLIT)
KN = "parallel_sum__memory_aug_recurrent_mem_tr__dense_activation_relu__prompt_kernel"
def only(a, w, l):
    a("s_cmp_lg_u32 s14, %d", w)
    a("s_cbranch_scc1 %s", l)
def emit_main(a, prof=0, force_mixed=False, gate=2, g0=34, npre=0, nlook=3, tch=2, **kw):
    def T(k):
        if prof and k >= 20:
            l = a.newlabel("ST")
            if k >= 23: a("s_cmp_lg_u32 s26, 0"); a("s_cbranch_scc1 %s", l)
            a("s_memrealtime s[60:61]"); a("s_waitcnt lgkmcnt(0)"); a("v_writelane_b32 v5, s60, %d", k)
            a.label(l)
        elif prof: a("s_memrealtime s[%d:%d]", 76 + 2 * k, 77 + 2 * k)
    a.raw(".p2align 8")
    a.label(KN)
    a("s_cmp_ge_u32 s2, 256")
    a("s_cbranch_scc1 M_end")
    a("s_load_dwordx2 s[10:11], s[0:1], 88")
    a("s_memrealtime s[18:19]")
    a("s_getreg_b32 s16, hwreg(HW_REG_XCC_ID)")
    a("s_getreg_b32 s15, hwreg(HW_REG_HW_ID)")
    a("s_and_b32 s16, s16, 7")
    pt.load_ptrs(a)
    main_prologue(a)
    if prof: a("s_memtime s[98:99]"); a("s_mov_b32 s100, s18"); a("s_mov_b32 s76, s18")
    T(20)
    a("s_or_b32 s18, s18, 0x40000000")
    a("s_and_b32 s18, s18, 0x7ffffffe")
    a("s_mov_b32 s19, 0")
    a("s_mov_b32 s17, 0")
    a("s_mov_b32 s101, 0")
    if force_mixed:
        a("s_bfe_u32 s20, s2, 0x10003")
        a("s_or_b32 s16, s16, s20")
    a("s_lshl_b32 s21, s16, 5")
    a("s_cmp_eq_u32 s14, 0")
    a("s_cbranch_scc1 M_s0")
    if tch:
        a("s_bfe_u32 s22, s15, 0x2000d")
        a("s_bfe_u32 s23, s15, 0x30008")
        a("s_lshl_b32 s22, s22, 3")
        a("s_add_u32 s22, s22, s23")
        a("v_lshrrev_b32 v6, 2, v1")
        a("v_lshlrev_b32 v6, 13, v6")
        a("v_and_b32 v7, 3, v1")
        a("v_lshl_add_u32 v6, v7, 7, v6")
        a("s_sub_u32 s23, s14, 1")
        a("s_cmp_lg_u32 s16, 0")
        a("s_cbranch_scc1 M_t1")
        a("s_and_b32 s24, s22, 1")
        a("s_lshr_b32 s25, s22, 1")
        a("s_lshl_b32 s25, s25, 9")
        a("s_cmp_eq_u32 s14, 7")
        a("s_cbranch_scc1 M_t0")
        a("s_mul_i32 s24, s24, 14")
        a("s_add_u32 s24, s24, s23")
        a("s_add_u32 s24, s24, 8")
        a("s_lshl_b32 s24, s24, 17")
        a("s_add_u32 s24, s24, s25")
        add64(a, 24, 66, off_sgpr=24)
        a("s_branch M_t9")
        a.label("M_t0")
        a("s_mul_i32 s24, s24, %d", 7 << 18)
        a("s_add_u32 s24, s24, s25")
        add64(a, 24, 64, off_sgpr=24)
        a("global_load_dword v102, v6, s[24:25]")
        a("v_add_u32 v6, 0x20000, v6")
        a("s_branch M_t9")
        a.label("M_t1")
        a("s_add_u32 s22, s22, s21")
        a("s_sub_u32 s22, s22, 32")
        a("s_lshr_b32 s26, s22, 1")
        a("s_mul_i32 s27, s26, 147")
        a("s_lshr_b32 s27, s27, 10")
        a("s_mul_i32 s28, s27, 7")
        a("s_sub_u32 s28, s26, s28")
        a("s_and_b32 s29, s22, 1")
        a("s_and_b32 s30, s23, 1")
        a("s_cmp_ge_u32 s23, 2")
        a("s_cbranch_scc1 M_t2")
        a("s_mul_i32 s24, s29, 7")
        a("s_add_u32 s24, s24, s28")
        a("s_lshl_b32 s24, s24, 1")
        a("s_add_u32 s24, s24, s30")
        a("s_lshl_b32 s24, s24, 17")
        a("s_lshl_b32 s25, s27, 9")
        a("s_add_u32 s24, s24, s25")
        add64(a, 24, 68, off_sgpr=24)
        a("s_branch M_t9")
        a.label("M_t2")
        a("s_cmp_ge_u32 s23, 4")
        a("s_cbranch_scc1 M_t3")
        a("s_lshl_b32 s24, s27, 2")
        a("s_lshl_b32 s25, s29, 1")
        a("s_add_u32 s24, s24, s25")
        a("s_add_u32 s24, s24, s30")
        a("s_mul_i32 s24, s24, %d", 64 * 896)
        a("s_lshl_b32 s25, s28, 7")
        a("s_add_u32 s24, s24, s25")
        add64(a, 24, 70, off_sgpr=24)
        a("v_mul_u32_u24 v6, 896, v1")
        a("s_branch M_t9")
        a.label("M_t3")
        a("s_cmp_ge_u32 s22, 128")
        a("s_cbranch_scc1 M_ta")
        a("s_cmp_eq_u32 s14, 7")
        a("s_cbranch_scc1 M_ta")
        a("s_lshl_b32 s24, s22, 1")
        a("s_add_u32 s24, s24, s30")
        a("s_mul_i32 s24, s24, 7168")
        add64(a, 24, 6, off_sgpr=24)
        a("v_min_u32 v6, 55, v1")
        a("v_lshlrev_b32 v6, 7, v6")
        a.label("M_t9")
        a("global_load_dword v102, v6, s[24:25]")
        a.label("M_ta")
        if tch > 1:
            only(a, 1, "M_tk")
            a("s_getpc_b64 s[24:25]")
            a("s_and_b32 s26, s22, %d", 3 if tch == 2 else 7)
            a("s_lshl_b32 s26, s26, 13")
            a("v_lshlrev_b32 v6, 7, v1")
            a("v_add_u32 v6, s26, v6")
            a("global_load_dword v102, v6, s[24:25]")
    a("s_branch M_tk")
    a.label("M_s0")
    a("v_and_b32 v6, 31, v1")
    a("v_lshlrev_b32 v6, 2, v6")
    a("v_add_u32 v6, %d, v6", L_TK)
    a("v_mov_b32 v7, 0")
    a("ds_write_b32 v6, v7")
    a.label("M_tk")
    T(21)
    only(a, 0, "M_r1")
    a("v_mov_b32 v6, s21")
    a("v_mov_b32 v7, 1")
    a("s_mov_b64 exec, 1")
    a("global_atomic_add v8, v6, v7, s[10:11] sc0 sc1")
    a("s_mov_b64 exec, -1")
    a("v_lshlrev_b32 v9, 3, v1")
    a("v_add_u32 v9, %d, v9", chain.L_FL)
    a("v_mov_b32 v10, 0")
    a("v_mov_b32 v11, 0")
    a("ds_write_b64 v9, v[10:11]")
    a("s_mov_b64 exec, 1")
    a("v_mov_b32 v6, %d", L_TK + 32)
    a("v_mov_b32 v7, %d", C_NON * 4)
    a("v_mov_b32 v10, s18")
    a("s_waitcnt vmcnt(0)")
    a("ds_write_b32 v6, v8")
    a("v_cmp_eq_u32 vcc, s19, v8")
    a("s_cbranch_vccz M_r0")
    a("global_atomic_cmpswap v7, v[10:11], s[10:11] sc1")
    a.label("M_r0")
    a("s_mov_b64 exec, -1")
    a.label("M_r1")
    a("s_waitcnt lgkmcnt(0)")
    a("s_barrier")
    a("v_mov_b32 v6, %d", L_TK + 32)
    a("ds_read_b32 v8, v6")
    a("s_waitcnt lgkmcnt(0)")
    a("v_readfirstlane_b32 s20, v8")
    a("s_cmp_lt_u32 s20, 32")
    a("s_cbranch_scc1 M_r2")
    a("s_cmp_eq_u32 s17, 0")
    a("s_cbranch_scc1 M_chk")
    a("s_branch M_acq")
    a.label("M_r2")
    a("s_cmp_eq_u32 s21, 0")
    a("s_cbranch_scc1 M_chain")
    a("s_add_u32 s20, s20, s21")
    a("s_sub_u32 s20, s20, 32")
    T(22)
    a.label("M_ab")
    def look():
        a("s_lshr_b32 s21, s20, 5")
        a("s_lshl_b32 s21, s21, 2")
        a("s_add_u32 s21, s21, %d", pt.L_UM)
        a("s_lshl_b32 s22, 1, s20")
        a("v_mov_b32 v6, s21")
        a("v_mov_b32 v7, s22")
        a("ds_or_b32 v6, v7")
        a("v_and_b32 v6, 7, v1")
        a("v_lshlrev_b32 v6, 5, v6")
        a("s_mov_b32 s22, %d", nlook)
        a.label("M_l0")
        a("global_load_dword v8, v6, s[10:11] sc1")
        a("s_waitcnt vmcnt(0)")
        a("v_cmp_gt_u32 vcc, 32, v8")
        a("s_and_b32 s21, vcc_lo, 0xff")
        a("s_cbranch_scc0 M_l1")
        a("s_sub_u32 s22, s22, 1")
        a("s_cbranch_scc0 M_l0")
        a.label("M_l1")
        a("v_mov_b32 v6, %d", L_TK + 36)
        a("v_mov_b32 v9, s21")
        a("ds_write_b32 v6, v9")
        a("s_waitcnt lgkmcnt(0)")
    def w7():
        a("s_cmp_eq_u32 s26, 0")
        a("s_cbranch_scc1 M_w7b")
        a("s_mov_b32 s44, s20")
        a("s_mov_b32 s42, %d", pt.L_WT)
        a.label("M_w7a")
        pt.wtask(a)
        a("s_add_u32 s44, s44, 224")
        a("s_cmp_lt_u32 s44, 392")
        a("s_cbranch_scc1 M_w7a")
        a("s_branch P_abend")
        a.label("M_w7b")
        a("s_cmp_ge_u32 s20, 128")
        a("s_cbranch_scc1 M_w7c")
        pt.emit_ln(a)
        T(2)
        a.label("M_w7c")
        look()
        T(3)
    a("s_mov_b32 s26, 0")
    a.label("M_ab2")
    pt.emit_p(a, T, w7)
    a("s_cmp_eq_u32 s26, 0")
    a("s_cbranch_scc1 M_ab3")
    a("s_mov_b32 s38, %d", C_P * 4)
    signal(a, 38)
    if prof:
        a("s_waitcnt lgkmcnt(0)")
        a("v_mov_b32 v8, v5")
        for k in range(7): a("v_writelane_b32 v8, s%d, %d", 76 + 2 * k, k)
        for k in range(3): a("v_writelane_b32 v8, s%d, %d", 92 + 2 * k, 7 + k)
        a("s_lshl_b32 s60, s20, 3")
        a("s_add_u32 s60, s60, s14")
        a("s_lshl_b32 s60, s60, 8")
        a("s_add_u32 s60, s60, 0x%x", POIS_END + 0x100000)
        add64(a, 60, 4, off_sgpr=60)
        a("v_lshlrev_b32 v9, 2, v1")
        a("global_store_dword v9, v8, s[60:61]")
    a("s_branch M_u")
    a.label("M_ab3")
    if prof:
        a("s_waitcnt lgkmcnt(0)")
        a("s_mov_b32 s84, s78"); a("s_mov_b32 s86, s80"); a("s_mov_b32 s88, s82")
    a("s_barrier")
    a("v_mov_b32 v6, %d", L_TK + 36)
    a("ds_read_b32 v8, v6")
    a("v_and_b32 v6, 7, v1")
    a("v_lshlrev_b32 v6, 2, v6")
    a("v_add_u32 v6, %d, v6", pt.L_UM)
    a("ds_read_b32 v9, v6")
    a("s_waitcnt lgkmcnt(0)")
    a("v_readfirstlane_b32 s16, v8")
    a("s_and_b32 s21, s16, 0xfe")
    a("s_or_b32 s21, s21, s101")
    a("s_cbranch_scc0 M_uph")
    a.label("M_cl")
    a("s_cmp_eq_u32 s101, 0")
    a("s_cbranch_scc1 M_chk")
    a("s_ff1_i32_b32 s21, s101")
    a("s_bitset0_b32 s101, s21")
    a("v_readlane_b32 s20, v0, s21")
    a("s_lshl_b32 s21, s21, 5")
    a("s_add_u32 s20, s20, s21")
    a("s_sub_u32 s20, s20, 32")
    a("s_branch M_ab")
    a.label("M_chain")
    names = chain.emit_chain(a, prof, abort="M_end", **kw)
    a("v_lshrrev_b32 v3, 4, v1")
    a("v_and_b32 v4, 15, v1")
    a("s_branch M_acq")
    a.label("M_chk")
    a("s_barrier")
    only(a, 7, "M_n1")
    pt.nonce_ld(a)
    a("s_waitcnt vmcnt(0)")
    pt.nonce_put(a, "M_end")
    a.label("M_n1")
    only(a, 0, "M_c1")
    a("v_lshlrev_b32 v6, 5, v1")
    a("v_mov_b32 v7, 1")
    a("v_mov_b32 v8, 64")
    a("v_lshlrev_b32 v9, 2, v1")
    a("v_add_u32 v9, %d, v9", L_TK)
    a("s_mov_b64 exec, 0xff")
    a("global_load_dword v8, v6, s[10:11] sc1")
    a("s_waitcnt vmcnt(0)")
    a("v_cmp_gt_u32 vcc, 32, v8")
    a("s_and_b32 exec_lo, vcc_lo, 0xfe")
    a("s_cbranch_scc0 M_c1x")
    a("global_atomic_add v8, v6, v7, s[10:11] sc0 sc1")
    a("s_waitcnt vmcnt(0)")
    a.label("M_c1x")
    a("s_mov_b32 exec_lo, 0xff")
    a("ds_write_b32 v9, v8")
    a("s_mov_b64 exec, -1")
    a.label("M_c1")
    a("s_waitcnt lgkmcnt(0)")
    a("s_barrier")
    a("v_and_b32 v6, 7, v1")
    a("v_lshlrev_b32 v6, 2, v6")
    a("v_add_u32 v6, %d, v6", L_TK)
    a("ds_read_b32 v0, v6")
    a("ds_read_b32 v9, v6 offset:%d", pt.L_UM - L_TK)
    pt.nonce_get(a, 8, "M_end")
    a("v_cmp_gt_u32 vcc, 32, v0")
    a("s_mov_b32 s16, vcc_lo")
    a("s_and_b32 s101, vcc_lo, 0xfe")
    a("s_cbranch_scc1 M_cl")
    a.label("M_uph")
    a("v_mov_b32 v0, v9")
    a("s_mov_b32 s17, -1")
    a.label("M_u")
    a("s_cmp_lg_u32 s101, 0")
    a("s_cbranch_scc1 M_u0")
    a("s_add_u32 s17, s17, 1")
    a("s_cmp_eq_u32 s17, 7")
    a("s_cbranch_scc1 M_u1")
    a("v_readlane_b32 s101, v0, s17")
    a("s_branch M_u")
    a.label("M_u0")
    a("s_ff1_i32_b32 s21, s101")
    a("s_bitset0_b32 s101, s21")
    a("s_lshl_b32 s20, s17, 5")
    a("s_add_u32 s20, s20, s21")
    ut.emit_u(a, "M_end", T)
    a("s_mov_b32 s26, 1")
    a("s_barrier")
    a("s_branch M_ab2")
    a.label("M_u1")
    a("s_mov_b32 s21, 0")
    a("s_mov_b32 s17, 1")
    a("s_bitcmp1_b32 s16, 0")
    a("s_cbranch_scc1 M_tk")
    a.label("M_acq")
    a("s_mov_b32 s25, 0x400000")
    only(a, 0, "M_next")
    a("s_mov_b32 s21, %d", C_P * 4)
    wait_cnt(a, 21, 224, "M_end")
    a("buffer_inv sc1")
    a.label("M_next")
    a("s_barrier")
    only(a, 0, "M_q1")
    a("v_mov_b32 v6, %d", C_Q * 4)
    a("v_mov_b32 v7, 1")
    a("s_mov_b64 exec, 1")
    a("global_atomic_add v8, v6, v7, s[10:11] sc0 sc1")
    a("v_mov_b32 v6, %d", L_TK)
    a("s_waitcnt vmcnt(0)")
    a("ds_write_b32 v6, v8")
    a("s_mov_b64 exec, -1")
    a("s_waitcnt lgkmcnt(0)")
    a.label("M_q1")
    a("s_barrier")
    a("v_mov_b32 v6, %d", L_TK)
    a("ds_read_b32 v8, v6")
    a("s_waitcnt lgkmcnt(0)")
    a("v_readfirstlane_b32 s15, v8")
    a("s_mov_b32 s25, 0x400000")
    a("s_cmp_lt_u32 s15, %d", N_G1)
    a("s_cbranch_scc0 M_d2")
    a("s_mul_i32 s20, s15, 2341")
    a("s_lshr_b32 s20, s20, 16")
    a("s_mul_i32 s21, s20, 28")
    a("s_sub_u32 s21, s15, s21")
    g1.emit_g1(a, first=8)
    a("s_branch M_next")
    a.label("M_d2")
    a("s_sub_u32 s20, s15, %d", N_G1)
    a("s_cmp_lt_u32 s20, %d", N_G2)
    a("s_cbranch_scc0 M_d3")
    only(a, 0, "M_d2w")
    a("s_mul_i32 s21, s20, 2341")
    a("s_lshr_b32 s21, s21, 16")
    g1_cnt(a, 21, 21)
    wait_cnt(a, 21, 28, "M_end")
    a.label("M_d2w")
    a("s_barrier")
    g2.emit_g2(a)
    a("s_branch M_next")
    a.label("M_d3")
    a("s_sub_u32 s20, s20, %d", N_G2)
    a("s_cmp_lt_u32 s20, %d", N_F)
    a("s_cbranch_scc0 M_end")
    for nb in (2, 1):
        X = "M%d" % nb
        def pre():
            if g0:
                only(a, 3, X + "_fg")
                a("s_mul_i32 s50, s21, %d", (57 - g0) * 1024 // 63)
                a("s_lshr_b32 s50, s50, 10")
                a("s_add_u32 s50, s50, %d", g0)
                a("s_lshl_b32 s50, s50, 13")
                a("s_add_u32 s50, s50, 0x%x", MEMX)
                add64(a, 50, 4, off_sgpr=50)
                a("v_mov_b32 v8, 128")
                a.label(X + "_fgl")
                a("global_load_dword v9, v8, s[50:51] sc1")
                a("s_sub_u32 s25, s25, 1")
                a("s_cbranch_scc1 M_end")
                a("s_waitcnt vmcnt(0)")
                a("v_cmp_eq_u32 vcc, -1, v9")
                a("s_cbranch_vccnz %s_fgl", X)
                a.label(X + "_fg")
            a("s_cmp_gt_u32 s14, 2")
            a("s_cbranch_scc1 %s_fw", X)
            a("s_cmp_eq_u32 s14, 2")
            a("s_cbranch_scc1 %s_fw2", X)
            a("s_lshl_b32 s50, s21, 1")
            a("s_add_u32 s50, s50, s14")
            a("s_lshl_b32 s50, s50, 10")
            wait_ufl(a, 50, "M_end", t=16)
            a("s_branch %s_fw", X)
            a.label(X + "_fw2")
            a("s_lshr_b32 s50, s21, 1")
            g2_cnt(a, 50, 50, 51)
            wait_cnt(a, 50, 7, "M_end")
            a.label(X + "_fw")
        if nb == 2:
            a("s_cmp_ge_u32 s20, %d", 4 * FSPLIT)
            a("s_cbranch_scc1 M_d4")
            a("s_lshr_b32 s21, s20, 2")
            a("s_bfe_u32 s22, s20, 0x10001")
            a("s_and_b32 s23, s20, 1")
        else:
            a.label("M_d4")
            a("s_add_u32 s21, s20, %d", 4 * FSPLIT)
            a("s_lshr_b32 s21, s21, 3")
            a("s_bfe_u32 s22, s20, 0x10002")
            a("s_and_b32 s23, s20, 3")
        ft.emit_f(a, "M_end", nb, pre, prof, gate)
        a("s_branch M_next")
    a.label("M_end")
    a("s_endpgm")
    return names
```

```python
from common import *
from k1 import transp_perm, transp_cvt, SCALE
L_WT = 32768 + 7 * 16384
L_TK = L_WT + 14336
MAIN_LDS = L_TK + 128
L_UM = L_TK + 64
L_NON = L_TK + 48
def load_ptrs(a):
    a("s_load_dwordx8 s[64:71], s[0:1], 16")
    a("s_load_dwordx4 s[72:75], s[0:1], 64")
def nonce_ld(a):
    a("v_mov_b32 v101, %d", C_NON * 4)
    a("global_load_dword v100, v101, s[10:11] sc1")
def nonce_put(a, abort):
    l = a.newlabel("NP")
    a("s_mov_b32 s18, 0x100000")
    a("s_branch %sa", l)
    a.label(l)
    nonce_ld(a)
    a("s_sub_u32 s18, s18, 1")
    a("s_cbranch_scc1 %s", abort)
    a("s_waitcnt vmcnt(0)")
    a.label(l + "a")
    a("v_readfirstlane_b32 s19, v100")
    a("s_cmp_eq_u32 s19, 0")
    a("s_cbranch_scc1 %s", l)
    a("v_mov_b32 v101, %d", L_NON)
    a("ds_write_b32 v101, v100")
def nonce_get(a, v, abort):
    l = a.newlabel("NG")
    a("s_mov_b32 s18, 0x1000000")
    a.label(l)
    a("v_mov_b32 v%d, %d", v, L_NON)
    a("ds_read_b32 v%d, v%d", v, v)
    a("s_sub_u32 s18, s18, 1")
    a("s_cbranch_scc1 %s", abort)
    a("s_waitcnt lgkmcnt(0)")
    a("v_readfirstlane_b32 s19, v%d", v)
    a("s_cmp_eq_u32 s19, 0")
    a("s_cbranch_scc1 %s", l)
def lanes(a):
    a("v_and_b32 v12, 3, v1")
    a("v_xor_b32 v12, v12, v3")
    a("v_lshlrev_b32 v12, 4, v12")
    a("v_lshrrev_b32 v14, 2, v4")
    a("v_xor_b32 v14, v14, v3")
    a("v_lshlrev_b32 v14, 4, v14")
    a("v_lshl_add_u32 v14, v4, 6, v14")

def wtask(a):
    a("s_cmp_ge_u32 s44, 196")
    a("s_cselect_b32 s45, 196, 0")
    a("s_cselect_b32 s46, 1, 0")
    a("s_sub_u32 s45, s44, s45")
    a("s_mul_i32 s47, s45, 147")
    a("s_lshr_b32 s47, s47, 10")
    a("s_mul_i32 s48, s47, 7")
    a("s_sub_u32 s48, s45, s48")
    a("s_cmp_eq_u32 s46, 0")
    a("s_cselect_b32 s49, s48, s47")
    a("s_cselect_b32 s50, s47, s48")
    a("s_movk_i32 s51, 896")
    a("s_cselect_b32 s51, 3584, s51")
    a("s_cselect_b32 s52, s72, s74")
    a("s_cselect_b32 s53, s73, s75")
    a("s_cselect_b32 s54, 14, 56")
    a("s_mov_b32 s55, 0x%x", W2F)
    a("s_cselect_b32 s55, 0x%x, s55", W1F)
    a("s_mul_i32 s56, s49, s51")
    a("s_lshl_b32 s56, s56, 6")
    a("s_lshl_b32 s57, s50, 7")
    a("s_add_u32 s56, s56, s57")
    add64(a, 52, 52, off_sgpr=56)
    a("v_mul_lo_u32 v9, v3, s51")
    a("v_lshlrev_b32 v9, 3, v9")
    a("v_lshl_add_u32 v9, v4, 3, v9")
    for e in range(16):
        if e == 8:
            a("s_mul_i32 s56, s51, 24")
            add64(a, 52, 52, off_sgpr=56)
        a("global_load_dwordx2 %s, v9, s[52:53]", vr(16 + 2 * e, 2))
        add64(a, 52, 52, off_sgpr=51)
    a("v_lshrrev_b32 v8, 3, v4")
    a("v_lshlrev_b32 v8, 1, v8")
    a("v_and_b32 v11, 1, v4")
    a("v_add_u32 v8, v8, v11")
    a("v_lshlrev_b32 v8, 10, v8")
    a("v_bfe_u32 v11, v4, 1, 2")
    a("v_lshl_add_u32 v8, v11, 6, v8")
    a("v_lshl_add_u32 v8, v3, 8, v8")
    a("v_add_u32 v8, s42, v8")
    a("v_add_u32 v13, s42, v2")
    a("s_mul_i32 s56, s50, s54")
    a("s_lshl_b32 s56, s56, 2")
    a("s_lshl_b32 s57, s49, 1")
    a("s_add_u32 s56, s56, s57")
    a("s_lshl_b32 s56, s56, 10")
    a("s_add_u32 s56, s56, s55")
    add64(a, 58, 4, off_sgpr=56)
    a("s_lshl_b32 s54, s54, 10")
    a("v_add_u32 v9, s54, v2")
    a("v_add_u32 v10, s54, v9")
    a("v_add_u32 v11, s54, v10")
    for hlf in range(2):
        a("s_waitcnt vmcnt(%d)", 8 if hlf == 0 else 0)
        transp_cvt(a, 48 + 16 * hlf, 16 + 16 * hlf, 80)
        for r in range(4):
            a("ds_write_b128 v8, %s offset:%d", vr(48 + 16 * hlf + 4 * r, 4), hlf * 4096 + 16 * r)
    a("s_waitcnt lgkmcnt(0)")
    for f in range(8): a("ds_read_b128 %s, v13 offset:%d", vr(16 + 4 * f, 4), f * 1024)
    for f in range(8):
        a("s_waitcnt lgkmcnt(%d)", 7 - f)
        a("global_store_dwordx4 v%d, %s, s[58:59] offset:%d sc1", [2, 9, 10, 11][f & 3], vr(16 + 4 * f, 4), (f >> 2) * 1024)

def emit_p(a, T=lambda k: None, w7=None):
    a.c("---- product task")
    lanes(a)
    a("s_mov_b32 s40, 0x05040100")
    a("s_mov_b32 s41, 0x07060302")
    a("s_lshr_b32 s25, s20, 1")
    a("s_mul_i32 s27, s25, 147")
    a("s_lshr_b32 s27, s27, 10")
    a("s_mul_i32 s24, s27, 7")
    a("s_sub_u32 s24, s25, s24")
    a("s_and_b32 s25, s20, 1")
    a("s_mul_i32 s25, s25, 7")
    a("s_add_u32 s25, s25, s14")
    a("v_bfe_u32 v7, v1, 2, 2")
    a("v_lshlrev_b32 v13, 16, v3")
    a("v_add_u32 v13, v13, v12")
    a("v_lshl_add_u32 v6, v7, 13, v13")
    a("v_lshl_add_u32 v7, v7, 14, v13")
    a("s_lshl_b32 s30, s27, 9")
    a("s_cmp_eq_u32 s26, 0")
    a("s_cselect_b32 s28, s68, s64")
    a("s_cselect_b32 s29, s69, s65")
    a("s_cselect_b64 vcc, -1, 0")
    a("v_cndmask_b32 v15, v14, v2")
    a("s_cbranch_scc1 P_stB")
    a("s_lshr_b32 s31, s14, 1")
    a("s_lshr_b32 s32, s31, 1")
    a("s_lshl_b32 s32, s32, 5")
    a("s_and_b32 s33, s31, 1")
    a("s_add_u32 s32, s32, s33")
    a("s_lshl_b32 s33, s24, 6")
    a("s_add_u32 s32, s32, s33")
    a("s_lshl_b32 s32, s32, 13")
    a("s_add_u32 s32, s32, s30")
    a("s_and_b32 s33, s14, 1")
    a("s_lshl_b32 s34, s33, 8")
    a("s_add_u32 s32, s32, s34")
    add64(a, 34, 66, off_sgpr=32)
    a("s_lshl_b32 s36, s14, 12")
    for k in range(4):
        a("s_add_u32 m0, s36, %d", 960 * k)
        a("global_load_lds_dwordx4 v7, s[34:35] offset:%d", 64 * k)
    a("v_mov_b32 v8, 0")
    a("s_branch P_rows")
    a.label("P_stB")
    a("s_mul_i32 s32, s27, 229376")
    a("s_mul_i32 s33, s14, %d", 32 * 896)
    a("s_add_u32 s32, s32, s33")
    a("s_lshl_b32 s33, s24, 7")
    a("s_add_u32 s32, s32, s33")
    add64(a, 34, 70, off_sgpr=32)
    a("v_mul_u32_u24 v9, %d, v3", 8 * 896)
    a("v_lshl_add_u32 v9, v4, 3, v9")
    a("v_add_u32 v10, %d, v9", 4 * 896)
    for e in range(8):
        a("global_load_dwordx2 %s, v%d, s[34:35] offset:%d", vr(216 + 2 * e, 2), 9 if e < 4 else 10, (e & 3) * 896)
    a("v_lshrrev_b32 v8, 3, v4")
    a("v_lshlrev_b32 v8, 1, v8")
    a("v_and_b32 v11, 1, v4")
    a("v_add_u32 v8, v8, v11")
    a("v_lshlrev_b32 v8, 13, v8")
    a("v_bfe_u32 v11, v4, 1, 2")
    a("v_lshl_add_u32 v8, v11, 6, v8")
    a("v_lshl_add_u32 v8, v3, 8, v8")
    a("s_lshl_b32 s36, s14, 10")
    a("v_add_u32 v8, s36, v8")
    a.label("P_rows")
    T(23)
    a("s_barrier")
    a("s_lshl_b32 s32, s25, 18")
    a("s_add_u32 s32, s32, s30")
    add64(a, 36, 28, off_sgpr=32)
    a("s_lshl_b32 s42, s14, 14")
    a("s_add_u32 s42, s42, 32768")
    a("s_cmp_eq_u32 s14, 7")
    a("s_cbranch_scc1 P_norows")
    def rows(t):
        for kd_ in range(8):
            a("s_add_u32 m0, s42, %d", t * 8192 + 960 * kd_)
            a("global_load_lds_dwordx4 v6, s[36:37] offset:%d", 64 * kd_)
    rows(0)
    a("s_add_u32 s36, s36, 0x%x", 4 * 8192)
    a("s_addc_u32 s37, s37, 0")
    T(24)
    a("s_waitcnt vmcnt(8)")
    T(25)
    a("s_branch P_stage")
    a.label("P_norows")
    a("s_setprio 3")
    a("s_lshl_b32 s43, s26, 8")
    a("s_add_u32 s43, s43, s20")
    a("s_cmp_lt_u32 s43, 128")
    a("s_cbranch_scc0 P_nl")
    a("s_mul_i32 s36, s20, %d", 16 * 896)
    add64(a, 36, 6, off_sgpr=36)
    a("v_lshrrev_b32 v6, 2, v1")
    a("v_mul_u32_u24 v6, 896, v6")
    a("v_add_u32 v6, v6, v12")
    for ks in range(14):
        a("s_mov_b32 m0, %d", L_WT + 960 * ks)
        a("global_load_lds_dwordx4 v6, s[36:37] offset:%d", ks * 64)
    nonce_ld(a)
    a("s_waitcnt vmcnt(15)")
    a("s_branch P_stage")
    a.label("P_nl")
    nonce_ld(a)
    a("s_waitcnt vmcnt(1)")
    a.label("P_stage")
    a("s_cmp_lg_u32 s26, 0")
    a("s_cbranch_scc1 P_staged")
    transp_perm(a, 200, 216, 40, 41)
    for r in range(4):
        a("ds_write_b128 v8, %s offset:%d", vr(200 + 4 * r, 4), 16 * r)
    a.label("P_staged")
    a("s_waitcnt lgkmcnt(0)")
    a("s_barrier")
    T(1)
    a("s_cmp_eq_u32 s14, 7")
    a("s_cbranch_scc1 P_w7")
    OUT = 16; ACC = 32; RR = 64; CR = 128
    for f in range(32): a("ds_read_b128 %s, v15 offset:%d", vr(CR + 4 * f, 4), f * 1024)
    rows(1)
    a("v_add_u32 v14, s42, v14")
    a("s_cmp_eq_u32 s26, 0")
    a("s_cselect_b32 s38, 1.0, %s", f32(SCALE))
    a("s_lshl_b32 s33, s24, 2")
    a("s_mul_i32 s32, s27, 28")
    a("s_add_u32 s32, s32, s33")
    a("s_add_u32 s32, s32, 448")
    a("s_lshr_b32 s34, s27, 1")
    a("s_mul_i32 s34, s34, 28")
    a("s_add_u32 s34, s34, s33")
    a("s_lshl_b32 s34, s34, 1")
    a("s_and_b32 s33, s27, 1")
    a("s_add_u32 s34, s34, s33")
    a("s_movk_i32 s39, %d", 14 * 1024)
    a("s_cmp_eq_u32 s26, 0")
    a("s_cselect_b32 s32, s34, s32")
    a("s_cselect_b32 s39, %d, s39", 28 * 1024)
    a("s_mul_i32 s32, s32, 14")
    a("s_add_u32 s32, s32, s25")
    a("s_lshl_b32 s32, s32, 10")
    a("s_add_u32 s32, s32, 0x%x", WALL)
    add64(a, 44, 4, off_sgpr=32)
    a("v_add_u32 v9, s39, v2")
    a("v_add_u32 v10, s39, v9")
    a("v_add_u32 v11, s39, v10")
    a("s_mul_i32 s32, s26, 224")
    a("s_add_u32 s32, s32, s20")
    a("s_lshl_b32 s32, s32, 5")
    a("s_lshl_b32 s33, s14, 2")
    a("s_add_u32 s32, s32, s33")
    a("s_add_u32 s32, s32, 0x%x", ABF)
    add64(a, 46, 4, off_sgpr=32)
    a("v_mov_b32 v13, 0")
    for b in range(2):
        a("s_waitcnt vmcnt(%d)", 0 if b else 8)
        for f in range(8 * b, 8 * b + 8): a("ds_read_b128 %s, v14 offset:%d", vr(RR + 4 * f, 4), f * 1024)
        for kd_ in range(8):
            a("s_waitcnt lgkmcnt(%d)", 7 - kd_)
            for ct in range(4):
                d = vr(ACC + (b * 4 + ct) * 4, 4)
                a("v_mfma_f32_16x16x32_bf16 %s, %s, %s, %s", d, vr(RR + (b * 8 + kd_) * 4, 4), vr(CR + (ct * 8 + kd_) * 4, 4), d if kd_ else "0")
    T(2)
    for ct in range(4):
        o = OUT + ct * 4
        for b in range(2):
            d = ACC + (b * 4 + ct) * 4
            for r in range(4): a("v_mul_f32 v%d, s38, v%d", d + r, d + r)
            a("v_cvt_pk_f16_f32 v%d, v%d, v%d", o + 2 * b, d, d + 1)
            a("v_cvt_pk_f16_f32 v%d, v%d, v%d", o + 2 * b + 1, d + 2, d + 3)
        a("global_store_dwordx4 v%d, %s, s[44:45] sc1", [2, 9, 10, 11][ct], vr(o, 4))
    nonce_get(a, 8, "M_end")
    a("s_waitcnt vmcnt(0)")
    a("s_mov_b64 exec, 1")
    a("global_store_dword v13, v8, s[46:47] sc1")
    a("s_mov_b64 exec, -1")
    T(3)
    a("s_branch P_abend")
    a.label("P_w7")
    a("s_waitcnt vmcnt(0)")
    nonce_put(a, "M_end")
    if w7: w7()
    a.label("P_abend")
    a("s_setprio 0")

def emit_ln(a):
    a("v_add_u32 v14, %d, v14", L_WT)
    X = 16
    a("s_waitcnt vmcnt(0)")
    for ks in range(14): a("ds_read_b128 %s, v14 offset:%d", vr(X + 4 * ks, 4), ks * 1024)
    F = 80
    for d in range(56):
        if d % 4 == 0: a("s_waitcnt lgkmcnt(%d)", 13 - d // 4)
        a("v_lshlrev_b32 v%d, 16, v%d", F + 2 * d, X + d)
        a("v_and_b32 v%d, 0xffff0000, v%d", F + 2 * d + 1, X + d)
    def allred(acc, tmp):
        a("v_pk_add_f32 v[8:9], v[8:9], v[10:11]")
        a("v_add_f32 v8, v8, v9")
        a("v_mov_b32 v%d, v%d", tmp, acc)
        a("v_permlane32_swap_b32 v%d, v%d", acc, tmp)
        a("v_add_f32 v%d, v%d, v%d", acc, acc, tmp)
        a("v_mov_b32 v%d, v%d", tmp, acc)
        a("v_permlane16_swap_b32 v%d, v%d", acc, tmp)
        a("v_add_f32 v%d, v%d, v%d", acc, acc, tmp)
    P = lambda d: vr(F + 2 * d, 2)
    A = lambda d: vr(8 + 2 * (d & 1), 2)
    for d in range(2): a("v_pk_add_f32 %s, %s, %s", A(d), P(d), P(d + 2))
    for d in range(4, 56): a("v_pk_add_f32 %s, %s, %s", A(d), A(d), P(d))
    allred(8, 9)
    a("v_mul_f32 v12, %s, v8", f32(-1.0 / 448))
    a("v_mov_b32 v13, v12")
    for d in range(56): a("v_pk_add_f32 %s, %s, v[12:13]", P(d), P(d))
    for d in range(2): a("v_pk_mul_f32 %s, %s, %s", A(d), P(d), P(d))
    for d in range(2, 56): a("v_pk_fma_f32 %s, %s, %s, %s", A(d), P(d), P(d), A(d))
    allred(8, 9)
    a("v_mov_b32 v12, %s", f32(1e-5))
    a("v_fmac_f32 v12, %s, v8", f32(1.0 / 448))
    a("v_sqrt_f32 v12, v12")
    a("v_rcp_f32 v12, v12")
    a("s_mul_i32 s36, s20, %d", 14 * 1024)
    a("s_add_u32 s36, s36, 0x%x", XF + 4096)
    add64(a, 36, 4, off_sgpr=36)
    a("v_mov_b32 v13, v12")
    for ks in range(14):
        if ks == 8:
            a("s_add_u32 s36, s36, 8192"); a("s_addc_u32 s37, s37, 0")
        for d in range(4 * ks, 4 * ks + 4): a("v_pk_mul_f32 %s, %s, v[12:13]", P(d), P(d))
        for d in range(4 * ks, 4 * ks + 4): a("v_cvt_pk_f16_f32 v%d, v%d, v%d", X + d, F + 2 * d, F + 2 * d + 1)
        a("global_store_dwordx4 v2, %s, s[36:37] offset:%d sc1", vr(X + 4 * ks, 4), (ks & 7) * 1024 - 4096)
    a("s_lshl_b32 s36, s20, 2")
    a("s_add_u32 s36, s36, 0x%x", LNF)
    a("v_lshlrev_b32 v8, 9, v1")
    a("v_add_u32 v8, s36, v8")
    a("v_mov_b32 v9, s19")
    a("s_waitcnt vmcnt(0)")
    a("s_mov_b32 exec_hi, 0")
    a("global_store_dword v8, v9, s[4:5] sc1")
    a("s_mov_b64 exec, -1")
```

```python
from common import *
MF = "v_mfma_f32_16x16x32_f16 %s, %s, %s, %s"
def ln_wait(a, abort):
    a("s_and_b32 s22, s20, 31")
    a("s_lshl_b32 s22, s22, 9")
    a("s_add_u32 s22, s22, 0x%x", LNF)
    a("v_lshlrev_b32 v9, 3, v1")
    a("v_add_u32 v9, s22, v9")
    a("s_mov_b32 s25, 0x400000")
    lw = a.newlabel("UW")
    a.label(lw)
    a("global_load_dwordx2 v[10:11], v9, s[4:5] sc1")
    a("s_sub_u32 s25, s25, 1")
    a("s_cbranch_scc1 %s", abort)
    a("s_waitcnt vmcnt(0)")
    allnon(a, [10, 11])
    a("v_cmp_ne_u32 vcc, 0, v10")
    a("s_cbranch_vccnz %s", lw)
def emit_u(a, abort, T=lambda k: None):
    WR = 16; XR = (128, 184); ACC = 240; OUT = 248
    a.c("---- U task")
    a("s_mul_i32 s33, s20, 2341")
    a("s_lshr_b32 s33, s33, 16")
    a("s_mul_i32 s34, s33, 28")
    a("s_sub_u32 s34, s20, s34")
    a("s_cmp_gt_u32 s14, 1")
    a("s_cbranch_scc1 U_b")
    a("s_cmp_eq_u32 s14, 0")
    a("s_cbranch_scc1 U_a")
    ln_wait(a, abort)
    a("s_branch U_b")
    a.label("U_a")
    a("s_mul_i32 s23, s33, 14")
    a("s_lshr_b32 s22, s34, 2")
    a("s_add_u32 s23, s23, s22")
    a("s_lshl_b32 s23, s23, 6")
    a("s_add_u32 s23, s23, 0x%x", ABF)
    a("v_and_b32 v8, 1, v3")
    a("v_mul_u32_u24 v8, %d, v8", 7 * 64)
    a("v_lshl_add_u32 v8, v4, 2, v8")
    a("v_add_u32 v8, s23, v8")
    a("s_mov_b32 s25, 0x400000")
    a.label("U_w")
    a("global_load_dword v12, v8, s[4:5] sc1")
    a("s_sub_u32 s25, s25, 1")
    a("s_cbranch_scc1 %s", abort)
    a("s_waitcnt vmcnt(0)")
    a("v_cmp_eq_u32 vcc, s19, v12")
    a("s_or_b32 vcc_lo, vcc_lo, 0x80808080")
    a("s_cmp_eq_u32 vcc_lo, -1")
    a("s_cbranch_scc0 U_w")
    a.label("U_b")
    a("s_barrier")
    T(8)
    a("s_min_u32 s21, s14, 6")
    a("s_lshl_b32 s21, s21, 12")
    a("v_add_u32 v8, s21, v2")
    a("s_mul_i32 s26, s20, %d", 28 * 1024)
    a("s_add_u32 s26, s26, 0x%x", BF)
    add64(a, 26, 4, off_sgpr=26)
    for k in range(4): a("global_load_dwordx4 %s, v8, s[26:27] offset:%d sc1", vr(XR[1] + 4 * k, 4), 1024 * k)
    a("s_mul_i32 s28, s14, %d", 14 * 1024)
    a("s_add_u32 s28, s28, 0x%x", XF + 4096)
    add64(a, 28, 4, off_sgpr=28)
    a("v_add_u32 v9, 8192, v2")
    def xld(b):
        for ks in range(14):
            a("global_load_dwordx4 %s, v%d, s[28:29] offset:%d sc1", vr(XR[b] + 4 * ks, 4), 2 if ks < 8 else 9, (ks & 7) * 1024 - 4096)
        a("s_add_u32 s28, s28, %d", 8 * 14 * 1024); a("s_addc_u32 s29, s29, 0")
    xld(0)
    a("s_lshr_b32 s22, s14, 1")
    a("s_and_b32 s23, s14, 1")
    a("s_mul_i32 s35, s22, 14")
    a("s_lshr_b32 s32, s34, 1")
    a("s_add_u32 s35, s35, s32")
    a("s_lshl_b32 s35, s35, 3")
    a("s_add_u32 s35, s35, s33")
    a("s_lshl_b32 s35, s35, 1")
    a("s_and_b32 s34, s34, 1")
    a("s_add_u32 s35, s35, s34")
    a("s_lshl_b32 s35, s35, 1")
    a("s_add_u32 s35, s35, s23")
    a("s_lshl_b32 s35, s35, 10")
    a("s_add_u32 s35, s35, 0x%x", UF)
    add64(a, 30, 4, off_sgpr=35)
    a("s_lshl_b32 s36, s20, 1")
    a("s_add_u32 s36, s36, s23")
    a("s_lshl_b32 s36, s36, 8")
    a("s_mul_i32 s32, s22, %d", 112 * 1024)
    a("s_add_u32 s32, s32, s36")
    a("s_add_u32 s32, s32, 0x%x", TBX)
    add64(a, 32, 4, off_sgpr=32)
    a("s_min_u32 s36, s36, %d", 31 * 256)
    a("s_lshl_b32 s34, s22, 13")
    a("s_add_u32 s34, s34, s36")
    a("s_add_u32 s34, s34, 0x%x", MEMX)
    add64(a, 34, 4, off_sgpr=34)
    a("s_lshl_b32 s36, s14, 10")
    a("s_lshl_b32 s37, s20, 2")
    a("s_add_u32 s36, s36, s37")
    a("s_add_u32 s36, s36, 0x%x", UFL)
    add64(a, 36, 4, off_sgpr=36)
    for r in range(4): a("v_mov_b32 v%d, -1", 12 + r)
    a("v_mov_b32 v10, 0")
    a("s_mov_b32 s24, 0")
    a("v_mov_b32 v11, s19")
    a("s_waitcnt vmcnt(14)")
    for k in range(4): a("ds_write_b128 v8, %s offset:%d", vr(XR[1] + 4 * k, 4), 1024 * k)
    a("s_waitcnt lgkmcnt(0)")
    a("s_barrier")
    for f in range(28): a("ds_read_b128 %s, v2 offset:%d", vr(WR + 4 * f, 4), f * 1024)
    a("s_waitcnt vmcnt(0) lgkmcnt(0)")
    T(9)
    L = a.newlabel("UT")
    a.label(L)
    for b in range(2):
        sk = a.newlabel("UTs")
        a("s_cmp_eq_u32 s24, %d", 7 if b else 0)
        a("s_cbranch_scc1 %s", sk)
        xld(1 - b)
        a.label(sk)
        for ks in range(14):
            for w in range(2):
                d = vr(ACC + 4 * w, 4)
                a(MF, d, vr(XR[b] + 4 * ks, 4), vr(WR + (w * 14 + ks) * 4, 4), d if ks else "0")
        a("s_mov_b64 exec, 0xffff")
        a("global_store_dwordx4 v2, v[12:15], s[32:33] sc1")
        l = a.newlabel("UTm")
        a("s_cmp_ge_u32 s20, 14")
        a("s_cbranch_scc1 %s", l)
        a("global_store_dwordx4 v2, v[12:15], s[34:35] sc1")
        a.label(l)
        a("s_mov_b64 exec, -1")
        for w in range(2):
            a("v_cvt_pk_f16_f32 v%d, v%d, v%d", OUT + w, ACC + 4 * w, ACC + 4 * w + 1)
            a("v_cvt_pk_f16_f32 v%d, v%d, v%d", OUT + 2 + w, ACC + 4 * w + 2, ACC + 4 * w + 3)
        a("global_store_dwordx4 v2, %s, s[30:31] sc1", vr(OUT, 4))
        for r, n in ((30, 4 * 14 * 32768), (32, 4 * 112 * 1024), (34, 4 * 8192)):
            a("s_add_u32 s%d, s%d, %d", r, r, n); a("s_addc_u32 s%d, s%d, 0", r + 1, r + 1)
        a("s_waitcnt vmcnt(0)")
        a("s_mov_b64 exec, 1")
        a("global_store_dword v10, v11, s[36:37] sc1")
        a("s_mov_b64 exec, -1")
        a("s_add_u32 s36, s36, 8192"); a("s_addc_u32 s37, s37, 0")
        if b == 0:
            sk = a.newlabel("UTs")
            a("s_cmp_lg_u32 s24, 0")
            a("s_cbranch_scc1 %s", sk)
            T(10)
            xld(1)
            a("s_waitcnt vmcnt(0)")
            a.label(sk)
    a("s_add_u32 s24, s24, 1")
    a("s_cmp_lt_u32 s24, 8")
    a("s_cbranch_scc1 %s", L)
```

```python
from common import *
L_MEMI = 0; L_TAI = 7168; L_RED = 11264; L_TB1 = 15360; L_TB2 = 19456; L_BW = 23552; BWSZ = 16384
CHAIN_LDS = L_BW + 7 * BWSZ
MFR = 16; ACC0 = 44; ACC1 = 48; STG = 52; EX = 68; BW = 96; AW = 144
VP = 0

class Prof:
    def __init__(self, a, on, step=40): self.a = a; self.on = on; self.step = step; self.names = ["top"] if on else []
    def __call__(self, name):
        if not self.on or (self.on in (1, 4) and name != "top"): return
        if self.on == 4:
            self.a("s_memtime s[64:65]"); self.a("s_memrealtime s[66:67]"); return
        if (self.on == 3) != name.startswith("a") and name not in ("top", "TA done", "bar2"): return
        if name not in self.names: self.names.append(name)
        k = self.names.index(name)
        assert k < 16
        self.a("s_memtime s[%d:%d]", 64 + 2 * k, 65 + 2 * k)
    def flush(self, n=16):
        if not self.on: return
        a = self.a
        if self.on == 4:
            a("s_bitcmp1_b32 s14, 0")
            a("s_cselect_b32 s64, s66, s64")
            a("s_mov_b32 m0, s24")
            a("v_writelane_b32 v%d, s64, m0", VP)
            return
        l = a.newlabel("PF")
        a("s_cmp_lg_u32 s24, %d", self.step + 1)
        a("s_cbranch_scc1 %s", l)
        for k in range(n): a("v_writelane_b32 v%d, s%d, %d", VP, 64 + 2 * k, k)
        a.label(l)
        for st, ln in ((10, 20), (60, 21)):
            l = a.newlabel("PF")
            a("s_cmp_lg_u32 s24, %d", st)
            a("s_cbranch_scc1 %s", l)
            a("v_writelane_b32 v%d, s64, %d", VP, ln)
            a.label(l)

class LQ:
    def __init__(self, a): self.a = a; self.q = []
    def issue(self, tag, txt, *args): self.a(txt, *args); self.q.append(tag)
    def wait(self, tag):
        if tag not in self.q: return
        last = max(k for k, t in enumerate(self.q) if t == tag)
        self.a("s_waitcnt lgkmcnt(%d)", len(self.q) - 1 - last)
        self.q = self.q[last + 1:]
    def all(self): self.a("s_waitcnt lgkmcnt(0)"); self.q = []

def interleave(a, b):
    a("v_swap_b32 v%d, v%d", b + 1, b + 4)
    a("v_swap_b32 v%d, v%d", b + 3, b + 5)
    a("v_swap_b32 v%d, v%d", b + 2, b + 4)
    a("v_swap_b32 v%d, v%d", b + 5, b + 6)

def code_touch(a, lab, back, va, vd):
    l = a.newlabel("CT")
    a("s_getpc_b64 s[50:51]")
    a.label(l)
    if back:
        a("s_sub_u32 s50, s50, %s-%s", l, lab); a("s_subb_u32 s51, s51, 0")
    else:
        a("s_add_u32 s50, s50, %s-%s", lab, l); a("s_addc_u32 s51, s51, 0")
    a("global_load_dword v%d, v%d, s[50:51]", vd, va)
L_FL = L_BW + 8 * BWSZ
def local_a(a, prof, abort, bload, hi, k0, pd, touch, rdep, bands, ni, ramp, pa, p7, sconst, rot, bp, n0, ct, qt):
    import pt
    from k1 import SCALE
    R = lambda i: L_BW + i * BWSZ
    sl = [R(0), R(1), R(2), 0, R(7), R(4), R(5), R(6), R(3)]
    slot = {k: sl[k % 9] for k in range(14)}
    pt.lanes(a)
    a("v_bfe_u32 v7, v1, 2, 2")
    a("s_lshl_b32 s30, s21, 9")
    def bptr():
        a("s_lshl_b32 s50, s22, 2")
        a("s_add_u32 s50, s50, s60")
        a("s_mul_i32 s50, s50, 14")
        a("s_min_u32 s51, s21, 13")
        a("s_add_u32 s50, s50, s51")
        a("s_mul_i32 s50, s50, %d", 56 * 1024)
        a("s_mul_i32 s51, s61, 7168")
        a("s_add_u32 s50, s50, s51")
        a("s_add_u32 s50, s50, 0x%x", BF + 4096)
        add64(a, 80, 4, off_sgpr=50)
        for i in range(1, 4): add64(a, 80 + 2 * i, 80, imm=14336 * i)
        for i in range(4): a("v_mov_b32 v%d, 0", BW + i)
        if prof == 4: a("s_mov_b32 s78, 0")
        a("s_mul_i32 s50, s22, 56")
        a("s_min_u32 s51, s21, 13")
        a("s_lshr_b32 s51, s51, 1")
        a("s_add_u32 s50, s50, s51")
        a("s_lshl_b32 s50, s50, 6")
        a("s_add_u32 s50, s50, 0x%x", ABF)
    WK = 32; V = 16
    PD = lambda k: BW + 36 + k % 4
    def landed(k, first, l):
        if not first: a("s_branch %sa", l)
        a.label(l)
        a("ds_read_b32 v3, v0")
        a("s_sub_u32 s25, s25, 1")
        a("s_cbranch_scc1 %s", abort)
        a("s_waitcnt lgkmcnt(0)")
        a.label(l + "a")
        a("v_cmp_ne_u32 vcc, 0, v3")
        a("s_bitcmp1_b32 vcc_lo, %d", k)
        a("s_cbranch_scc0 %s", l)
    a("s_cmp_eq_u32 s14, 7")
    a("s_cbranch_scc1 LA_w7")
    a("v_lshlrev_b32 v13, 16, v3")
    a("v_add_u32 v13, v13, v12")
    a("v_lshl_add_u32 v9, v7, 14, v13")
    a("s_mul_i32 s34, s22, 7")
    a("s_add_u32 s34, s34, s14")
    a("s_lshl_b32 s34, s34, 18")
    a("s_add_u32 s34, s34, s30")
    add64(a, 34, 66, off_sgpr=34)
    add64(a, 36, 34, imm=8192)
    a("s_mul_i32 s32, s20, 7")
    a("s_add_u32 s32, s32, s14")
    a("s_lshl_b32 s32, s32, 10")
    a("s_add_u32 s32, s32, 0x%x", MEMR)
    add64(a, 32, 4, off_sgpr=32)
    for r in range(4): a("v_mov_b32 v%d, -1", V + r)
    a("global_store_dwordx4 v2, %s, s[32:33] sc1", vr(V, 4))
    a("v_lshlrev_b32 v0, 2, v1")
    a("v_add_u32 v0, %d, v0", L_FL)
    a("v_mov_b32 v8, %d", pt.L_NON)
    a("v_cmp_gt_u32 vcc, 16, v1")
    a("v_cndmask_b32 v0, v8, v0")
    a("s_lshr_b32 s50, s60, 1")
    a("s_lshl_b32 s50, s50, 2")
    a("s_add_u32 s50, s50, %d", L_FL + 384)
    a("v_mov_b32 v8, s50")
    a("v_cmp_gt_u32 vcc, 17, v1")
    a("v_cndmask_b32 v0, v8, v0")
    a("v_and_b32 v8, 1, v3")
    a("v_lshrrev_b32 v13, 1, v3")
    def wkld(m): a("global_load_dwordx4 %s, v9, s[%d:%d] offset:%d", vr(WK + m * 4, 4), 34 + 2 * (m & 1), 35 + 2 * (m & 1), 64 * (m >> 1))
    a("s_cmp_ge_u32 s14, 4")
    a("s_cbranch_scc1 LA_i0")
    a("s_barrier")
    for m in range(16):
        if m % 4 == 0 and bp[m // 4] >= 0 and (m == 0 or bp[m // 4] != bp[m // 4 - 1]): landed(bp[m // 4], True, "LA_b%d" % m)
        wkld(m)
    a("s_branch LA_i1")
    a.label("LA_i0")
    for m in range(16): wkld(m)
    a("s_setprio %d", pa)
    a("s_barrier")
    a.label("LA_i1")
    bptr()
    a("v_lshrrev_b32 v14, 2, v4")
    a("v_xor_b32 v14, v14, v13")
    a("v_lshlrev_b32 v14, 4, v14")
    a("v_lshl_add_u32 v14, v4, 6, v14")
    a("v_lshl_add_u32 v5, v8, 13, v14")
    a("v_add_u32 v5, %d, v5", slot[0])
    a("v_xor_b32 v6, 32, v5")
    a("s_lshl_b32 s36, s14, 11")
    a("s_add_u32 s36, s36, %d", sl[8])
    a("v_lshl_add_u32 v10, v8, 10, v14")
    a("v_add_u32 v10, s36, v10")
    a("v_xor_b32 v11, 32, v10")
    a("v_add_u32 v12, s36, v2")
    a("s_lshl_b32 s50, s14, 2")
    a("s_add_u32 s50, s50, %d", L_FL + 64)
    a("v_mov_b32 v1, s50")
    a("s_and_b32 s50, s60, 1")
    a("s_lshl_b32 s50, s50, 2")
    a("s_add_u32 s50, s50, s61")
    a("s_lshl_b32 s50, s50, 2")
    a("s_lshl_b32 s88, 0x0f0f, s50")
    a("s_cmp_eq_u32 s23, 0")
    a("s_cselect_b32 s89, -1, s88")
    a("s_mov_b32 s96, %s", f32(SCALE))
    sconst()
    for kd in range(8):
        a("s_waitcnt vmcnt(%d)", 14 - 2 * kd)
        for t in range(2): a("ds_write_b128 v12, %s offset:%d", vr(WK + (2 * kd + t) * 4, 4), 1024 * t)
        for c in range(2): a("ds_read_b128 %s, v%d", vr(WK + (2 * kd + c) * 4, 4), 10 + c)
    if prof == 4: a("s_memrealtime s[76:77]")
    landed(0, True, "LA_l0")
    if prof == 4: a("s_memrealtime s[90:91]")
    q = LQ(a)
    free = [(8, 224), (12, 224), (BW + 40, 224), (BW + 44, 224)] + [(AW + 96 + 4 * i, 192) for i in range(4)]
    buf = {}; nxt = [0]
    def rd(cur, lim):
        while nxt[0] < min(lim, cur + 1 + rdep):
            F = nxt[0]
            ok = [x for x in free if x[1] > F]
            if not ok: return
            x = min(ok, key=lambda y: y[1]); free.remove(x); buf[F] = x
            if F and not (F & 15):
                for r in (5, 6): a("v_add_u32 v%d, %d, v%d", r, slot[F >> 4] - slot[(F >> 4) - 1], r)
            q.issue(F, "ds_read_b128 %s, v%d offset:%d", vr(x[0], 4), 5 + (F & 1), ((F & 15) >> 1) * 1024)
            nxt[0] += 1
    def acc(ks): return V if ks & 1 else AW + 8 * ks
    def cvt_ops(ks):
        Rr = AW + 8 * ks; X = acc(ks); ops = []
        for d in range(4):
            for e in range(2):
                s0 = X + 8 * e + 2 * d
                ops.append([("v_mul_f32 v%d, s96, v%d", s0, s0), ("v_mul_f32 v%d, s96, v%d", s0 + 1, s0 + 1), ("v_cvt_pk_f16_f32 v%d, v%d, v%d", Rr + 2 * d + e, s0, s0 + 1)])
        for d in range(4): ops.append([("v_permlane16_swap_b32 v%d, v%d", Rr + 2 * d, Rr + 2 * d + 1)])
        return ops
    def bgo():
        if prof == 4: a("s_memrealtime s[78:79]")
        bload(range(5))
        a("ds_write_b32 v1, v0 offset:192")
        a("s_mov_b32 s89, -1")
    tail = []
    rd(-1, 16)
    for ks in range(14):
        ops = cvt_ops(ks - 1) if ks else []
        sched = {2: [0], 3: [1], 4: [2], 8: [3, 8], 9: [4], 10: [5, 9], 11: [6], 12: [7, 10], 13: [11]}
        for m in range(16):
            F = ks * 16 + m
            q.wait(F)
            d = vr(acc(ks), 16)
            a("v_mfma_f32_32x32x16_bf16 %s, %s, %s, %s", d, vr(buf[F][0], 4), vr(WK + m * 4, 4), d if m else "0")
            if ops:
                for g in sched.get(m, []):
                    for o in ops[g]: a(*o)
            free.append(buf[F])
            if ks == 13: free.append((WK + m * 4, 224))
            row = {9: 7, 13: 8}.get(ks, ks if ks <= 5 else None)
            if m == 0 and row is not None: q.issue("pr", "ds_write_b32 v1, v0 offset:%d", 32 * row)
            if m == 13 and ks < 12 or (F == 0): q.issue("fl", "ds_read_b32 v3, v0")
            if m == 5 and ks < 13:
                q.wait("fl")
                a("v_cmp_ne_u32 vcc, 0, v3")
                a("v_readlane_b32 s50, v3, 17")
                if ks == 12: a("v_readlane_b32 s19, v3, 16")
            if m == 6 and ks < 13:
                a("s_bitcmp1_b32 vcc_lo, %d", ks + 1)
                a("s_cbranch_scc0 LA_l%d", ks + 1)
                a.label("LA_m%d" % (ks + 1))
                def slow(k=ks + 1):
                    landed(k, True, "LA_l%d" % k)
                    a("s_branch LA_m%d", k)
                tail.append(slow)
            rd(F, min(224, 16 * (ks + 1 + (m >= 6))))
            if m == 7 and k0 <= ks < 13:
                a("s_and_b32 s50, s50, s88")
                a("s_cmp_eq_u32 s50, s89")
                a("s_cbranch_scc1 LA_g%d", ks)
                a.label("LA_h%d" % ks)
                def go(k=ks):
                    a.label("LA_g%d" % k)
                    bgo()
                    a("s_waitcnt lgkmcnt(0)")
                    a("s_branch LA_h%d", k)
                tail.append(go)
    a.label("LA_e0")
    a("s_cmp_eq_u32 s89, -1")
    a("s_cbranch_scc1 LA_e1")
    a("ds_read_b32 v3, v0")
    a("s_sub_u32 s25, s25, 1")
    a("s_cbranch_scc1 %s", abort)
    a("s_waitcnt lgkmcnt(0)")
    a("v_readlane_b32 s50, v3, 17")
    a("s_and_b32 s50, s50, s88")
    a("s_cmp_eq_u32 s50, s89")
    a("s_cbranch_scc0 LA_e0")
    bgo()
    a.label("LA_e1")
    a("s_setprio 0")
    a("v_lshrrev_b32 v1, 4, v2")
    if prof == 4: a("s_memrealtime s[92:93]")
    a("s_cmp_eq_u32 s23, 0")
    a("s_cbranch_scc1 LA_e2")
    bload([5] + hi)
    a.label("LA_e2")
    for o in cvt_ops(13):
        for x in o: a(*x)
    a("v_lshrrev_b32 v3, 4, v1")
    a("s_cmp_lt_u32 s14, 4" if rot else "s_cmp_eq_u32 s61, 1")
    a("s_cbranch_scc1 LA_end")
    for i in range(56): a("v_swap_b32 v%d, v%d", AW + i, AW + 56 + i)
    a("s_branch LA_end")
    for f in tail: f()
    a.label("LA_w7")
    a("s_setprio %d", p7)
    a("v_and_b32 v13, 1, v3")
    a("v_lshl_add_u32 v8, v13, 17, v12")
    a("v_lshrrev_b32 v13, 1, v3")
    a("v_lshl_add_u32 v8, v13, 15, v8")
    a("v_lshl_add_u32 v8, v7, 13, v8")
    a("s_mul_i32 s31, s22, %d", (7 << 18) * rot)
    a("s_add_u32 s32, s30, s31")
    add64(a, 32, 64, off_sgpr=32)
    a("s_sub_u32 s31, %d, s31", 7 << 18)
    a("s_add_u32 s30, s30, s31")
    add64(a, 30, 64, off_sgpr=30)
    vq = []
    def half(i):
        add64(a, 34, 32 if i < 14 else 30, imm=(((i >> 1) % 7) << 18) + (i & 1) * 8 * 8192)
        for kd in range(8):
            a("s_mov_b32 m0, %d", slot[i >> 1] + (i & 1) * 8192 + 960 * kd)
            a("global_load_lds_dwordx4 v8, s[34:35] offset:%d", 64 * kd)
            vq.append(i)
    def vwait(tag):
        last = max(k for k, t in enumerate(vq) if t == tag)
        a("s_waitcnt vmcnt(%d)", len(vq) - 1 - last)
        del vq[:last + 1]
    DEP = 7
    for i in range(n0):
        if i == ni: a("s_barrier")
        half(i)
    pt.nonce_ld(a); vq.append("N")
    if ni >= n0: a("s_barrier")
    issued = [n0]
    bptr()
    a("v_lshlrev_b32 v10, 3, v1")
    a("s_lshl_b32 s51, s20, 9")
    a("s_add_u32 s51, s51, 0x%x", LNF)
    a("v_add_u32 v12, s51, v10")
    a("v_lshrrev_b32 v13, 3, v1")
    a("v_mul_u32_u24 v13, %d, v13", 7 * 64)
    a("v_and_b32 v14, 7, v1")
    a("v_lshl_add_u32 v13, v14, 3, v13")
    a("v_add_u32 v13, s50, v13")
    a("v_min_u32 v11, 6, v14")
    a("v_lshlrev_b32 v11, 2, v11")
    a("v_add_u32 v11, %d, v11", L_FL + 64)
    a("v_and_b32 v14, 31, v1")
    a("v_lshlrev_b32 v9, 7, v14")
    a("v_lshlrev_b32 v14, 2, v14")
    a("v_add_u32 v14, 0x%x, v14", RDY)
    a("v_lshrrev_b32 v10, 5, v1")
    a("v_mul_u32_u24 v10, 14336, v10")
    a("v_add_u32 v9, v9, v10")
    a("s_lshl_b32 s50, s20, 2")
    a("s_add_u32 s50, s50, 0x%x", RDY)
    a("v_mov_b32 v15, s50")
    a("v_mov_b32 v5, %d", L_FL)
    a("s_and_b32 s50, s20, 3")
    a("s_lshl_b32 s50, s50, 13")
    a("v_lshlrev_b32 v23, 7, v1")
    a("v_add_u32 v23, s50, v23")
    a("v_and_b32 v24, 0x3fff, v23")
    a("v_lshrrev_b32 v25, 2, v1")
    a("v_lshlrev_b32 v25, 13, v25")
    a("v_and_b32 v26, 3, v1")
    a("v_lshl_add_u32 v25, v26, 7, v25")
    a("s_lshl_b32 s50, s22, 17")
    a("v_add_u32 v25, s50, v25")
    for i in range(16):
        vwait(i)
        if i == ct[0]: code_touch(a, "LA_m7", 1, 24, 21); vq.append("T")
        if i == max(n0, 4): pt.nonce_put(a, abort)
        if i & 1: a("ds_write_b32 v5, v5 offset:%d", 4 * (i >> 1))
        upto = min(16, i + 1 + ramp.get(i, DEP))
        while issued[0] < upto: half(issued[0]); issued[0] += 1
        if qt <= i < qt + 6:
            add64(a, 34, 30, imm=(i - qt + 1) << 18)
            a("global_load_dword v21, v25, s[34:35]"); vq.append("T")
    def bpoll():
        a("global_load_dwordx2 v[16:17], v13, s[4:5] sc1")
        a("s_sub_u32 s25, s25, 1")
        a("s_cbranch_scc1 %s", abort)
        a("s_waitcnt vmcnt(0)")
        a("v_cmp_eq_u32 vcc, s19, v17")
        a("s_or_b32 vcc_lo, vcc_lo, 0x88888888")
        a("s_or_b32 vcc_hi, vcc_hi, 0x88888888")
        a("v_cmp_eq_u32 s[50:51], s19, v16")
        a("s_and_b64 s[50:51], s[50:51], vcc")
        a("v_mov_b32 v16, s50")
        a("v_mov_b32 v17, s51")
        a("ds_write_b64 v5, v[16:17] offset:384")
    def prog(row, l):
        a("ds_read_b32 v6, v11 offset:%d", 32 * row)
        a("s_waitcnt lgkmcnt(0)")
        a("v_cmp_eq_u32 vcc, 0, v6")
        a("s_cbranch_vccnz %s", l)
    for k in range(8, 14):
        l = "LA_f%d" % k
        a("s_branch %sa", l)
        a.label(l)
        bpoll()
        for kk in range(max(8, k - 2), k): a("ds_write_b32 v5, v5 offset:%d", 4 * kk)
        a.label(l + "a")
        prog(k - 8, l)
        if k == 8:
            a("s_or_b32 s50, s19, s17")
            a("v_mov_b32 v16, s50")
            a("s_mov_b64 exec, 1")
            a("global_store_dword v15, v16, s[4:5] sc1")
            a("s_mov_b64 exec, -1")
        if k >= 10:
            a("s_waitcnt vmcnt(16)")
            a("ds_write_b32 v5, v5 offset:%d", 4 * (k - 2))
        if k == ct[1]: code_touch(a, "LA_e0", 1, 23, 21)
        half(2 * k); half(2 * k + 1)
    a("s_waitcnt vmcnt(16)")
    a("ds_write_b32 v5, v5 offset:48")
    a.label("LA_p")
    bpoll()
    a("ds_write_b32 v5, v5 offset:52")
    a("s_cmp_eq_u32 s23, 0")
    a("s_cbranch_scc1 LA_q")
    a("s_cmp_eq_u64 s[50:51], -1")
    a("s_cbranch_scc0 LA_p")
    a.label("LA_p2")
    a("s_sub_u32 s25, s25, 1")
    a("s_cbranch_scc1 %s", abort)
    prog(6, "LA_p2")
    def pol2():
        a("global_load_dwordx2 v[18:19], v12, s[4:5] sc1")
        a("global_load_dword v20, v14, s[4:5] sc1")
    pol2()
    bload(range(6))
    bload(hi)
    if touch:
        a("s_mul_i32 s50, s61, 14336")
        a("s_add_u32 s50, s50, %d", 3 * 14 * 56 * 1024 + 1024 - 7168)
        a("s_sub_u32 s34, s80, s50")
        a("s_subb_u32 s35, s81, 0")
        for qq in range(3):
            for i in range(2):
                a("global_load_dword v21, v9, s[34:35] sc1")
                a("s_add_u32 s34, s34, %d", 28672 if i < 1 else 14 * 56 * 1024 - 28672); a("s_addc_u32 s35, s35, 0")
    a("s_waitcnt vmcnt(%d)", 28 + 6 * touch)
    a("s_branch LA_q1")
    a.label("LA_q")
    pol2()
    a("s_sub_u32 s25, s25, 1")
    a("s_cbranch_scc1 %s", abort)
    a("s_waitcnt vmcnt(0)")
    a.label("LA_q1")
    a("v_and_b32 v22, -2, v20")
    allnon(a, [18, 19, 22])
    a("v_cmp_ne_u32 vcc, 0, v18")
    a("s_cbranch_vccnz LA_q")
    a("v_cmp_ne_u32 vcc, s19, v20")
    a("s_or_b32 s50, vcc_lo, vcc_hi")
    a("s_cselect_b32 s50, 3, 1")
    a("v_mov_b32 v7, s50")
    a("ds_write2_b32 v5, v7, v7 offset0:%d offset1:%d", 16 + 7 * 8 + 7, 16 + 8 * 8 + 7)
    a("s_lshr_b32 s97, s50, 1")
    a("s_setprio 0")
    sconst()
    a("s_waitcnt lgkmcnt(0)")
    a.label("LA_end")

SM = "v_smfmac_f32_16x16x64_f16 %s, %s, %s, v5"
def emit_chain(a, prof=False, nv=64, ns=(0, 0, 0, 0), bpos=9, nb2=4, nb3=8, gpos=13, g2=1, pdel=1, p2=1, flag=1, fpos=5, dep=6, dep2=7, nb7=0, xp=0, abort="CH_abort", merged=True, dbgout=0, k0=1, pd=3, touch=1, rdep=8, bands=(), ni=4, ramp={0: 3, 1: 4, 2: 3}, pa=1, p7=0, ctouch=1, rot=1, bp=(-1, -1, -1, -1), n0=4, ct=(-1, -1), qt=99, fin=3):
    P = Prof(a, prof)
    npf = nv + sum(ns)
    def spf(w):
        o = nv + sum(ns[:w - 4])
        for i in range(ns[w - 4]): a("s_load_dword s96, s[54:55], %d", (o + i) * 128)
    MODE = {"ST": "", "PX": ""}
    a.c("---- chain, role s20")
    a("s_lshr_b32 s21, s20, 1")
    a("s_and_b32 s22, s20, 1")
    a("s_cmp_lt_u32 s20, 28")
    a("s_cselect_b32 s23, 1, 0")
    a("s_mov_b32 s25, 0x100000")
    a("s_and_b32 s60, s14, 3")
    a("s_lshr_b32 s61, s14, 2")
    a("s_xor_b32 s61, s61, s22")
    a("s_xor_b32 s61, s61, 1")
    def breg(n): return BW + n * 8 if n < 6 else 32 + (n - 6) * 8
    def bload(ns_):
        for n in ns_:
            for w in range(2):
                b = 80 + 4 * (n & 1) + 2 * w
                a("global_load_dwordx4 %s, v2, s[%d:%d] offset:%d sc1", vr(breg(n) + w * 4, 4), b, b + 1, (n >> 1) * 1024 - 4096)
    hi = [10, 11, 12, 13, 6, 7, 8, 9]
    def sconst():
        a("s_mov_b32 s46, 0x00ff00ff")
        a("s_mov_b32 s47, 0x00ff00ff")
        add64(a, 26, 4, imm=MEMR)
        add64(a, 28, 4, imm=SR)
        for r in (30, 32, 58): a("s_mov_b64 s[%d:%d], s[26:27]", r, r + 1)
        for r in (34, 36): a("s_mov_b64 s[%d:%d], s[28:29]", r, r + 1)
        a("s_mul_i32 s42, s22, 7168")
        a("s_and_b32 s43, s14, 1")
        a("s_xor_b32 s43, s43, 1")
        a("s_mul_i32 s43, s43, 14336")
        a("s_add_u32 s42, s42, s43")
        a("s_add_u32 s42, s42, 0x%x", XF + 4096)
        add64(a, 42, 4, off_sgpr=42)
        a("s_sub_u32 s44, s20, 28")
        a("s_max_i32 s44, s44, 0")
        a("s_mul_i32 s44, s44, 7168")
        a("s_add_u32 s44, s44, 0x%x", XF + 2 * 28 * 1024)
        add64(a, 44, 4, off_sgpr=44)
        a("s_mov_b32 s24, 0")
        a("s_mov_b64 s[62:63], 0")
        a("s_min_u32 s38, s20, 27")
        a("s_mul_i32 s38, s38, %d", 16 * 1024)
        a("s_add_u32 s38, s38, 0x%x", UF)
        add64(a, 38, 4, off_sgpr=38)
        a("s_lshl_b32 s40, s21, 13")
        a("s_lshl_b32 s41, s22, 11")
        a("s_add_u32 s40, s40, s41")
        a("s_add_u32 s40, s40, 0x%x", TBX - 28 * 4096 + 2048)
        add64(a, 40, 4, off_sgpr=40)
        add64(a, 48, 4, imm=MEMX)
        a("s_mov_b64 s[54:55], s[38:39]")
        a("s_sub_u32 s56, s20, 28")
        a("s_max_i32 s56, s56, 0")
        a("s_mul_i32 s56, s56, %d", 7 * 16384)
        a("s_add_u32 s56, s56, 0x%x", UF + 2 * 28 * 16 * 1024)
        add64(a, 56, 4, off_sgpr=56)
        add64(a, 52, 4, imm=UFL)
    local_a(a, prof, abort, bload, hi, k0, pd, touch, rdep, bands, ni, ramp, pa, p7, sconst, rot, bp, n0, ct, qt)
    def TS(k):
        if prof == 4: a("s_memrealtime s[%d:%d]", 64 + 2 * k, 65 + 2 * k)
    TS(0)
    a("s_min_u32 s50, s14, 6")
    a("s_lshl_b32 s50, s50, 10")
    a("v_add_u32 v14, s50, v2")
    a("s_sub_u32 s50, s14, 3")
    a("s_cmp_ge_u32 s50, 4")
    a("s_cbranch_scc1 CH_m0")
    a("v_bfe_u32 v16, v14, 4, 3")
    a("v_mul_u32_u24 v16, 896, v16")
    a("v_lshrrev_b32 v17, 9, v14")
    a("v_lshl_add_u32 v16, v17, 6, v16")
    a("v_bfe_u32 v17, v14, 7, 1")
    a("v_lshl_add_u32 v16, v17, 5, v16")
    a("v_bfe_u32 v17, v14, 8, 1")
    a("v_lshl_add_u32 v16, v17, 3, v16")
    a("global_load_dwordx2 v[20:21], v16, s[12:13]")
    a("global_load_dwordx2 v[22:23], v16, s[12:13] offset:16")
    a("s_cmp_eq_u32 s14, 3")
    a("s_cbranch_scc1 CH_m0")
    a("global_load_dwordx2 v[24:25], v16, s[12:13] offset:-512")
    a("global_load_dwordx2 v[26:27], v16, s[12:13] offset:-496")
    a.label("CH_m0")
    a("v_bfe_u32 v5, v4, 1, 1")
    a("v_mul_u32_u24 v5, 0xaaaa, v5")
    a("v_add_u32 v5, 0x4444, v5")
    a("v_lshrrev_b32 v6, 2, v4")
    a("v_lshlrev_b32 v6, 1, v6")
    a("v_and_b32 v7, 1, v4")
    a("v_add_u32 v6, v6, v7")
    a("v_lshlrev_b32 v6, 4, v6")
    a("v_lshl_add_u32 v6, v3, 7, v6")
    a("s_mul_i32 s50, s61, 3584")
    a("v_add_u32 v6, s50, v6")
    a("v_lshrrev_b32 v7, 2, v4")
    a("v_lshlrev_b32 v7, 7, v7")
    a("v_lshl_add_u32 v7, v3, 5, v7")
    a("v_and_b32 v8, 3, v4")
    a("v_lshl_add_u32 v7, v8, 2, v7")
    a("s_lshl_b32 s50, s14, 9")
    a("s_add_u32 s50, s50, %d", L_TAI)
    a("v_add_u32 v7, s50, v7")
    a("s_lshl_b32 s50, s60, 10")
    a("s_add_u32 s50, s50, %d", L_TB1)
    a("v_add_u32 v12, s50, v2")
    a("s_cmp_ge_u32 s14, 4")
    a("s_cbranch_scc1 CH_c4")
    a("s_lshr_b32 s50, s60, 1")
    a("s_lshl_b32 s50, s50, 10")
    a("s_and_b32 s51, s60, 1")
    a("s_lshl_b32 s51, s51, 3")
    a("s_add_u32 s50, s50, s51")
    a("s_add_u32 s50, s50, %d", L_TB2)
    a("v_add_u32 v8, s50, v2")
    a("s_lshl_b32 s50, s60, 10")
    a("s_add_u32 s50, s50, %d", L_RED)
    a("v_lshlrev_b32 v9, 2, v1")
    a("v_add_u32 v9, s50, v9")
    a("s_lshl_b32 s50, s22, 2")
    a("s_add_u32 s50, s50, s60")
    a("s_lshl_b32 s51, s50, 11")
    a("v_add_u32 v10, s51, v2")
    a("s_lshl_b32 s51, s50, 9")
    a("s_add_u32 s51, s51, 16384")
    a("v_lshlrev_b32 v11, 2, v1")
    a("v_add_u32 v11, s51, v11")
    a("s_lshl_b32 s50, s60, 12")
    a("v_add_u32 v13, s50, v2")
    a("s_branch CH_c5")
    a.label("CH_c4")
    a("v_mov_b32 v11, 0")
    a("v_and_b32 v16, 7, v4")
    a("s_cmp_eq_u32 s14, 5")
    a("s_cselect_b64 vcc, -1, 0")
    a("v_lshlrev_b32 v8, 4, v16")
    a("v_lshl_add_u32 v17, v3, 7, v8")
    a("v_and_b32 v18, 1, v3")
    a("v_lshl_add_u32 v8, v18, 8, v8")
    a("v_lshrrev_b32 v18, 1, v3")
    a("v_lshl_add_u32 v8, v18, 3, v8")
    a("v_cndmask_b32 v8, v17, v8")
    a("v_add_u32 v8, %d, v8", L_TAI)
    a("v_lshrrev_b32 v17, 1, v16")
    a("v_lshlrev_b32 v17, 2, v17")
    a("v_and_b32 v18, 1, v16")
    a("v_add_u32 v17, v17, v18")
    a("s_and_b32 s50, s21, 1")
    a("s_lshl_b32 s50, s50, 1")
    a("v_add_u32 v17, s50, v17")
    a("s_lshr_b32 s50, s21, 1")
    a("s_lshl_b32 s50, s50, 1")
    a("s_add_u32 s50, s50, s22")
    a("s_lshl_b32 s51, s50, 1")
    a("s_add_u32 s51, s51, 7")
    a("s_sub_u32 s51, s51, s14")
    a("s_lshl_b32 s51, s51, 9")
    a("v_lshlrev_b32 v9, 4, v17")
    a("v_lshrrev_b32 v18, 1, v3")
    a("v_lshl_add_u32 v9, v18, 8, v9")
    a("v_and_b32 v18, 1, v3")
    a("v_lshl_add_u32 v9, v18, 3, v9")
    a("v_add_u32 v9, s51, v9")
    a("s_lshl_b32 s51, s50, 8")
    a("s_add_u32 s51, s51, 16384")
    a("v_lshl_add_u32 v17, v3, 4, v17")
    a("v_lshlrev_b32 v18, 2, v17")
    a("v_add_u32 v18, s51, v18")
    a("v_cndmask_b32 v9, v9, v18")
    a("v_bfe_u32 v13, v1, 1, 1")
    a("v_lshlrev_b32 v13, 7, v13")
    a("v_and_b32 v16, 1, v1")
    a("v_lshl_add_u32 v13, v16, 3, v13")
    a("v_bfe_u32 v16, v1, 2, 2")
    a("v_lshl_add_u32 v13, v16, 5, v13")
    a("v_lshrrev_b32 v16, 5, v1")
    a("v_lshl_add_u32 v13, v16, 4, v13")
    a("v_bfe_u32 v16, v1, 4, 1")
    a("v_lshl_add_u32 v13, v16, 8, v13")
    a("s_mul_i32 s50, s22, 7168")
    a("s_lshl_b32 s51, s21, 9")
    a("s_add_u32 s50, s50, s51")
    a("v_add_u32 v13, s50, v13")
    a("v_min_u32 v10, %d, v1", max(nv - 1, 0))
    a("v_lshlrev_b32 v10, 7, v10")
    a("v_add_u32 v16, 2048, v8")
    a("v_cndmask_b32 v10, v10, v16")
    a.label("CH_c5")
    a("s_mul_i32 s50, s61, 7168")
    a("s_sub_u32 s50, 3584, s50")
    a("v_add_u32 v3, s50, v6")
    a("s_lshl_b32 s50, s20, 7")
    a("s_add_u32 s50, s50, %d", 192 * 1024)
    a("v_mov_b32 v4, s50")
    a("s_cmp_lg_u32 s23, 0")
    a("s_cbranch_scc1 CH_hs")
    NL = max(128 - npf, 1); NHP = (7 * NL + 319) // 320
    a("s_and_b32 s50, s20, 1")
    a("s_lshl_b32 s50, s50, 2")
    a("s_add_u32 s50, s50, s60")
    a("s_min_u32 s50, s50, 6")
    a("s_lshl_b32 s50, s50, 10")
    a("v_lshrrev_b32 v4, 5, v1")
    a("v_lshlrev_b32 v4, 9, v4")
    a("v_bfe_u32 v16, v1, 4, 1")
    a("v_lshl_add_u32 v4, v16, 7, v4")
    a("v_and_b32 v16, 7, v1")
    a("v_lshl_add_u32 v4, v16, 4, v4")
    a("v_bfe_u32 v16, v1, 3, 1")
    a("v_lshl_add_u32 v4, v16, 3, v4")
    a("v_add_u32 v4, s50, v4")
    a("v_add_u32 v13, s50, v2")
    a("s_sub_u32 s50, s20, 28")
    a("s_lshl_b32 s50, s50, 7")
    a("s_add_u32 s50, s50, %d", 192 * 1024)
    a("v_mov_b32 v11, s50")
    a("s_cmp_lg_u32 s14, 7")
    a("s_cbranch_scc1 CH_h7")
    a("v_min_u32 v10, 55, v1")
    a("v_lshlrev_b32 v10, 7, v10")
    a.label("CH_h7")
    for i in range(NHP):
        a("s_min_u32 s50, s14, 4")
        a("s_add_u32 s50, s50, %d", 5 * i)
        a("s_lshl_b32 s50, s50, 6")
        a("v_add_u32 v16, s50, v1")
        a("v_min_u32 v16, %d, v16", 7 * NL - 1)
        a("v_cvt_f32_u32 v17, v16")
        a("v_add_f32 v17, 0.5, v17")
        a("v_mul_f32 v17, %s, v17", f32(1.0 / NL))
        a("v_cvt_u32_f32 v17, v17")
        a("v_mul_u32_u24 v18, %d, v17", NL)
        a("v_sub_u32 v16, v16, v18")
        a("v_add_u32 v16, %d, v16", 128 - NL)
        a("v_lshlrev_b32 v16, 7, v16")
        a("v_lshl_add_u32 v%d, v17, 14, v16", BW + i)
    a.label("CH_hs")
    XR = EX; UR = EX; GX = EX + 16; GM = EX + 24
    def xload():
        for k in range(7):
            a("global_load_dwordx4 %s, v2, s[42:43] offset:%d sc1", vr(XR + 4 * k, 4), k * 1024 - 4096)
    a("s_mul_i32 s50, s14, %d", BWSZ)
    a("s_add_u32 s50, s50, %d", L_BW)
    a("v_add_u32 v15, s50, v2")
    a("v_min_u32 v16, 55, v1")
    a("v_lshlrev_b32 v16, 4, v16")
    a("v_and_b32 v30, 7, v1")
    a("v_lshlrev_b32 v30, 2, v30")
    a("v_add_u32 v30, %d, v30", L_FL + 64 + 8 * 32)
    a("s_cmp_ge_u32 s14, 3")
    a("s_cselect_b32 s50, 32, 0")
    a("v_subrev_u32 v31, s50, v30")
    X = "CI"
    def skip(cond, l):
        a({"noA": "s_cmp_eq_u32 s14, 7", "noB": "s_cmp_eq_u32 s23, 0"}[cond])
        a("s_cbranch_scc1 %s%s", X, l)
    def row(v):
        l = a.newlabel("CR")
        a.label(l)
        a("ds_read_b32 v28, v%d", v)
        a("s_sub_u32 s25, s25, 1")
        a("s_cbranch_scc1 %s", abort)
        a("s_waitcnt lgkmcnt(0)")
        a("v_cmp_eq_u32 vcc, 0, v28")
        a("s_cbranch_vccnz %s", l)
    TS(1)
    skip("noA", "c1")
    row(31)
    a("v_readlane_b32 s97, v28, 7")
    a("s_lshr_b32 s97, s97, 1")
    TS(2)
    for c in range(2):
        a.label(X + "c%d" % c)
        skip("noB", "h")
        a("s_waitcnt vmcnt(16)")
        for n in range(6): interleave(a, breg(n))
        TS(3)
        for i, n in enumerate(hi):
            a("s_waitcnt vmcnt(%d)", 14 - 2 * i)
            b = breg(n)
            if c:
                for d in range(8): a("v_mov_b32 v%d, v%d", AW + 8 * (n - 6) + d, b + (d >> 1) + 4 * (d & 1))
            else:
                interleave(a, b)
                for hf in range(2):
                    a("ds_write_b128 v15, %s offset:%d", vr(b + 4 * hf, 4), (n - 6) * 2048 + hf * 1024)
        if c == 0: a("s_branch %sh", X)
    a.label(X + "h")
    TS(4)
    a("s_cmp_lt_u32 s14, 3")
    a("s_cbranch_scc1 CI2")
    a("s_waitcnt lgkmcnt(0)")
    a("s_cmp_lt_u32 s14, 6")
    a("s_cbranch_scc1 CIx")
    xload()
    a.label("CIx")
    a("s_cmp_lg_u32 s60, 3")
    a("s_cbranch_scc1 CIu")
    a("s_cmp_lg_u32 s14, 7")
    a("s_cbranch_scc1 CIt")
    a("s_mul_i32 s50, s20, 5120")
    add64(a, 50, 26, off_sgpr=50)
    a("v_min_u32 v19, 39, v1")
    a("v_lshlrev_b32 v19, 7, v19")
    a("global_load_dword v29, v19, s[50:51] sc1")
    if ctouch: code_touch(a, "CI2", 0, 23, 29)
    a.label("CIt")
    a("s_lshr_b32 s50, s14, 2")
    a("s_lshl_b32 s50, s50, 12")
    a("v_add_u32 v17, s50, v16")
    a.label("CH_t0")
    for k in range(4): a("global_load_dwordx4 %s, v17, s[52:53] offset:%d sc1", vr(32 + 4 * k, 4), 1024 * k)
    a("s_sub_u32 s25, s25, 1")
    a("s_cbranch_scc1 %s", abort)
    a("s_waitcnt vmcnt(0)")
    allnon(a, list(range(32, 48)))
    a("v_cmp_ne_u32 vcc, 0, v32")
    a("s_cbranch_vccnz CH_t0")
    a.label("CIu")
    row(30)
    a("s_cmp_eq_u32 s14, 7")
    a("s_cbranch_scc1 CI2")
    a("s_waitcnt vmcnt(0)")
    def m0cvt(r):
        for d in range(4):
            a("v_lshlrev_b32 v18, 16, v%d", r + d)
            a("v_and_b32 v%d, 0xffff0000, v%d", r + d, r + d)
            a("v_cvt_pk_f16_f32 v%d, v18, v%d", r + d, r + d)
    m0cvt(20)
    a("ds_write_b128 v14, v[20:23]")
    a("s_cmp_eq_u32 s14, 3")
    a("s_cbranch_scc1 CI2")
    m0cvt(24)
    a("v_subrev_u32 v18, 4096, v14")
    a("ds_write_b128 v18, v[24:27]")
    a.label("CI2")
    a("v_mov_b32 v0, 0")
    a("s_waitcnt vmcnt(0) lgkmcnt(0)")
    if prof == 4:
        a("s_memrealtime s[94:95]")
        for w, r in ((4, 90), (2, 92), (6, 78)):
            a("s_cmp_eq_u32 s14, %d", w)
            a("s_cselect_b32 s98, s%d, s98", r)
    if prof == 4:
        TS(5)
        a("s_waitcnt lgkmcnt(0)")
        for k in range(6): a("v_writelane_b32 v24, s%d, %d", 64 + 2 * k, k + 1)
        a("v_writelane_b32 v24, s92, 0")
        a("v_writelane_b32 v24, s94, 7")
        a("v_writelane_b32 v24, s76, 8")
        a("v_writelane_b32 v24, s90, 9")
        a("s_lshl_b32 s50, s20, 3")
        a("s_add_u32 s50, s50, s14")
        a("s_lshl_b32 s50, s50, 8")
        a("s_add_u32 s50, s50, 0x%x", POIS_END + 0x300000)
        a("v_lshlrev_b32 v25, 2, v1")
        a("v_add_u32 v25, s50, v25")
        a("global_store_dword v25, v24, s[4:5]")
    a("v_mov_b32 v%d, v16", STG + 8)
    for i in range(8): a("v_mov_b32 v%d, s19", STG + i)
    def slotptr(d, base, delta, stride):
        a("s_add_u32 s50, s24, %d", delta)
        a("s_and_b32 s50, s50, 3")
        a("s_mul_i32 s50, s50, %d", stride)
        add64(a, d, base, off_sgpr=50)
    def adv(r, n):
        if (xp & 1) and r in (38, 42, 44, 54, 56): return
        a("s_add_u32 s%d, s%d, %d", r, r, n); a("s_addc_u32 s%d, s%d, 0", r + 1, r + 1)
    def ptrs(w, first=False):
        if w != 4: slotptr(34, 28, 0, SR_STRIDE)
        if w >= 5: slotptr(36, 28, 3, SR_STRIDE)
        slotptr(30, 26, 1, MEMR_STRIDE)
        if w == 6: slotptr(32, 26, 3, MEMR_STRIDE)
        if w >= 6: adv(42, 28 * 1024)
        if w >= 4: adv(54, 28 * 16384)
        if first: return
        if w < 4: adv(38, 28 * 16384); adv(48, 8192)
        if w == 7: adv(40, 28 * 4096); adv(44, 28 * 1024)
        if w <= 4: adv(56, 28 * 16384)
    G1 = (GX, GX + 4, GM, GM + 1); G2 = (MFR + 24, STG + 12, EX + 26, EX + 27)
    def gather(G=G1):
        a("global_load_dwordx4 %s, v10, s[34:35] sc1", vr(G[0], 4))
        a("global_load_dwordx4 %s, v10, s[34:35] offset:1024 sc1", vr(G[1], 4))
        a("global_load_dword v%d, v11, s[34:35] sc1", G[2])
        a("global_load_dword v%d, v11, s[34:35] offset:256 sc1", G[3])
    def zero(r, n=4):
        for i in range(n): a("v_mov_b32 v%d, 0", r + i)
    def memx():
        a("ds_read2_b64 %s, v4 offset0:0 offset1:32", vr(STG, 4))
        a("s_waitcnt lgkmcnt(0)")
        a("global_store_dwordx4 v13, %s, s[48:49] sc1", vr(STG, 4))
    def tbx_read(d):
        for k in range(4):
            a("ds_read_b128 %s, v2 offset:%d", vr(d + 4 * k, 4), L_TB2 + k * 1024)
    def tbx_store(d):
        for k in range(4):
            a("global_store_dwordx4 v2, %s, s[40:41] offset:%d sc1", vr(d + 4 * k, 4), (k >> 1) * 4096 + (k & 1) * 1024 - 2048)

    class TB:
        def __init__(self, w, q):
            self.w = w; self.q = q
            self.loc = {n: BW + 8 * n for n in range(6)}
            if w == 7:
                for n in range(6, 14): self.loc[n] = AW + 8 * (n - 6)
                self.pend = []; self.order = list(range(14))
            else:
                self.pend = list(range(6, 14))
                self.order = [6, 0, 7, 1, 8, 2, 9, 3, 10, 4, 11, 5, 12, 13]
            self.lds = set(self.pend); self.pos = 0
        def stage(self, slot):
            if not self.pend: return
            n = self.pend.pop(0); self.loc[n] = slot
            for hf in range(2):
                self.q.issue(("B", n), "ds_read_b128 %s, v15 offset:%d", vr(slot + 4 * hf, 4), (n - 6) * 2048 + hf * 1024)
        def late(self):
            self.order = [0, 1, 2, 6, 3, 7, 4, 8, 5, 9, 10, 11, 12, 13]
        def run(self, upto, hooks={}):
            while self.pos < upto:
                n = self.order[self.pos]
                self.q.wait(("M", n >> 1))
                if n in self.lds: self.q.wait(("B", n))
                a(SM, vr(ACC1 if n & 1 else ACC0, 4), vr(MFR + 4 * (n >> 1), 4), vr(self.loc[n], 8))
                if n in self.lds: self.stage(self.loc[n])
                if self.pos in hooks: hooks[self.pos]()
                self.pos += 1
    TBO = MFR; TPR = MFR + 8; PX = MFR + 12; PM = MFR + 16; T0 = MFR + 18; T1 = MFR + 19; RZ = MFR + 20
    ONE = STG; ZA = STG + 8
    def tb_cvt(d):
        for b, acc in enumerate((ACC0, ACC1)):
            a("v_cvt_pk_f16_f32 v%d, v%d, v%d", d + 2 * b, acc, acc + 1)
            a("v_cvt_pk_f16_f32 v%d, v%d, v%d", d + 2 * b + 1, acc + 2, acc + 3)
    def tb_give(d=TBO):
        tb_cvt(d)
        a("ds_write_b128 v12, %s", vr(d, 4))
        a("s_waitcnt lgkmcnt(0)")
        P("TB done")
    def tb_take1():
        a("s_barrier")
        a("ds_read_b128 %s, v12", vr(TPR, 4))
    def tb_take2():
        a("s_waitcnt lgkmcnt(0)")
        for d in range(4): a("v_pk_add_f16 v%d, v%d, v%d", TBO + d, TBO + d, TPR + d)
    def tb_take3():
        for b in range(2): a("ds_write_b64 v8, %s offset:%d", vr(TBO + 2 * b, 2), b * 2048)
    def mread(q, n):
        q.issue(("O", n) if n < 7 else ("M", n - 7), "ds_read_b128 %s, v%d offset:%d", vr(MFR + 4 * (n % 7), 4), 3 if n < 7 else 6, (n % 7) * 512)

    FLG = 192 * 1024
    class _N:
        def __call__(self, *x): pass
    def wave_loop(w, hp):
        pv = w < 4; N = MODE["PX"] + ("H%d" if hp else "C%d") % w
        ST = MODE["ST"]
        uchk = merged and hp and w == 4
        def ufl_ld(delta):
            a("s_add_u32 s50, s24, %d", delta)
            a("s_min_u32 s50, s50, 63")
            a("s_lshl_b32 s50, s50, 11")
            add64(a, 50, 52, off_sgpr=50)
            for k in range(2): a("global_load_dwordx4 %s, v%d, s[50:51] offset:%d sc1", vr(STG + 4 * k, 4), STG + 8, 1024 * k)
        TA = GX if pv else ACC0
        W7 = AW + 64
        r = {7: W7}.get(w, EX); r2 = r + 8; t = MFR
        pol = w != 6
        tail = []
        def poll(r):
            a("global_load_dwordx4 %s, v14, s[58:59] offset:-3584 sc1", vr(r, 4))
            a("global_load_dwordx4 %s, v14, s[58:59] offset:3584 sc1", vr(r + 4, 4))
        def newtb(q0, q):
            if hp: return None
            tb = TB(w, q0)
            if w < 6: tb.stage(STG); tb.stage(STG + 8)
            tb.q = q
            return tb
        def pre():
            newtb(LQ(a), None)
            if w != 7: zero(TA)
            if (pv or w == 7) and not hp: zero(ACC0); zero(ACC1)
            a("s_setprio 1")
        def mchk(x, lab):
            for d in range(4): a("v_pk_add_f16 v%d, v%d, v%d", t + d, x + d, x + 4 + d)
            a("ds_write_b128 v14, %s", vr(t, 4))
            a("v_pk_maximum3_f16 v%d, v%d, v%d, v%d", t + 4, t, t + 1, t + 2)
            a("v_pk_maximum3_f16 v%d, v%d, v%d, v%d", t + 4, t + 4, t + 3, t + 3)
            a("v_cmp_u_f16 vcc, v%d, v%d", t + 4, t + 4)
            a("s_cbranch_vccnz %s", lab)
        a.label(N + "_entry")
        if w == 6 and not hp: add64(a, 48, 4, imm=MEMP)
        if w == 7 and hp and (fin & 4):
            a("s_getpc_b64 s[48:49]")
            a.label(N + "_pc")
            a("s_sub_u32 s48, s48, %s_pc-%sC0_fin", N, MODE["PX"]); a("s_subb_u32 s49, s49, 0")
            a("s_and_b32 s50, s20, 1")
            a("s_lshl_b32 s50, s50, 13")
            a("v_lshlrev_b32 v%d, 7, v1", BW + 30)
            a("v_add_u32 v%d, s50, v%d", BW + 30, BW + 30)
        ptrs(w, True)
        pre()
        a("s_branch %s_top", N)
        a.raw(".p2align 6")
        a.label(N + "_loop")
        if pol:
            a("s_waitcnt vmcnt(%d)", 2 if p2 else 0)
            mchk(r, N + "_mre")
            def mre():
                a.label(N + "_mre")
                poll(r)
                P("M re")
                if prof: a("s_add_u32 s62, s62, 1")
                a("s_sub_u32 s25, s25, 1")
                a("s_cbranch_scc1 %s", abort)
                if p2:
                    a("s_waitcnt vmcnt(2) lgkmcnt(0)")
                    mchk(r2, N + "_mre2")
                    a("s_branch %s_got", N)
                    a.label(N + "_mre2")
                    poll(r2)
                a("s_waitcnt lgkmcnt(0)")
                a("s_branch %s_loop", N)
            tail.append(mre)
        else:
            if fin & 1:
                a("s_cmp_eq_u32 s24, 63")
                a("s_cbranch_scc1 %s_top", N)
            a("s_waitcnt vmcnt(0)")
        a.label(N + "_got")
        P("mem got")
        a.label(N + "_top")
        a("s_cmp_eq_u32 s24, 63")
        a("s_waitcnt lgkmcnt(0)")
        a("s_barrier")
        P("top")
        a("s_cbranch_scc1 %s_fin", N)
        q = LQ(a)
        tb = newtb(LQ(_N()), q)
        if w != 7:
            dp = dep if pv else dep2
            for n in range(dp): mread(q, n)
            for n in range(14):
                if n == 0: P("a pre")
                q.wait(("O", n) if n < 7 else ("M", n - 7))
                a(SM, vr(TA, 4), vr(MFR + 4 * (n % 7), 4), vr(AW + n * 8, 8))
                if n in (0, 2, 4, 6, 8, 10, 13): P("a%d" % n)
                if n + dp < 14: mread(q, n + dp)
            if pv and not hp:
                for k in range(2): a("global_load_dwordx4 %s, v13, s[38:39] offset:%d sc1", vr(UR + 4 * k, 4), k * 1024)
            a("v_cvt_pk_f16_f32 v%d, v%d, v%d", TA, TA, TA + 2)
            a("v_cvt_pk_f16_f32 v%d, v%d, v%d", TA + 1, TA + 1, TA + 3)
            q.issue("T", "ds_write2_b32 v7, v%d, v%d offset0:0 offset1:4", TA, TA + 1)
            if pv:
                a("s_setprio 0")
                if hp:
                    if not (xp & 2): memx()
                else:
                    for k in range(2, 4): a("global_load_dwordx4 %s, v13, s[38:39] offset:%d sc1", vr(UR + 4 * k, 4), k * 1024)
                    tb.run(nb2)
            if uchk:
                a.label(N + "_uc")
                allnon(a, [STG + i for i in range(8)])
                a("v_cmp_ne_u32 vcc, 0, v%d", STG)
                a("s_cbranch_vccnz %s_ure", N)
                def ure():
                    a.label(N + "_ure")
                    ufl_ld(3)
                    a("s_sub_u32 s25, s25, 1")
                    a("s_cbranch_scc1 %s", abort)
                    a("s_waitcnt vmcnt(0)")
                    a("s_branch %s_uc", N)
                tail.append(ure)
            q.wait("T")
            if w == 5: a("s_waitcnt vmcnt(0)")
        elif hp:
            a("global_load_dword v%d, v10, s[44:45] sc1", BW + 28)
            if fin & 4: a("global_load_dword v%d, v%d, s[48:49]", BW + 29, BW + 30)
        else:
            a("s_setprio 0")
            if nv > 0: a("global_load_dword v4, v10, s[54:55] sc1")
            tbx_read(STG)
            a("s_waitcnt lgkmcnt(0)")
            if not (xp & 2): tbx_store(STG)
            for n in range(7, 14): mread(q, n)
            tb.run(nb7)
        P("TA done")
        a("s_barrier")
        P("bar2")
        def pubS():
            a("s_barrier")
            P("pubS")
        def gath():
            P("G iss")
            gather()
        if w >= 5:
            a("s_setprio %d", p7)
            ring = {5: [EX + 4 * k for k in range(7)], 6: [STG, STG + 4, STG + 8, STG + 12, ACC1], 7: [W7 + 16 + 4 * k for k in range(7)]}[w]
            SA = W7 + 44 if w == 7 else ACC0
            D = len(ring)
            def trd(k):
                if w == 5: q.issue(("S", k), "ds_read2_b64 %s, v%d offset0:%d offset1:%d", vr(ring[k], 4), 8 if k < 4 else 10, (k & 3) * 64, (k & 3) * 64 + 16)
                else: q.issue(("S", k), "ds_read_b128 %s, v8 offset:%d", vr(ring[k % D], 4), k * 512)
            for k in range(min(D, 7)): trd(k)
            for k in range(7):
                q.wait(("S", k))
                a("v_mfma_f32_16x16x32_f16 %s, %s, %s, %s", vr(SA, 4), vr((MFR if w == 5 else XR) + 4 * k, 4), vr(ring[k % D], 4), vr(SA, 4) if k else "0")
                if k + D < 7: trd(k + D)
            o = ring[2]
            a("s_mov_b64 exec, s[46:47]")
            a("v_mov_b32 v%d, -1", o + 2)
            if w == 5:
                a("v_cvt_pk_f16_f32 v%d, v%d, v%d", o, ACC0, ACC0 + 1)
                a("global_store_dword v9, v%d, s[34:35] %s", o, ST)
                a("global_store_dword v9, v%d, s[36:37] %s", o + 2, ST)
            else:
                a("v_mov_b32 v%d, -1", o + 3)
                a("v_cvt_pk_f16_f32 v%d, v%d, v%d", o, SA, SA + 1)
                a("v_cvt_pk_f16_f32 v%d, v%d, v%d", o + 1, SA + 2, SA + 3)
                a("global_store_dwordx2 v9, %s, s[34:35] %s", vr(o, 2), ST)
                a("global_store_dwordx2 v9, %s, s[36:37] %s", vr(o + 2, 2), ST)
            a("s_mov_b64 exec, -1")
            a("s_setprio 0")
            P("S pub")
            pubS()
            if not hp:
                if w == 6: tb.stage(STG)
                if w < 7: zero(ACC0); zero(ACC1)
                if w == 6:
                    tb.late()
                    tb.stage(STG + 8)
                tb.run(14)
                tb_give()
                a("s_barrier")
                if w >= 6: xload()
                if w != 6: spf(w)
        elif hp:
            if w == 4: a("s_setprio 0")
            pubS()
        elif pv: tb.run(nb3); pubS(); tb.run(14, {gpos: gath})
        else:
            a("s_setprio 0")
            zero(ACC0); zero(ACC1)
            tb.run(14, {bpos: pubS})
            tb_give()
            spf(4)
            a("s_barrier")
        if hp:
            if w <= 4:
                for i in range(NHP): a("global_load_dword v%d, v%d, s[56:57] sc1", EX + i, BW + i)
                if uchk: ufl_ld(4)
            elif w >= 6: xload()
            elif flag:
                for i in range(flag - 1): a("global_load_dword v%d, v11, s[26:27] sc1", EX + i)
                a.label(N + "_fl")
                a("s_sub_u32 s25, s25, 1")
                a("s_cbranch_scc1 %s", abort)
                for i in range(flag):
                    a("global_load_dword v%d, v11, s[26:27] sc1", EX + (i + flag - 1) % flag)
                    a("s_waitcnt vmcnt(%d)", flag - 1)
                    a("v_cmp_gt_i32 vcc, s24, v%d", EX + i)
                    if i < flag - 1: a("s_cbranch_vccz %s_fd", N)
                    else: a("s_cbranch_vccnz %s_fl", N)
                a.label(N + "_fd")
            if flag: a("s_barrier")
        if pv and not hp:
            for i in range(8): a("v_mov_b32 v%d, 0x3c003c00", ONE + i)
            zero(ZA)
            if gpos == 14: gath()
            tb_cvt(TBO)
            zero(TBO + 4, 2); zero(PM + 1, 1)
            zero(ACC0); zero(ACC1)
            if w == 3: a("v_mov_b32 v%d, s24", RZ)
            if gpos == 15: gath()
            if g2: gather(G2)
            P("II")
            def gchk(G, lab):
                for d in range(4): a("v_pk_add_f16 v%d, v%d, v%d", PX + d, G[0] + d, G[1] + d)
                a("v_pk_add_f16 v%d, v%d, v%d", PM, G[2], G[3])
                a("v_pk_maximum3_f16 v%d, v%d, v%d, v%d", T0, PX, PX + 1, PX + 2)
                a("v_pk_maximum3_f16 v%d, v%d, v%d, v%d", T0, T0, PX + 3, PM)
                a("v_pk_maximum3_f16 v%d, v%d, v%d, v%d op_sel:[0,1,0] op_sel_hi:[1,0,1]", T0, T0, T0, T0)
                a("v_mov_b32 v%d, v%d", T1, T0)
                a("v_cmp_u_f16 vcc, v%d, v%d", T0, T0)
                a("v_permlane32_swap_b32 v%d, v%d", T0, T1)
                a("v_pk_max_f16 v%d, v%d, v%d", T0, T0, T1)
                a("v_mov_b32 v%d, v%d", T1, T0)
                a("s_cbranch_vccnz %s", lab)
            a.label(N + "_sp")
            a("s_waitcnt vmcnt(%d)", 4 if g2 else 0)
            gchk(G1, N + "_gre")
            def gre():
                a.label(N + "_gre")
                P("G re")
                if prof: a("s_add_u32 s63, s63, 1")
                gather()
                a("s_sub_u32 s25, s25, 1")
                a("s_cbranch_scc1 %s", abort)
                if g2:
                    a("s_waitcnt vmcnt(4)")
                    gchk(G2, N + "_gre2")
                    a("s_branch %s_sok", N)
                    a.label(N + "_gre2")
                    gather(G2)
                a("s_branch %s_sp", N)
            tail.append(gre)
            a.label(N + "_sok")
            P("S got")
            a("v_permlane16_swap_b32 v%d, v%d", T0, T1)
            a("v_pk_max_f16 v%d, v%d, v%d", T0, T0, T1)
            for x in (PM, PX, PX + 1, PX + 2, PX + 3):
                a("v_pk_add_f16 v%d, v%d, v%d neg_lo:[0,1] neg_hi:[0,1]", x, x, T0)
            nex = [0]
            def ex(x, hi):
                a("v_exp_f16_sdwa v%d, v%d dst_sel:WORD_%d dst_unused:UNUSED_PRESERVE src0_sel:WORD_%d", x, x, hi, hi)
                if w == 3 and flag and nex[0] == fpos: a("global_store_dword v4, v%d, s[26:27] %s", RZ, ST)
                nex[0] += 1
            S2 = "v_smfmac_f32_16x16x32_f16 %s, %s, %s, v5"
            ex(PM, 0); ex(PX, 0)
            tb_take1()
            P("bar3")
            ex(PM, 1); ex(PX + 1, 0); ex(PX, 1)
            a(S2, vr(ZA, 4), vr(PM, 2), vr(ONE, 4))
            ex(PX + 2, 0); ex(PX + 1, 1); ex(PX + 3, 0); ex(PX + 2, 1); ex(PX + 3, 1)
            a(SM, vr(ZA, 4), vr(PX, 4), vr(ONE, 8))
            a(SM, vr(ACC0, 4), vr(PX, 4), vr(UR, 8))
            a(SM, vr(ACC1, 4), vr(PX, 4), vr(UR + 8, 8))
            tb_take2()
            a(S2, vr(ACC0, 4), vr(PM, 2), vr(TBO, 4))
            a(S2, vr(ACC1, 4), vr(PM, 2), vr(TBO + 2, 4))
            for i in range(4): a("v_rcp_f32 v%d, v%d", RZ + i, ZA + i)
            for b, acc in enumerate((ACC0, ACC1)):
                a("v_pk_mul_f32 %s, %s, %s", vr(acc, 2), vr(acc, 2), vr(RZ, 2))
                a("v_pk_fma_f32 %s, %s, %s, %s", vr(acc, 2), vr(acc + 2, 2), vr(RZ + 2, 2), vr(acc, 2))
                a("ds_write2st64_b32 v9, v%d, v%d offset0:%d offset1:%d", acc, acc + 1, b, 2 + b)
            tb_take3()
            a("s_waitcnt lgkmcnt(2)")
            P("red wr")
        if not hp:
            a("s_barrier")
            if w == 6:
                R = MFR
                for k in range(4): a("ds_read_b128 %s, v2 offset:%d", vr(R + 4 * k, 4), L_RED + k * 1024)
                a("v_mov_b32 v%d, -1", R + 16)
                a("v_mov_b32 v%d, -1", R + 17)
                a("s_waitcnt lgkmcnt(2)")
                for d in (0, 2): a("v_pk_add_f32 %s, %s, %s", vr(R + d, 2), vr(R + d, 2), vr(R + 4 + d, 2))
                a("s_waitcnt lgkmcnt(1)")
                for d in (0, 2): a("v_pk_add_f32 %s, %s, %s", vr(R + d, 2), vr(R + d, 2), vr(R + 8 + d, 2))
                a("s_waitcnt lgkmcnt(0)")
                for d in (0, 2): a("v_pk_add_f32 %s, %s, %s", vr(R + d, 2), vr(R + d, 2), vr(R + 12 + d, 2))
                a("v_cvt_pk_f16_f32 v%d, v%d, v%d", R, R, R + 1)
                a("v_cvt_pk_f16_f32 v%d, v%d, v%d", R + 1, R + 2, R + 3)
                a("global_store_dwordx2 v13, %s, s[30:31] %s", vr(R, 2), ST)
                a("global_store_dwordx2 v13, %s, s[32:33] %s", vr(R + 16, 2), ST)
                P("mem pub")
                spf(6)
            a("s_barrier")
            if w == 6:
                a("s_cmp_eq_u32 s24, 62")
                a("s_cselect_b64 exec, -1, 0")
                a("global_store_dwordx2 v13, %s, s[48:49] sc1", vr(MFR, 2))
                a("s_mov_b64 exec, -1")
        a("s_add_u32 s58, s30, 3584"); a("s_addc_u32 s59, s31, 0")
        pd = 0 if hp else pdel
        def p1(): poll(r); P("M iss")
        if pol and pd == 0: p1()
        a("s_add_u32 s24, s24, 1")
        ptrs(w)
        if pol and pd == 1: p1()
        if pv and not hp: a("s_waitcnt vmcnt(%d)", 0 if pd == 2 else 2)
        pre()
        if pol and pd == 2: p1()
        if P.on:
            a("s_waitcnt lgkmcnt(0)")
            P.flush()
        if pol and p2: poll(r2)
        a("s_branch %s_loop", N)
        for f in tail: f()
        a.label(N + "_fin")
        a("s_setprio 0")
        if w != 6 or not (fin & 1): a("s_waitcnt vmcnt(0)")
        if hp:
            if pv: memx()
            a("s_branch CH_fin" if prof else "s_endpgm")
            return
        q = LQ(a)
        tb = newtb(LQ(_N()), q)
        for n in range(7, 14): mread(q, n)
        if pv and (fin & 2): adv(40, 64 * 28 * 4096 - L_TB2)
        if w == 7: tbx_read(W7)
        if w == 6: tb.stage(STG); tb.stage(STG + 8)
        if w in (4, 5, 6): zero(ACC1)
        q.all()
        if w == 7: tbx_store(W7); adv(40, 28 * 4096)
        tb.run(14)
        if pv and (fin & 2):
            tb_cvt(TBO); tb_take1(); tb_take2()
            for b in range(2): a("global_store_dwordx2 v8, %s, s[40:41] offset:%d sc1", vr(TBO + 2 * b, 2), b * 4096 - 2048)
        elif pv:
            tb_cvt(TBO); tb_take1(); tb_take2(); tb_take3()
            a("s_waitcnt lgkmcnt(0)")
        else:
            tb_give()
            a("s_barrier")
        if not (fin & 2): a("s_barrier")
        if w == 7 and not (fin & 2):
            tbx_read(MFR)
            a("s_waitcnt lgkmcnt(0)")
            tbx_store(MFR)
        a("s_branch CH_fin" if prof else "s_endpgm")
    if merged:
        a("s_cmp_lg_u32 s97, 0")
        a("s_cbranch_scc1 CH_mixed")
    for px, st in ((("", ""), ("X", "sc1")) if merged else (("", ""),)):
        MODE["PX"] = px; MODE["ST"] = st
        if px: a.label("CH_mixed")
        for hp in (0, 1):
            H = px + ("H" if hp else "C")
            if hp: a.label(px + "CH_hdisp")
            else:
                a("s_cmp_eq_u32 s23, 0")
                a("s_cbranch_scc1 %sCH_hdisp", px)
            for w in (3, 4, 5, 6, 7):
                a("s_cmp_eq_u32 s14, %d", w)
                a("s_cbranch_scc1 %s%d_entry", H, w)
            for w in (0, 3, 4, 5, 6, 7): wave_loop(w, hp)
    a.label("CH_fin")
    a("s_waitcnt vmcnt(0)")
    if dbgout:
        a("s_or_b32 s50, s20, s14")
        a("s_cmp_lg_u32 s50, 1")
        a("s_cbranch_scc1 CH_nodbg")
        a("s_cmp_lg_u32 s20, 0")
        a("s_cbranch_scc1 CH_nodbg")
        a("s_mov_b32 s52, s100")
        a("v_readlane_b32 s50, v0, 1")
        a("v_readlane_b32 s51, v0, 63")
        a("s_sub_u32 s52, s100, s52")
        a("s_sub_u32 s50, s50, s100")
        a("s_sub_u32 s51, s51, s100")
        a("s_sub_u32 s53, s64, s98")
        a("v_mov_b32 v16, s52"); a("v_mov_b32 v17, s50"); a("v_mov_b32 v18, s51"); a("v_mov_b32 v19, s53")
        a("s_sub_u32 s53, s66, s100")
        a("v_mov_b32 v20, s53")
        a("v_mov_b32 v21, 0")
        a("global_store_dwordx4 v21, v[16:19], s[10:11]")
        a("global_store_dword v21, v20, s[10:11] offset:16")
        a.label("CH_nodbg")
    if prof:
        a("s_lshl_b32 s50, s20, 3")
        a("s_add_u32 s50, s50, s14")
        a("s_lshl_b32 s50, s50, 8")
        a("s_add_u32 s50, s50, 0x%x", POIS_END)
        add64(a, 50, 4, off_sgpr=50)
        if prof == 4:
            a("s_bitcmp1_b32 s14, 0")
            a("s_cselect_b32 s98, s100, s98")
            a("s_cmp_eq_u32 s14, 3")
            a("s_cselect_b32 s98, s94, s98")
            a("s_memrealtime s[94:95]")
            a("s_waitcnt lgkmcnt(0)")
            a("s_cmp_eq_u32 s14, 5")
            a("s_cselect_b32 s98, s66, s98")
            a("s_cmp_eq_u32 s14, 7")
            a("s_cselect_b32 s98, s94, s98")
            a("v_writelane_b32 v%d, s98, 0", VP)
        else:
            a("v_writelane_b32 v%d, s62, 22", VP)
            a("v_writelane_b32 v%d, s63, 23", VP)
        a("v_lshlrev_b32 v16, 2, v1")
        a("global_store_dword v16, v%d, s[50:51]", VP)
    return P.names
```

```python
from common import *
LX = 0; LM = 28 * 1024; LP = 36 * 1024; LPM = 52 * 1024
MF = "v_mfma_f32_16x16x32_f16 %s, %s, %s, %s"
def emit_f(a, abort, nb, pre=None, prof=0, gate=2, lq=0, ntask=0, fo=0):
    dry = fo & 1; direct = fo & 2; split = fo & 4; ngate = fo & 8; two = fo & 16; tp = (fo >> 5) & 3
    QR = 16; SX = 128; SMm = 144; RING = 152; UE = 176; FOR = 248; TBR = 72; PR = 104
    a.c("---- F task")
    a("s_mov_b32 s25, 0x400000")
    a("s_min_u32 s24, s14, 6")
    a("s_mul_i32 s23, s23, 7")
    a("s_add_u32 s23, s23, s24")
    if nb == 2: a("s_lshl_b32 s23, s23, 1")
    a("s_mul_i32 s26, s21, %d", 28 * 1024)
    a("s_add_u32 s26, s26, 0x%x", XF)
    add64(a, 26, 4, off_sgpr=26)
    a("s_lshl_b32 s28, s21, 4")
    a("s_lshl_b32 s29, s14, 1")
    a("s_add_u32 s28, s28, s29")
    a("s_lshl_b32 s28, s28, 1")
    a("s_add_u32 s28, s28, s22")
    a("s_mul_i32 s28, s28, %d", 14 * 1024)
    a("s_add_u32 s28, s28, 0x%x", QF + 4096)
    add64(a, 28, 4, off_sgpr=28)
    a("s_mul_i32 s30, s21, 28")
    a("s_add_u32 s30, s30, s23")
    a("s_lshr_b32 s32, s30, 1")
    a("s_lshl_b32 s32, s32, 15")
    a("s_and_b32 s31, s30, 1")
    a("s_lshl_b32 s33, s31, 11")
    a("s_add_u32 s32, s32, s33")
    a("s_add_u32 s32, s32, 0x%x", UF + 4096)
    add64(a, 32, 4, off_sgpr=32)
    a("s_lshl_b32 s34, s30, 1")
    a("s_add_u32 s34, s34, s22")
    a("s_lshl_b32 s34, s34, 10")
    a("s_add_u32 s34, s34, 0x%x", FO)
    add64(a, 34, 4, off_sgpr=34)
    a("s_lshl_b32 s36, s30, 12")
    a("s_add_u32 s36, s36, 0x%x", TBX + 4096)
    add64(a, 36, 4, off_sgpr=36)
    a("s_lshl_b32 s38, s21, 13")
    a("s_lshl_b32 s39, s24, 10")
    a("s_add_u32 s38, s38, s39")
    a("s_add_u32 s38, s38, 0x%x", MEMX)
    a("s_add_u32 s39, s39, %d", LM)
    a("v_add_u32 v14, s39, v2")
    add64(a, 38, 4, off_sgpr=38)
    a("s_add_u32 s52, s21, %d", gate)
    a("s_min_u32 s52, s52, 63")
    a("s_lshl_b32 s52, s52, 13")
    a("s_add_u32 s52, s52, 0x%x", MEMX)
    add64(a, 52, 4, off_sgpr=52)
    a("s_lshl_b32 s48, s21, 1")
    a("s_add_u32 s48, s48, s22")
    a("s_mul_i32 s48, s48, %d", 16 * 896)
    a("s_lshr_b32 s49, s23, 1")
    a("s_lshl_b32 s49, s49, 6")
    a("s_add_u32 s48, s48, s49")
    a("s_lshl_b32 s49, s31, 3")
    a("s_add_u32 s48, s48, s49")
    add64(a, 48, 8, off_sgpr=48)
    a("v_mul_u32_u24 v15, 896, v4")
    a("v_lshl_add_u32 v15, v3, 4, v15")
    for k in range(1, 4): a("v_add_u32 v%d, %d, v2", 4 + k, k * 8192)
    a("v_lshrrev_b32 v12, 2, v4")
    a("v_lshlrev_b32 v12, 1, v12")
    a("v_and_b32 v13, 1, v4")
    a("v_add_u32 v12, v12, v13")
    a("v_lshlrev_b32 v12, 4, v12")
    a("v_lshl_add_u32 v12, v3, 7, v12")
    a("v_add_u32 v12, %d, v12", LM)
    a("v_lshlrev_b32 v13, 2, v3")
    a("v_sub_u32 v13, v4, v13")
    for r in range(4): a("v_cmp_le_i32 s[%d:%d], %d, v13", 40 + 2 * r, 41 + 2 * r, r)
    ld = [a.newlabel("Fd") for tt in range(2)]; lre = a.newlabel("Fre")
    if dry:
        a("s_mov_b32 s54, 1")
        a("s_cmp_eq_u32 s22, 1")
        a("s_cbranch_scc1 %s", ld[1])
        a("s_branch %s", ld[0])
        a.label(lre)
        a("s_mov_b32 s54, 0")
        a("s_waitcnt vmcnt(0)")
    if pre: pre()
    a("s_barrier")
    a("v_mov_b32 v8, %d", lq)
    a("ds_read_b32 v9, v8")
    a("s_waitcnt lgkmcnt(0)")
    a("v_readfirstlane_b32 s55, v9")
    av = lambda off: ([2, 5, 6, 7][off // 8192], off % 8192 - 4096)
    end = a.newlabel("Fend")
    l1 = a.newlabel("Ft1")
    a("s_cmp_eq_u32 s22, 1")
    a("s_cbranch_scc1 %s", l1)
    for tt in range(2):
        if tt: a.label(l1)
        nx = 2 * (tt + 1)
        a("s_mul_i32 s50, s24, %d", nx * 1024)
        a("v_add_u32 v8, s50, v2")
        a("s_add_u32 m0, s50, %d", LX)
        for k in range(nx): a("global_load_lds_dwordx4 v8, s[26:27] offset:%d", 1024 * k)
        for hh in range(2):
            for ks in range(14):
                v, o = av(ks * 1024)
                a("global_load_dwordx4 %s, v%d, s[28:29] offset:%d sc1", vr(QR + (hh * 14 + ks) * 4, 4), v, o)
            if hh == 0:
                a("s_add_u32 s28, s28, %d", 28 * 1024); a("s_addc_u32 s29, s29, 0")
        ufr = [(p, t, b) for p in range(8) for t in range(tt + 1) for b in range(nb)]
        ureg = {f: (UE + 4 * n if n < 18 else QR + 4 * (n - 18)) for n, f in enumerate(ufr)}
        def uld(f):
            p, t, b = f
            v, o = av((p * 4 + b * 2 + t) * 1024)
            a("global_load_dwordx4 %s, v%d, s[32:33] offset:%d sc1", vr(ureg[f], 4), v, o)
        for f in ufr[:18]: uld(f)
        for b in range(nb): a("global_load_dwordx4 %s, v2, s[34:35] offset:%d sc1", vr(FOR + 4 * b, 4), b * 2048)
        ne = min(len(ufr), 18) + nb
        a("s_waitcnt vmcnt(%d)", 28 + ne)
        a("s_barrier")
        fr = [(ks, t) for ks in range(14) for t in range(tt + 1)]
        def rd(n):
            ks, t = fr[n]
            a("ds_read_b128 %s, v2 offset:%d", vr(RING + (n % 6) * 4, 4), LX + (t * 14 + ks) * 1024)
        for n in range(5): rd(n)
        a("s_waitcnt vmcnt(%d)", ne)
        for n in range(len(fr)):
            if n + 5 < len(fr): rd(n + 5)
            a("s_waitcnt lgkmcnt(%d)", min(5, len(fr) - 1 - n))
            ks, t = fr[n]
            for hh in range(2):
                d = vr(SX + (hh * 2 + t) * 4, 4)
                a(MF, d, vr(RING + (n % 6) * 4, 4), vr(QR + (hh * 14 + ks) * 4, 4), d if ks else "0")
        a("v_mov_b32 v8, 0xff800000")
        vals = []
        for hh in range(2):
            for r in range(4):
                x = SX + (hh * 2 + tt) * 4 + r
                a("v_cndmask_b32 v%d, v8, v%d, s[%d:%d]", x, x, 40 + 2 * r, 41 + 2 * r)
            vals.append([SX + (hh * 2 + t) * 4 + r for t in range(tt + 1) for r in range(4)] + [SMm + hh * 4, SMm + hh * 4 + 1])
        n = len(vals[0])
        M0 = [13, 0]
        for hh in range(2): a("v_max_f32 v%d, v%d, v%d", M0[hh], vals[hh][0], vals[hh][1])
        for k in range(2, n - 2, 2):
            for hh in range(2): a("v_max3_f32 v%d, v%d, v%d, v%d", M0[hh], M0[hh], vals[hh][k], vals[hh][k + 1])
        M = [RING, RING + 1]; T = [RING + 2, RING + 3]; ZX = [FOR + 4, FOR + 5]
        def allred(op, M=M):
            for sw in ("v_permlane32_swap_b32", "v_permlane16_swap_b32"):
                for hh in range(2): a("v_mov_b32 v%d, v%d", T[hh], M[hh])
                for hh in range(2): a("%s v%d, v%d", sw, M[hh], T[hh])
                for hh in range(2): a("%s v%d, v%d, v%d", op, M[hh], M[hh], T[hh])
        if split:
            allred("v_max_f32", M0)
            for k in range(n - 2):
                for hh in range(2): a("v_sub_f32 v%d, v%d, v%d", vals[hh][k], vals[hh][k], M0[hh])
            for k in range(n - 2):
                for hh in range(2): a("v_exp_f32 v%d, v%d", vals[hh][k], vals[hh][k])
            for hh in range(2): a("v_add_f32 v%d, v%d, v%d", ZX[hh], vals[hh][0], vals[hh][1])
            for k in range(2, n - 2):
                for hh in range(2): a("v_add_f32 v%d, v%d, v%d", ZX[hh], ZX[hh], vals[hh][k])
        lp = a.newlabel("Fmp"); lg = a.newlabel("Fg"); lb = a.newlabel("Fgb"); l63 = a.newlabel("Fl")
        if direct:
            a("s_cmp_eq_u32 s21, 63")
            a("s_cbranch_scc1 %s", l63)
        if gate:
            a("s_cmp_ge_u32 s21, %d", 61 if ngate else 63)
            a("s_cbranch_scc1 %s", lp)
            a("s_cmp_lg_u32 s14, 7")
            a("s_cbranch_scc1 %s", lb)
            a("v_mov_b32 v8, 0")
            a.label(lg)
            a("global_load_dword v9, v8, s[52:53] sc1")
            a("s_sub_u32 s25, s25, 1")
            a("s_cbranch_scc1 %s", abort)
            a("s_waitcnt vmcnt(0)")
            a("v_cmp_eq_u32 vcc, -1, v9")
            a("s_cbranch_vccnz %s", lg)
            a.label(lb)
            a("s_barrier")
        a.label(lp)
        a("global_load_dwordx4 v[8:11], v2, s[38:39] sc1")
        a("s_sub_u32 s25, s25, 1")
        a("s_cbranch_scc1 %s", abort)
        a("s_waitcnt vmcnt(0)")
        a("v_pk_maximum3_f16 v%d, v8, v9, v10", RING)
        a("v_pk_maximum3_f16 v%d, v%d, v11, v11", RING, RING)
        a("v_cmp_u_f16 vcc, v%d, v%d", RING, RING)
        a("s_cbranch_vccnz %s", lp)
        a("ds_write_b128 v14, v[8:11]")
        if direct:
            a("s_branch %s", ld[tt])
            a.label(l63)
            a("s_lshl_b32 s50, s24, 10")
            a("s_add_u32 s38, s50, 0x%x", MEMP + 3584)
            add64(a, 38, 4, off_sgpr=38)
            a("v_and_b32 v14, 0x270, v2")
            a("v_bfe_u32 v8, v1, 3, 1")
            a("v_lshl_add_u32 v14, v8, 8, v14")
            a("v_bfe_u32 v8, v1, 4, 1")
            a("v_lshl_add_u32 v14, v8, 3, v14")
            a("s_add_u32 s50, s50, %d", LM)
            a("v_add_u32 v14, s50, v14")
            a.label(l63 + "p")
            a("global_load_dwordx4 v[8:11], v2, s[38:39] offset:-3584 sc1")
            a("global_load_dwordx4 %s, v2, s[38:39] offset:3584 sc1", vr(RING + 4, 4))
            a("s_sub_u32 s25, s25, 1")
            a("s_cbranch_scc1 %s", abort)
            a("s_waitcnt vmcnt(0)")
            for d in range(4): a("v_pk_add_f16 v%d, v%d, v%d", 8 + d, 8 + d, RING + 4 + d)
            a("ds_write2_b64 v14, v[8:9], v[10:11] offset0:0 offset1:16")
            a("v_pk_maximum3_f16 v%d, v8, v9, v10", RING)
            a("v_pk_maximum3_f16 v%d, v%d, v11, v11", RING, RING)
            a("v_cmp_u_f16 vcc, v%d, v%d", RING, RING)
            a("s_waitcnt lgkmcnt(0)")
            a("s_cbranch_vccnz %sp", l63)
        a.label(ld[tt])
        if prof: a("s_memrealtime s[64:65]")
        a("s_waitcnt lgkmcnt(0)")
        a("s_barrier")
        def rm(n): a("ds_read_b128 %s, v12 offset:%d", vr(RING + (n % 6) * 4, 4), n * 512)
        for k in range(5): rm(k)
        for k in range(14):
            if k + 5 < 14: rm(k + 5)
            a("s_waitcnt lgkmcnt(%d)", min(5, 13 - k))
            for hh in range(2):
                d = vr(SMm + hh * 4, 4)
                a(MF, d, vr(RING + (k % 6) * 4, 4), vr(QR + (hh * 14 + k) * 4, 4), d if k else "0")
        for f in ufr[18:]: uld(f)
        def tbl(R=TBR):
            for b in range(nb):
                for pp in range(4):
                    a("global_load_dwordx4 %s, v2, s[36:37] offset:%d sc1", vr(R + (b * 4 + pp) * 4, 4), (b * 4 + pp) * 1024 - 4096)
        if tp == 0: tbl()
        a("s_lshl_b32 s50, s14, 11")
        a("s_add_u32 s50, s50, %d", LP)
        a("v_add_u32 v8, s50, v2")
        a("s_lshr_b32 s50, s14, 1")
        a("s_lshl_b32 s50, s50, 10")
        a("s_and_b32 s51, s14, 1")
        a("s_lshl_b32 s51, s51, 3")
        a("s_add_u32 s50, s50, s51")
        a("s_add_u32 s50, s50, %d", LPM)
        a("v_add_u32 v9, s50, v2")
        for hh in range(2): a("v_max3_f32 v%d, v%d, v%d, v%d", M[hh], M0[hh], vals[hh][n - 2], vals[hh][n - 1])
        allred("v_max_f32")
        if tp == 1: tbl()
        if split:
            late = [[M0[hh], vals[hh][n - 2], vals[hh][n - 1]] for hh in range(2)]
            for k in range(3):
                for hh in range(2): a("v_sub_f32 v%d, v%d, v%d", late[hh][k], late[hh][k], M[hh])
            for k in range(3):
                for hh in range(2): a("v_exp_f32 v%d, v%d", late[hh][k], late[hh][k])
            for hh in range(2): a("v_fma_f32 v%d, v%d, v%d, v%d", M[hh], M0[hh], ZX[hh], late[hh][1])
            for hh in range(2): a("v_add_f32 v%d, v%d, v%d", M[hh], M[hh], late[hh][2])
            allred("v_add_f32")
            for hh in range(2): a("v_rcp_f32 v%d, v%d", M[hh], M[hh])
            for k in range(3):
                for hh in range(2): a("v_mul_f32 v%d, v%d, v%d", late[hh][k], late[hh][k], M[hh])
            for k in range(n - 2):
                for hh in range(2): a("v_mul_f32 v%d, v%d, v%d", vals[hh][k], vals[hh][k], M0[hh])
        else:
            for k in range(n):
                for hh in range(2): a("v_sub_f32 v%d, v%d, v%d", vals[hh][k], vals[hh][k], M[hh])
            for k in range(n):
                for hh in range(2): a("v_exp_f32 v%d, v%d", vals[hh][k], vals[hh][k])
            for hh in range(2): a("v_add_f32 v%d, v%d, v%d", M[hh], vals[hh][0], vals[hh][1])
            for k in range(2, n):
                for hh in range(2): a("v_add_f32 v%d, v%d, v%d", M[hh], M[hh], vals[hh][k])
            allred("v_add_f32")
            for hh in range(2): a("v_rcp_f32 v%d, v%d", M[hh], M[hh])
            for k in range(n):
                for hh in range(2): a("v_mul_f32 v%d, v%d, v%d", vals[hh][k], vals[hh][k], M[hh])
        if tp == 2: tbl()
        O = RING + 4
        for t in range(tt + 1):
            for hh in range(2):
                for r2 in range(2):
                    x = SX + (hh * 2 + t) * 4 + 2 * r2
                    a("v_cvt_pk_f16_f32 v%d, v%d, v%d", O + 4 * t + 2 * r2 + hh, x, x + 1)
            a("ds_write_b128 v8, %s offset:%d", vr(O + 4 * t, 4), t * 1024)
        for hh in range(2): a("v_cvt_pk_f16_f32 v%d, v%d, v%d", O + 8 + hh, SMm + hh * 4, SMm + hh * 4 + 1)
        a("ds_write_b64 v9, %s", vr(O + 8, 2))
        a("s_waitcnt lgkmcnt(0)")
        a("s_barrier")
        a("s_cmp_eq_u32 s14, 7")
        a("s_cbranch_scc1 %s", end)
        if prof: a("s_memrealtime s[66:67]"); a("s_waitcnt lgkmcnt(0)")
        pf = [(p, t) for p in range(8) for t in range(tt + 1)]
        PMR = RING
        def rp(n):
            p, t = pf[n]
            a("ds_read_b128 %s, v2 offset:%d", vr(PR + (n % 6) * 4, 4), LP + (p * 2 + t) * 1024)
        for pp in range(4): a("ds_read_b128 %s, v2 offset:%d", vr(PMR + 4 * pp, 4), LPM + pp * 1024)
        for k in range(5): rp(k)
        if two: tbl(TBR + 16)
        for k in range(len(pf)):
            if k + 5 < len(pf): rp(k + 5)
            a("s_waitcnt lgkmcnt(%d)", min(5, len(pf) - 1 - k))
            p, t = pf[k]
            last = nb * k + nb - 1
            if last >= 18: a("s_waitcnt vmcnt(%d)", 4 * nb + len(ufr) - 1 - last)
            for b in range(nb):
                d = vr(FOR + 4 * b, 4)
                a(MF, d, vr(ureg[(p, t, b)], 4), vr(PR + (k % 6) * 4, 4), d)
        lt = a.newlabel("Ftb"); lr = a.newlabel("Ftr"); ls = a.newlabel("Fts")
        def fin(R, cnt):
            a("s_waitcnt vmcnt(%d)", cnt)
            for pp in range(4):
                for b in range(nb):
                    d = vr(SX + 4 * b, 4)
                    a(MF, d, vr(R + (b * 4 + pp) * 4, 4), vr(PMR + 4 * pp, 4), d if pp else vr(FOR + 4 * b, 4))
            a("v_pk_add_f32 v[8:9], %s, %s", vr(SX, 2), vr(SX + 2, 2))
            if nb == 2:
                a("v_pk_add_f32 v[10:11], %s, %s", vr(SX + 4, 2), vr(SX + 6, 2))
                a("v_pk_add_f32 v[8:9], v[8:9], v[10:11]")
            a("v_cmp_u_f32 vcc, v8, v9")
            for k in range(2 * nb): a("v_cvt_pk_bf16_f32 v%d, v%d, v%d", 8 + k, SX + 2 * k, SX + 2 * k + 1)
        a.label(lt)
        fin(TBR, 4 if two else 0)
        if dry:
            a("s_cmp_lg_u32 s54, 0")
            a("s_cbranch_scc1 %s", lre)
        a("s_cbranch_vccnz %s", lr)
        a.label(ls)
        a("global_store_dwordx%d v15, %s, s[48:49]", 2 * nb, vr(8, 2 * nb))
        if prof:
            a("s_memrealtime s[68:69]")
            a("s_waitcnt vmcnt(0)")
            a("s_memrealtime s[70:71]")
            a("s_waitcnt lgkmcnt(0)")
            for k in range(4): a("v_mov_b32 v%d, s%d", 8 + k, 64 + 2 * k)
            a("s_lshl_b32 s50, s20, 3")
            a("s_add_u32 s50, s50, s14")
            a("s_lshl_b32 s50, s50, 4")
            a("s_add_u32 s50, s50, 0x%x", POIS_END + 0x10000)
            add64(a, 50, 4, off_sgpr=50)
            a("v_mov_b32 v12, 0")
            a("global_store_dwordx4 v12, v[8:11], s[50:51]")
        a("s_cmp_lt_u32 s55, 0x%x", ntask)
        a("s_cbranch_scc1 %s", end)
        a("s_endpgm")
        a.label(lr)
        tbl()
        if two:
            fin(TBR + 16, 4)
            a("s_cbranch_vccz %s", ls)
            tbl(TBR + 16)
        a("s_sub_u32 s25, s25, 1")
        a("s_cbranch_scc0 %s", lt)
        a("s_branch %s", abort)
    a.label(end)
    if dry:
        a("s_cmp_lg_u32 s54, 0")
        a("s_cbranch_scc1 %s", lre)
    a("s_cmp_ge_u32 s55, 0x%x", ntask)
    a("s_cbranch_scc1 %s", abort)
    a("s_waitcnt vmcnt(0)")
```

```python
from common import *
import chain, ut, g1, g2, ft, pt
from pt import L_TK, MAIN_LDS
FSPLIT = 60
N_G1, N_G2, N_F = 224, 224, 4 * FSPLIT + 8 * (64 - FSPLIT)
KN = "parallel_sum__memory_aug_recurrent_mem_tr__dense_activation_relu__prompt_kernel"
def only(a, w, l):
    a("s_cmp_lg_u32 s14, %d", w)
    a("s_cbranch_scc1 %s", l)
def emit_main(a, prof=0, force_mixed=False, gate=2, g0=34, npre=0, nlook=3, tch=2, qend=1, fo=94, **kw):
    assert g0 > 0
    def T(k):
        if prof and k >= 20:
            l = a.newlabel("ST")
            if k >= 23: a("s_cmp_lg_u32 s26, 0"); a("s_cbranch_scc1 %s", l)
            a("s_memrealtime s[60:61]"); a("s_waitcnt lgkmcnt(0)"); a("v_writelane_b32 v5, s60, %d", k)
            a.label(l)
        elif prof: a("s_memrealtime s[%d:%d]", 76 + 2 * k, 77 + 2 * k)
    a.raw(".p2align 8")
    a.label(KN)
    a("s_cmp_ge_u32 s2, 256")
    a("s_cbranch_scc1 M_end")
    a("s_load_dwordx2 s[10:11], s[0:1], 88")
    a("s_memrealtime s[18:19]")
    a("s_getreg_b32 s16, hwreg(HW_REG_XCC_ID)")
    a("s_getreg_b32 s15, hwreg(HW_REG_HW_ID)")
    a("s_and_b32 s16, s16, 7")
    pt.load_ptrs(a)
    main_prologue(a)
    if prof: a("s_memtime s[98:99]"); a("s_mov_b32 s100, s18"); a("s_mov_b32 s76, s18")
    T(20)
    a("s_or_b32 s18, s18, 0x40000000")
    a("s_and_b32 s18, s18, 0x7ffffffe")
    a("s_mov_b32 s19, 0")
    a("s_mov_b32 s17, 0")
    a("s_mov_b32 s101, 0")
    if force_mixed:
        a("s_bfe_u32 s20, s2, 0x10003")
        a("s_or_b32 s16, s16, s20")
    a("s_lshl_b32 s21, s16, 5")
    a("s_cmp_eq_u32 s14, 0")
    a("s_cbranch_scc1 M_s0")
    if tch:
        a("s_bfe_u32 s22, s15, 0x2000d")
        a("s_bfe_u32 s23, s15, 0x30008")
        a("s_lshl_b32 s22, s22, 3")
        a("s_add_u32 s22, s22, s23")
        a("v_lshrrev_b32 v6, 2, v1")
        a("v_lshlrev_b32 v6, 13, v6")
        a("v_and_b32 v7, 3, v1")
        a("v_lshl_add_u32 v6, v7, 7, v6")
        a("s_sub_u32 s23, s14, 1")
        a("s_cmp_lg_u32 s16, 0")
        a("s_cbranch_scc1 M_t1")
        a("s_and_b32 s24, s22, 1")
        a("s_lshr_b32 s25, s22, 1")
        a("s_lshl_b32 s25, s25, 9")
        a("s_cmp_eq_u32 s14, 7")
        a("s_cbranch_scc1 M_t0")
        a("s_mul_i32 s24, s24, 14")
        a("s_add_u32 s24, s24, s23")
        a("s_add_u32 s24, s24, 8")
        a("s_lshl_b32 s24, s24, 17")
        a("s_add_u32 s24, s24, s25")
        add64(a, 24, 66, off_sgpr=24)
        a("s_branch M_t9")
        a.label("M_t0")
        a("s_mul_i32 s24, s24, %d", (7 << 18) if kw.get("rot", 1) else (1 << 18))
        a("s_add_u32 s24, s24, s25")
        add64(a, 24, 64, off_sgpr=24)
        a("global_load_dword v102, v6, s[24:25]")
        a("v_add_u32 v6, 0x20000, v6")
        a("s_branch M_t9")
        a.label("M_t1")
        a("s_add_u32 s22, s22, s21")
        a("s_sub_u32 s22, s22, 32")
        a("s_lshr_b32 s26, s22, 1")
        a("s_mul_i32 s27, s26, 147")
        a("s_lshr_b32 s27, s27, 10")
        a("s_mul_i32 s28, s27, 7")
        a("s_sub_u32 s28, s26, s28")
        a("s_and_b32 s29, s22, 1")
        a("s_and_b32 s30, s23, 1")
        a("s_cmp_ge_u32 s23, 2")
        a("s_cbranch_scc1 M_t2")
        a("s_mul_i32 s24, s29, 7")
        a("s_add_u32 s24, s24, s28")
        a("s_lshl_b32 s24, s24, 1")
        a("s_add_u32 s24, s24, s30")
        a("s_lshl_b32 s24, s24, 17")
        a("s_lshl_b32 s25, s27, 9")
        a("s_add_u32 s24, s24, s25")
        add64(a, 24, 68, off_sgpr=24)
        a("s_branch M_t9")
        a.label("M_t2")
        a("s_cmp_ge_u32 s23, 4")
        a("s_cbranch_scc1 M_t3")
        a("s_lshl_b32 s24, s27, 2")
        a("s_lshl_b32 s25, s29, 1")
        a("s_add_u32 s24, s24, s25")
        a("s_add_u32 s24, s24, s30")
        a("s_mul_i32 s24, s24, %d", 64 * 896)
        a("s_lshl_b32 s25, s28, 7")
        a("s_add_u32 s24, s24, s25")
        add64(a, 24, 70, off_sgpr=24)
        a("v_mul_u32_u24 v6, 896, v1")
        a("s_branch M_t9")
        a.label("M_t3")
        a("s_cmp_ge_u32 s22, 128")
        a("s_cbranch_scc1 M_ta")
        a("s_cmp_eq_u32 s14, 7")
        a("s_cbranch_scc1 M_ta")
        a("s_lshl_b32 s24, s22, 1")
        a("s_add_u32 s24, s24, s30")
        a("s_mul_i32 s24, s24, 7168")
        add64(a, 24, 6, off_sgpr=24)
        a("v_min_u32 v6, 55, v1")
        a("v_lshlrev_b32 v6, 7, v6")
        a.label("M_t9")
        a("global_load_dword v102, v6, s[24:25]")
        a.label("M_ta")
        if tch > 1:
            only(a, 1, "M_tk")
            a("s_getpc_b64 s[24:25]")
            a("s_and_b32 s26, s22, %d", 3 if tch == 2 else 7)
            a("s_lshl_b32 s26, s26, 13")
            a("v_lshlrev_b32 v6, 7, v1")
            a("v_add_u32 v6, s26, v6")
            a("global_load_dword v102, v6, s[24:25]")
    a("s_branch M_tk")
    a.label("M_s0")
    a("v_and_b32 v6, 31, v1")
    a("v_lshlrev_b32 v6, 2, v6")
    a("v_add_u32 v6, %d, v6", L_TK)
    a("v_mov_b32 v7, 0")
    a("ds_write_b32 v6, v7")
    a.label("M_tk")
    T(21)
    only(a, 0, "M_r1")
    a("v_mov_b32 v6, s21")
    a("v_mov_b32 v7, 1")
    a("s_mov_b64 exec, 1")
    a("global_atomic_add v8, v6, v7, s[10:11] sc0 sc1")
    a("s_mov_b64 exec, -1")
    a("v_lshlrev_b32 v9, 3, v1")
    a("v_add_u32 v9, %d, v9", chain.L_FL)
    a("v_mov_b32 v10, 0")
    a("v_mov_b32 v11, 0")
    a("ds_write_b64 v9, v[10:11]")
    a("s_mov_b64 exec, 1")
    a("v_mov_b32 v6, %d", L_TK + 32)
    a("v_mov_b32 v7, %d", C_NON * 4)
    a("v_mov_b32 v10, s18")
    a("s_waitcnt vmcnt(0)")
    a("ds_write_b32 v6, v8")
    a("v_cmp_eq_u32 vcc, s19, v8")
    a("s_cbranch_vccz M_r0")
    a("global_atomic_cmpswap v7, v[10:11], s[10:11] sc1")
    a.label("M_r0")
    a("s_mov_b64 exec, -1")
    a.label("M_r1")
    a("s_waitcnt lgkmcnt(0)")
    a("s_barrier")
    a("v_mov_b32 v6, %d", L_TK + 32)
    a("ds_read_b32 v8, v6")
    a("s_waitcnt lgkmcnt(0)")
    a("v_readfirstlane_b32 s20, v8")
    a("s_cmp_lt_u32 s20, 32")
    a("s_cbranch_scc1 M_r2")
    a("s_cmp_eq_u32 s17, 0")
    a("s_cbranch_scc1 M_chk")
    a("s_branch M_acq")
    a.label("M_r2")
    a("s_cmp_eq_u32 s21, 0")
    a("s_cbranch_scc1 M_chain")
    a("s_add_u32 s20, s20, s21")
    a("s_sub_u32 s20, s20, 32")
    T(22)
    a.label("M_ab")
    def look():
        a("s_lshr_b32 s21, s20, 5")
        a("s_lshl_b32 s21, s21, 2")
        a("s_add_u32 s21, s21, %d", pt.L_UM)
        a("s_lshl_b32 s22, 1, s20")
        a("v_mov_b32 v6, s21")
        a("v_mov_b32 v7, s22")
        a("ds_or_b32 v6, v7")
        a("v_and_b32 v6, 7, v1")
        a("v_lshlrev_b32 v6, 5, v6")
        a("s_mov_b32 s22, %d", nlook)
        a.label("M_l0")
        a("global_load_dword v8, v6, s[10:11] sc1")
        a("s_waitcnt vmcnt(0)")
        a("v_cmp_gt_u32 vcc, 32, v8")
        a("s_and_b32 s21, vcc_lo, 0xff")
        a("s_cbranch_scc0 M_l1")
        a("s_sub_u32 s22, s22, 1")
        a("s_cbranch_scc0 M_l0")
        a.label("M_l1")
        a("v_mov_b32 v6, %d", L_TK + 36)
        a("v_mov_b32 v9, s21")
        a("ds_write_b32 v6, v9")
        a("s_waitcnt lgkmcnt(0)")
    def w7():
        a("s_cmp_eq_u32 s26, 0")
        a("s_cbranch_scc1 M_w7b")
        a("s_mov_b32 s44, s20")
        a("s_mov_b32 s42, %d", pt.L_WT)
        a.label("M_w7a")
        pt.wtask(a)
        a("s_add_u32 s44, s44, 224")
        a("s_cmp_lt_u32 s44, 392")
        a("s_cbranch_scc1 M_w7a")
        a("s_branch P_abend")
        a.label("M_w7b")
        a("s_cmp_ge_u32 s20, 128")
        a("s_cbranch_scc1 M_w7c")
        pt.emit_ln(a)
        T(2)
        a.label("M_w7c")
        look()
        T(3)
    a("s_mov_b32 s26, 0")
    a.label("M_ab2")
    pt.emit_p(a, T, w7)
    a("s_cmp_eq_u32 s26, 0")
    a("s_cbranch_scc1 M_ab3")
    a("s_mov_b32 s38, %d", C_P * 4)
    signal(a, 38)
    if prof:
        a("s_waitcnt lgkmcnt(0)")
        a("v_mov_b32 v8, v5")
        for k in range(7): a("v_writelane_b32 v8, s%d, %d", 76 + 2 * k, k)
        for k in range(3): a("v_writelane_b32 v8, s%d, %d", 92 + 2 * k, 7 + k)
        a("s_lshl_b32 s60, s20, 3")
        a("s_add_u32 s60, s60, s14")
        a("s_lshl_b32 s60, s60, 8")
        a("s_add_u32 s60, s60, 0x%x", POIS_END + 0x100000)
        add64(a, 60, 4, off_sgpr=60)
        a("v_lshlrev_b32 v9, 2, v1")
        a("global_store_dword v9, v8, s[60:61]")
    a("s_branch M_u")
    a.label("M_ab3")
    if prof:
        a("s_waitcnt lgkmcnt(0)")
        a("s_mov_b32 s84, s78"); a("s_mov_b32 s86, s80"); a("s_mov_b32 s88, s82")
    a("s_barrier")
    a("v_mov_b32 v6, %d", L_TK + 36)
    a("ds_read_b32 v8, v6")
    a("v_and_b32 v6, 7, v1")
    a("v_lshlrev_b32 v6, 2, v6")
    a("v_add_u32 v6, %d, v6", pt.L_UM)
    a("ds_read_b32 v9, v6")
    a("s_waitcnt lgkmcnt(0)")
    a("v_readfirstlane_b32 s16, v8")
    a("s_and_b32 s21, s16, 0xfe")
    a("s_or_b32 s21, s21, s101")
    a("s_cbranch_scc0 M_uph")
    a.label("M_cl")
    a("s_cmp_eq_u32 s101, 0")
    a("s_cbranch_scc1 M_chk")
    a("s_ff1_i32_b32 s21, s101")
    a("s_bitset0_b32 s101, s21")
    a("v_readlane_b32 s20, v0, s21")
    a("s_lshl_b32 s21, s21, 5")
    a("s_add_u32 s20, s20, s21")
    a("s_sub_u32 s20, s20, 32")
    a("s_branch M_ab")
    a.label("M_chain")
    names = chain.emit_chain(a, prof, abort="M_end", **kw)
    a("s_endpgm")
    a.label("M_chk")
    a("s_barrier")
    only(a, 7, "M_n1")
    pt.nonce_ld(a)
    a("s_waitcnt vmcnt(0)")
    pt.nonce_put(a, "M_end")
    a.label("M_n1")
    only(a, 0, "M_c1")
    a("v_lshlrev_b32 v6, 5, v1")
    a("v_mov_b32 v7, 1")
    a("v_mov_b32 v8, 64")
    a("v_lshlrev_b32 v9, 2, v1")
    a("v_add_u32 v9, %d, v9", L_TK)
    a("s_mov_b64 exec, 0xff")
    a("global_load_dword v8, v6, s[10:11] sc1")
    a("s_waitcnt vmcnt(0)")
    a("v_cmp_gt_u32 vcc, 32, v8")
    a("s_and_b32 exec_lo, vcc_lo, 0xfe")
    a("s_cbranch_scc0 M_c1x")
    a("global_atomic_add v8, v6, v7, s[10:11] sc0 sc1")
    a("s_waitcnt vmcnt(0)")
    a.label("M_c1x")
    a("s_mov_b32 exec_lo, 0xff")
    a("ds_write_b32 v9, v8")
    a("s_mov_b64 exec, -1")
    a.label("M_c1")
    a("s_waitcnt lgkmcnt(0)")
    a("s_barrier")
    a("v_and_b32 v6, 7, v1")
    a("v_lshlrev_b32 v6, 2, v6")
    a("v_add_u32 v6, %d, v6", L_TK)
    a("ds_read_b32 v0, v6")
    a("ds_read_b32 v9, v6 offset:%d", pt.L_UM - L_TK)
    pt.nonce_get(a, 8, "M_end")
    a("v_cmp_gt_u32 vcc, 32, v0")
    a("s_mov_b32 s16, vcc_lo")
    a("s_and_b32 s101, vcc_lo, 0xfe")
    a("s_cbranch_scc1 M_cl")
    a.label("M_uph")
    a("v_mov_b32 v0, v9")
    a("s_mov_b32 s17, -1")
    a.label("M_u")
    a("s_cmp_lg_u32 s101, 0")
    a("s_cbranch_scc1 M_u0")
    a("s_add_u32 s17, s17, 1")
    a("s_cmp_eq_u32 s17, 7")
    a("s_cbranch_scc1 M_u1")
    a("v_readlane_b32 s101, v0, s17")
    a("s_branch M_u")
    a.label("M_u0")
    a("s_ff1_i32_b32 s21, s101")
    a("s_bitset0_b32 s101, s21")
    a("s_lshl_b32 s20, s17, 5")
    a("s_add_u32 s20, s20, s21")
    ut.emit_u(a, "M_end", T)
    a("s_mov_b32 s26, 1")
    a("s_barrier")
    a("s_branch M_ab2")
    a.label("M_u1")
    a("s_mov_b32 s21, 0")
    a("s_mov_b32 s17, 1")
    a("s_bitcmp1_b32 s16, 0")
    a("s_cbranch_scc1 M_tk")
    a.label("M_acq")
    a("s_mov_b32 s25, 0x400000")
    only(a, 0, "M_next")
    a("s_mov_b32 s21, %d", C_P * 4)
    wait_cnt(a, 21, 224, "M_end")
    a("buffer_inv sc1")
    a.label("M_next")
    a("s_barrier")
    only(a, 0, "M_q1")
    a("v_mov_b32 v6, %d", C_Q * 4)
    a("v_mov_b32 v7, 1")
    a("s_mov_b64 exec, 1")
    a("global_atomic_add v8, v6, v7, s[10:11] sc0 sc1")
    a("v_mov_b32 v6, %d", L_TK)
    a("s_waitcnt vmcnt(0)")
    a("ds_write_b32 v6, v8")
    a("s_mov_b64 exec, -1")
    a("s_waitcnt lgkmcnt(0)")
    a.label("M_q1")
    a("s_barrier")
    a("v_mov_b32 v6, %d", L_TK)
    a("ds_read_b32 v8, v6")
    a("s_waitcnt lgkmcnt(0)")
    a("v_readfirstlane_b32 s15, v8")
    a("s_mov_b32 s25, 0x400000")
    a("s_cmp_lt_u32 s15, %d", N_G1)
    a("s_cbranch_scc0 M_d2")
    a("s_mul_i32 s20, s15, 2341")
    a("s_lshr_b32 s20, s20, 16")
    a("s_mul_i32 s21, s20, 28")
    a("s_sub_u32 s21, s15, s21")
    g1.emit_g1(a, first=8)
    a("s_branch M_next")
    a.label("M_d2")
    a("s_sub_u32 s20, s15, %d", N_G1)
    a("s_cmp_lt_u32 s20, %d", N_G2)
    a("s_cbranch_scc0 M_d3")
    only(a, 0, "M_d2w")
    a("s_mul_i32 s21, s20, 2341")
    a("s_lshr_b32 s21, s21, 16")
    g1_cnt(a, 21, 21)
    wait_cnt(a, 21, 28, "M_end")
    a.label("M_d2w")
    a("s_barrier")
    g2.emit_g2(a)
    a("s_branch M_next")
    a.label("M_d3")
    a("s_sub_u32 s20, s20, %d", N_G2)
    a("s_cmp_lt_u32 s20, %d", N_F)
    a("s_cbranch_scc0 M_end")
    for nb in (2, 1):
        X = "M%d" % nb
        def pre():
            if g0:
                only(a, 3, X + "_fg")
                a("s_mul_i32 s50, s21, %d", (57 - g0) * 1024 // 63)
                a("s_lshr_b32 s50, s50, 10")
                a("s_add_u32 s50, s50, %d", g0)
                a("s_lshl_b32 s50, s50, 13")
                a("s_add_u32 s50, s50, 0x%x", MEMX)
                add64(a, 50, 4, off_sgpr=50)
                a("v_mov_b32 v8, 128")
                a.label(X + "_fgl")
                a("global_load_dword v9, v8, s[50:51] sc1")
                a("s_sub_u32 s25, s25, 1")
                a("s_cbranch_scc1 M_end")
                a("s_waitcnt vmcnt(0)")
                a("v_cmp_eq_u32 vcc, -1, v9")
                a("s_cbranch_vccnz %s_fgl", X)
                a("v_mov_b32 v8, %d", C_Q * 4)
                a("global_load_dword v9, v8, s[10:11] sc1")
                a("v_mov_b32 v8, %d", L_TK + 44)
                a("s_waitcnt vmcnt(0)")
                a("ds_write_b32 v8, v9")
                a("s_waitcnt lgkmcnt(0)")
                a.label(X + "_fg")
            a("s_cmp_gt_u32 s14, 2")
            a("s_cbranch_scc1 %s_fw", X)
            a("s_cmp_eq_u32 s14, 2")
            a("s_cbranch_scc1 %s_fw2", X)
            a("s_lshl_b32 s50, s21, 1")
            a("s_add_u32 s50, s50, s14")
            a("s_lshl_b32 s50, s50, 10")
            wait_ufl(a, 50, "M_end", t=16)
            a("s_branch %s_fw", X)
            a.label(X + "_fw2")
            a("s_lshr_b32 s50, s21, 1")
            g2_cnt(a, 50, 50, 51)
            wait_cnt(a, 50, 7, "M_end")
            a.label(X + "_fw")
        if nb == 2:
            a("s_cmp_ge_u32 s20, %d", 4 * FSPLIT)
            a("s_cbranch_scc1 M_d4")
            a("s_lshr_b32 s21, s20, 2")
            a("s_bfe_u32 s22, s20, 0x10001")
            a("s_and_b32 s23, s20, 1")
        else:
            a.label("M_d4")
            a("s_add_u32 s21, s20, %d", 4 * FSPLIT)
            a("s_lshr_b32 s21, s21, 3")
            a("s_bfe_u32 s22, s20, 0x10002")
            a("s_and_b32 s23, s20, 3")
        ft.emit_f(a, "M_end", nb, pre, prof, gate, L_TK + 44, N_G1 + N_G2 + N_F if qend else 0xffffffff, fo if nb == 1 else 0)
        a("s_branch M_next")
    a.label("M_end")
    a("s_endpgm")
    return names
```

```python
from common import *
L_MEMI = 0; L_TAI = 7168; L_RED = 11264; L_TB1 = 15360; L_TB2 = 19456; L_BW = 23552; BWSZ = 16384
CHAIN_LDS = L_BW + 7 * BWSZ
MFR = 16; ACC0 = 44; ACC1 = 48; STG = 52; EX = 68; BW = 96; AW = 144
VP = 0

class Prof:
    def __init__(self, a, on, step=40): self.a = a; self.on = on; self.step = step; self.names = ["top"] if on else []
    def __call__(self, name):
        if not self.on or (self.on in (1, 4) and name != "top"): return
        if self.on == 4:
            self.a("s_memtime s[64:65]"); self.a("s_memrealtime s[66:67]"); return
        if (self.on == 3) != name.startswith("a") and name not in ("top", "TA done", "bar2"): return
        if name not in self.names: self.names.append(name)
        k = self.names.index(name)
        assert k < 16
        self.a("s_memtime s[%d:%d]", 64 + 2 * k, 65 + 2 * k)
    def flush(self, n=16):
        if not self.on: return
        a = self.a
        if self.on == 4:
            a("s_bitcmp1_b32 s14, 0")
            a("s_cselect_b32 s64, s66, s64")
            a("s_mov_b32 m0, s24")
            a("v_writelane_b32 v%d, s64, m0", VP)
            return
        l = a.newlabel("PF")
        a("s_cmp_lg_u32 s24, %d", self.step + 1)
        a("s_cbranch_scc1 %s", l)
        for k in range(n): a("v_writelane_b32 v%d, s%d, %d", VP, 64 + 2 * k, k)
        a.label(l)
        for st, ln in ((10, 20), (60, 21)):
            l = a.newlabel("PF")
            a("s_cmp_lg_u32 s24, %d", st)
            a("s_cbranch_scc1 %s", l)
            a("v_writelane_b32 v%d, s64, %d", VP, ln)
            a.label(l)

class LQ:
    def __init__(self, a): self.a = a; self.q = []
    def issue(self, tag, txt, *args): self.a(txt, *args); self.q.append(tag)
    def wait(self, tag):
        if tag not in self.q: return
        last = max(k for k, t in enumerate(self.q) if t == tag)
        self.a("s_waitcnt lgkmcnt(%d)", len(self.q) - 1 - last)
        self.q = self.q[last + 1:]
    def all(self): self.a("s_waitcnt lgkmcnt(0)"); self.q = []

def interleave(a, b):
    a("v_swap_b32 v%d, v%d", b + 1, b + 4)
    a("v_swap_b32 v%d, v%d", b + 3, b + 5)
    a("v_swap_b32 v%d, v%d", b + 2, b + 4)
    a("v_swap_b32 v%d, v%d", b + 5, b + 6)

def code_touch(a, lab, back, va, vd):
    l = a.newlabel("CT")
    a("s_getpc_b64 s[50:51]")
    a.label(l)
    if back:
        a("s_sub_u32 s50, s50, %s-%s", l, lab); a("s_subb_u32 s51, s51, 0")
    else:
        a("s_add_u32 s50, s50, %s-%s", lab, l); a("s_addc_u32 s51, s51, 0")
    a("global_load_dword v%d, v%d, s[50:51]", vd, va)
L_FL = L_BW + 8 * BWSZ
def local_a(a, prof, abort, bload, hi, k0, pd, touch, rdep, bands, ni, ramp, pa, p7, sconst, rot, bp, n0, ct, qt, tpr, mf, NK):
    import pt
    from k1 import SCALE
    R = lambda i: L_BW + i * BWSZ
    NX = 14 - NK; NF = 16 * NK; L = NK - 1
    sl = {14: [R(0), R(1), R(2), 0, R(7), R(4), R(5), R(6), R(3)], 12: [R(0), 0, R(7), R(1), R(2), R(4), R(5), R(6), R(3)]}[NK]
    slot = {k: sl[k % 9] for k in range(14)}
    pt.lanes(a)
    a("v_bfe_u32 v7, v1, 2, 2")
    a("s_lshl_b32 s30, s21, 9")
    def bptr():
        a("s_lshl_b32 s50, s22, 2")
        a("s_add_u32 s50, s50, s60")
        a("s_mul_i32 s50, s50, 14")
        a("s_min_u32 s51, s21, 13")
        a("s_add_u32 s50, s50, s51")
        a("s_mul_i32 s50, s50, %d", 56 * 1024)
        a("s_mul_i32 s51, s61, 7168")
        a("s_add_u32 s50, s50, s51")
        a("s_add_u32 s50, s50, 0x%x", BF + 4096)
        add64(a, 80, 4, off_sgpr=50)
        for i in range(1, 4): add64(a, 80 + 2 * i, 80, imm=14336 * i)
        for i in range(4): a("v_mov_b32 v%d, 0", BW + i)
        if prof == 4: a("s_mov_b32 s78, 0")
        a("s_mul_i32 s50, s22, 56")
        a("s_min_u32 s51, s21, 13")
        a("s_lshr_b32 s51, s51, 1")
        a("s_add_u32 s50, s50, s51")
        a("s_lshl_b32 s50, s50, 6")
        a("s_add_u32 s50, s50, 0x%x", ABF)
    WK = 32; V = 16
    PD = lambda k: BW + 36 + k % 4
    def landed(k, first, l):
        if not first: a("s_branch %sa", l)
        a.label(l)
        a("ds_read_b32 v3, v0")
        a("s_sub_u32 s25, s25, 1")
        a("s_cbranch_scc1 %s", abort)
        a("s_waitcnt lgkmcnt(0)")
        a.label(l + "a")
        a("v_cmp_ne_u32 vcc, 0, v3")
        a("s_bitcmp1_b32 vcc_lo, %d", k)
        a("s_cbranch_scc0 %s", l)
    a("s_cmp_eq_u32 s14, 7")
    a("s_cbranch_scc1 LA_w7")
    a("v_lshlrev_b32 v13, 16, v3")
    a("v_add_u32 v13, v13, v12")
    a("v_lshl_add_u32 v9, v7, 14, v13")
    a("s_mul_i32 s34, s22, 7")
    a("s_add_u32 s34, s34, s14")
    a("s_lshl_b32 s34, s34, 18")
    a("s_add_u32 s34, s34, s30")
    add64(a, 34, 66, off_sgpr=34)
    add64(a, 36, 34, imm=8192)
    a("s_mul_i32 s32, s20, 7")
    a("s_add_u32 s32, s32, s14")
    a("s_lshl_b32 s32, s32, 10")
    a("s_add_u32 s32, s32, 0x%x", MEMR)
    add64(a, 32, 4, off_sgpr=32)
    for r in range(4): a("v_mov_b32 v%d, -1", V + r)
    a("global_store_dwordx4 v2, %s, s[32:33] sc1", vr(V, 4))
    a("v_lshlrev_b32 v0, 2, v1")
    a("v_add_u32 v0, %d, v0", L_FL)
    a("v_mov_b32 v8, %d", pt.L_NON)
    a("v_cmp_gt_u32 vcc, 16, v1")
    a("v_cndmask_b32 v0, v8, v0")
    a("s_lshr_b32 s50, s60, 1")
    a("s_lshl_b32 s50, s50, 2")
    a("s_add_u32 s50, s50, %d", L_FL + 384)
    a("v_mov_b32 v8, s50")
    a("v_cmp_gt_u32 vcc, 17, v1")
    a("v_cndmask_b32 v0, v8, v0")
    a("v_mov_b32 v8, %d", L_FL + 392)
    a("v_cmp_gt_u32 vcc, 18, v1")
    a("v_cndmask_b32 v0, v8, v0")
    a("v_and_b32 v8, 1, v3")
    a("v_lshrrev_b32 v13, 1, v3")
    def wkld(m): a("global_load_dwordx4 %s, v9, s[%d:%d] offset:%d" + nt(1), vr(WK + m * 4, 4), 34 + 2 * (m & 1), 35 + 2 * (m & 1), 64 * (m >> 1))
    a("s_cmp_ge_u32 s14, 4")
    a("s_cbranch_scc1 LA_i0")
    a("s_barrier")
    for m in range(16):
        if m % 4 == 0 and bp[m // 4] >= 0 and (m == 0 or bp[m // 4] != bp[m // 4 - 1]): landed(bp[m // 4], True, "LA_b%d" % m)
        wkld(m)
    a("s_branch LA_i1")
    a.label("LA_i0")
    for m in range(16): wkld(m)
    a("s_setprio %d", pa)
    a("s_barrier")
    a.label("LA_i1")
    bptr()
    a("s_lshl_b32 s36, s14, 11")
    a("s_add_u32 s36, s36, %d", sl[8])
    if mf == 32:
        a("v_lshrrev_b32 v14, 2, v4")
        a("v_xor_b32 v14, v14, v13")
        a("v_lshlrev_b32 v14, 4, v14")
        a("v_lshl_add_u32 v14, v4, 6, v14")
        a("v_lshl_add_u32 v5, v8, 13, v14")
        a("v_add_u32 v5, %d, v5", slot[0])
        a("v_xor_b32 v6, 32, v5")
        a("v_lshl_add_u32 v10, v8, 10, v14")
        a("v_add_u32 v10, s36, v10")
        a("v_xor_b32 v11, 32, v10")
    else:
        a("v_add_u32 v5, %d, v14", slot[0])
        a("v_add_u32 v10, s36, v14")
        a("v_add_u32 v11, 1024, v10")
    a("v_add_u32 v12, s36, v2")
    a("s_lshl_b32 s50, s14, 2")
    a("s_add_u32 s50, s50, %d", L_FL + 64)
    a("v_mov_b32 v1, s50")
    a("s_and_b32 s50, s60, 1")
    a("s_lshl_b32 s50, s50, 2")
    a("s_add_u32 s50, s50, s61")
    a("s_lshl_b32 s50, s50, 2")
    a("s_lshl_b32 s88, 0x0f0f, s50")
    a("s_cmp_eq_u32 s23, 0")
    a("s_cselect_b32 s89, -1, s88")
    a("s_mov_b32 s96, %s", f32(SCALE))
    a("s_mul_i32 s50, s14, %d", NX)
    a("s_lshl_b32 s72, %d, s50", (1 << NX) - 1)
    a("s_mov_b32 s73, %s", "s72" if NX else "-1")
    a("s_mul_i32 s50, s20, 7")
    a("s_add_u32 s50, s50, s14")
    a("s_lshl_b32 s50, s50, 13")
    a("s_add_u32 s50, s50, 0x%x", AX)
    add64(a, 74, 4, off_sgpr=50)
    sconst()
    for kd in range(8):
        a("s_waitcnt vmcnt(%d)", 14 - 2 * kd)
        for t in range(2): a("ds_write_b128 v12, %s offset:%d", vr(WK + (2 * kd + t) * 4, 4), 1024 * t)
        for c in range(2): a("ds_read_b128 %s, v%d", vr(WK + (2 * kd + c) * 4, 4), 10 + c)
    if prof == 4: a("s_memrealtime s[76:77]")
    landed(0, True, "LA_l0")
    if prof == 4: a("s_memrealtime s[90:91]")
    q = LQ(a)
    free = [(8, 224), (12, 224), (BW + 40, 224), (BW + 44, 224)] + [(AW + 8 * (NK - 2) + 4 * i, NF - 32) for i in range(4)]
    buf = {}; nxt = [0]
    def rd(cur, lim):
        while nxt[0] < min(lim, cur + 1 + rdep):
            F = nxt[0]
            ok = [x for x in free if x[1] > F]
            if not ok: return
            x = min(ok, key=lambda y: y[1]); free.remove(x); buf[F] = x
            if F and not (F & 15):
                for r in (5, 6)[:mf // 16]: a("v_add_u32 v%d, %d, v%d", r, slot[F >> 4] - slot[(F >> 4) - 1], r)
            if mf == 32: q.issue(F, "ds_read_b128 %s, v%d offset:%d", vr(x[0], 4), 5 + (F & 1), ((F & 15) >> 1) * 1024)
            else: q.issue(F, "ds_read_b128 %s, v5 offset:%d", vr(x[0], 4), ((F & 15) >> 1) * 1024 + (F & 1) * 8192)
            nxt[0] += 1
    def acc(ks): return V if ks & 1 else AW + 8 * ks
    def cvt_ops(ks):
        Rr = AW + 8 * ks; X = acc(ks); ops = []
        for d in range(4):
            for e in range(2):
                s0 = X + 8 * e + 2 * d
                cv = ("v_cvt_pk_f16_f32 v%d, v%d, v%d", Rr + 2 * d + e, s0, s0 + 1)
                if pd == 0: ops.append([("v_mul_f32 v%d, s96, v%d", s0, s0), ("v_mul_f32 v%d, s96, v%d", s0 + 1, s0 + 1), cv])
                else: ops.append([("v_fma_mixlo_f16 v%d, v%d, s96, 0", Rr + 2 * d + e, s0), ("v_fma_mixhi_f16 v%d, v%d, s96, 0", Rr + 2 * d + e, s0 + 1)])
        for d in range(4): ops.append([("v_permlane16_swap_b32 v%d, v%d", Rr + 2 * d, Rr + 2 * d + 1)] if mf == 32 else [])
        return ops
    def bgo():
        if prof == 4: a("s_memrealtime s[78:79]")
        bload(range(5))
        a("ds_write_b32 v1, v0 offset:192")
        a("s_mov_b32 s89, -1")
    def ago():
        for i in range(2 * NX): a("global_load_dwordx4 %s, v2, s[74:75] offset:%d sc1", vr(AW + 8 * NK + 4 * i, 4), 1024 * i)
        a("s_mov_b32 s73, -1")
    tail = []
    rd(-1, 16)
    for ks in range(NK):
        ops = cvt_ops(ks - 1) if ks else []
        sched = {2: [0], 3: [1], 4: [2], 8: [3, 8], 9: [4], 10: [5, 9], 11: [6], 12: [7, 10], 13: [11]}
        for m in range(16):
            F = ks * 16 + m
            q.wait(F)
            fl = [o for g in sched.get(m, []) for o in ops[g]] if ops else []
            if mf == 32:
                d = vr(acc(ks), 16)
                a("v_mfma_f32_32x32x16_bf16 %s, %s, %s, %s", d, vr(buf[F][0], 4), vr(WK + m * 4, 4), d if m else "0")
                if ks == L: free.append((WK + m * 4, 224))
            else:
                for c in range(2):
                    d = vr(acc(ks) + 8 * c + 4 * (m & 1), 4)
                    a("v_mfma_f32_16x16x32_bf16 %s, %s, %s, %s", d, vr(buf[F][0], 4), vr(WK + ((m & 14) + c) * 4, 4), d if m > 1 else "0")
                    if c == 0:
                        for o in fl[:2]: a(*o)
                        fl = fl[2:]
                    if ks == L and (m & 1): free.append((WK + ((m & 14) + c) * 4, 224))
            for o in fl: a(*o)
            free.append(buf[F])
            row = {9: 7, L: 8}.get(ks, ks if ks <= NK - 9 else None)
            if m == 0 and row is not None: q.issue("pr", "ds_write_b32 v1, v0 offset:%d", 32 * row)
            if m == 13 and ks < L - 1 or (F == 0): q.issue("fl", "ds_read_b32 v3, v0")
            if m == 5 and ks < L:
                q.wait("fl")
                a("v_cmp_ne_u32 vcc, 0, v3")
                a("v_readlane_b32 s50, v3, 17")
                if ks == L - 1: a("v_readlane_b32 s19, v3, 16")
                if NX and ks >= 5: a("v_readlane_b32 s51, v3, 18")
            if m == 6 and ks < L:
                a("s_bitcmp1_b32 vcc_lo, %d", ks + 1)
                a("s_cbranch_scc0 LA_l%d", ks + 1)
                a.label("LA_m%d" % (ks + 1))
                def slow(k=ks + 1):
                    landed(k, True, "LA_l%d" % k)
                    a("s_branch LA_m%d", k)
                tail.append(slow)
            rd(F, min(NF, 16 * (ks + 1 + (m >= 6))))
            if m == 7 and k0 <= ks < L:
                a("s_and_b32 s50, s50, s88")
                a("s_cmp_eq_u32 s50, s89")
                a("s_cbranch_scc1 LA_g%d", ks)
                a.label("LA_h%d" % ks)
                def go(k=ks):
                    a.label("LA_g%d" % k)
                    bgo()
                    a("s_waitcnt lgkmcnt(0)")
                    a("s_branch LA_h%d", k)
                tail.append(go)
            if m == 14 and NX and 5 <= ks < L:
                a("s_and_b32 s51, s51, s72")
                a("s_cmp_eq_u32 s51, s73")
                a("s_cbranch_scc1 LA_a%d", ks)
                a.label("LA_b%d" % ks)
                def goa(k=ks):
                    a.label("LA_a%d" % k)
                    ago()
                    a("s_branch LA_b%d", k)
                tail.append(goa)
    a.label("LA_e0")
    a("s_cmp_eq_u32 s89, -1")
    a("s_cbranch_scc1 LA_e1")
    a("ds_read_b32 v3, v0")
    a("s_sub_u32 s25, s25, 1")
    a("s_cbranch_scc1 %s", abort)
    a("s_waitcnt lgkmcnt(0)")
    a("v_readlane_b32 s50, v3, 17")
    a("s_and_b32 s50, s50, s88")
    a("s_cmp_eq_u32 s50, s89")
    a("s_cbranch_scc0 LA_e0")
    bgo()
    a.label("LA_e1")
    a("s_setprio %d", tpr)
    a("v_lshrrev_b32 v1, 4, v2")
    if prof == 4: a("s_memrealtime s[92:93]")
    a("s_cmp_eq_u32 s23, 0")
    a("s_cbranch_scc1 LA_e2")
    bload([5] + hi)
    a.label("LA_e2")
    for o in cvt_ops(L):
        for x in o: a(*x)
    a("v_lshrrev_b32 v3, 4, v1")
    a("s_mov_b32 s96, 0")
    a("s_cmp_lt_u32 s14, 4" if rot else "s_cmp_eq_u32 s61, 1")
    a("s_cbranch_scc1 LA_end")
    for i in range(56):
        if NX and i == 56 - 8 * NX:
            a("s_mov_b32 s96, 1")
            a("s_cmp_eq_u32 s73, -1")
            a("s_cselect_b32 s50, s23, 0")
            a("s_cmp_eq_u32 s50, 0")
            a("s_cbranch_scc1 LA_end")
            a("s_mov_b32 s96, 0")
            a("s_waitcnt vmcnt(18)")
        a("v_swap_b32 v%d, v%d", AW + i, AW + 56 + i)
    a("s_branch LA_end")
    for f in tail: f()
    a.label("LA_w7")
    a("s_setprio %d", p7)
    if mf == 32:
        a("v_and_b32 v13, 1, v3")
        a("v_lshl_add_u32 v8, v13, 17, v12")
        a("v_lshrrev_b32 v13, 1, v3")
        a("v_lshl_add_u32 v8, v13, 15, v8")
    else: a("v_lshl_add_u32 v8, v3, 16, v12")
    a("v_lshl_add_u32 v8, v7, 13, v8")
    a("s_mul_i32 s31, s22, %d", (7 << 18) * rot)
    a("s_add_u32 s32, s30, s31")
    add64(a, 32, 64, off_sgpr=32)
    a("s_sub_u32 s31, %d, s31", 7 << 18)
    a("s_add_u32 s30, s30, s31")
    add64(a, 30, 64, off_sgpr=30)
    vq = []
    def half(i):
        add64(a, 34, 32 if i < 14 else 30, imm=(((i >> 1) % 7) << 18) + (i & 1) * (mf // 4) * 8192)
        for kd in range(8):
            a("s_mov_b32 m0, %d", slot[i >> 1] + (i & 1) * 8192 + 960 * kd)
            a("global_load_lds_dwordx4 v8, s[34:35] offset:%d" + nt(2), 64 * kd)
            vq.append(i)
    def vwait(tag):
        last = max(k for k, t in enumerate(vq) if t == tag)
        a("s_waitcnt vmcnt(%d)", len(vq) - 1 - last)
        del vq[:last + 1]
    DEP = 7
    for i in range(n0):
        if i == ni: a("s_barrier")
        half(i)
    pt.nonce_ld(a); vq.append("N")
    if ni >= n0: a("s_barrier")
    issued = [n0]
    bptr()
    a("v_lshlrev_b32 v10, 3, v1")
    a("s_lshl_b32 s51, s20, 9")
    a("s_add_u32 s51, s51, 0x%x", LNF)
    a("v_add_u32 v12, s51, v10")
    a("v_lshrrev_b32 v13, 3, v1")
    a("v_mul_u32_u24 v13, %d, v13", 7 * 64)
    a("v_and_b32 v14, 7, v1")
    a("v_lshl_add_u32 v13, v14, 3, v13")
    a("v_add_u32 v13, s50, v13")
    a("v_min_u32 v11, 6, v14")
    a("v_lshlrev_b32 v11, 2, v11")
    a("v_add_u32 v11, %d, v11", L_FL + 64)
    a("v_and_b32 v14, 31, v1")
    a("v_lshlrev_b32 v9, 7, v14")
    a("v_lshlrev_b32 v14, 2, v14")
    a("v_add_u32 v14, 0x%x, v14", RDY)
    a("v_lshrrev_b32 v10, 5, v1")
    a("v_mul_u32_u24 v10, 14336, v10")
    a("v_add_u32 v9, v9, v10")
    a("s_lshl_b32 s50, s20, 2")
    a("s_add_u32 s50, s50, 0x%x", RDY)
    a("v_mov_b32 v15, s50")
    a("v_mov_b32 v5, %d", L_FL)
    a("v_min_u32 v27, %d, v1", max(7 * NX - 1, 0))
    a("v_lshlrev_b32 v27, 2, v27")
    a("s_lshl_b32 s50, s20, 7")
    a("s_add_u32 s50, s50, 0x%x", AFL)
    a("v_add_u32 v27, s50, v27")
    a("s_and_b32 s50, s20, 3")
    a("s_lshl_b32 s50, s50, 13")
    a("v_lshlrev_b32 v23, 7, v1")
    a("v_add_u32 v23, s50, v23")
    a("v_and_b32 v24, 0x3fff, v23")
    a("v_lshrrev_b32 v25, 2, v1")
    a("v_lshlrev_b32 v25, 13, v25")
    a("v_and_b32 v26, 3, v1")
    a("v_lshl_add_u32 v25, v26, 7, v25")
    a("s_lshl_b32 s50, s22, 17")
    a("v_add_u32 v25, s50, v25")
    for i in range(16):
        vwait(i)
        if i == ct[0]: code_touch(a, "LA_m7", 1, 24, 21); vq.append("T")
        if i == max(n0, 4): pt.nonce_put(a, abort)
        if i & 1: a("ds_write_b32 v5, v5 offset:%d", 4 * (i >> 1))
        upto = min(16, i + 1 + ramp.get(i, DEP))
        while issued[0] < upto: half(issued[0]); issued[0] += 1
        if qt <= i < qt + 6:
            add64(a, 34, 30, imm=(i - qt + 1) << 18)
            a("global_load_dword v21, v25, s[34:35]" + nt(32)); vq.append("T")
    def bpoll():
        a("global_load_dwordx2 v[16:17], v13, s[4:5] sc1")
        if NX: a("global_load_dword v18, v27, s[4:5] sc1")
        a("s_sub_u32 s25, s25, 1")
        a("s_cbranch_scc1 %s", abort)
        a("s_waitcnt vmcnt(0)")
        a("v_cmp_eq_u32 vcc, s19, v17")
        a("s_or_b32 vcc_lo, vcc_lo, 0x88888888")
        a("s_or_b32 vcc_hi, vcc_hi, 0x88888888")
        a("v_cmp_eq_u32 s[50:51], s19, v16")
        a("s_and_b64 s[50:51], s[50:51], vcc")
        a("v_mov_b32 v16, s50")
        a("v_mov_b32 v17, s51")
        a("ds_write_b64 v5, v[16:17] offset:384")
        if NX:
            a("v_cmp_eq_u32 vcc, s19, v18")
            a("v_mov_b32 v18, vcc_lo")
            a("ds_write_b32 v5, v18 offset:392")
    def prog(row, l):
        a("ds_read_b32 v6, v11 offset:%d", 32 * row)
        a("s_waitcnt lgkmcnt(0)")
        a("v_cmp_eq_u32 vcc, 0, v6")
        a("s_cbranch_vccnz %s", l)
    for k in range(8, NK):
        l = "LA_f%d" % k
        a("s_branch %sa", l)
        a.label(l)
        bpoll()
        for kk in range(max(8, k - 2), k): a("ds_write_b32 v5, v5 offset:%d", 4 * kk)
        a.label(l + "a")
        prog(k - 8, l)
        if k == 8:
            a("s_or_b32 s50, s19, s17")
            a("v_mov_b32 v16, s50")
            a("s_mov_b64 exec, 1")
            a("global_store_dword v15, v16, s[4:5] sc1")
            a("s_mov_b64 exec, -1")
        if k >= 10:
            a("s_waitcnt vmcnt(16)")
            a("ds_write_b32 v5, v5 offset:%d", 4 * (k - 2))
        if k == ct[1]: code_touch(a, "LA_e0", 1, 23, 21)
        half(2 * k); half(2 * k + 1)
    a("s_waitcnt vmcnt(16)")
    a("ds_write_b32 v5, v5 offset:%d", 4 * (NK - 2))
    a.label("LA_p")
    bpoll()
    a("ds_write_b32 v5, v5 offset:%d", 4 * (NK - 1))
    a("s_cmp_eq_u32 s23, 0")
    a("s_cbranch_scc1 LA_q")
    a("s_cmp_eq_u64 s[50:51], -1")
    a("s_cbranch_scc0 LA_p")
    a.label("LA_p2")
    a("s_sub_u32 s25, s25, 1")
    a("s_cbranch_scc1 %s", abort)
    prog(6, "LA_p2")
    def pol2():
        a("global_load_dwordx2 v[18:19], v12, s[4:5] sc1")
        a("global_load_dword v20, v14, s[4:5] sc1")
        if NX: a("global_load_dword v26, v27, s[4:5] sc1")
    pol2()
    bload(range(6))
    bload(hi)
    if touch:
        a("s_mul_i32 s50, s61, 14336")
        a("s_add_u32 s50, s50, %d", 3 * 14 * 56 * 1024 + 1024 - 7168)
        a("s_sub_u32 s34, s80, s50")
        a("s_subb_u32 s35, s81, 0")
        for qq in range(3):
            for i in range(2):
                a("global_load_dword v21, v9, s[34:35] sc1")
                a("s_add_u32 s34, s34, %d", 28672 if i < 1 else 14 * 56 * 1024 - 28672); a("s_addc_u32 s35, s35, 0")
    a("s_waitcnt vmcnt(%d)", 28 + 6 * touch)
    a("s_branch LA_q1")
    a.label("LA_q")
    pol2()
    a("s_sub_u32 s25, s25, 1")
    a("s_cbranch_scc1 %s", abort)
    a("s_waitcnt vmcnt(0)")
    a.label("LA_q1")
    a("v_and_b32 v22, -2, v20")
    if NX:
        a("v_cmp_eq_u32 vcc, s19, v26")
        a("v_mov_b32 v7, vcc_lo")
        a("ds_write_b32 v5, v7 offset:392")
    allnon(a, [18, 19, 22])
    a("v_cmp_ne_u32 vcc, 0, v18")
    a("s_cbranch_vccnz LA_q")
    a("v_cmp_ne_u32 vcc, s19, v20")
    a("s_or_b32 s50, vcc_lo, vcc_hi")
    a("s_cselect_b32 s50, 3, 1")
    a("v_mov_b32 v7, s50")
    a("ds_write2_b32 v5, v7, v7 offset0:%d offset1:%d", 16 + 7 * 8 + 7, 16 + 8 * 8 + 7)
    a("s_lshr_b32 s97, s50, 1")
    a("s_mov_b32 s96, 0")
    a("s_mov_b32 s72, 0")
    a("s_mov_b32 s73, -1")
    a("v_mov_b32 v0, v5")
    a("s_mov_b64 s[74:75], s[4:5]")
    a("s_setprio 0")
    sconst()
    a("s_waitcnt lgkmcnt(0)")
    a.label("LA_end")

SM = "v_smfmac_f32_16x16x64_f16 %s, %s, %s, v5"
def emit_chain(a, prof=False, nv=64, ns=(0, 0, 0, 0), bpos=9, nb2=4, nb3=8, gpos=13, g2=1, pdel=1, p2=1, flag=1, fpos=5, dep=6, dep2=7, nb7=0, xp=0, abort="CH_abort", merged=True, dbgout=0, k0=1, pd=0, touch=1, rdep=8, bands=(), ni=4, ramp={0: 3, 1: 4, 2: 3}, pa=1, p7=0, ctouch=1, rot=1, bp=(-1, -1, -1, -1), n0=4, ct=(-1, -1), qt=99, fin=3, tpr=0, mf=32, nk=14, gm=0, sw=0, lp=1, pz=3, lt=0, s4=0):
    P = Prof(a, prof)
    npf = nv + sum(ns)
    def spf(w):
        o = nv + sum(ns[:w - 4])
        for i in range(ns[w - 4]): a("s_load_dword s96, s[54:55], %d", (o + i) * 128)
    MODE = {"ST": "", "PX": ""}
    a.c("---- chain, role s20")
    a("s_lshr_b32 s21, s20, 1")
    a("s_and_b32 s22, s20, 1")
    a("s_cmp_lt_u32 s20, 28")
    a("s_cselect_b32 s23, 1, 0")
    a("s_mov_b32 s25, 0x100000")
    a("s_and_b32 s60, s14, 3")
    a("s_lshr_b32 s61, s14, 2")
    a("s_xor_b32 s61, s61, s22")
    a("s_xor_b32 s61, s61, 1")
    def breg(n): return BW + n * 8 if n < 6 else 32 + (n - 6) * 8
    def bload(ns_):
        for n in ns_:
            for w in range(2):
                b = 80 + 4 * (n & 1) + 2 * w
                a("global_load_dwordx4 %s, v2, s[%d:%d] offset:%d sc1", vr(breg(n) + w * 4, 4), b, b + 1, (n >> 1) * 1024 - 4096)
    hi = [10, 11, 12, 13, 6, 7, 8, 9]
    def sconst():
        a("s_mov_b32 s46, 0x00ff00ff")
        a("s_mov_b32 s47, 0x00ff00ff")
        add64(a, 26, 4, imm=MEMR)
        add64(a, 28, 4, imm=SR)
        for r in (30, 32, 58): a("s_mov_b64 s[%d:%d], s[26:27]", r, r + 1)
        for r in (34, 36): a("s_mov_b64 s[%d:%d], s[28:29]", r, r + 1)
        a("s_mul_i32 s42, s22, 7168")
        a("s_and_b32 s43, s14, 1")
        a("s_xor_b32 s43, s43, 1")
        a("s_mul_i32 s43, s43, 14336")
        a("s_add_u32 s42, s42, s43")
        a("s_add_u32 s42, s42, 0x%x", XF + 4096)
        add64(a, 42, 4, off_sgpr=42)
        a("s_sub_u32 s44, s20, 28")
        a("s_max_i32 s44, s44, 0")
        a("s_mul_i32 s44, s44, 7168")
        a("s_add_u32 s44, s44, 0x%x", XF + 2 * 28 * 1024)
        add64(a, 44, 4, off_sgpr=44)
        a("s_mov_b32 s24, 0")
        a("s_mov_b64 s[62:63], 0")
        a("s_min_u32 s38, s20, 27")
        a("s_mul_i32 s38, s38, %d", 16 * 1024)
        a("s_add_u32 s38, s38, 0x%x", UF)
        add64(a, 38, 4, off_sgpr=38)
        a("s_lshl_b32 s40, s21, 13")
        a("s_lshl_b32 s41, s22, 11")
        a("s_add_u32 s40, s40, s41")
        a("s_add_u32 s40, s40, 0x%x", TBX - 28 * 4096 + 2048)
        add64(a, 40, 4, off_sgpr=40)
        add64(a, 48, 4, imm=MEMX)
        a("s_mov_b64 s[54:55], s[38:39]")
        a("s_sub_u32 s56, s20, 28")
        a("s_max_i32 s56, s56, 0")
        a("s_mul_i32 s56, s56, %d", 7 * 16384)
        a("s_add_u32 s56, s56, 0x%x", UF + 2 * 28 * 16 * 1024)
        add64(a, 56, 4, off_sgpr=56)
        add64(a, 52, 4, imm=UFL)
    local_a(a, prof, abort, bload, hi, k0, pd, touch, rdep, bands, ni, ramp, pa, p7, sconst, rot, bp, n0, ct, qt, tpr, mf, nk)
    def TS(k):
        if prof == 4: a("s_memrealtime s[%d:%d]", TSR[k], TSR[k] + 1)
    TSR = [64, 66, 68, 70, 88, 72]
    def achk(l, block):
        if nk == 14: return
        a("s_cmp_eq_u32 s73, -1")
        a("s_cbranch_scc1 %s", l)
        a.label(l + "p")
        a("ds_read_b32 v28, v0")
        a("s_sub_u32 s25, s25, 1")
        a("s_cbranch_scc1 %s", abort)
        a("s_waitcnt lgkmcnt(0)")
        a("v_readlane_b32 s50, v28, 18")
        a("s_and_b32 s50, s50, s72")
        a("s_cmp_eq_u32 s50, s73")
        a("s_cbranch_scc0 %s", l + "p" if block else l)
        for i in range(2 * (14 - nk)): a("global_load_dwordx4 %s, v2, s[74:75] offset:%d sc1", vr(AW + 8 * nk + 4 * i, 4), 1024 * i)
        a("s_mov_b32 s73, -1")
        a.label(l)
    TS(0)
    a("s_min_u32 s50, s14, 6")
    a("s_lshl_b32 s50, s50, 10")
    a("v_add_u32 v14, s50, v2")
    a("s_sub_u32 s50, s14, 3")
    a("s_cmp_ge_u32 s50, 4")
    a("s_cbranch_scc1 CH_m0")
    a("v_bfe_u32 v16, v14, 4, 3")
    a("v_mul_u32_u24 v16, 896, v16")
    a("v_lshrrev_b32 v17, 9, v14")
    a("v_lshl_add_u32 v16, v17, 6, v16")
    a("v_bfe_u32 v17, v14, 7, 1")
    a("v_lshl_add_u32 v16, v17, 5, v16")
    a("v_bfe_u32 v17, v14, 8, 1")
    a("v_lshl_add_u32 v16, v17, 3, v16")
    a("global_load_dwordx2 v[20:21], v16, s[12:13]")
    a("global_load_dwordx2 v[22:23], v16, s[12:13] offset:16")
    a("s_cmp_eq_u32 s14, 3")
    a("s_cbranch_scc1 CH_m0")
    a("global_load_dwordx2 v[24:25], v16, s[12:13] offset:-512")
    a("global_load_dwordx2 v[26:27], v16, s[12:13] offset:-496")
    a.label("CH_m0")
    a("v_bfe_u32 v5, v4, 1, 1")
    a("v_mul_u32_u24 v5, 0xaaaa, v5")
    a("v_add_u32 v5, 0x4444, v5")
    a("v_lshrrev_b32 v6, 2, v4")
    a("v_lshlrev_b32 v6, 1, v6")
    a("v_and_b32 v7, 1, v4")
    a("v_add_u32 v6, v6, v7")
    a("v_lshlrev_b32 v6, 4, v6")
    a("v_lshl_add_u32 v6, v3, 7, v6")
    a("s_mul_i32 s50, s61, 3584")
    a("v_add_u32 v6, s50, v6")
    a("v_lshrrev_b32 v7, 2, v4")
    a("v_lshlrev_b32 v7, 7, v7")
    a("v_lshl_add_u32 v7, v3, 5, v7")
    a("v_and_b32 v8, 3, v4")
    a("v_lshl_add_u32 v7, v8, 2, v7")
    a("s_lshl_b32 s50, s14, 9")
    a("s_add_u32 s50, s50, %d", L_TAI)
    a("v_add_u32 v7, s50, v7")
    a("s_lshl_b32 s50, s60, 10")
    a("s_add_u32 s50, s50, %d", L_TB1)
    a("v_add_u32 v12, s50, v2")
    a("s_cmp_ge_u32 s14, 4")
    a("s_cbranch_scc1 CH_c4")
    a("s_lshr_b32 s50, s60, 1")
    a("s_lshl_b32 s50, s50, 10")
    a("s_and_b32 s51, s60, 1")
    a("s_lshl_b32 s51, s51, 3")
    a("s_add_u32 s50, s50, s51")
    a("s_add_u32 s50, s50, %d", L_TB2)
    a("v_add_u32 v8, s50, v2")
    a("s_lshl_b32 s50, s60, 10")
    a("s_add_u32 s50, s50, %d", L_RED)
    if lp:
        a("v_and_b32 v9, 7, v1")
        a("v_lshlrev_b32 v9, 2, v9")
        a("v_lshl_add_u32 v9, v3, 6, v9")
        a("v_bfe_u32 v16, v1, 3, 1")
        a("v_lshl_add_u32 v9, v16, 8, v9")
    else: a("v_lshlrev_b32 v9, 2, v1")
    a("v_add_u32 v9, s50, v9")
    a("s_lshl_b32 s50, s22, 2")
    a("s_add_u32 s50, s50, s60")
    a("s_lshl_b32 s51, s50, 11")
    if sw:
        a("v_lshrrev_b32 v16, 2, v4")
        a("v_lshlrev_b32 v16, 1, v16")
        a("v_and_b32 v17, 1, v4")
        a("v_add_u32 v16, v16, v17")
        a("v_bfe_u32 v17, v4, 1, 1")
        a("v_lshl_add_u32 v18, v17, 3, v16")
        a("v_lshl_add_u32 v18, v3, 4, v18")
        a("v_lshl_add_u32 v10, v18, 4, s51")
    else: a("v_add_u32 v10, s51, v2")
    a("s_lshl_b32 s51, s50, 9")
    a("s_add_u32 s51, s51, 16384")
    if sw:
        a("v_lshl_add_u32 v11, v3, 3, v16")
        a("v_lshl_add_u32 v11, v17, 5, v11")
        a("v_lshlrev_b32 v11, 2, v11")
    else: a("v_lshlrev_b32 v11, %d, v1", 2 + gm)
    a("v_add_u32 v11, s51, v11")
    a("s_lshl_b32 s50, s60, 12")
    a("v_add_u32 v13, s50, v2")
    a("s_branch CH_c5")
    a.label("CH_c4")
    a("v_mov_b32 v11, 0")
    a("v_and_b32 v16, 7, v4")
    a("s_cmp_eq_u32 s14, 5")
    a("s_cselect_b64 vcc, -1, 0")
    a("v_lshlrev_b32 v8, 4, v16")
    a("v_lshl_add_u32 v17, v3, 7, v8")
    a("v_and_b32 v18, 1, v3")
    a("v_lshl_add_u32 v8, v18, 8, v8")
    a("v_lshrrev_b32 v18, 1, v3")
    a("v_lshl_add_u32 v8, v18, 3, v8")
    a("v_cndmask_b32 v8, v17, v8")
    a("v_add_u32 v8, %d, v8", L_TAI)
    a("v_lshrrev_b32 v17, 1, v16")
    a("v_lshlrev_b32 v17, 2, v17")
    a("v_and_b32 v18, 1, v16")
    a("v_add_u32 v17, v17, v18")
    a("s_and_b32 s50, s21, 1")
    a("s_lshl_b32 s50, s50, 1")
    a("v_add_u32 v17, s50, v17")
    if sw:
        a("s_lshl_b32 s50, s50, 2")
        a("v_add_u32 v17, s50, v16")
    a("s_lshr_b32 s50, s21, 1")
    a("s_lshl_b32 s50, s50, 1")
    a("s_add_u32 s50, s50, s22")
    a("s_lshl_b32 s51, s50, 1")
    a("s_add_u32 s51, s51, 7")
    a("s_sub_u32 s51, s51, s14")
    a("s_lshl_b32 s51, s51, 9")
    a("v_lshlrev_b32 v9, 4, v17")
    a("v_lshrrev_b32 v18, 1, v3")
    a("v_lshl_add_u32 v9, v18, 8, v9")
    a("v_and_b32 v18, 1, v3")
    a("v_lshl_add_u32 v9, v18, 3, v9")
    a("v_add_u32 v9, s51, v9")
    a("s_lshl_b32 s51, s50, 8")
    a("s_add_u32 s51, s51, 16384")
    if gm:
        a("s_mul_i32 s50, s22, 252")
        a("s_sub_u32 s51, s51, s50")
    if sw:
        a("s_and_b32 s50, s21, 1")
        a("s_lshl_b32 s50, s50, 7")
        a("s_add_u32 s51, s51, s50")
        a("v_lshl_add_u32 v17, v3, 3, v16")
    else: a("v_lshl_add_u32 v17, v3, 4, v17")
    a("v_lshlrev_b32 v18, %d, v17", 2 + gm)
    a("v_add_u32 v18, s51, v18")
    a("v_cndmask_b32 v9, v9, v18")
    a("v_bfe_u32 v13, v1, 1, 1")
    a("v_lshlrev_b32 v13, 7, v13")
    a("v_and_b32 v16, 1, v1")
    a("v_lshl_add_u32 v13, v16, 3, v13")
    a("v_bfe_u32 v16, v1, 2, 2")
    a("v_lshl_add_u32 v13, v16, 5, v13")
    a("v_lshrrev_b32 v16, 5, v1")
    a("v_lshl_add_u32 v13, v16, 4, v13")
    a("v_bfe_u32 v16, v1, 4, 1")
    a("v_lshl_add_u32 v13, v16, 8, v13")
    if lp: a("v_lshlrev_b32 v13, 3, v1")
    a("s_mul_i32 s50, s22, 7168")
    a("s_lshl_b32 s51, s21, 9")
    a("s_add_u32 s50, s50, s51")
    a("v_add_u32 v13, s50, v13")
    a("v_min_u32 v10, %d, v1", max(nv - 1, 0))
    a("v_lshlrev_b32 v10, 7, v10")
    a("v_add_u32 v16, 2048, v8")
    a("v_cndmask_b32 v10, v10, v16")
    a.label("CH_c5")
    a("s_mul_i32 s50, s61, 7168")
    a("s_sub_u32 s50, 3584, s50")
    a("v_add_u32 v3, s50, v6")
    a("s_lshl_b32 s50, s20, 7")
    a("s_add_u32 s50, s50, %d", 192 * 1024)
    a("v_mov_b32 v4, s50")
    a("s_cmp_lg_u32 s23, 0")
    a("s_cbranch_scc1 CH_hs")
    NL = max(128 - npf, 1); NHP = (7 * NL + 319) // 320
    a("s_and_b32 s50, s20, 1")
    a("s_lshl_b32 s50, s50, 2")
    a("s_add_u32 s50, s50, s60")
    a("s_min_u32 s50, s50, 6")
    a("s_lshl_b32 s50, s50, 10")
    a("v_lshrrev_b32 v4, 5, v1")
    a("v_lshlrev_b32 v4, 9, v4")
    a("v_bfe_u32 v16, v1, 4, 1")
    a("v_lshl_add_u32 v4, v16, 7, v4")
    a("v_and_b32 v16, 7, v1")
    a("v_lshl_add_u32 v4, v16, 4, v4")
    a("v_bfe_u32 v16, v1, 3, 1")
    a("v_lshl_add_u32 v4, v16, 3, v4")
    a("v_add_u32 v4, s50, v4")
    a("v_add_u32 v13, s50, v2")
    a("s_sub_u32 s50, s20, 28")
    a("s_lshl_b32 s50, s50, 7")
    a("s_add_u32 s50, s50, %d", 192 * 1024)
    a("v_mov_b32 v11, s50")
    a("s_cmp_lg_u32 s14, 7")
    a("s_cbranch_scc1 CH_h7")
    a("v_min_u32 v10, 55, v1")
    a("v_lshlrev_b32 v10, 7, v10")
    a.label("CH_h7")
    for i in range(NHP):
        a("s_min_u32 s50, s14, 4")
        a("s_add_u32 s50, s50, %d", 5 * i)
        a("s_lshl_b32 s50, s50, 6")
        a("v_add_u32 v16, s50, v1")
        a("v_min_u32 v16, %d, v16", 7 * NL - 1)
        a("v_cvt_f32_u32 v17, v16")
        a("v_add_f32 v17, 0.5, v17")
        a("v_mul_f32 v17, %s, v17", f32(1.0 / NL))
        a("v_cvt_u32_f32 v17, v17")
        a("v_mul_u32_u24 v18, %d, v17", NL)
        a("v_sub_u32 v16, v16, v18")
        a("v_add_u32 v16, %d, v16", 128 - NL)
        a("v_lshlrev_b32 v16, 7, v16")
        a("v_lshl_add_u32 v%d, v17, 14, v16", BW + i)
    a.label("CH_hs")
    XR = EX; UR = EX; GX = EX + 16; GM = EX + 24
    def xload():
        for k in range(7):
            a("global_load_dwordx4 %s, v2, s[42:43] offset:%d sc1", vr(XR + 4 * k, 4), k * 1024 - 4096)
    a("s_mul_i32 s50, s14, %d", BWSZ)
    a("s_add_u32 s50, s50, %d", L_BW)
    a("v_add_u32 v15, s50, v2")
    a("v_min_u32 v16, 55, v1")
    a("v_lshlrev_b32 v16, 4, v16")
    a("v_and_b32 v30, 7, v1")
    a("v_lshlrev_b32 v30, 2, v30")
    a("v_add_u32 v30, %d, v30", L_FL + 64 + 8 * 32)
    a("s_cmp_ge_u32 s14, 3")
    a("s_cselect_b32 s50, 32, 0")
    a("v_subrev_u32 v31, s50, v30")
    X = "CI"
    def skip(cond, l):
        a({"noA": "s_cmp_eq_u32 s14, 7", "noB": "s_cmp_eq_u32 s23, 0"}[cond])
        a("s_cbranch_scc1 %s%s", X, l)
    def row(v):
        l = a.newlabel("CR")
        a.label(l)
        a("ds_read_b32 v28, v%d", v)
        a("s_sub_u32 s25, s25, 1")
        a("s_cbranch_scc1 %s", abort)
        a("s_waitcnt lgkmcnt(0)")
        a("v_cmp_eq_u32 vcc, 0, v28")
        a("s_cbranch_vccnz %s", l)
    TS(1)
    skip("noA", "c1")
    row(31)
    a("v_readlane_b32 s97, v28, 7")
    a("s_lshr_b32 s97, s97, 1")
    achk("CIa", 0)
    TS(2)
    for c in range(2):
        a.label(X + "c%d" % c)
        skip("noB", "h")
        a("s_waitcnt vmcnt(16)")
        for n in range(6): interleave(a, breg(n))
        TS(3)
        for i, n in enumerate(hi):
            a("s_waitcnt vmcnt(%d)", 14 - 2 * i)
            b = breg(n)
            if c:
                for d in range(8): a("v_mov_b32 v%d, v%d", AW + 8 * (n - 6) + d, b + (d >> 1) + 4 * (d & 1))
            else:
                interleave(a, b)
                for hf in range(2):
                    a("ds_write_b128 v15, %s offset:%d", vr(b + 4 * hf, 4), (n - 6) * 2048 + hf * 1024)
        if c == 0: a("s_branch %sh", X)
    a.label(X + "h")
    TS(4)
    achk("CIb", 0)
    a("s_cmp_lt_u32 s14, 3")
    a("s_cbranch_scc1 CI2")
    a("s_waitcnt lgkmcnt(0)")
    a("s_cmp_lt_u32 s14, 6")
    a("s_cbranch_scc1 CIx")
    xload()
    a.label("CIx")
    a("s_cmp_lg_u32 s60, 3")
    a("s_cbranch_scc1 CIu")
    a("s_cmp_lg_u32 s14, 7")
    a("s_cbranch_scc1 CIt")
    a("s_mul_i32 s50, s20, 5120")
    add64(a, 50, 26, off_sgpr=50)
    a("v_min_u32 v19, 39, v1")
    a("v_lshlrev_b32 v19, 7, v19")
    a("global_load_dword v29, v19, s[50:51] sc1")
    if ctouch: code_touch(a, "CI2", 0, 23, 29)
    a.label("CIt")
    a("s_lshr_b32 s50, s14, 2")
    a("s_lshl_b32 s50, s50, 12")
    a("v_add_u32 v17, s50, v16")
    if nk < 14:
        a("v_min_u32 v19, %d, v1", 7 * (14 - nk) - 1)
        a("v_lshlrev_b32 v19, 2, v19")
        a("s_lshl_b32 s50, s20, 7")
        a("s_add_u32 s50, s50, 0x%x", AFL)
        a("v_add_u32 v19, s50, v19")
        a("v_mov_b32 v18, %d", L_FL + 392)
    a.label("CH_t0")
    if nk < 14: a("global_load_dword v48, v19, s[4:5] sc1")
    for k in range(4): a("global_load_dwordx4 %s, v17, s[52:53] offset:%d sc1", vr(32 + 4 * k, 4), 1024 * k)
    a("s_sub_u32 s25, s25, 1")
    a("s_cbranch_scc1 %s", abort)
    if nk < 14:
        a("s_waitcnt vmcnt(4)")
        a("v_cmp_eq_u32 vcc, s19, v48")
        a("v_mov_b32 v49, vcc_lo")
        a("ds_or_b32 v18, v49")
        achk("CId", 0)
    a("s_waitcnt vmcnt(0)")
    allnon(a, list(range(32, 48 + (nk < 14))))
    a("v_cmp_ne_u32 vcc, 0, v32")
    a("s_cbranch_vccnz CH_t0")
    a.label("CIu")
    row(30)
    a("s_cmp_eq_u32 s14, 7")
    a("s_cbranch_scc1 CI2")
    a("s_waitcnt vmcnt(0)")
    def m0cvt(r):
        for d in range(4):
            a("v_lshlrev_b32 v18, 16, v%d", r + d)
            a("v_and_b32 v%d, 0xffff0000, v%d", r + d, r + d)
            a("v_cvt_pk_f16_f32 v%d, v18, v%d", r + d, r + d)
    m0cvt(20)
    a("ds_write_b128 v14, v[20:23]")
    a("s_cmp_eq_u32 s14, 3")
    a("s_cbranch_scc1 CI2")
    m0cvt(24)
    a("v_subrev_u32 v18, 4096, v14")
    a("ds_write_b128 v18, v[24:27]")
    a.label("CI2")
    achk("CIc", 1)
    a("v_mov_b32 v0, 0")
    a("s_waitcnt vmcnt(0) lgkmcnt(0)")
    if nk < 14:
        a("s_cmp_eq_u32 s96, 0")
        a("s_cbranch_scc1 CIs")
        for i in range(8 * nk - 56, 56): a("v_swap_b32 v%d, v%d", AW + i, AW + 56 + i)
        a.label("CIs")
    if prof == 4:
        a("s_memrealtime s[94:95]")
        for w, r in ((4, 90), (2, 92), (6, 78)):
            a("s_cmp_eq_u32 s14, %d", w)
            a("s_cselect_b32 s98, s%d, s98", r)
    if prof == 4:
        TS(5)
        a("s_waitcnt lgkmcnt(0)")
        for k in range(6): a("v_writelane_b32 v24, s%d, %d", TSR[k], k + 1)
        a("v_writelane_b32 v24, s92, 0")
        a("v_writelane_b32 v24, s94, 7")
        a("v_writelane_b32 v24, s76, 8")
        a("v_writelane_b32 v24, s90, 9")
        a("s_lshl_b32 s50, s20, 3")
        a("s_add_u32 s50, s50, s14")
        a("s_lshl_b32 s50, s50, 8")
        a("s_add_u32 s50, s50, 0x%x", POIS_END + 0x300000)
        a("v_lshlrev_b32 v25, 2, v1")
        a("v_add_u32 v25, s50, v25")
        a("global_store_dword v25, v24, s[4:5]")
    a("v_mov_b32 v%d, v16", STG + 8)
    for i in range(8): a("v_mov_b32 v%d, s19", STG + i)
    def slotptr(d, base, delta, stride):
        a("s_add_u32 s50, s24, %d", delta)
        a("s_and_b32 s50, s50, 3")
        a("s_mul_i32 s50, s50, %d", stride)
        add64(a, d, base, off_sgpr=50)
    def adv(r, n):
        if (xp & 1) and r in (38, 42, 44, 54, 56): return
        a("s_add_u32 s%d, s%d, %d", r, r, n); a("s_addc_u32 s%d, s%d, 0", r + 1, r + 1)
    def ptrs(w, first=False):
        if w != 4: slotptr(34, 28, 0, SR_STRIDE)
        if w >= 5: slotptr(36, 28, 3, SR_STRIDE)
        slotptr(30, 26, 1, MEMR_STRIDE)
        if w == 6: slotptr(32, 26, 3, MEMR_STRIDE)
        if w >= 6: adv(42, 28 * 1024)
        if w >= 4: adv(54, 28 * 16384)
        if first: return
        if w < 4: adv(38, 28 * 16384); adv(48, 8192)
        if w == 7: adv(40, 28 * 4096); adv(44, 28 * 1024)
        if w <= 4: adv(56, 28 * 16384)
    G1 = (GX, GX + 4, GM, GM + 1); G2 = (MFR + 24, STG + 12, EX + 26, EX + 27)
    def gather(G=G1):
        a("global_load_dwordx4 %s, v10, s[34:35] sc1", vr(G[0], 4))
        a("global_load_dwordx4 %s, v10, s[34:35] offset:1024 sc1", vr(G[1], 4))
        if gm: a("global_load_dwordx2 %s, v11, s[34:35] sc1", vr(G[2], 2)); return
        a("global_load_dword v%d, v11, s[34:35] sc1", G[2])
        a("global_load_dword v%d, v11, s[34:35] offset:256 sc1", G[3])
    def zero(r, n=4):
        for i in range(n): a("v_mov_b32 v%d, 0", r + i)
    def memx():
        a("ds_read2_b64 %s, v4 offset0:0 offset1:32", vr(STG, 4))
        a("s_waitcnt lgkmcnt(0)")
        a("global_store_dwordx4 v13, %s, s[48:49] sc1", vr(STG, 4))
    def tbx_read(d):
        for k in range(4):
            a("ds_read_b128 %s, v2 offset:%d", vr(d + 4 * k, 4), L_TB2 + k * 1024)
    def tbx_store(d):
        for k in range(4):
            a("global_store_dwordx4 v2, %s, s[40:41] offset:%d sc1", vr(d + 4 * k, 4), (k >> 1) * 4096 + (k & 1) * 1024 - 2048)

    class TB:
        def __init__(self, w, q):
            self.w = w; self.q = q
            self.loc = {n: BW + 8 * n for n in range(6)}
            if w == 7:
                for n in range(6, 14): self.loc[n] = AW + 8 * (n - 6)
                self.pend = []; self.order = list(range(14))
            else:
                self.pend = list(range(6, 14))
                self.order = [6, 0, 7, 1, 8, 2, 9, 3, 10, 4, 11, 5, 12, 13]
            self.lds = set(self.pend); self.pos = 0
        def stage(self, slot):
            if not self.pend: return
            n = self.pend.pop(0); self.loc[n] = slot
            for hf in range(2):
                self.q.issue(("B", n), "ds_read_b128 %s, v15 offset:%d", vr(slot + 4 * hf, 4), (n - 6) * 2048 + hf * 1024)
        def late(self):
            self.order = [0, 1, 2, 6, 3, 7, 4, 8, 5, 9, 10, 11, 12, 13]
        def run(self, upto, hooks={}):
            while self.pos < upto:
                n = self.order[self.pos]
                self.q.wait(("M", n >> 1))
                if n in self.lds: self.q.wait(("B", n))
                a(SM, vr(ACC1 if n & 1 else ACC0, 4), vr(MFR + 4 * (n >> 1), 4), vr(self.loc[n], 8))
                if n in self.lds: self.stage(self.loc[n])
                if self.pos in hooks: hooks[self.pos]()
                self.pos += 1
    TBO = MFR; TPR = MFR + 8; PX = MFR + 12; PM = MFR + 16; T0 = MFR + 18; T1 = MFR + 19; RZ = MFR + 20
    ONE = STG; ZA = STG + 8
    def tb_cvt(d):
        for b, acc in enumerate((ACC0, ACC1)):
            a("v_cvt_pk_f16_f32 v%d, v%d, v%d", d + 2 * b, acc, acc + 1)
            a("v_cvt_pk_f16_f32 v%d, v%d, v%d", d + 2 * b + 1, acc + 2, acc + 3)
    def tb_give(d=TBO):
        tb_cvt(d)
        a("ds_write_b128 v12, %s", vr(d, 4))
        a("s_waitcnt lgkmcnt(0)")
        P("TB done")
    def tb_take1():
        a("s_barrier")
        a("ds_read_b128 %s, v12", vr(TPR, 4))
    def tb_take2():
        a("s_waitcnt lgkmcnt(0)")
        for d in range(4): a("v_pk_add_f16 v%d, v%d, v%d", TBO + d, TBO + d, TPR + d)
    def tb_take3():
        for b in range(2): a("ds_write_b64 v8, %s offset:%d", vr(TBO + 2 * b, 2), b * 2048)
    def mread(q, n):
        q.issue(("O", n) if n < 7 else ("M", n - 7), "ds_read_b128 %s, v%d offset:%d", vr(MFR + 4 * (n % 7), 4), 3 if n < 7 else 6, (n % 7) * 512)

    FLG = 192 * 1024
    class _N:
        def __call__(self, *x): pass
    def wave_loop(w, hp):
        pv = w < 4; N = MODE["PX"] + ("H%d" if hp else "C%d") % w
        ST = MODE["ST"]
        uchk = merged and hp and w == 4
        def ufl_ld(delta):
            a("s_add_u32 s50, s24, %d", delta)
            a("s_min_u32 s50, s50, 63")
            a("s_lshl_b32 s50, s50, 11")
            add64(a, 50, 52, off_sgpr=50)
            for k in range(2): a("global_load_dwordx4 %s, v%d, s[50:51] offset:%d sc1", vr(STG + 4 * k, 4), STG + 8, 1024 * k)
        TA = GX if pv else ACC0
        W7 = AW + 64
        r = {7: W7}.get(w, EX); r2 = r + 8; t = MFR
        pol = w != 6
        tail = []
        def poll(r):
            a("global_load_dwordx4 %s, v14, s[58:59] offset:-3584 sc1", vr(r, 4))
            a("global_load_dwordx4 %s, v14, s[58:59] offset:3584 sc1", vr(r + 4, 4))
        def newtb(q0, q):
            if hp: return None
            tb = TB(w, q0)
            if w < 6: tb.stage(STG); tb.stage(STG + 8)
            tb.q = q
            return tb
        def pre():
            newtb(LQ(a), None)
            if w != 7: zero(TA)
            if (pv or w == 7) and not hp: zero(ACC0); zero(ACC1)
            a("s_setprio 1")
        def mchk(x, lab):
            for d in range(4): a("v_pk_add_f16 v%d, v%d, v%d", t + d, x + d, x + 4 + d)
            a("ds_write_b128 v14, %s", vr(t, 4))
            a("v_pk_maximum3_f16 v%d, v%d, v%d, v%d", t + 4, t, t + 1, t + 2)
            a("v_pk_maximum3_f16 v%d, v%d, v%d, v%d", t + 4, t + 4, t + 3, t + 3)
            a("v_cmp_u_f16 vcc, v%d, v%d", t + 4, t + 4)
            a("s_cbranch_vccnz %s", lab)
        a.label(N + "_entry")
        if lt and w == 4: a("s_memrealtime s[98:99]")
        if w == 6 and not hp: add64(a, 48, 4, imm=MEMP)
        if w == 7 and hp and (fin & 4):
            a("s_getpc_b64 s[48:49]")
            a.label(N + "_pc")
            a("s_sub_u32 s48, s48, %s_pc-%sC0_fin", N, MODE["PX"]); a("s_subb_u32 s49, s49, 0")
            a("s_and_b32 s50, s20, 1")
            a("s_lshl_b32 s50, s50, 13")
            a("v_lshlrev_b32 v%d, 7, v1", BW + 30)
            a("v_add_u32 v%d, s50, v%d", BW + 30, BW + 30)
        ptrs(w, True)
        pre()
        a("s_branch %s_top", N)
        a.raw(".p2align 6")
        a.label(N + "_loop")
        if pol:
            a("s_waitcnt vmcnt(%d)", 2 if p2 else 0)
            mchk(r, N + "_mre")
            def mre():
                a.label(N + "_mre")
                poll(r)
                P("M re")
                if prof: a("s_add_u32 s62, s62, 1")
                a("s_sub_u32 s25, s25, 1")
                a("s_cbranch_scc1 %s", abort)
                if p2:
                    a("s_waitcnt vmcnt(2) lgkmcnt(0)")
                    mchk(r2, N + "_mre2")
                    a("s_branch %s_got", N)
                    a.label(N + "_mre2")
                    poll(r2)
                a("s_waitcnt lgkmcnt(0)")
                a("s_branch %s_loop", N)
            tail.append(mre)
        else:
            if fin & 1:
                a("s_cmp_eq_u32 s24, 63")
                a("s_cbranch_scc1 %s_top", N)
            a("s_waitcnt vmcnt(0)")
        a.label(N + "_got")
        P("mem got")
        a.label(N + "_top")
        a("s_cmp_eq_u32 s24, 63")
        a("s_waitcnt lgkmcnt(0)")
        a("s_barrier")
        P("top")
        a("s_cbranch_scc1 %s_fin", N)
        q = LQ(a)
        tb = newtb(LQ(_N()), q)
        if w != 7:
            dp = dep if pv else dep2
            for n in range(dp): mread(q, n)
            for n in range(14):
                if n == 0: P("a pre")
                q.wait(("O", n) if n < 7 else ("M", n - 7))
                a(SM, vr(TA, 4), vr(MFR + 4 * (n % 7), 4), vr(AW + n * 8, 8))
                if n in (0, 2, 4, 6, 8, 10, 13): P("a%d" % n)
                if n + dp < 14: mread(q, n + dp)
            if pv and not hp:
                for k in range(2): a("global_load_dwordx4 %s, v13, s[38:39] offset:%d sc1", vr(UR + 4 * k, 4), k * 1024)
            a("v_cvt_pk_f16_f32 v%d, v%d, v%d", TA, TA, TA + 2)
            a("v_cvt_pk_f16_f32 v%d, v%d, v%d", TA + 1, TA + 1, TA + 3)
            q.issue("T", "ds_write2_b32 v7, v%d, v%d offset0:0 offset1:4", TA, TA + 1)
            if pv:
                a("s_setprio 0")
                if hp:
                    if not (xp & 2): memx()
                else:
                    for k in range(2, 4): a("global_load_dwordx4 %s, v13, s[38:39] offset:%d sc1", vr(UR + 4 * k, 4), k * 1024)
                    tb.run(nb2)
            if uchk:
                a.label(N + "_uc")
                allnon(a, [STG + i for i in range(8)])
                a("v_cmp_ne_u32 vcc, 0, v%d", STG)
                a("s_cbranch_vccnz %s_ure", N)
                def ure():
                    a.label(N + "_ure")
                    ufl_ld(3)
                    a("s_sub_u32 s25, s25, 1")
                    a("s_cbranch_scc1 %s", abort)
                    a("s_waitcnt vmcnt(0)")
                    a("s_branch %s_uc", N)
                tail.append(ure)
            q.wait("T")
            if w == 5: a("s_waitcnt vmcnt(0)")
        elif hp:
            a("global_load_dword v%d, v10, s[44:45] sc1", BW + 28)
            if fin & 4: a("global_load_dword v%d, v%d, s[48:49]", BW + 29, BW + 30)
        else:
            a("s_setprio 0")
            if nv > 0: a("global_load_dword v4, v10, s[54:55] sc1")
            tbx_read(STG)
            a("s_waitcnt lgkmcnt(0)")
            if not (xp & 2): tbx_store(STG)
            for n in range(7, 14): mread(q, n)
            tb.run(nb7)
        P("TA done")
        a("s_barrier")
        P("bar2")
        def pubS():
            a("s_barrier")
            P("pubS")
        def gath():
            P("G iss")
            gather()
        if w >= 5:
            a("s_setprio %d", p7)
            ring = {5: [EX + 4 * k for k in range(7)], 6: [STG, STG + 4, STG + 8, STG + 12, ACC1], 7: [W7 + 16 + 4 * k for k in range(7)]}[w]
            SA = W7 + 44 if w == 7 else ACC0
            D = len(ring)
            def trd(k):
                if w == 5: q.issue(("S", k), "ds_read2_b64 %s, v%d offset0:%d offset1:%d", vr(ring[k], 4), 8 if k < 4 else 10, (k & 3) * 64, (k & 3) * 64 + 16)
                else: q.issue(("S", k), "ds_read_b128 %s, v8 offset:%d", vr(ring[k % D], 4), k * 512)
            for k in range(min(D, 7)): trd(k)
            for k in range(7):
                q.wait(("S", k))
                a("v_mfma_f32_16x16x32_f16 %s, %s, %s, %s", vr(SA, 4), vr((MFR if w == 5 else XR) + 4 * k, 4), vr(ring[k % D], 4), vr(SA, 4) if k else "0")
                if k + D < 7: trd(k + D)
            o = ring[2]
            if not (s4 and w > 5): a("s_mov_b64 exec, s[46:47]")
            late = (pz & 1) and not hp
            if not late: a("v_mov_b32 v%d, -1", o + 2)
            if w == 5:
                a("v_cvt_pk_f16_f32 v%d, v%d, v%d", o, ACC0, ACC0 + 1)
                a("global_store_dword v9, v%d, s[34:35] %s", o, ST)
                if not late: a("global_store_dword v9, v%d, s[36:37] %s", o + 2, ST)
            else:
                if not late: a("v_mov_b32 v%d, -1", o + 3)
                if s4: o = ring[3]; oo = ring[2]
                a("v_cvt_pk_f16_f32 v%d, v%d, v%d", o, SA, SA + 1)
                a("v_cvt_pk_f16_f32 v%d, v%d, v%d", o + 1, SA + 2, SA + 3)
                if s4:
                    for i in range(2): a("v_permlane16_swap_b32 v%d, v%d", o + i, o + 2 + i)
                    a("s_mov_b32 exec_lo, 0xff")
                    a("s_mov_b32 exec_hi, 0xff")
                    a("global_store_dwordx4 v9, %s, s[34:35] %s", vr(o, 4), ST)
                    o = oo
                    if not late: a("s_mov_b64 exec, s[46:47]")
                else: a("global_store_dwordx2 v9, %s, s[34:35] %s", vr(o, 2), ST)
                if not late: a("global_store_dwordx2 v9, %s, s[36:37] %s", vr(o + 2, 2), ST)
            a("s_mov_b64 exec, -1")
            a("s_setprio 0")
            P("S pub")
            pubS()
            if not hp:
                if w == 6: tb.stage(STG)
                if w < 7: zero(ACC0); zero(ACC1)
                if w == 6:
                    tb.late()
                    tb.stage(STG + 8)
                tb.run(14)
                tb_give()
                a("s_barrier")
                if w >= 6: xload()
                for i in range(2): a("v_mov_b32 v%d, -1", ACC1 + i)
                if w == 6 and (pz & 2): a("global_store_dwordx2 v13, %s, s[32:33] %s", vr(ACC1, 2), ST)
                if late:
                    a("s_mov_b64 exec, s[46:47]")
                    if w == 5: a("global_store_dword v9, v%d, s[36:37] %s", ACC1, ST)
                    else: a("global_store_dwordx2 v9, %s, s[36:37] %s", vr(ACC1, 2), ST)
                    a("s_mov_b64 exec, -1")
                if w != 6: spf(w)
        elif hp:
            if w == 4: a("s_setprio 0")
            pubS()
        elif pv: tb.run(nb3); pubS(); tb.run(14, {gpos: gath})
        else:
            a("s_setprio 0")
            zero(ACC0); zero(ACC1)
            tb.run(14, {bpos: pubS})
            tb_give()
            spf(4)
            a("s_barrier")
        if hp:
            if w <= 4:
                for i in range(NHP): a("global_load_dword v%d, v%d, s[56:57] sc1", EX + i, BW + i)
                if uchk: ufl_ld(4)
            elif w >= 6: xload()
            elif flag:
                for i in range(flag - 1): a("global_load_dword v%d, v11, s[26:27] sc1", EX + i)
                a.label(N + "_fl")
                a("s_sub_u32 s25, s25, 1")
                a("s_cbranch_scc1 %s", abort)
                for i in range(flag):
                    a("global_load_dword v%d, v11, s[26:27] sc1", EX + (i + flag - 1) % flag)
                    a("s_waitcnt vmcnt(%d)", flag - 1)
                    a("v_cmp_gt_i32 vcc, s24, v%d", EX + i)
                    if i < flag - 1: a("s_cbranch_vccz %s_fd", N)
                    else: a("s_cbranch_vccnz %s_fl", N)
                a.label(N + "_fd")
            if flag: a("s_barrier")
        if pv and not hp:
            for i in range(8): a("v_mov_b32 v%d, 0x3c003c00", ONE + i)
            if gpos == 18: gath()
            zero(ZA)
            if gpos == 14: gath()
            tb_cvt(TBO)
            if gpos == 16: gath()
            zero(TBO + 4, 2); zero(PM + 1, 1)
            if gpos == 17: gath()
            zero(ACC0); zero(ACC1)
            if w == 3: a("v_mov_b32 v%d, s24", RZ)
            if gpos == 15: gath()
            if g2: gather(G2)
            P("II")
            def gchk(G, lab):
                for d in range(4): a("v_pk_add_f16 v%d, v%d, v%d", PX + d, G[0] + d, G[1] + d)
                a("v_pk_add_f16 v%d, v%d, v%d", PM, G[2], G[3])
                a("v_pk_maximum3_f16 v%d, v%d, v%d, v%d", T0, PX, PX + 1, PX + 2)
                a("v_pk_maximum3_f16 v%d, v%d, v%d, v%d", T0, T0, PX + 3, PM)
                a("v_pk_maximum3_f16 v%d, v%d, v%d, v%d op_sel:[0,1,0] op_sel_hi:[1,0,1]", T0, T0, T0, T0)
                a("v_mov_b32 v%d, v%d", T1, T0)
                a("v_cmp_u_f16 vcc, v%d, v%d", T0, T0)
                a("v_permlane32_swap_b32 v%d, v%d", T0, T1)
                a("v_pk_max_f16 v%d, v%d, v%d", T0, T0, T1)
                a("v_mov_b32 v%d, v%d", T1, T0)
                a("s_cbranch_vccnz %s", lab)
            a.label(N + "_sp")
            a("s_waitcnt vmcnt(%d)", 4 if g2 else 0)
            gchk(G1, N + "_gre")
            def gre():
                a.label(N + "_gre")
                P("G re")
                if prof: a("s_add_u32 s63, s63, 1")
                gather()
                a("s_sub_u32 s25, s25, 1")
                a("s_cbranch_scc1 %s", abort)
                if g2:
                    a("s_waitcnt vmcnt(4)")
                    gchk(G2, N + "_gre2")
                    a("s_branch %s_sok", N)
                    a.label(N + "_gre2")
                    gather(G2)
                a("s_branch %s_sp", N)
            tail.append(gre)
            a.label(N + "_sok")
            P("S got")
            a("v_permlane16_swap_b32 v%d, v%d", T0, T1)
            a("v_pk_max_f16 v%d, v%d, v%d", T0, T0, T1)
            for x in (PM, PX, PX + 1, PX + 2, PX + 3):
                a("v_pk_add_f16 v%d, v%d, v%d neg_lo:[0,1] neg_hi:[0,1]", x, x, T0)
            nex = [0]
            def ex(x, hi):
                a("v_exp_f16_sdwa v%d, v%d dst_sel:WORD_%d dst_unused:UNUSED_PRESERVE src0_sel:WORD_%d", x, x, hi, hi)
                if w == 3 and flag and nex[0] == fpos: a("global_store_dword v4, v%d, s[26:27] %s", RZ, ST)
                nex[0] += 1
            S2 = "v_smfmac_f32_16x16x32_f16 %s, %s, %s, v5"
            ex(PM, 0); ex(PX, 0)
            tb_take1()
            P("bar3")
            ex(PM, 1); ex(PX + 1, 0); ex(PX, 1)
            a(S2, vr(ZA, 4), vr(PM, 2), vr(ONE, 4))
            ex(PX + 2, 0); ex(PX + 1, 1); ex(PX + 3, 0); ex(PX + 2, 1); ex(PX + 3, 1)
            a(SM, vr(ZA, 4), vr(PX, 4), vr(ONE, 8))
            a(SM, vr(ACC0, 4), vr(PX, 4), vr(UR, 8))
            a(SM, vr(ACC1, 4), vr(PX, 4), vr(UR + 8, 8))
            tb_take2()
            a(S2, vr(ACC0, 4), vr(PM, 2), vr(TBO, 4))
            a(S2, vr(ACC1, 4), vr(PM, 2), vr(TBO + 2, 4))
            for i in range(4): a("v_rcp_f32 v%d, v%d", RZ + i, ZA + i)
            for b, acc in enumerate((ACC0, ACC1)):
                a("v_pk_mul_f32 %s, %s, %s", vr(acc, 2), vr(acc, 2), vr(RZ, 2))
                a("v_pk_fma_f32 %s, %s, %s, %s", vr(acc, 2), vr(acc + 2, 2), vr(RZ + 2, 2), vr(acc, 2))
                if lp: a("ds_write2_b32 v9, v%d, v%d offset0:%d offset1:%d", acc, acc + 1, 128 * b, 128 * b + 8)
                else: a("ds_write2st64_b32 v9, v%d, v%d offset0:%d offset1:%d", acc, acc + 1, b, 2 + b)
            tb_take3()
            a("s_waitcnt lgkmcnt(2)")
            P("red wr")
        if not hp:
            a("s_barrier")
            if w == 6:
                R = MFR
                for k in range(4): a("ds_read_b128 %s, v2 offset:%d", vr(R + 4 * k, 4), L_RED + k * 1024)
                if not (pz & 2):
                    a("v_mov_b32 v%d, -1", R + 16)
                    a("v_mov_b32 v%d, -1", R + 17)
                a("s_waitcnt lgkmcnt(2)")
                for d in (0, 2): a("v_pk_add_f32 %s, %s, %s", vr(R + d, 2), vr(R + d, 2), vr(R + 4 + d, 2))
                a("s_waitcnt lgkmcnt(1)")
                for d in (0, 2): a("v_pk_add_f32 %s, %s, %s", vr(R + d, 2), vr(R + d, 2), vr(R + 8 + d, 2))
                a("s_waitcnt lgkmcnt(0)")
                for d in (0, 2): a("v_pk_add_f32 %s, %s, %s", vr(R + d, 2), vr(R + d, 2), vr(R + 12 + d, 2))
                a("v_cvt_pk_f16_f32 v%d, v%d, v%d", R, R, R + 1)
                a("v_cvt_pk_f16_f32 v%d, v%d, v%d", R + 1, R + 2, R + 3)
                a("global_store_dwordx2 v13, %s, s[30:31] %s", vr(R, 2), ST)
                if not (pz & 2): a("global_store_dwordx2 v13, %s, s[32:33] %s", vr(R + 16, 2), ST)
                P("mem pub")
                spf(6)
            a("s_barrier")
            if w == 6:
                a("s_cmp_eq_u32 s24, 62")
                a("s_cselect_b64 exec, -1, 0")
                a("global_store_dwordx2 v13, %s, s[48:49] sc1", vr(MFR, 2))
                a("s_mov_b64 exec, -1")
        a("s_add_u32 s58, s30, 3584"); a("s_addc_u32 s59, s31, 0")
        pd = 0 if hp else pdel
        def p1(): poll(r); P("M iss")
        if pol and pd == 0: p1()
        a("s_add_u32 s24, s24, 1")
        ptrs(w)
        if pol and pd == 1: p1()
        if pv and not hp: a("s_waitcnt vmcnt(%d)", 0 if pd == 2 else 2)
        pre()
        if pol and pd == 2: p1()
        if P.on:
            a("s_waitcnt lgkmcnt(0)")
            P.flush()
        if pol and p2: poll(r2)
        a("s_branch %s_loop", N)
        for f in tail: f()
        a.label(N + "_fin")
        if lt and w == 4:
            a("s_memrealtime s[100:101]")
            a("s_lshl_b32 s50, s20, 4")
            a("s_add_u32 s50, s50, 0x%x", POIS_END)
            a("v_mov_b32 v%d, s50", EX + 4)
            a("s_waitcnt vmcnt(0) lgkmcnt(0)")
            for i, r in enumerate((98, 100, 18)): a("v_mov_b32 v%d, s%d", EX + i, r)
            a("global_store_dwordx3 v%d, %s, s[4:5]", EX + 4, vr(EX, 3))
        a("s_setprio 0")
        if w != 6 or not (fin & 1): a("s_waitcnt vmcnt(0)")
        if hp:
            if pv: memx()
            a("s_branch CH_fin" if prof else "s_endpgm")
            return
        q = LQ(a)
        tb = newtb(LQ(_N()), q)
        for n in range(7, 14): mread(q, n)
        if pv and (fin & 2): adv(40, 64 * 28 * 4096 - L_TB2)
        if w == 7: tbx_read(W7)
        if w == 6: tb.stage(STG); tb.stage(STG + 8)
        if w in (4, 5, 6): zero(ACC1)
        q.all()
        if w == 7: tbx_store(W7); adv(40, 28 * 4096)
        tb.run(14)
        if pv and (fin & 2):
            tb_cvt(TBO); tb_take1(); tb_take2()
            for b in range(2): a("global_store_dwordx2 v8, %s, s[40:41] offset:%d sc1", vr(TBO + 2 * b, 2), b * 4096 - 2048)
        elif pv:
            tb_cvt(TBO); tb_take1(); tb_take2(); tb_take3()
            a("s_waitcnt lgkmcnt(0)")
        else:
            tb_give()
            a("s_barrier")
        if not (fin & 2): a("s_barrier")
        if w == 7 and not (fin & 2):
            tbx_read(MFR)
            a("s_waitcnt lgkmcnt(0)")
            tbx_store(MFR)
        a("s_branch CH_fin" if prof else "s_endpgm")
    if merged:
        a("s_cmp_lg_u32 s97, 0")
        a("s_cbranch_scc1 CH_mixed")
    for px, st in ((("", ""), ("X", "sc1")) if merged else (("", ""),)):
        MODE["PX"] = px; MODE["ST"] = st
        if px: a.label("CH_mixed")
        for hp in (0, 1):
            H = px + ("H" if hp else "C")
            if hp: a.label(px + "CH_hdisp")
            else:
                a("s_cmp_eq_u32 s23, 0")
                a("s_cbranch_scc1 %sCH_hdisp", px)
            for w in (3, 4, 5, 6, 7):
                a("s_cmp_eq_u32 s14, %d", w)
                a("s_cbranch_scc1 %s%d_entry", H, w)
            for w in (0, 3, 4, 5, 6, 7): wave_loop(w, hp)
    a.label("CH_fin")
    a("s_waitcnt vmcnt(0)")
    if dbgout:
        a("s_or_b32 s50, s20, s14")
        a("s_cmp_lg_u32 s50, 1")
        a("s_cbranch_scc1 CH_nodbg")
        a("s_cmp_lg_u32 s20, 0")
        a("s_cbranch_scc1 CH_nodbg")
        a("s_mov_b32 s52, s100")
        a("v_readlane_b32 s50, v0, 1")
        a("v_readlane_b32 s51, v0, 63")
        a("s_sub_u32 s52, s100, s52")
        a("s_sub_u32 s50, s50, s100")
        a("s_sub_u32 s51, s51, s100")
        a("s_sub_u32 s53, s64, s98")
        a("v_mov_b32 v16, s52"); a("v_mov_b32 v17, s50"); a("v_mov_b32 v18, s51"); a("v_mov_b32 v19, s53")
        a("s_sub_u32 s53, s66, s100")
        a("v_mov_b32 v20, s53")
        a("v_mov_b32 v21, 0")
        a("global_store_dwordx4 v21, v[16:19], s[10:11]")
        a("global_store_dword v21, v20, s[10:11] offset:16")
        a.label("CH_nodbg")
    if prof:
        a("s_lshl_b32 s50, s20, 3")
        a("s_add_u32 s50, s50, s14")
        a("s_lshl_b32 s50, s50, 8")
        a("s_add_u32 s50, s50, 0x%x", POIS_END)
        add64(a, 50, 4, off_sgpr=50)
        if prof == 4:
            a("s_bitcmp1_b32 s14, 0")
            a("s_cselect_b32 s98, s100, s98")
            a("s_cmp_eq_u32 s14, 3")
            a("s_cselect_b32 s98, s94, s98")
            a("s_memrealtime s[94:95]")
            a("s_waitcnt lgkmcnt(0)")
            a("s_cmp_eq_u32 s14, 5")
            a("s_cselect_b32 s98, s66, s98")
            a("s_cmp_eq_u32 s14, 7")
            a("s_cselect_b32 s98, s94, s98")
            a("v_writelane_b32 v%d, s98, 0", VP)
        else:
            a("v_writelane_b32 v%d, s62, 22", VP)
            a("v_writelane_b32 v%d, s63, 23", VP)
        a("v_lshlrev_b32 v16, 2, v1")
        a("global_store_dword v16, v%d, s[50:51]", VP)
    return P.names
```

```python
from common import *
import chain, ut, g1, g2, ft, pt
from pt import L_TK, MAIN_LDS
FSPLIT = 60
N_G1, N_G2, N_F = 224, 224, 4 * FSPLIT + 8 * (64 - FSPLIT)
KN = "parallel_sum__memory_aug_recurrent_mem_tr__dense_activation_relu__prompt_kernel"
def only(a, w, l):
    a("s_cmp_lg_u32 s14, %d", w)
    a("s_cbranch_scc1 %s", l)
def emit_main(a, prof=0, force_mixed=False, gate=2, g0=34, npre=0, nlook=3, tch=3, qend=1, xw=5, xd=4, xt=1, fo=94, **kw):
    assert g0 > 0
    NX = 14 - kw.get('nk', 14)
    def T(k):
        if prof and k >= 20:
            l = a.newlabel("ST")
            if k >= 23: a("s_cmp_lg_u32 s26, 0"); a("s_cbranch_scc1 %s", l)
            a("s_memrealtime s[60:61]"); a("s_waitcnt lgkmcnt(0)"); a("v_writelane_b32 v5, s60, %d", k)
            a.label(l)
        elif prof: a("s_memrealtime s[%d:%d]", 76 + 2 * k, 77 + 2 * k)
    a.raw(".p2align 8")
    a.label(KN)
    a("s_cmp_ge_u32 s2, 256")
    a("s_cbranch_scc1 M_end")
    a("s_load_dwordx2 s[10:11], s[0:1], 88")
    a("s_memrealtime s[18:19]")
    a("s_getreg_b32 s16, hwreg(HW_REG_XCC_ID)")
    a("s_getreg_b32 s15, hwreg(HW_REG_HW_ID)")
    a("s_and_b32 s16, s16, 7")
    pt.load_ptrs(a)
    main_prologue(a)
    if prof: a("s_memtime s[98:99]"); a("s_mov_b32 s100, s18"); a("s_mov_b32 s76, s18")
    T(20)
    a("s_or_b32 s18, s18, 0x40000000")
    a("s_and_b32 s18, s18, 0x7ffffffe")
    a("s_mov_b32 s19, 0")
    a("s_mov_b32 s17, 0")
    a("s_mov_b32 s101, 0")
    a("s_mov_b32 s39, -1")
    a("s_mov_b64 s[48:49], 0")
    if force_mixed:
        a("s_bfe_u32 s20, s2, 0x10003")
        a("s_or_b32 s16, s16, s20")
    a("s_lshl_b32 s21, s16, 5")
    a("s_cmp_eq_u32 s14, 0")
    a("s_cbranch_scc1 M_s0")
    if tch:
        a("s_bfe_u32 s22, s15, 0x2000d")
        a("s_bfe_u32 s23, s15, 0x30008")
        a("s_lshl_b32 s22, s22, 3")
        a("s_add_u32 s22, s22, s23")
        a("v_lshrrev_b32 v6, 2, v1")
        a("v_lshlrev_b32 v6, 13, v6")
        a("v_and_b32 v7, 3, v1")
        a("v_lshl_add_u32 v6, v7, 7, v6")
        a("s_sub_u32 s23, s14, 1")
        a("s_cmp_lg_u32 s16, 0")
        a("s_cbranch_scc1 M_t1")
        a("s_and_b32 s24, s22, 1")
        a("s_lshr_b32 s25, s22, 1")
        a("s_lshl_b32 s25, s25, 9")
        a("s_cmp_eq_u32 s14, 7")
        a("s_cbranch_scc1 M_t0")
        a("s_mul_i32 s24, s24, 14")
        a("s_add_u32 s24, s24, s23")
        a("s_add_u32 s24, s24, 8")
        a("s_lshl_b32 s24, s24, 17")
        a("s_add_u32 s24, s24, s25")
        add64(a, 24, 66, off_sgpr=24)
        a("s_branch M_t9")
        a.label("M_t0")
        a("s_mul_i32 s24, s24, %d", (7 << 18) if kw.get("rot", 1) else (1 << 18))
        a("s_add_u32 s24, s24, s25")
        add64(a, 24, 64, off_sgpr=24)
        a("global_load_dword v102, v6, s[24:25]")
        a("v_add_u32 v6, 0x20000, v6")
        a("s_branch M_t9")
        a.label("M_t1")
        a("s_add_u32 s22, s22, s21")
        a("s_sub_u32 s22, s22, 32")
        a("s_lshr_b32 s26, s22, 1")
        a("s_mul_i32 s27, s26, 147")
        a("s_lshr_b32 s27, s27, 10")
        a("s_mul_i32 s28, s27, 7")
        a("s_sub_u32 s28, s26, s28")
        a("s_and_b32 s29, s22, 1")
        a("s_and_b32 s30, s23, 1")
        a("s_cmp_ge_u32 s23, 2")
        a("s_cbranch_scc1 M_t2")
        a("s_mul_i32 s24, s29, 7")
        a("s_add_u32 s24, s24, s28")
        a("s_lshl_b32 s24, s24, 1")
        a("s_add_u32 s24, s24, s30")
        a("s_lshl_b32 s24, s24, 17")
        a("s_lshl_b32 s25, s27, 9")
        a("s_add_u32 s24, s24, s25")
        add64(a, 24, 68, off_sgpr=24)
        a("s_branch M_t9")
        a.label("M_t2")
        a("s_cmp_ge_u32 s23, 4")
        a("s_cbranch_scc1 M_t3")
        a("s_lshl_b32 s24, s27, 2")
        a("s_lshl_b32 s25, s29, 1")
        a("s_add_u32 s24, s24, s25")
        a("s_add_u32 s24, s24, s30")
        a("s_mul_i32 s24, s24, %d", 64 * 896)
        a("s_lshl_b32 s25, s28, 7")
        a("s_add_u32 s24, s24, s25")
        add64(a, 24, 70, off_sgpr=24)
        a("v_mul_u32_u24 v6, 896, v1")
        a("s_branch M_t9")
        a.label("M_t3")
        a("s_cmp_lg_u32 s14, 7")
        a("s_cbranch_scc1 M_t4")
        if NX and (xt & 1):
            a("s_and_b32 s24, s22, %d", 2 * NX - 1)
            a("s_add_u32 s24, s24, %d", 28 - 2 * NX)
            a("s_lshl_b32 s24, s24, 17")
            a("s_lshl_b32 s25, s27, 9")
            a("s_add_u32 s24, s24, s25")
            add64(a, 24, 64, off_sgpr=24)
            a("s_branch M_t9")
        else: a("s_branch M_ta")
        a.label("M_t4")
        a("s_cmp_ge_u32 s22, 128")
        a("s_cbranch_scc1 M_ta")
        a("s_lshl_b32 s24, s22, 1")
        a("s_add_u32 s24, s24, s30")
        a("s_mul_i32 s24, s24, 7168")
        add64(a, 24, 6, off_sgpr=24)
        a("v_min_u32 v6, 55, v1")
        a("v_lshlrev_b32 v6, 7, v6")
        a.label("M_t9")
        a("global_load_dword v102, v6, s[24:25]")
        a.label("M_ta")
        if tch > 1:
            only(a, 1, "M_tk")
            a("s_getpc_b64 s[24:25]")
            a.label("M_pc")
            a("s_cmp_eq_u32 s16, 0")
            a("s_movk_i32 s26, 16384")
            a("s_cselect_b32 s27, s26, %s", "M_chk-M_pc" if tch > 2 else "s26")
            a("s_bitcmp1_b32 s22, 1")
            a("s_cselect_b32 s27, s27, 0")
            a("s_and_b32 s26, s22, 1")
            a("s_lshl_b32 s26, s26, 13")
            a("s_add_u32 s26, s26, s27")
            a("v_lshlrev_b32 v6, 7, v1")
            a("v_add_u32 v6, s26, v6")
            a("global_load_dword v102, v6, s[24:25]")
    a("s_branch M_tk")
    a.label("M_s0")
    a("v_and_b32 v6, 31, v1")
    a("v_lshlrev_b32 v6, 2, v6")
    a("v_add_u32 v6, %d, v6", L_TK)
    a("v_mov_b32 v7, 0")
    a("ds_write_b32 v6, v7")
    a.label("M_tk")
    T(21)
    only(a, 0, "M_r1")
    a("v_mov_b32 v6, s21")
    a("v_mov_b32 v7, 1")
    a("s_mov_b64 exec, 1")
    a("global_atomic_add v8, v6, v7, s[10:11] sc0 sc1")
    a("s_mov_b64 exec, -1")
    a("v_lshlrev_b32 v9, 3, v1")
    a("v_add_u32 v9, %d, v9", chain.L_FL)
    a("v_mov_b32 v10, 0")
    a("v_mov_b32 v11, 0")
    a("ds_write_b64 v9, v[10:11]")
    a("s_mov_b64 exec, 1")
    a("v_mov_b32 v6, %d", L_TK + 32)
    a("v_mov_b32 v7, %d", C_NON * 4)
    a("v_mov_b32 v10, s18")
    a("s_waitcnt vmcnt(0)")
    a("ds_write_b32 v6, v8")
    a("v_cmp_eq_u32 vcc, s19, v8")
    a("s_cbranch_vccz M_r0")
    a("global_atomic_cmpswap v7, v[10:11], s[10:11] sc1")
    a.label("M_r0")
    a("s_mov_b64 exec, -1")
    a.label("M_r1")
    a("s_waitcnt lgkmcnt(0)")
    a("s_barrier")
    a("v_mov_b32 v6, %d", L_TK + 32)
    a("ds_read_b32 v8, v6")
    a("s_waitcnt lgkmcnt(0)")
    a("v_readfirstlane_b32 s20, v8")
    a("s_cmp_lt_u32 s20, 32")
    a("s_cbranch_scc1 M_r2")
    a("s_cmp_eq_u32 s17, 0")
    a("s_cbranch_scc1 M_chk")
    a("s_branch M_acq")
    a.label("M_r2")
    a("s_cmp_eq_u32 s21, 0")
    a("s_cbranch_scc1 M_chain")
    a("s_add_u32 s20, s20, s21")
    a("s_sub_u32 s20, s20, 32")
    T(22)
    a.label("M_ab")
    def look():
        a("s_lshr_b32 s21, s20, 5")
        a("s_lshl_b32 s21, s21, 2")
        a("s_add_u32 s21, s21, %d", pt.L_UM)
        a("s_lshl_b32 s22, 1, s20")
        a("v_mov_b32 v6, s21")
        a("v_mov_b32 v7, s22")
        a("ds_or_b32 v6, v7")
        a("v_and_b32 v6, 7, v1")
        a("v_lshlrev_b32 v6, 5, v6")
        a("s_mov_b32 s22, %d", nlook)
        a.label("M_l0")
        a("global_load_dword v8, v6, s[10:11] sc1")
        a("s_waitcnt vmcnt(0)")
        a("v_cmp_gt_u32 vcc, 32, v8")
        a("s_and_b32 s21, vcc_lo, 0xff")
        a("s_cbranch_scc0 M_l1")
        a("s_sub_u32 s22, s22, 1")
        a("s_cbranch_scc0 M_l0")
        a.label("M_l1")
        a("v_mov_b32 v6, %d", L_TK + 36)
        a("v_mov_b32 v9, s21")
        a("ds_write_b32 v6, v9")
        a("s_waitcnt lgkmcnt(0)")
    def w7():
        a("s_cmp_eq_u32 s26, 0")
        a("s_cbranch_scc1 M_w7b")
        a("s_mov_b32 s44, s20")
        a("s_mov_b32 s42, %d", pt.L_WT)
        a.label("M_w7a")
        pt.wtask(a)
        a("s_add_u32 s44, s44, 224")
        a("s_cmp_lt_u32 s44, 392")
        a("s_cbranch_scc1 M_w7a")
        a("s_branch P_abend")
        a.label("M_w7b")
        if NX and (xt & 2): pt.x_touch(a, NX)
        a("s_cmp_ge_u32 s20, 128")
        a("s_cbranch_scc1 M_w7c")
        pt.emit_ln(a)
        T(2)
        a.label("M_w7c")
        look()
        T(3)
    a("s_mov_b32 s26, 0")
    a.label("M_ab2")
    pt.emit_p(a, T, NX, xd, w7)
    a("s_cmp_eq_u32 s26, 0")
    a("s_cbranch_scc1 M_ab3")
    a("s_mov_b32 s38, %d", C_P * 4)
    signal(a, 38)
    if prof:
        a("s_waitcnt lgkmcnt(0)")
        a("v_mov_b32 v8, v5")
        for k in range(7): a("v_writelane_b32 v8, s%d, %d", 76 + 2 * k, k)
        for k in range(3): a("v_writelane_b32 v8, s%d, %d", 92 + 2 * k, 7 + k)
        a("s_lshl_b32 s60, s20, 3")
        a("s_add_u32 s60, s60, s14")
        a("s_lshl_b32 s60, s60, 8")
        a("s_add_u32 s60, s60, 0x%x", POIS_END + 0x100000)
        add64(a, 60, 4, off_sgpr=60)
        a("v_lshlrev_b32 v9, 2, v1")
        a("global_store_dword v9, v8, s[60:61]")
    a("s_mov_b32 s39, -1")
    a("s_mov_b64 s[48:49], 0")
    a("s_branch M_u")
    a.label("M_ab3")
    if prof:
        a("s_waitcnt lgkmcnt(0)")
        a("s_mov_b32 s84, s78"); a("s_mov_b32 s86, s80"); a("s_mov_b32 s88, s82")
    a("s_barrier")
    a("s_mov_b32 s39, s20")
    a("s_mov_b64 s[48:49], 0")
    a("v_mov_b32 v6, %d", L_TK + 36)
    a("ds_read_b32 v8, v6")
    a("v_and_b32 v6, 7, v1")
    a("v_lshlrev_b32 v6, 2, v6")
    a("v_add_u32 v6, %d, v6", pt.L_UM)
    a("ds_read_b32 v9, v6")
    a("s_waitcnt lgkmcnt(0)")
    a("v_readfirstlane_b32 s16, v8")
    a("s_and_b32 s21, s16, 0xfe")
    a("s_or_b32 s21, s21, s101")
    a("s_cbranch_scc0 M_uph")
    if NX:
        a("s_waitcnt vmcnt(0)")
        a("s_barrier")
        pt.emit_x(a, NX, xw, xd, "XS")
        pt.x_store(a)
        a("v_mov_b32 v10, s19")
        a("s_waitcnt vmcnt(0)")
        pt.x_flag(a, 10)
    a.label("M_cl")
    a("s_cmp_eq_u32 s101, 0")
    a("s_cbranch_scc1 M_chk")
    a("s_ff1_i32_b32 s21, s101")
    a("s_bitset0_b32 s101, s21")
    a("v_readlane_b32 s20, v0, s21")
    a("s_lshl_b32 s21, s21, 5")
    a("s_add_u32 s20, s20, s21")
    a("s_sub_u32 s20, s20, 32")
    a("s_branch M_ab")
    a.label("M_chain")
    names = chain.emit_chain(a, prof, abort="M_end", **kw)
    a("s_endpgm")
    a.label("M_chk")
    a("s_barrier")
    only(a, 7, "M_n1")
    pt.nonce_ld(a)
    a("s_waitcnt vmcnt(0)")
    pt.nonce_put(a, "M_end")
    a.label("M_n1")
    only(a, 0, "M_c1")
    a("v_lshlrev_b32 v6, 5, v1")
    a("v_mov_b32 v7, 1")
    a("v_mov_b32 v8, 64")
    a("v_lshlrev_b32 v9, 2, v1")
    a("v_add_u32 v9, %d, v9", L_TK)
    a("s_mov_b64 exec, 0xff")
    a("global_load_dword v8, v6, s[10:11] sc1")
    a("s_waitcnt vmcnt(0)")
    a("v_cmp_gt_u32 vcc, 32, v8")
    a("s_and_b32 exec_lo, vcc_lo, 0xfe")
    a("s_cbranch_scc0 M_c1x")
    a("global_atomic_add v8, v6, v7, s[10:11] sc0 sc1")
    a("s_waitcnt vmcnt(0)")
    a.label("M_c1x")
    a("s_mov_b32 exec_lo, 0xff")
    a("ds_write_b32 v9, v8")
    a("s_mov_b64 exec, -1")
    a.label("M_c1")
    a("s_waitcnt lgkmcnt(0)")
    a("s_barrier")
    a("v_and_b32 v6, 7, v1")
    a("v_lshlrev_b32 v6, 2, v6")
    a("v_add_u32 v6, %d, v6", L_TK)
    a("ds_read_b32 v0, v6")
    a("ds_read_b32 v9, v6 offset:%d", pt.L_UM - L_TK)
    pt.nonce_get(a, 8, "M_end")
    a("v_cmp_gt_u32 vcc, 32, v0")
    a("s_mov_b32 s16, vcc_lo")
    a("s_and_b32 s101, vcc_lo, 0xfe")
    a("s_cbranch_scc1 M_cl")
    a.label("M_uph")
    a("v_mov_b32 v0, v9")
    a("s_mov_b32 s17, -1")
    a.label("M_u")
    a("s_cmp_lg_u32 s101, 0")
    a("s_cbranch_scc1 M_u0")
    a("s_add_u32 s17, s17, 1")
    a("s_cmp_eq_u32 s17, 7")
    a("s_cbranch_scc1 M_u1")
    a("v_readlane_b32 s101, v0, s17")
    a("s_branch M_u")
    a.label("M_u0")
    a("s_ff1_i32_b32 s21, s101")
    a("s_bitset0_b32 s101, s21")
    a("s_lshl_b32 s20, s17, 5")
    a("s_add_u32 s20, s20, s21")
    ut.emit_u(a, "M_end", T, (lambda: pt.emit_x(a, NX, xw, xd, 'XU'), lambda: pt.x_store(a), lambda: pt.x_flag(a, 11)) if NX else None)
    a("s_mov_b32 s26, 1")
    a("s_barrier")
    a("s_branch M_ab2")
    a.label("M_u1")
    a("s_mov_b32 s21, 0")
    a("s_mov_b32 s17, 1")
    a("s_bitcmp1_b32 s16, 0")
    a("s_cbranch_scc1 M_tk")
    a.label("M_acq")
    a("s_mov_b32 s25, 0x400000")
    only(a, 0, "M_next")
    a("s_mov_b32 s21, %d", C_P * 4)
    wait_cnt(a, 21, 224, "M_end")
    a("buffer_inv sc1")
    a.label("M_next")
    a("s_barrier")
    only(a, 0, "M_q1")
    a("v_mov_b32 v6, %d", C_Q * 4)
    a("v_mov_b32 v7, 1")
    a("s_mov_b64 exec, 1")
    a("global_atomic_add v8, v6, v7, s[10:11] sc0 sc1")
    a("v_mov_b32 v6, %d", L_TK)
    a("s_waitcnt vmcnt(0)")
    a("ds_write_b32 v6, v8")
    a("s_mov_b64 exec, -1")
    a("s_waitcnt lgkmcnt(0)")
    a.label("M_q1")
    a("s_barrier")
    a("v_mov_b32 v6, %d", L_TK)
    a("ds_read_b32 v8, v6")
    a("s_waitcnt lgkmcnt(0)")
    a("v_readfirstlane_b32 s15, v8")
    a("s_mov_b32 s25, 0x400000")
    a("s_cmp_lt_u32 s15, %d", N_G1)
    a("s_cbranch_scc0 M_d2")
    a("s_mul_i32 s20, s15, 2341")
    a("s_lshr_b32 s20, s20, 16")
    a("s_mul_i32 s21, s20, 28")
    a("s_sub_u32 s21, s15, s21")
    g1.emit_g1(a, first=8)
    a("s_branch M_next")
    a.label("M_d2")
    a("s_sub_u32 s20, s15, %d", N_G1)
    a("s_cmp_lt_u32 s20, %d", N_G2)
    a("s_cbranch_scc0 M_d3")
    only(a, 0, "M_d2w")
    a("s_mul_i32 s21, s20, 2341")
    a("s_lshr_b32 s21, s21, 16")
    g1_cnt(a, 21, 21)
    wait_cnt(a, 21, 28, "M_end")
    a.label("M_d2w")
    a("s_barrier")
    g2.emit_g2(a)
    a("s_branch M_next")
    a.label("M_d3")
    a("s_sub_u32 s20, s20, %d", N_G2)
    a("s_cmp_lt_u32 s20, %d", N_F)
    a("s_cbranch_scc0 M_end")
    for nb in (2, 1):
        X = "M%d" % nb
        def pre():
            if g0:
                only(a, 3, X + "_fg")
                a("s_mul_i32 s50, s21, %d", (57 - g0) * 1024 // 63)
                a("s_lshr_b32 s50, s50, 10")
                a("s_add_u32 s50, s50, %d", g0)
                a("s_lshl_b32 s50, s50, 13")
                a("s_add_u32 s50, s50, 0x%x", MEMX)
                add64(a, 50, 4, off_sgpr=50)
                a("v_mov_b32 v8, 128")
                a.label(X + "_fgl")
                a("global_load_dword v9, v8, s[50:51] sc1")
                a("s_sub_u32 s25, s25, 1")
                a("s_cbranch_scc1 M_end")
                a("s_waitcnt vmcnt(0)")
                a("v_cmp_eq_u32 vcc, -1, v9")
                a("s_cbranch_vccnz %s_fgl", X)
                a("v_mov_b32 v8, %d", C_Q * 4)
                a("global_load_dword v9, v8, s[10:11] sc1")
                a("v_mov_b32 v8, %d", L_TK + 44)
                a("s_waitcnt vmcnt(0)")
                a("ds_write_b32 v8, v9")
                a("s_waitcnt lgkmcnt(0)")
                a.label(X + "_fg")
            a("s_cmp_gt_u32 s14, 2")
            a("s_cbranch_scc1 %s_fw", X)
            a("s_cmp_eq_u32 s14, 2")
            a("s_cbranch_scc1 %s_fw2", X)
            a("s_lshl_b32 s50, s21, 1")
            a("s_add_u32 s50, s50, s14")
            a("s_lshl_b32 s50, s50, 10")
            wait_ufl(a, 50, "M_end", t=16)
            a("s_branch %s_fw", X)
            a.label(X + "_fw2")
            a("s_lshr_b32 s50, s21, 1")
            g2_cnt(a, 50, 50, 51)
            wait_cnt(a, 50, 7, "M_end")
            a.label(X + "_fw")
        if nb == 2:
            a("s_cmp_ge_u32 s20, %d", 4 * FSPLIT)
            a("s_cbranch_scc1 M_d4")
            a("s_lshr_b32 s21, s20, 2")
            a("s_bfe_u32 s22, s20, 0x10001")
            a("s_and_b32 s23, s20, 1")
        else:
            a.label("M_d4")
            a("s_add_u32 s21, s20, %d", 4 * FSPLIT)
            a("s_lshr_b32 s21, s21, 3")
            a("s_bfe_u32 s22, s20, 0x10002")
            a("s_and_b32 s23, s20, 3")
        ft.emit_f(a, "M_end", nb, pre, prof, gate, L_TK + 44, N_G1 + N_G2 + N_F if qend else 0xffffffff, fo if nb == 1 else 0)
        a("s_branch M_next")
    a.label("M_end")
    a("s_endpgm")
    return names
```

```python
from common import *
from k1 import transp_perm, transp_cvt, SCALE
L_WT = 32768 + 7 * 16384
L_TK = L_WT + 14336
MAIN_LDS = L_TK + 128
L_UM = L_TK + 64
L_NON = L_TK + 48
def load_ptrs(a):
    a("s_load_dwordx8 s[64:71], s[0:1], 16")
    a("s_load_dwordx4 s[72:75], s[0:1], 64")
def nonce_ld(a):
    a("v_mov_b32 v101, %d", C_NON * 4)
    a("global_load_dword v100, v101, s[10:11] sc1")
def nonce_put(a, abort):
    l = a.newlabel("NP")
    a("s_mov_b32 s18, 0x100000")
    a("s_branch %sa", l)
    a.label(l)
    nonce_ld(a)
    a("s_sub_u32 s18, s18, 1")
    a("s_cbranch_scc1 %s", abort)
    a("s_waitcnt vmcnt(0)")
    a.label(l + "a")
    a("v_readfirstlane_b32 s19, v100")
    a("s_cmp_eq_u32 s19, 0")
    a("s_cbranch_scc1 %s", l)
    a("v_mov_b32 v101, %d", L_NON)
    a("ds_write_b32 v101, v100")
def nonce_get(a, v, abort):
    l = a.newlabel("NG")
    a("s_mov_b32 s18, 0x1000000")
    a.label(l)
    a("v_mov_b32 v%d, %d", v, L_NON)
    a("ds_read_b32 v%d, v%d", v, v)
    a("s_sub_u32 s18, s18, 1")
    a("s_cbranch_scc1 %s", abort)
    a("s_waitcnt lgkmcnt(0)")
    a("v_readfirstlane_b32 s19, v%d", v)
    a("s_cmp_eq_u32 s19, 0")
    a("s_cbranch_scc1 %s", l)
def lanes(a):
    a("v_and_b32 v12, 3, v1")
    a("v_xor_b32 v12, v12, v3")
    a("v_lshlrev_b32 v12, 4, v12")
    a("v_lshrrev_b32 v14, 2, v4")
    a("v_xor_b32 v14, v14, v3")
    a("v_lshlrev_b32 v14, 4, v14")
    a("v_lshl_add_u32 v14, v4, 6, v14")

def wtask(a):
    a("s_cmp_ge_u32 s44, 196")
    a("s_cselect_b32 s45, 196, 0")
    a("s_cselect_b32 s46, 1, 0")
    a("s_sub_u32 s45, s44, s45")
    a("s_mul_i32 s47, s45, 147")
    a("s_lshr_b32 s47, s47, 10")
    a("s_mul_i32 s48, s47, 7")
    a("s_sub_u32 s48, s45, s48")
    a("s_cmp_eq_u32 s46, 0")
    a("s_cselect_b32 s49, s48, s47")
    a("s_cselect_b32 s50, s47, s48")
    a("s_movk_i32 s51, 896")
    a("s_cselect_b32 s51, 3584, s51")
    a("s_cselect_b32 s52, s72, s74")
    a("s_cselect_b32 s53, s73, s75")
    a("s_cselect_b32 s54, 14, 56")
    a("s_mov_b32 s55, 0x%x", W2F)
    a("s_cselect_b32 s55, 0x%x, s55", W1F)
    a("s_mul_i32 s56, s49, s51")
    a("s_lshl_b32 s56, s56, 6")
    a("s_lshl_b32 s57, s50, 7")
    a("s_add_u32 s56, s56, s57")
    add64(a, 52, 52, off_sgpr=56)
    a("v_mul_lo_u32 v9, v3, s51")
    a("v_lshlrev_b32 v9, 3, v9")
    a("v_lshl_add_u32 v9, v4, 3, v9")
    for e in range(16):
        if e == 8:
            a("s_mul_i32 s56, s51, 24")
            add64(a, 52, 52, off_sgpr=56)
        a("global_load_dwordx2 %s, v9, s[52:53]", vr(16 + 2 * e, 2))
        add64(a, 52, 52, off_sgpr=51)
    a("v_lshrrev_b32 v8, 3, v4")
    a("v_lshlrev_b32 v8, 1, v8")
    a("v_and_b32 v11, 1, v4")
    a("v_add_u32 v8, v8, v11")
    a("v_lshlrev_b32 v8, 10, v8")
    a("v_bfe_u32 v11, v4, 1, 2")
    a("v_lshl_add_u32 v8, v11, 6, v8")
    a("v_lshl_add_u32 v8, v3, 8, v8")
    a("v_add_u32 v8, s42, v8")
    a("v_add_u32 v13, s42, v2")
    a("s_mul_i32 s56, s50, s54")
    a("s_lshl_b32 s56, s56, 2")
    a("s_lshl_b32 s57, s49, 1")
    a("s_add_u32 s56, s56, s57")
    a("s_lshl_b32 s56, s56, 10")
    a("s_add_u32 s56, s56, s55")
    add64(a, 58, 4, off_sgpr=56)
    a("s_lshl_b32 s54, s54, 10")
    a("v_add_u32 v9, s54, v2")
    a("v_add_u32 v10, s54, v9")
    a("v_add_u32 v11, s54, v10")
    for hlf in range(2):
        a("s_waitcnt vmcnt(%d)", 8 if hlf == 0 else 0)
        transp_cvt(a, 48 + 16 * hlf, 16 + 16 * hlf, 80)
        for r in range(4):
            a("ds_write_b128 v8, %s offset:%d", vr(48 + 16 * hlf + 4 * r, 4), hlf * 4096 + 16 * r)
    a("s_waitcnt lgkmcnt(0)")
    for f in range(8): a("ds_read_b128 %s, v13 offset:%d", vr(16 + 4 * f, 4), f * 1024)
    for f in range(8):
        a("s_waitcnt lgkmcnt(%d)", 7 - f)
        a("global_store_dwordx4 v%d, %s, s[58:59] offset:%d sc1", [2, 9, 10, 11][f & 3], vr(16 + 4 * f, 4), (f >> 2) * 1024)

def emit_p(a, T, NX, d0, w7):
    a.c("---- product task")
    lanes(a)
    a("s_mov_b32 s40, 0x05040100")
    a("s_mov_b32 s41, 0x07060302")
    a("s_lshr_b32 s25, s20, 1")
    a("s_mul_i32 s27, s25, 147")
    a("s_lshr_b32 s27, s27, 10")
    a("s_mul_i32 s24, s27, 7")
    a("s_sub_u32 s24, s25, s24")
    a("s_and_b32 s25, s20, 1")
    a("s_mul_i32 s25, s25, 7")
    a("s_add_u32 s25, s25, s14")
    a("v_bfe_u32 v7, v1, 2, 2")
    a("v_lshlrev_b32 v13, 16, v3")
    a("v_add_u32 v13, v13, v12")
    a("v_lshl_add_u32 v6, v7, 13, v13")
    a("v_lshl_add_u32 v7, v7, 14, v13")
    a("s_lshl_b32 s30, s27, 9")
    a("s_cmp_eq_u32 s26, 0")
    a("s_cselect_b32 s28, s68, s64")
    a("s_cselect_b32 s29, s69, s65")
    a("s_cselect_b64 vcc, -1, 0")
    a("v_cndmask_b32 v15, v14, v2")
    a("s_cbranch_scc1 P_stB")
    a("s_lshr_b32 s31, s14, 1")
    a("s_lshr_b32 s32, s31, 1")
    a("s_lshl_b32 s32, s32, 5")
    a("s_and_b32 s33, s31, 1")
    a("s_add_u32 s32, s32, s33")
    a("s_lshl_b32 s33, s24, 6")
    a("s_add_u32 s32, s32, s33")
    a("s_lshl_b32 s32, s32, 13")
    a("s_add_u32 s32, s32, s30")
    a("s_and_b32 s33, s14, 1")
    a("s_lshl_b32 s34, s33, 8")
    a("s_add_u32 s32, s32, s34")
    add64(a, 34, 66, off_sgpr=32)
    a("s_lshl_b32 s36, s14, 12")
    for k in range(4):
        a("s_add_u32 m0, s36, %d", 960 * k)
        a("global_load_lds_dwordx4 v7, s[34:35] offset:%d", 64 * k)
    a("v_mov_b32 v8, 0")
    a("s_branch P_rows")
    a.label("P_stB")
    a("s_mul_i32 s32, s27, 229376")
    a("s_mul_i32 s33, s14, %d", 32 * 896)
    a("s_add_u32 s32, s32, s33")
    a("s_lshl_b32 s33, s24, 7")
    a("s_add_u32 s32, s32, s33")
    add64(a, 34, 70, off_sgpr=32)
    a("v_mul_u32_u24 v9, %d, v3", 8 * 896)
    a("v_lshl_add_u32 v9, v4, 3, v9")
    a("v_add_u32 v10, %d, v9", 4 * 896)
    for e in range(8):
        a("global_load_dwordx2 %s, v%d, s[34:35] offset:%d", vr(216 + 2 * e, 2), 9 if e < 4 else 10, (e & 3) * 896)
    a("v_lshrrev_b32 v8, 3, v4")
    a("v_lshlrev_b32 v8, 1, v8")
    a("v_and_b32 v11, 1, v4")
    a("v_add_u32 v8, v8, v11")
    a("v_lshlrev_b32 v8, 13, v8")
    a("v_bfe_u32 v11, v4, 1, 2")
    a("v_lshl_add_u32 v8, v11, 6, v8")
    a("v_lshl_add_u32 v8, v3, 8, v8")
    a("s_lshl_b32 s36, s14, 10")
    a("v_add_u32 v8, s36, v8")
    a.label("P_rows")
    T(23)
    a("s_barrier")
    a("s_lshl_b32 s32, s25, 18")
    a("s_add_u32 s32, s32, s30")
    add64(a, 36, 28, off_sgpr=32)
    a("s_lshl_b32 s42, s14, 14")
    a("s_add_u32 s42, s42, 32768")
    a("s_cmp_eq_u32 s14, 7")
    a("s_cbranch_scc1 P_norows")
    def rows(t):
        for kd_ in range(8):
            a("s_add_u32 m0, s42, %d", t * 8192 + 960 * kd_)
            a("global_load_lds_dwordx4 v6, s[36:37] offset:%d", 64 * kd_)
    rows(0)
    a("s_add_u32 s36, s36, 0x%x", 4 * 8192)
    a("s_addc_u32 s37, s37, 0")
    T(24)
    a("s_waitcnt vmcnt(8)")
    T(25)
    a("s_branch P_stage")
    a.label("P_norows")
    a("s_setprio 3")
    a("s_lshl_b32 s43, s26, 8")
    a("s_add_u32 s43, s43, s20")
    a("s_cmp_lt_u32 s43, 128")
    a("s_cbranch_scc0 P_nl")
    a("s_mul_i32 s36, s20, %d", 16 * 896)
    add64(a, 36, 6, off_sgpr=36)
    a("v_lshrrev_b32 v6, 2, v1")
    a("v_mul_u32_u24 v6, 896, v6")
    a("v_add_u32 v6, v6, v12")
    for ks in range(14):
        a("s_mov_b32 m0, %d", L_WT + 960 * ks)
        a("global_load_lds_dwordx4 v6, s[36:37] offset:%d", ks * 64)
    nonce_ld(a)
    a("s_waitcnt vmcnt(15)")
    a("s_branch P_stage")
    a.label("P_nl")
    nonce_ld(a)
    a("s_waitcnt vmcnt(1)")
    a.label("P_stage")
    a("s_cmp_lg_u32 s26, 0")
    a("s_cbranch_scc1 P_staged")
    transp_perm(a, 200, 216, 40, 41)
    for r in range(4):
        a("ds_write_b128 v8, %s offset:%d", vr(200 + 4 * r, 4), 16 * r)
    a.label("P_staged")
    a("s_waitcnt lgkmcnt(0)")
    a("s_barrier")
    T(1)
    a("s_cmp_eq_u32 s14, 7")
    a("s_cbranch_scc1 P_w7")
    OUT = 16; ACC = 32; RR = 64; CR = 128
    for f in range(32): a("ds_read_b128 %s, v15 offset:%d", vr(CR + 4 * f, 4), f * 1024)
    rows(1)
    a("v_add_u32 v14, s42, v14")
    a("s_cmp_eq_u32 s26, 0")
    a("s_cselect_b32 s38, 1.0, %s", f32(SCALE))
    a("s_lshl_b32 s33, s24, 2")
    a("s_mul_i32 s32, s27, 28")
    a("s_add_u32 s32, s32, s33")
    a("s_add_u32 s32, s32, 448")
    a("s_lshr_b32 s34, s27, 1")
    a("s_mul_i32 s34, s34, 28")
    a("s_add_u32 s34, s34, s33")
    a("s_lshl_b32 s34, s34, 1")
    a("s_and_b32 s33, s27, 1")
    a("s_add_u32 s34, s34, s33")
    a("s_movk_i32 s39, %d", 14 * 1024)
    a("s_cmp_eq_u32 s26, 0")
    a("s_cselect_b32 s32, s34, s32")
    a("s_cselect_b32 s39, %d, s39", 28 * 1024)
    a("s_mul_i32 s32, s32, 14")
    a("s_add_u32 s32, s32, s25")
    a("s_lshl_b32 s32, s32, 10")
    a("s_add_u32 s32, s32, 0x%x", WALL)
    add64(a, 44, 4, off_sgpr=32)
    a("v_add_u32 v9, s39, v2")
    a("v_add_u32 v10, s39, v9")
    a("v_add_u32 v11, s39, v10")
    a("s_mul_i32 s32, s26, 224")
    a("s_add_u32 s32, s32, s20")
    a("s_lshl_b32 s32, s32, 5")
    a("s_lshl_b32 s33, s14, 2")
    a("s_add_u32 s32, s32, s33")
    a("s_add_u32 s32, s32, 0x%x", ABF)
    add64(a, 46, 4, off_sgpr=32)
    a("v_mov_b32 v13, 0")
    for b in range(2):
        a("s_waitcnt vmcnt(%d)", 0 if b else 8)
        for f in range(8 * b, 8 * b + 8): a("ds_read_b128 %s, v14 offset:%d", vr(RR + 4 * f, 4), f * 1024)
        for kd_ in range(8):
            a("s_waitcnt lgkmcnt(%d)", 7 - kd_)
            for ct in range(4):
                d = vr(ACC + (b * 4 + ct) * 4, 4)
                a("v_mfma_f32_16x16x32_bf16 %s, %s, %s, %s", d, vr(RR + (b * 8 + kd_) * 4, 4), vr(CR + (ct * 8 + kd_) * 4, 4), d if kd_ else "0")
    T(2)
    for ct in range(4):
        o = OUT + ct * 4
        for b in range(2):
            d = ACC + (b * 4 + ct) * 4
            for r in range(4): a("v_mul_f32 v%d, s38, v%d", d + r, d + r)
            a("v_cvt_pk_f16_f32 v%d, v%d, v%d", o + 2 * b, d, d + 1)
            a("v_cvt_pk_f16_f32 v%d, v%d, v%d", o + 2 * b + 1, d + 2, d + 3)
        a("global_store_dwordx4 v%d, %s, s[44:45] sc1", [2, 9, 10, 11][ct], vr(o, 4))
    nonce_get(a, 8, "M_end")
    if NX:
        a("s_lshl_b32 s32, s26, 3")
        a("s_add_u32 s32, s32, s14")
        a("s_sub_u32 s32, s32, %d", d0)
        a("s_cmp_gt_u32 s32, %d", NX)
        a("s_cbranch_scc1 P_nx")
        a("s_mul_i32 s32, s20, 4682")
        a("s_lshr_b32 s32, s32, 16")
        a("s_mul_i32 s33, s32, 14")
        a("s_sub_u32 s33, s20, s33")
        a("s_add_u32 s34, s14, %d", 13 - NX - d0)
        a("s_movk_i32 s35, 8192")
        a("s_cmp_eq_u32 s14, %d", d0)
        a("s_cselect_b32 s33, s33, s34")
        a("s_cselect_b32 s36, s66, s64")
        a("s_cselect_b32 s37, s67, s65")
        a("s_cselect_b32 s35, s35, 32768")
        a("s_cselect_b64 vcc, -1, 0")
        a("v_cndmask_b32 v6, v6, v7")
        a("s_lshl_b32 s33, s33, 18")
        a("s_lshl_b32 s32, s32, 9")
        a("s_add_u32 s32, s32, s33")
        add64(a, 36, 36, off_sgpr=32)
        rows(0)
        add64(a, 36, 36, off_sgpr=35)
        rows(1)
        a("s_waitcnt vmcnt(16)")
        a("s_branch P_fl")
        a.label("P_nx")
    a("s_waitcnt vmcnt(0)")
    a.label("P_fl")
    a("s_mov_b64 exec, 1")
    a("global_store_dword v13, v8, s[46:47] sc1")
    a("s_mov_b64 exec, -1")
    T(3)
    a("s_branch P_abend")
    a.label("P_w7")
    a("s_waitcnt vmcnt(0)")
    nonce_put(a, "M_end")
    if w7: w7()
    a.label("P_abend")
    a("s_setprio 0")

def emit_ln(a):
    a("v_add_u32 v14, %d, v14", L_WT)
    X = 16
    for ks in range(14): a("ds_read_b128 %s, v14 offset:%d", vr(X + 4 * ks, 4), ks * 1024)
    F = 80
    for d in range(56):
        if d % 4 == 0: a("s_waitcnt lgkmcnt(%d)", 13 - d // 4)
        a("v_lshlrev_b32 v%d, 16, v%d", F + 2 * d, X + d)
        a("v_and_b32 v%d, 0xffff0000, v%d", F + 2 * d + 1, X + d)
    def allred(acc, tmp):
        a("v_pk_add_f32 v[8:9], v[8:9], v[10:11]")
        a("v_add_f32 v8, v8, v9")
        a("v_mov_b32 v%d, v%d", tmp, acc)
        a("v_permlane32_swap_b32 v%d, v%d", acc, tmp)
        a("v_add_f32 v%d, v%d, v%d", acc, acc, tmp)
        a("v_mov_b32 v%d, v%d", tmp, acc)
        a("v_permlane16_swap_b32 v%d, v%d", acc, tmp)
        a("v_add_f32 v%d, v%d, v%d", acc, acc, tmp)
    P = lambda d: vr(F + 2 * d, 2)
    A = lambda d: vr(8 + 2 * (d & 1), 2)
    for d in range(2): a("v_pk_add_f32 %s, %s, %s", A(d), P(d), P(d + 2))
    for d in range(4, 56): a("v_pk_add_f32 %s, %s, %s", A(d), A(d), P(d))
    allred(8, 9)
    a("v_mul_f32 v12, %s, v8", f32(-1.0 / 448))
    a("v_mov_b32 v13, v12")
    for d in range(56): a("v_pk_add_f32 %s, %s, v[12:13]", P(d), P(d))
    for d in range(2): a("v_pk_mul_f32 %s, %s, %s", A(d), P(d), P(d))
    for d in range(2, 56): a("v_pk_fma_f32 %s, %s, %s, %s", A(d), P(d), P(d), A(d))
    allred(8, 9)
    a("v_mov_b32 v12, %s", f32(1e-5))
    a("v_fmac_f32 v12, %s, v8", f32(1.0 / 448))
    a("v_sqrt_f32 v12, v12")
    a("v_rcp_f32 v12, v12")
    a("s_mul_i32 s36, s20, %d", 14 * 1024)
    a("s_add_u32 s36, s36, 0x%x", XF + 4096)
    add64(a, 36, 4, off_sgpr=36)
    a("v_mov_b32 v13, v12")
    for ks in range(14):
        if ks == 8:
            a("s_add_u32 s36, s36, 8192"); a("s_addc_u32 s37, s37, 0")
        for d in range(4 * ks, 4 * ks + 4): a("v_pk_mul_f32 %s, %s, v[12:13]", P(d), P(d))
        for d in range(4 * ks, 4 * ks + 4): a("v_cvt_pk_f16_f32 v%d, v%d, v%d", X + d, F + 2 * d, F + 2 * d + 1)
        a("global_store_dwordx4 v2, %s, s[36:37] offset:%d sc1", vr(X + 4 * ks, 4), (ks & 7) * 1024 - 4096)
    a("s_lshl_b32 s36, s20, 2")
    a("s_add_u32 s36, s36, 0x%x", LNF)
    a("v_lshlrev_b32 v8, 9, v1")
    a("v_add_u32 v8, s36, v8")
    a("v_mov_b32 v9, s19")
    a("s_waitcnt vmcnt(0)")
    a("s_mov_b32 exec_hi, 0")
    a("global_store_dword v8, v9, s[4:5] sc1")
    a("s_mov_b64 exec, -1")


def emit_x(a, NX, w0, d0, px):
    a("s_sub_u32 s40, s14, %d", w0)
    a("s_cmp_ge_u32 s40, %d", NX)
    a("s_cbranch_scc1 %s_end", px)
    a("s_cmp_lt_i32 s39, 0")
    a("s_cbranch_scc1 %s_end", px)
    ACC = 240; CR = 16; RR = lambda f: 80 + 4 * f if f < 12 else 200 + 4 * (f - 12)
    a("v_lshrrev_b32 v6, 2, v4")
    a("v_xor_b32 v6, v6, v3")
    a("v_lshlrev_b32 v6, 4, v6")
    a("v_lshl_add_u32 v6, v4, 6, v6")
    a("v_add_u32 v6, %d, v6", 32768 + 16384 * d0)
    a("s_lshl_b32 s41, s40, 14")
    a("v_add_u32 v7, s41, v6")
    for kd in range(8):
        for t in range(2):
            a("ds_read_b128 %s, v6 offset:%d", vr(CR + (2 * kd + t) * 4, 4), t * 8192 + kd * 1024)
            a("ds_read_b128 %s, v7 offset:%d", vr(RR(2 * kd + t), 4), 16384 + t * 8192 + kd * 1024)
    a("s_lshl_b32 s42, s39, 2")
    a("s_add_u32 s42, s42, s40")
    a("s_lshl_b32 s42, s42, 11")
    a("s_add_u32 s42, s42, 0x%x", AX)
    a("s_mul_i32 s44, s39, 9363")
    a("s_lshr_b32 s44, s44, 16")
    a("s_mul_i32 s45, s44, 7")
    a("s_sub_u32 s45, s39, s45")
    a("s_mul_i32 s45, s45, %d", NX)
    a("s_add_u32 s45, s45, s40")
    a("s_lshl_b32 s44, s44, 5")
    a("s_add_u32 s44, s44, s45")
    a("s_lshl_b32 s44, s44, 2")
    a("s_add_u32 s44, s44, 0x%x", AFL)
    a("s_mov_b64 s[48:49], 1")
    a("s_mov_b32 s46, %s", f32(SCALE))
    for kd in range(8):
        a("s_waitcnt lgkmcnt(%d)", min(15, 28 - 4 * kd))
        for b in range(2):
            for c in range(2):
                d = vr(ACC + 8 * c + 4 * b, 4)
                a("v_mfma_f32_16x16x32_bf16 %s, %s, %s, %s", d, vr(RR(2 * kd + b), 4), vr(CR + (2 * kd + c) * 4, 4), d if kd else "0")
    a("v_mov_b32 v7, s44")
    a("v_add_u32 v6, s42, v2")
    for r in range(16): a("v_mul_f32 v%d, s46, v%d", ACC + r, ACC + r)
    for d in range(4):
        for e in range(2): a("v_cvt_pk_f16_f32 v%d, v%d, v%d", ACC + 2 * d + e, ACC + 8 * e + 2 * d, ACC + 8 * e + 2 * d + 1)
    a.label(px + "_end")
    a("s_mov_b32 s39, -1")
def x_store(a):
    l = a.newlabel("XS")
    a("s_cmp_eq_u32 s48, 0")
    a("s_cbranch_scc1 %s", l)
    for k in range(2): a("global_store_dwordx4 v6, %s, s[4:5] offset:%d sc1", vr(240 + 4 * k, 4), 1024 * k)
    a.label(l)
def x_flag(a, v):
    l = a.newlabel("XF")
    a("s_cmp_eq_u32 s48, 0")
    a("s_cbranch_scc1 %s", l)
    a("s_waitcnt vmcnt(0)")
    a("s_mov_b64 exec, 1")
    a("global_store_dword v7, v%d, s[4:5] sc1", v)
    a("s_mov_b64 exec, -1")
    a("s_mov_b32 s48, 0")
    a.label(l)
def x_touch(a, NX):
    a("s_mul_i32 s32, s20, 4682")
    a("s_lshr_b32 s32, s32, 16")
    a("s_mul_i32 s33, s32, 14")
    a("s_sub_u32 s33, s20, s33")
    a("s_lshl_b32 s33, s33, 18")
    a("s_lshl_b32 s32, s32, 9")
    a("s_add_u32 s33, s33, s32")
    add64(a, 34, 66, off_sgpr=33)
    a("v_lshrrev_b32 v6, 2, v1")
    a("v_lshlrev_b32 v6, 13, v6")
    a("v_and_b32 v7, 3, v1")
    a("v_lshl_add_u32 v6, v7, 7, v6")
    a("v_add_u32 v7, 0x20000, v6")
    a("global_load_dword v250, v6, s[34:35]")
    a("global_load_dword v250, v7, s[34:35]")
```

```python
from common import *
MF = "v_mfma_f32_16x16x32_f16 %s, %s, %s, %s"
def ln_wait(a, abort):
    a("s_and_b32 s22, s20, 31")
    a("s_lshl_b32 s22, s22, 9")
    a("s_add_u32 s22, s22, 0x%x", LNF)
    a("v_lshlrev_b32 v9, 3, v1")
    a("v_add_u32 v9, s22, v9")
    a("s_mov_b32 s25, 0x400000")
    lw = a.newlabel("UW")
    a.label(lw)
    a("global_load_dwordx2 v[10:11], v9, s[4:5] sc1")
    a("s_sub_u32 s25, s25, 1")
    a("s_cbranch_scc1 %s", abort)
    a("s_waitcnt vmcnt(0)")
    allnon(a, [10, 11])
    a("v_cmp_ne_u32 vcc, 0, v10")
    a("s_cbranch_vccnz %s", lw)
def emit_u(a, abort, T=lambda k: None, xf=None):
    WR = 16; XR = (128, 184); ACC = 240; OUT = 248
    a.c("---- U task")
    a("s_mul_i32 s33, s20, 2341")
    a("s_lshr_b32 s33, s33, 16")
    a("s_mul_i32 s34, s33, 28")
    a("s_sub_u32 s34, s20, s34")
    a("s_mul_i32 s28, s14, %d", 14 * 1024)
    a("s_add_u32 s28, s28, 0x%x", XF + 4096)
    add64(a, 28, 4, off_sgpr=28)
    def xld(b):
        for ks in range(14):
            a("global_load_dwordx4 %s, v%d, s[28:29] offset:%d sc1", vr(XR[b] + 4 * ks, 4), 2 if ks < 8 else 13, (ks & 7) * 1024 - 4096)
        a("s_add_u32 s28, s28, %d", 8 * 14 * 1024); a("s_addc_u32 s29, s29, 0")
    a("v_add_u32 v13, 8192, v2")
    a("s_mov_b32 s25, 0x400000")
    a("s_cmp_eq_u32 s14, 7")
    a("s_cbranch_scc1 U_a")
    a("s_and_b32 s22, s20, 31")
    a("s_lshl_b32 s22, s22, 7")
    a("s_add_u32 s22, s22, s14")
    a("s_lshl_b32 s22, s22, 2")
    a("s_add_u32 s22, s22, 0x%x", LNF)
    a("v_mov_b32 v9, s22")
    a.label("U_x")
    a("global_load_dword v10, v9, s[4:5] sc1")
    a("s_sub_u32 s25, s25, 1")
    a("s_cbranch_scc1 %s", abort)
    a("s_waitcnt vmcnt(0)")
    a("v_cmp_ne_u32 vcc, s19, v10")
    a("s_cbranch_vccnz U_x")
    xld(0)
    a("s_branch U_b")
    a.label("U_a")
    a("s_mul_i32 s23, s33, 14")
    a("s_lshr_b32 s22, s34, 2")
    a("s_add_u32 s23, s23, s22")
    a("s_lshl_b32 s23, s23, 6")
    a("s_add_u32 s23, s23, 0x%x", ABF)
    a("v_and_b32 v8, 1, v3")
    a("v_mul_u32_u24 v8, %d, v8", 7 * 64)
    a("v_lshl_add_u32 v8, v4, 2, v8")
    a("v_add_u32 v8, s23, v8")
    a.label("U_w")
    a("global_load_dword v12, v8, s[4:5] sc1")
    a("s_sub_u32 s25, s25, 1")
    a("s_cbranch_scc1 %s", abort)
    a("s_waitcnt vmcnt(0)")
    a("v_cmp_eq_u32 vcc, s19, v12")
    a("s_or_b32 vcc_lo, vcc_lo, 0x80808080")
    a("s_cmp_eq_u32 vcc_lo, -1")
    a("s_cbranch_scc0 U_w")
    a("s_barrier")
    T(8)
    ln_wait(a, abort)
    xld(0)
    a("v_mov_b32 v8, 0")
    a("s_branch U_c")
    a.label("U_b")
    a("s_barrier")
    T(8)
    a("s_lshl_b32 s21, s14, 12")
    a("v_add_u32 v8, s21, v2")
    a("s_mul_i32 s26, s20, %d", 28 * 1024)
    a("s_add_u32 s26, s26, 0x%x", BF)
    add64(a, 26, 4, off_sgpr=26)
    for k in range(4): a("global_load_dwordx4 %s, v8, s[26:27] offset:%d sc1", vr(XR[1] + 4 * k, 4), 1024 * k)
    if xf: xf[0]()
    a.label("U_c")
    a("v_mov_b32 v9, v13")
    def xld(b):
        for ks in range(14):
            a("global_load_dwordx4 %s, v%d, s[28:29] offset:%d sc1", vr(XR[b] + 4 * ks, 4), 2 if ks < 8 else 9, (ks & 7) * 1024 - 4096)
        a("s_add_u32 s28, s28, %d", 8 * 14 * 1024); a("s_addc_u32 s29, s29, 0")
    a("s_lshr_b32 s22, s14, 1")
    a("s_and_b32 s23, s14, 1")
    a("s_mul_i32 s35, s22, 14")
    a("s_lshr_b32 s32, s34, 1")
    a("s_add_u32 s35, s35, s32")
    a("s_lshl_b32 s35, s35, 3")
    a("s_add_u32 s35, s35, s33")
    a("s_lshl_b32 s35, s35, 1")
    a("s_and_b32 s34, s34, 1")
    a("s_add_u32 s35, s35, s34")
    a("s_lshl_b32 s35, s35, 1")
    a("s_add_u32 s35, s35, s23")
    a("s_lshl_b32 s35, s35, 10")
    a("s_add_u32 s35, s35, 0x%x", UF)
    add64(a, 30, 4, off_sgpr=35)
    a("s_lshl_b32 s36, s20, 1")
    a("s_add_u32 s36, s36, s23")
    a("s_lshl_b32 s36, s36, 8")
    a("s_mul_i32 s32, s22, %d", 112 * 1024)
    a("s_add_u32 s32, s32, s36")
    a("s_add_u32 s32, s32, 0x%x", TBX)
    add64(a, 32, 4, off_sgpr=32)
    a("s_min_u32 s36, s36, %d", 31 * 256)
    a("s_lshl_b32 s34, s22, 13")
    a("s_add_u32 s34, s34, s36")
    a("s_add_u32 s34, s34, 0x%x", MEMX)
    add64(a, 34, 4, off_sgpr=34)
    a("s_lshl_b32 s36, s14, 10")
    a("s_lshl_b32 s37, s20, 2")
    a("s_add_u32 s36, s36, s37")
    a("s_add_u32 s36, s36, 0x%x", UFL)
    add64(a, 36, 4, off_sgpr=36)
    for r in range(4): a("v_mov_b32 v%d, -1", 12 + r)
    a("v_mov_b32 v10, 0")
    a("s_mov_b32 s24, 0")
    a("v_mov_b32 v11, s19")
    a("s_cmp_eq_u32 s14, 7")
    a("s_cbranch_scc1 U_d")
    for k in range(4):
        a("s_waitcnt vmcnt(%d)", 3 - k)
        a("ds_write_b128 v8, %s offset:%d", vr(XR[1] + 4 * k, 4), 1024 * k)
    if xf: xf[1]()
    a("s_waitcnt lgkmcnt(0)")
    a.label("U_d")
    a("s_barrier")
    for f in range(28): a("ds_read_b128 %s, v2 offset:%d", vr(WR + 4 * f, 4), f * 1024)
    a("s_cmp_lg_u32 s14, 7")
    a("s_cbranch_scc1 U_e")
    a("s_waitcnt vmcnt(0)")
    a.label("U_e")
    a("s_waitcnt lgkmcnt(0)")
    T(9)
    L = a.newlabel("UT")
    a.label(L)
    for b in range(2):
        sk = a.newlabel("UTs")
        a("s_cmp_eq_u32 s24, %d", 7 if b else 0)
        a("s_cbranch_scc1 %s", sk)
        xld(1 - b)
        a.label(sk)
        for ks in range(14):
            for w in range(2):
                d = vr(ACC + 4 * w, 4)
                a(MF, d, vr(XR[b] + 4 * ks, 4), vr(WR + (w * 14 + ks) * 4, 4), d if ks else "0")
        if xf and b == 0: xf[2]()
        a("s_mov_b64 exec, 0xffff")
        a("global_store_dwordx4 v2, v[12:15], s[32:33] sc1")
        l = a.newlabel("UTm")
        a("s_cmp_ge_u32 s20, 14")
        a("s_cbranch_scc1 %s", l)
        a("global_store_dwordx4 v2, v[12:15], s[34:35] sc1")
        a.label(l)
        a("s_mov_b64 exec, -1")
        for w in range(2):
            a("v_cvt_pk_f16_f32 v%d, v%d, v%d", OUT + w, ACC + 4 * w, ACC + 4 * w + 1)
            a("v_cvt_pk_f16_f32 v%d, v%d, v%d", OUT + 2 + w, ACC + 4 * w + 2, ACC + 4 * w + 3)
        a("global_store_dwordx4 v2, %s, s[30:31] sc1", vr(OUT, 4))
        for r, n in ((30, 4 * 14 * 32768), (32, 4 * 112 * 1024), (34, 4 * 8192)):
            a("s_add_u32 s%d, s%d, %d", r, r, n); a("s_addc_u32 s%d, s%d, 0", r + 1, r + 1)
        a("s_waitcnt vmcnt(0)")
        a("s_mov_b64 exec, 1")
        a("global_store_dword v10, v11, s[36:37] sc1")
        a("s_mov_b64 exec, -1")
        a("s_add_u32 s36, s36, 8192"); a("s_addc_u32 s37, s37, 0")
        if b == 0:
            sk = a.newlabel("UTs")
            a("s_cmp_lg_u32 s24, 0")
            a("s_cbranch_scc1 %s", sk)
            T(10)
            xld(1)
            a("s_waitcnt vmcnt(0)")
            a.label(sk)
    a("s_add_u32 s24, s24, 1")
    a("s_cmp_lt_u32 s24, 8")
    a("s_cbranch_scc1 %s", L)
```

```python
from common import *
import chain, ut, g1, g2, ft, pt
from pt import L_TK, MAIN_LDS
FSPLIT = 60
N_G1, N_G2, N_F = 224, 224, 4 * FSPLIT + 8 * (64 - FSPLIT)
KN = "parallel_sum__memory_aug_recurrent_mem_tr__dense_activation_relu__prompt_kernel"
def only(a, w, l):
    a("s_cmp_lg_u32 s14, %d", w)
    a("s_cbranch_scc1 %s", l)
def emit_main(a, prof=0, force_mixed=False, gate=2, g0=34, npre=0, nlook=3, tch=3, qend=1, ntb=0, wm=0, wr=64, xw=5, xd=4, xt=1, fo=94, **kw):
    assert g0 > 0
    NT[0] = ntb
    NX = 14 - kw.get('nk', 14)
    def T(k):
        if prof and k >= 20:
            l = a.newlabel("ST")
            if k >= 23: a("s_cmp_lg_u32 s26, 0"); a("s_cbranch_scc1 %s", l)
            a("s_memrealtime s[60:61]"); a("s_waitcnt lgkmcnt(0)"); a("v_writelane_b32 v5, s60, %d", k)
            a.label(l)
        elif prof: a("s_memrealtime s[%d:%d]", 76 + 2 * k, 77 + 2 * k)
    a.raw(".p2align 8")
    a.label(KN)
    a("s_cmp_ge_u32 s2, 256")
    a("s_cbranch_scc1 M_end")
    a("s_load_dwordx2 s[10:11], s[0:1], 88")
    a("s_memrealtime s[18:19]")
    a("s_getreg_b32 s16, hwreg(HW_REG_XCC_ID)")
    a("s_getreg_b32 s15, hwreg(HW_REG_HW_ID)")
    a("s_and_b32 s16, s16, 7")
    pt.load_ptrs(a)
    main_prologue(a)
    if prof: a("s_memtime s[98:99]"); a("s_mov_b32 s100, s18"); a("s_mov_b32 s76, s18")
    T(20)
    a("s_or_b32 s18, s18, 0x40000000")
    a("s_and_b32 s18, s18, 0x7ffffffe")
    a("s_mov_b32 s19, 0")
    a("s_mov_b32 s17, 0")
    a("s_mov_b32 s101, 0")
    a("s_mov_b32 s39, -1")
    a("s_mov_b64 s[48:49], 0")
    if force_mixed:
        a("s_bfe_u32 s20, s2, 0x10003")
        a("s_or_b32 s16, s16, s20")
    a("s_lshl_b32 s21, s16, 5")
    a("s_cmp_eq_u32 s14, 0")
    a("s_cbranch_scc1 M_s0")
    if tch:
        a("s_bfe_u32 s22, s15, 0x2000d")
        a("s_bfe_u32 s23, s15, 0x30008")
        a("s_lshl_b32 s22, s22, 3")
        a("s_add_u32 s22, s22, s23")
        a("v_lshrrev_b32 v6, 2, v1")
        a("v_lshlrev_b32 v6, 13, v6")
        a("v_and_b32 v7, 3, v1")
        a("v_lshl_add_u32 v6, v7, 7, v6")
        a("s_sub_u32 s23, s14, 1")
        a("s_cmp_lg_u32 s16, 0")
        a("s_cbranch_scc1 M_t1")
        a("s_and_b32 s24, s22, 1")
        a("s_lshr_b32 s25, s22, 1")
        a("s_lshl_b32 s25, s25, 9")
        a("s_cmp_eq_u32 s14, 7")
        a("s_cbranch_scc1 M_t0")
        a("s_mul_i32 s24, s24, 14")
        a("s_add_u32 s24, s24, s23")
        a("s_add_u32 s24, s24, 8")
        a("s_lshl_b32 s24, s24, 17")
        a("s_add_u32 s24, s24, s25")
        add64(a, 24, 66, off_sgpr=24)
        a("s_branch M_t8")
        a.label("M_t0")
        a("s_mul_i32 s24, s24, %d", (7 << 18) if kw.get("rot", 1) else (1 << 18))
        a("s_add_u32 s24, s24, s25")
        add64(a, 24, 64, off_sgpr=24)
        a("global_load_dword v102, v6, s[24:25]" + nt(16))
        a("v_add_u32 v6, 0x20000, v6")
        a.label("M_t8")
        a("global_load_dword v102, v6, s[24:25]" + nt(16))
        a("s_branch M_ta")
        a.label("M_t1")
        a("s_add_u32 s22, s22, s21")
        a("s_sub_u32 s22, s22, 32")
        a("s_lshr_b32 s26, s22, 1")
        a("s_mul_i32 s27, s26, 147")
        a("s_lshr_b32 s27, s27, 10")
        a("s_mul_i32 s28, s27, 7")
        a("s_sub_u32 s28, s26, s28")
        a("s_and_b32 s29, s22, 1")
        a("s_and_b32 s30, s23, 1")
        a("s_cmp_ge_u32 s23, 2")
        a("s_cbranch_scc1 M_t2")
        a("s_mul_i32 s24, s29, 7")
        a("s_add_u32 s24, s24, s28")
        a("s_lshl_b32 s24, s24, 1")
        a("s_add_u32 s24, s24, s30")
        a("s_lshl_b32 s24, s24, 17")
        a("s_lshl_b32 s25, s27, 9")
        a("s_add_u32 s24, s24, s25")
        add64(a, 24, 68, off_sgpr=24)
        a("s_branch M_t9")
        a.label("M_t2")
        a("s_cmp_ge_u32 s23, 4")
        a("s_cbranch_scc1 M_t3")
        a("s_lshl_b32 s24, s27, 2")
        a("s_lshl_b32 s25, s29, 1")
        a("s_add_u32 s24, s24, s25")
        a("s_add_u32 s24, s24, s30")
        a("s_mul_i32 s24, s24, %d", 64 * 896)
        a("s_lshl_b32 s25, s28, 7")
        a("s_add_u32 s24, s24, s25")
        add64(a, 24, 70, off_sgpr=24)
        a("v_mul_u32_u24 v6, 896, v1")
        a("s_branch M_t9")
        a.label("M_t3")
        a("s_cmp_lg_u32 s14, 7")
        a("s_cbranch_scc1 M_t4")
        if NX and (xt & 1):
            a("s_and_b32 s24, s22, %d", 2 * NX - 1)
            a("s_add_u32 s24, s24, %d", 28 - 2 * NX)
            a("s_lshl_b32 s24, s24, 17")
            a("s_lshl_b32 s25, s27, 9")
            a("s_add_u32 s24, s24, s25")
            add64(a, 24, 64, off_sgpr=24)
            a("s_branch M_t9")
        else:
            if wm & 1:
                a("v_lshlrev_b32 v6, 7, v1")
                for i in range(2):
                    a("s_add_u32 s24, s22, %d", wr + 224 * i)
                    a("s_cmp_ge_u32 s24, 448")
                    a("s_cbranch_scc1 M_ta")
                    a("s_lshl_b32 s24, s24, 13")
                    add64(a, 24, 64, off_sgpr=24)
                    a("global_load_dword v102, v6, s[24:25]")
            if wm & 8:
                a("s_sub_u32 s24, s21, 32")
                a("s_mul_i32 s25, s24, 4682")
                a("s_lshr_b32 s25, s25, 16")
                a("s_mul_i32 s25, s25, 14")
                a("s_sub_u32 s25, s24, s25")
                a("s_sub_u32 s26, s22, s24")
                a("s_cmp_lt_u32 s26, s25")
                a("s_cselect_b32 s26, 0, 32")
                a("s_add_u32 s26, s26, s22")
                a("s_sub_u32 s26, s26, s25")
                a("s_add_u32 s24, s24, 31")
                a("s_mul_i32 s24, s24, 4682")
                a("s_lshr_b32 s24, s24, 16")
                a("s_mul_i32 s25, s26, 4682")
                a("s_lshr_b32 s25, s25, 16")
                a("s_cmp_gt_u32 s25, s24")
                a("s_cbranch_scc1 M_ta")
                a("s_mul_i32 s24, s25, 14")
                a("s_sub_u32 s26, s26, s24")
                a("s_and_b32 s24, s26, 1")
                a("s_mul_i32 s24, s24, 7")
                a("s_lshr_b32 s26, s26, 1")
                a("s_add_u32 s24, s24, s26")
                a("s_lshl_b32 s24, s24, 18")
                a("s_lshl_b32 s25, s25, 9")
                a("s_add_u32 s24, s24, s25")
                add64(a, 24, 68, off_sgpr=24)
                a("global_load_dword v102, v6, s[24:25]" + nt(64))
                a("v_add_u32 v6, 0x20000, v6")
                a("s_branch M_t9")
            a("s_branch M_ta")
        a.label("M_t4")
        a("s_cmp_lt_u32 s22, 128")
        a("s_cbranch_scc1 M_t5")
        if wm & 4:
            a("s_mul_i32 s24, s30, 224")
            a("s_add_u32 s24, s24, s22")
            a("s_sub_u32 s24, s24, 128")
            a("s_lshl_b32 s24, s24, 13")
            add64(a, 24, 66, off_sgpr=24)
            a("v_lshlrev_b32 v6, 7, v1")
            a("global_load_dword v102, v6, s[24:25]")
        a("s_branch M_ta")
        a.label("M_t5")
        a("s_lshl_b32 s24, s22, 1")
        a("s_add_u32 s24, s24, s30")
        a("s_mul_i32 s24, s24, 7168")
        add64(a, 24, 6, off_sgpr=24)
        a("v_min_u32 v6, 55, v1")
        a("v_lshlrev_b32 v6, 7, v6")
        a.label("M_t9")
        a("global_load_dword v102, v6, s[24:25]" + nt(64))
        a.label("M_ta")
        if tch > 1:
            only(a, 1, "M_tk")
            a("s_getpc_b64 s[24:25]")
            a.label("M_pc")
            a("s_cmp_eq_u32 s16, 0")
            a("s_movk_i32 s26, 16384")
            a("s_cselect_b32 s27, s26, %s", "M_chk-M_pc" if tch > 2 else "s26")
            a("s_bitcmp1_b32 s22, 1")
            a("s_cselect_b32 s27, s27, 0")
            a("s_and_b32 s26, s22, 1")
            a("s_lshl_b32 s26, s26, 13")
            a("s_add_u32 s26, s26, s27")
            a("v_lshlrev_b32 v6, 7, v1")
            a("v_add_u32 v6, s26, v6")
            a("global_load_dword v102, v6, s[24:25]")
    a("s_branch M_tk")
    a.label("M_s0")
    a("v_and_b32 v6, 31, v1")
    a("v_lshlrev_b32 v6, 2, v6")
    a("v_add_u32 v6, %d, v6", L_TK)
    a("v_mov_b32 v7, 0")
    a("ds_write_b32 v6, v7")
    a.label("M_tk")
    T(21)
    only(a, 0, "M_r1")
    a("v_mov_b32 v6, s21")
    a("v_mov_b32 v7, 1")
    a("s_mov_b64 exec, 1")
    a("global_atomic_add v8, v6, v7, s[10:11] sc0 sc1")
    a("s_mov_b64 exec, -1")
    a("v_lshlrev_b32 v9, 3, v1")
    a("v_add_u32 v9, %d, v9", chain.L_FL)
    a("v_mov_b32 v10, 0")
    a("v_mov_b32 v11, 0")
    a("ds_write_b64 v9, v[10:11]")
    a("s_mov_b64 exec, 1")
    a("v_mov_b32 v6, %d", L_TK + 32)
    a("v_mov_b32 v7, %d", C_NON * 4)
    a("v_mov_b32 v10, s18")
    a("s_waitcnt vmcnt(0)")
    a("ds_write_b32 v6, v8")
    a("v_cmp_eq_u32 vcc, s19, v8")
    a("s_cbranch_vccz M_r0")
    a("global_atomic_cmpswap v7, v[10:11], s[10:11] sc1")
    a.label("M_r0")
    a("s_mov_b64 exec, -1")
    a.label("M_r1")
    a("s_waitcnt lgkmcnt(0)")
    a("s_barrier")
    a("v_mov_b32 v6, %d", L_TK + 32)
    a("ds_read_b32 v8, v6")
    a("s_waitcnt lgkmcnt(0)")
    a("v_readfirstlane_b32 s20, v8")
    a("s_cmp_lt_u32 s20, 32")
    a("s_cbranch_scc1 M_r2")
    a("s_cmp_eq_u32 s17, 0")
    a("s_cbranch_scc1 M_chk")
    a("s_branch M_acq")
    a.label("M_r2")
    a("s_cmp_eq_u32 s21, 0")
    a("s_cbranch_scc1 M_chain")
    a("s_add_u32 s20, s20, s21")
    a("s_sub_u32 s20, s20, 32")
    T(22)
    a.label("M_ab")
    def look():
        a("s_lshr_b32 s21, s20, 5")
        a("s_lshl_b32 s21, s21, 2")
        a("s_add_u32 s21, s21, %d", pt.L_UM)
        a("s_lshl_b32 s22, 1, s20")
        a("v_mov_b32 v6, s21")
        a("v_mov_b32 v7, s22")
        a("ds_or_b32 v6, v7")
        a("v_and_b32 v6, 7, v1")
        a("v_lshlrev_b32 v6, 5, v6")
        a("s_mov_b32 s22, %d", nlook)
        a.label("M_l0")
        a("global_load_dword v8, v6, s[10:11] sc1")
        a("s_waitcnt vmcnt(0)")
        a("v_cmp_gt_u32 vcc, 32, v8")
        a("s_and_b32 s21, vcc_lo, 0xff")
        a("s_cbranch_scc0 M_l1")
        a("s_sub_u32 s22, s22, 1")
        a("s_cbranch_scc0 M_l0")
        a.label("M_l1")
        a("v_mov_b32 v6, %d", L_TK + 36)
        a("v_mov_b32 v9, s21")
        a("ds_write_b32 v6, v9")
        a("s_waitcnt lgkmcnt(0)")
    def w7():
        a("s_cmp_eq_u32 s26, 0")
        a("s_cbranch_scc1 M_w7b")
        a("s_mov_b32 s44, s20")
        a("s_mov_b32 s42, %d", pt.L_WT)
        a.label("M_w7a")
        pt.wtask(a)
        a("s_add_u32 s44, s44, 224")
        a("s_cmp_lt_u32 s44, 392")
        a("s_cbranch_scc1 M_w7a")
        a("s_branch P_abend")
        a.label("M_w7b")
        if NX and (xt & 2): pt.x_touch(a, NX)
        a("s_cmp_ge_u32 s20, 128")
        a("s_cbranch_scc1 M_w7c")
        pt.emit_ln(a)
        T(2)
        a.label("M_w7c")
        look()
        T(3)
    a("s_mov_b32 s26, 0")
    a.label("M_ab2")
    pt.emit_p(a, T, NX, xd, w7, wr if wm & 2 else 0)
    a("s_cmp_eq_u32 s26, 0")
    a("s_cbranch_scc1 M_ab3")
    a("s_mov_b32 s38, %d", C_P * 4)
    signal(a, 38)
    if prof:
        a("s_waitcnt lgkmcnt(0)")
        a("v_mov_b32 v8, v5")
        for k in range(7): a("v_writelane_b32 v8, s%d, %d", 76 + 2 * k, k)
        for k in range(3): a("v_writelane_b32 v8, s%d, %d", 92 + 2 * k, 7 + k)
        a("s_lshl_b32 s60, s20, 3")
        a("s_add_u32 s60, s60, s14")
        a("s_lshl_b32 s60, s60, 8")
        a("s_add_u32 s60, s60, 0x%x", POIS_END + 0x100000)
        add64(a, 60, 4, off_sgpr=60)
        a("v_lshlrev_b32 v9, 2, v1")
        a("global_store_dword v9, v8, s[60:61]")
    a("s_mov_b32 s39, -1")
    a("s_mov_b64 s[48:49], 0")
    a("s_branch M_u")
    a.label("M_ab3")
    if prof:
        a("s_waitcnt lgkmcnt(0)")
        a("s_mov_b32 s84, s78"); a("s_mov_b32 s86, s80"); a("s_mov_b32 s88, s82")
    a("s_barrier")
    a("s_mov_b32 s39, s20")
    a("s_mov_b64 s[48:49], 0")
    a("v_mov_b32 v6, %d", L_TK + 36)
    a("ds_read_b32 v8, v6")
    a("v_and_b32 v6, 7, v1")
    a("v_lshlrev_b32 v6, 2, v6")
    a("v_add_u32 v6, %d, v6", pt.L_UM)
    a("ds_read_b32 v9, v6")
    a("s_waitcnt lgkmcnt(0)")
    a("v_readfirstlane_b32 s16, v8")
    a("s_and_b32 s21, s16, 0xfe")
    a("s_or_b32 s21, s21, s101")
    a("s_cbranch_scc0 M_uph")
    if NX:
        a("s_waitcnt vmcnt(0)")
        a("s_barrier")
        pt.emit_x(a, NX, xw, xd, "XS")
        pt.x_store(a)
        a("v_mov_b32 v10, s19")
        a("s_waitcnt vmcnt(0)")
        pt.x_flag(a, 10)
    a.label("M_cl")
    a("s_cmp_eq_u32 s101, 0")
    a("s_cbranch_scc1 M_chk")
    a("s_ff1_i32_b32 s21, s101")
    a("s_bitset0_b32 s101, s21")
    a("v_readlane_b32 s20, v0, s21")
    a("s_lshl_b32 s21, s21, 5")
    a("s_add_u32 s20, s20, s21")
    a("s_sub_u32 s20, s20, 32")
    a("s_branch M_ab")
    a.label("M_chain")
    names = chain.emit_chain(a, prof, abort="M_end", **kw)
    a("s_endpgm")
    a.label("M_chk")
    a("s_barrier")
    only(a, 7, "M_n1")
    pt.nonce_ld(a)
    a("s_waitcnt vmcnt(0)")
    pt.nonce_put(a, "M_end")
    a.label("M_n1")
    only(a, 0, "M_c1")
    a("v_lshlrev_b32 v6, 5, v1")
    a("v_mov_b32 v7, 1")
    a("v_mov_b32 v8, 64")
    a("v_lshlrev_b32 v9, 2, v1")
    a("v_add_u32 v9, %d, v9", L_TK)
    a("s_mov_b64 exec, 0xff")
    a("global_load_dword v8, v6, s[10:11] sc1")
    a("s_waitcnt vmcnt(0)")
    a("v_cmp_gt_u32 vcc, 32, v8")
    a("s_and_b32 exec_lo, vcc_lo, 0xfe")
    a("s_cbranch_scc0 M_c1x")
    a("global_atomic_add v8, v6, v7, s[10:11] sc0 sc1")
    a("s_waitcnt vmcnt(0)")
    a.label("M_c1x")
    a("s_mov_b32 exec_lo, 0xff")
    a("ds_write_b32 v9, v8")
    a("s_mov_b64 exec, -1")
    a.label("M_c1")
    a("s_waitcnt lgkmcnt(0)")
    a("s_barrier")
    a("v_and_b32 v6, 7, v1")
    a("v_lshlrev_b32 v6, 2, v6")
    a("v_add_u32 v6, %d, v6", L_TK)
    a("ds_read_b32 v0, v6")
    a("ds_read_b32 v9, v6 offset:%d", pt.L_UM - L_TK)
    pt.nonce_get(a, 8, "M_end")
    a("v_cmp_gt_u32 vcc, 32, v0")
    a("s_mov_b32 s16, vcc_lo")
    a("s_and_b32 s101, vcc_lo, 0xfe")
    a("s_cbranch_scc1 M_cl")
    a.label("M_uph")
    a("v_mov_b32 v0, v9")
    a("s_mov_b32 s17, -1")
    a.label("M_u")
    a("s_cmp_lg_u32 s101, 0")
    a("s_cbranch_scc1 M_u0")
    a("s_add_u32 s17, s17, 1")
    a("s_cmp_eq_u32 s17, 7")
    a("s_cbranch_scc1 M_u1")
    a("v_readlane_b32 s101, v0, s17")
    a("s_branch M_u")
    a.label("M_u0")
    a("s_ff1_i32_b32 s21, s101")
    a("s_bitset0_b32 s101, s21")
    a("s_lshl_b32 s20, s17, 5")
    a("s_add_u32 s20, s20, s21")
    ut.emit_u(a, "M_end", T, (lambda: pt.emit_x(a, NX, xw, xd, 'XU'), lambda: pt.x_store(a), lambda: pt.x_flag(a, 11)) if NX else None)
    a("s_mov_b32 s26, 1")
    a("s_barrier")
    a("s_branch M_ab2")
    a.label("M_u1")
    a("s_mov_b32 s21, 0")
    a("s_mov_b32 s17, 1")
    a("s_bitcmp1_b32 s16, 0")
    a("s_cbranch_scc1 M_tk")
    a.label("M_acq")
    a("s_mov_b32 s25, 0x400000")
    only(a, 0, "M_next")
    a("s_mov_b32 s21, %d", C_P * 4)
    wait_cnt(a, 21, 224, "M_end")
    a("buffer_inv sc1")
    a.label("M_next")
    a("s_barrier")
    only(a, 0, "M_q1")
    a("v_mov_b32 v6, %d", C_Q * 4)
    a("v_mov_b32 v7, 1")
    a("s_mov_b64 exec, 1")
    a("global_atomic_add v8, v6, v7, s[10:11] sc0 sc1")
    a("v_mov_b32 v6, %d", L_TK)
    a("s_waitcnt vmcnt(0)")
    a("ds_write_b32 v6, v8")
    a("s_mov_b64 exec, -1")
    a("s_waitcnt lgkmcnt(0)")
    a.label("M_q1")
    a("s_barrier")
    a("v_mov_b32 v6, %d", L_TK)
    a("ds_read_b32 v8, v6")
    a("s_waitcnt lgkmcnt(0)")
    a("v_readfirstlane_b32 s15, v8")
    a("s_mov_b32 s25, 0x400000")
    a("s_cmp_lt_u32 s15, %d", N_G1)
    a("s_cbranch_scc0 M_d2")
    a("s_mul_i32 s20, s15, 2341")
    a("s_lshr_b32 s20, s20, 16")
    a("s_mul_i32 s21, s20, 28")
    a("s_sub_u32 s21, s15, s21")
    g1.emit_g1(a, first=8)
    a("s_branch M_next")
    a.label("M_d2")
    a("s_sub_u32 s20, s15, %d", N_G1)
    a("s_cmp_lt_u32 s20, %d", N_G2)
    a("s_cbranch_scc0 M_d3")
    only(a, 0, "M_d2w")
    a("s_mul_i32 s21, s20, 2341")
    a("s_lshr_b32 s21, s21, 16")
    g1_cnt(a, 21, 21)
    wait_cnt(a, 21, 28, "M_end")
    a.label("M_d2w")
    a("s_barrier")
    g2.emit_g2(a)
    a("s_branch M_next")
    a.label("M_d3")
    a("s_sub_u32 s20, s20, %d", N_G2)
    a("s_cmp_lt_u32 s20, %d", N_F)
    a("s_cbranch_scc0 M_end")
    for nb in (2, 1):
        X = "M%d" % nb
        def pre():
            if g0:
                only(a, 3, X + "_fg")
                a("s_mul_i32 s50, s21, %d", (57 - g0) * 1024 // 63)
                a("s_lshr_b32 s50, s50, 10")
                a("s_add_u32 s50, s50, %d", g0)
                a("s_lshl_b32 s50, s50, 13")
                a("s_add_u32 s50, s50, 0x%x", MEMX)
                add64(a, 50, 4, off_sgpr=50)
                a("v_mov_b32 v8, 128")
                a.label(X + "_fgl")
                a("global_load_dword v9, v8, s[50:51] sc1")
                a("s_sub_u32 s25, s25, 1")
                a("s_cbranch_scc1 M_end")
                a("s_waitcnt vmcnt(0)")
                a("v_cmp_eq_u32 vcc, -1, v9")
                a("s_cbranch_vccnz %s_fgl", X)
                a("v_mov_b32 v8, %d", C_Q * 4)
                a("global_load_dword v9, v8, s[10:11] sc1")
                a("v_mov_b32 v8, %d", L_TK + 44)
                a("s_waitcnt vmcnt(0)")
                a("ds_write_b32 v8, v9")
                a("s_waitcnt lgkmcnt(0)")
                a.label(X + "_fg")
            a("s_cmp_gt_u32 s14, 2")
            a("s_cbranch_scc1 %s_fw", X)
            a("s_cmp_eq_u32 s14, 2")
            a("s_cbranch_scc1 %s_fw2", X)
            a("s_lshl_b32 s50, s21, 1")
            a("s_add_u32 s50, s50, s14")
            a("s_lshl_b32 s50, s50, 10")
            wait_ufl(a, 50, "M_end", t=16)
            a("s_branch %s_fw", X)
            a.label(X + "_fw2")
            a("s_lshr_b32 s50, s21, 1")
            g2_cnt(a, 50, 50, 51)
            wait_cnt(a, 50, 7, "M_end")
            a.label(X + "_fw")
        if nb == 2:
            a("s_cmp_ge_u32 s20, %d", 4 * FSPLIT)
            a("s_cbranch_scc1 M_d4")
            a("s_lshr_b32 s21, s20, 2")
            a("s_bfe_u32 s22, s20, 0x10001")
            a("s_and_b32 s23, s20, 1")
        else:
            a.label("M_d4")
            a("s_add_u32 s21, s20, %d", 4 * FSPLIT)
            a("s_lshr_b32 s21, s21, 3")
            a("s_bfe_u32 s22, s20, 0x10002")
            a("s_and_b32 s23, s20, 3")
        ft.emit_f(a, "M_end", nb, pre, prof, gate, L_TK + 44, N_G1 + N_G2 + N_F if qend else 0xffffffff, fo if nb == 1 else 0)
        a("s_branch M_next")
    a.label("M_end")
    a("s_endpgm")
    return names
```

```python
from common import *
from k1 import transp_perm, transp_cvt, SCALE
L_WT = 32768 + 7 * 16384
L_TK = L_WT + 14336
MAIN_LDS = L_TK + 128
L_UM = L_TK + 64
L_NON = L_TK + 48
def load_ptrs(a):
    a("s_load_dwordx8 s[64:71], s[0:1], 16")
    a("s_load_dwordx4 s[72:75], s[0:1], 64")
def nonce_ld(a):
    a("v_mov_b32 v101, %d", C_NON * 4)
    a("global_load_dword v100, v101, s[10:11] sc1")
def nonce_put(a, abort):
    l = a.newlabel("NP")
    a("s_mov_b32 s18, 0x100000")
    a("s_branch %sa", l)
    a.label(l)
    nonce_ld(a)
    a("s_sub_u32 s18, s18, 1")
    a("s_cbranch_scc1 %s", abort)
    a("s_waitcnt vmcnt(0)")
    a.label(l + "a")
    a("v_readfirstlane_b32 s19, v100")
    a("s_cmp_eq_u32 s19, 0")
    a("s_cbranch_scc1 %s", l)
    a("v_mov_b32 v101, %d", L_NON)
    a("ds_write_b32 v101, v100")
def nonce_get(a, v, abort):
    l = a.newlabel("NG")
    a("s_mov_b32 s18, 0x1000000")
    a.label(l)
    a("v_mov_b32 v%d, %d", v, L_NON)
    a("ds_read_b32 v%d, v%d", v, v)
    a("s_sub_u32 s18, s18, 1")
    a("s_cbranch_scc1 %s", abort)
    a("s_waitcnt lgkmcnt(0)")
    a("v_readfirstlane_b32 s19, v%d", v)
    a("s_cmp_eq_u32 s19, 0")
    a("s_cbranch_scc1 %s", l)
def lanes(a):
    a("v_and_b32 v12, 3, v1")
    a("v_xor_b32 v12, v12, v3")
    a("v_lshlrev_b32 v12, 4, v12")
    a("v_lshrrev_b32 v14, 2, v4")
    a("v_xor_b32 v14, v14, v3")
    a("v_lshlrev_b32 v14, 4, v14")
    a("v_lshl_add_u32 v14, v4, 6, v14")

def wtask(a):
    a("s_cmp_ge_u32 s44, 196")
    a("s_cselect_b32 s45, 196, 0")
    a("s_cselect_b32 s46, 1, 0")
    a("s_sub_u32 s45, s44, s45")
    a("s_mul_i32 s47, s45, 147")
    a("s_lshr_b32 s47, s47, 10")
    a("s_mul_i32 s48, s47, 7")
    a("s_sub_u32 s48, s45, s48")
    a("s_cmp_eq_u32 s46, 0")
    a("s_cselect_b32 s49, s48, s47")
    a("s_cselect_b32 s50, s47, s48")
    a("s_movk_i32 s51, 896")
    a("s_cselect_b32 s51, 3584, s51")
    a("s_cselect_b32 s52, s72, s74")
    a("s_cselect_b32 s53, s73, s75")
    a("s_cselect_b32 s54, 14, 56")
    a("s_mov_b32 s55, 0x%x", W2F)
    a("s_cselect_b32 s55, 0x%x, s55", W1F)
    a("s_mul_i32 s56, s49, s51")
    a("s_lshl_b32 s56, s56, 6")
    a("s_lshl_b32 s57, s50, 7")
    a("s_add_u32 s56, s56, s57")
    add64(a, 52, 52, off_sgpr=56)
    a("v_mul_lo_u32 v9, v3, s51")
    a("v_lshlrev_b32 v9, 3, v9")
    a("v_lshl_add_u32 v9, v4, 3, v9")
    for e in range(16):
        if e == 8:
            a("s_mul_i32 s56, s51, 24")
            add64(a, 52, 52, off_sgpr=56)
        a("global_load_dwordx2 %s, v9, s[52:53]" + nt(128), vr(16 + 2 * e, 2))
        add64(a, 52, 52, off_sgpr=51)
    a("v_lshrrev_b32 v8, 3, v4")
    a("v_lshlrev_b32 v8, 1, v8")
    a("v_and_b32 v11, 1, v4")
    a("v_add_u32 v8, v8, v11")
    a("v_lshlrev_b32 v8, 10, v8")
    a("v_bfe_u32 v11, v4, 1, 2")
    a("v_lshl_add_u32 v8, v11, 6, v8")
    a("v_lshl_add_u32 v8, v3, 8, v8")
    a("v_add_u32 v8, s42, v8")
    a("v_add_u32 v13, s42, v2")
    a("s_mul_i32 s56, s50, s54")
    a("s_lshl_b32 s56, s56, 2")
    a("s_lshl_b32 s57, s49, 1")
    a("s_add_u32 s56, s56, s57")
    a("s_lshl_b32 s56, s56, 10")
    a("s_add_u32 s56, s56, s55")
    add64(a, 58, 4, off_sgpr=56)
    a("s_lshl_b32 s54, s54, 10")
    a("v_add_u32 v9, s54, v2")
    a("v_add_u32 v10, s54, v9")
    a("v_add_u32 v11, s54, v10")
    for hlf in range(2):
        a("s_waitcnt vmcnt(%d)", 8 if hlf == 0 else 0)
        transp_cvt(a, 48 + 16 * hlf, 16 + 16 * hlf, 80)
        for r in range(4):
            a("ds_write_b128 v8, %s offset:%d", vr(48 + 16 * hlf + 4 * r, 4), hlf * 4096 + 16 * r)
    a("s_waitcnt lgkmcnt(0)")
    for f in range(8): a("ds_read_b128 %s, v13 offset:%d", vr(16 + 4 * f, 4), f * 1024)
    for f in range(8):
        a("s_waitcnt lgkmcnt(%d)", 7 - f)
        a("global_store_dwordx4 v%d, %s, s[58:59] offset:%d sc1", [2, 9, 10, 11][f & 3], vr(16 + 4 * f, 4), (f >> 2) * 1024)

def emit_p(a, T, NX, d0, w7, wr=0):
    a.c("---- product task")
    lanes(a)
    a("s_mov_b32 s40, 0x05040100")
    a("s_mov_b32 s41, 0x07060302")
    a("s_lshr_b32 s25, s20, 1")
    a("s_mul_i32 s27, s25, 147")
    a("s_lshr_b32 s27, s27, 10")
    a("s_mul_i32 s24, s27, 7")
    a("s_sub_u32 s24, s25, s24")
    a("s_and_b32 s25, s20, 1")
    a("s_mul_i32 s25, s25, 7")
    a("s_add_u32 s25, s25, s14")
    a("v_bfe_u32 v7, v1, 2, 2")
    a("v_lshlrev_b32 v13, 16, v3")
    a("v_add_u32 v13, v13, v12")
    a("v_lshl_add_u32 v6, v7, 13, v13")
    a("v_lshl_add_u32 v7, v7, 14, v13")
    a("s_lshl_b32 s30, s27, 9")
    a("s_cmp_eq_u32 s26, 0")
    a("s_cselect_b32 s28, s68, s64")
    a("s_cselect_b32 s29, s69, s65")
    a("s_cselect_b64 vcc, -1, 0")
    a("v_cndmask_b32 v15, v14, v2")
    a("s_cbranch_scc1 P_stB")
    a("s_lshr_b32 s31, s14, 1")
    a("s_lshr_b32 s32, s31, 1")
    a("s_lshl_b32 s32, s32, 5")
    a("s_and_b32 s33, s31, 1")
    a("s_add_u32 s32, s32, s33")
    a("s_lshl_b32 s33, s24, 6")
    a("s_add_u32 s32, s32, s33")
    a("s_lshl_b32 s32, s32, 13")
    a("s_add_u32 s32, s32, s30")
    a("s_and_b32 s33, s14, 1")
    a("s_lshl_b32 s34, s33, 8")
    a("s_add_u32 s32, s32, s34")
    add64(a, 34, 66, off_sgpr=32)
    a("s_lshl_b32 s36, s14, 12")
    for k in range(4):
        a("s_add_u32 m0, s36, %d", 960 * k)
        a("global_load_lds_dwordx4 v7, s[34:35] offset:%d", 64 * k)
    a("v_mov_b32 v8, 0")
    a("s_branch P_rows")
    a.label("P_stB")
    a("s_mul_i32 s32, s27, 229376")
    a("s_mul_i32 s33, s14, %d", 32 * 896)
    a("s_add_u32 s32, s32, s33")
    a("s_lshl_b32 s33, s24, 7")
    a("s_add_u32 s32, s32, s33")
    add64(a, 34, 70, off_sgpr=32)
    a("v_mul_u32_u24 v9, %d, v3", 8 * 896)
    a("v_lshl_add_u32 v9, v4, 3, v9")
    a("v_add_u32 v10, %d, v9", 4 * 896)
    for e in range(8):
        a("global_load_dwordx2 %s, v%d, s[34:35] offset:%d" + nt(8), vr(216 + 2 * e, 2), 9 if e < 4 else 10, (e & 3) * 896)
    a("v_lshrrev_b32 v8, 3, v4")
    a("v_lshlrev_b32 v8, 1, v8")
    a("v_and_b32 v11, 1, v4")
    a("v_add_u32 v8, v8, v11")
    a("v_lshlrev_b32 v8, 13, v8")
    a("v_bfe_u32 v11, v4, 1, 2")
    a("v_lshl_add_u32 v8, v11, 6, v8")
    a("v_lshl_add_u32 v8, v3, 8, v8")
    a("s_lshl_b32 s36, s14, 10")
    a("v_add_u32 v8, s36, v8")
    a.label("P_rows")
    T(23)
    a("s_barrier")
    a("s_lshl_b32 s32, s25, 18")
    a("s_add_u32 s32, s32, s30")
    add64(a, 36, 28, off_sgpr=32)
    a("s_lshl_b32 s42, s14, 14")
    a("s_add_u32 s42, s42, 32768")
    a("s_cmp_eq_u32 s14, 7")
    a("s_cbranch_scc1 P_norows")
    def rows(t):
        for kd_ in range(8):
            a("s_add_u32 m0, s42, %d", t * 8192 + 960 * kd_)
            a("global_load_lds_dwordx4 v6, s[36:37] offset:%d" + nt(4), 64 * kd_)
    rows(0)
    a("s_add_u32 s36, s36, 0x%x", 4 * 8192)
    a("s_addc_u32 s37, s37, 0")
    T(24)
    a("s_waitcnt vmcnt(8)")
    T(25)
    a("s_branch P_stage")
    a.label("P_norows")
    a("s_setprio 3")
    a("s_lshl_b32 s43, s26, 8")
    a("s_add_u32 s43, s43, s20")
    a("s_cmp_lt_u32 s43, 128")
    a("s_cbranch_scc0 P_nl")
    a("s_mul_i32 s36, s20, %d", 16 * 896)
    add64(a, 36, 6, off_sgpr=36)
    a("v_lshrrev_b32 v6, 2, v1")
    a("v_mul_u32_u24 v6, 896, v6")
    a("v_add_u32 v6, v6, v12")
    for ks in range(14):
        a("s_mov_b32 m0, %d", L_WT + 960 * ks)
        a("global_load_lds_dwordx4 v6, s[36:37] offset:%d" + nt(8), ks * 64)
    nonce_ld(a)
    a("s_waitcnt vmcnt(15)")
    a("s_branch P_stage")
    a.label("P_nl")
    nonce_ld(a)
    if wr:
        n = (448 - wr + 95) // 96
        a("s_cmp_lg_u32 s26, 0")
        a("s_cbranch_scc1 P_nw")
        a("v_lshlrev_b32 v6, 7, v1")
        for i in range(n):
            a("s_add_u32 s36, s20, %d", wr + 96 * i - 128)
            a("s_min_u32 s36, s36, 447")
            a("s_lshl_b32 s36, s36, 13")
            add64(a, 36, 64, off_sgpr=36)
            a("global_load_dword v250, v6, s[36:37]")
        a("s_waitcnt vmcnt(%d)", n + 1)
        a("s_branch P_stage")
        a.label("P_nw")
    a("s_waitcnt vmcnt(1)")
    a.label("P_stage")
    a("s_cmp_lg_u32 s26, 0")
    a("s_cbranch_scc1 P_staged")
    transp_perm(a, 200, 216, 40, 41)
    for r in range(4):
        a("ds_write_b128 v8, %s offset:%d", vr(200 + 4 * r, 4), 16 * r)
    a.label("P_staged")
    a("s_waitcnt lgkmcnt(0)")
    a("s_barrier")
    T(1)
    a("s_cmp_eq_u32 s14, 7")
    a("s_cbranch_scc1 P_w7")
    OUT = 16; ACC = 32; RR = 64; CR = 128
    for f in range(32): a("ds_read_b128 %s, v15 offset:%d", vr(CR + 4 * f, 4), f * 1024)
    rows(1)
    a("v_add_u32 v14, s42, v14")
    a("s_cmp_eq_u32 s26, 0")
    a("s_cselect_b32 s38, 1.0, %s", f32(SCALE))
    a("s_lshl_b32 s33, s24, 2")
    a("s_mul_i32 s32, s27, 28")
    a("s_add_u32 s32, s32, s33")
    a("s_add_u32 s32, s32, 448")
    a("s_lshr_b32 s34, s27, 1")
    a("s_mul_i32 s34, s34, 28")
    a("s_add_u32 s34, s34, s33")
    a("s_lshl_b32 s34, s34, 1")
    a("s_and_b32 s33, s27, 1")
    a("s_add_u32 s34, s34, s33")
    a("s_movk_i32 s39, %d", 14 * 1024)
    a("s_cmp_eq_u32 s26, 0")
    a("s_cselect_b32 s32, s34, s32")
    a("s_cselect_b32 s39, %d, s39", 28 * 1024)
    a("s_mul_i32 s32, s32, 14")
    a("s_add_u32 s32, s32, s25")
    a("s_lshl_b32 s32, s32, 10")
    a("s_add_u32 s32, s32, 0x%x", WALL)
    add64(a, 44, 4, off_sgpr=32)
    a("v_add_u32 v9, s39, v2")
    a("v_add_u32 v10, s39, v9")
    a("v_add_u32 v11, s39, v10")
    a("s_mul_i32 s32, s26, 224")
    a("s_add_u32 s32, s32, s20")
    a("s_lshl_b32 s32, s32, 5")
    a("s_lshl_b32 s33, s14, 2")
    a("s_add_u32 s32, s32, s33")
    a("s_add_u32 s32, s32, 0x%x", ABF)
    add64(a, 46, 4, off_sgpr=32)
    a("v_mov_b32 v13, 0")
    for b in range(2):
        a("s_waitcnt vmcnt(%d)", 0 if b else 8)
        for f in range(8 * b, 8 * b + 8): a("ds_read_b128 %s, v14 offset:%d", vr(RR + 4 * f, 4), f * 1024)
        for kd_ in range(8):
            a("s_waitcnt lgkmcnt(%d)", 7 - kd_)
            for ct in range(4):
                d = vr(ACC + (b * 4 + ct) * 4, 4)
                a("v_mfma_f32_16x16x32_bf16 %s, %s, %s, %s", d, vr(RR + (b * 8 + kd_) * 4, 4), vr(CR + (ct * 8 + kd_) * 4, 4), d if kd_ else "0")
    T(2)
    for ct in range(4):
        o = OUT + ct * 4
        for b in range(2):
            d = ACC + (b * 4 + ct) * 4
            for r in range(4): a("v_mul_f32 v%d, s38, v%d", d + r, d + r)
            a("v_cvt_pk_f16_f32 v%d, v%d, v%d", o + 2 * b, d, d + 1)
            a("v_cvt_pk_f16_f32 v%d, v%d, v%d", o + 2 * b + 1, d + 2, d + 3)
        a("global_store_dwordx4 v%d, %s, s[44:45] sc1", [2, 9, 10, 11][ct], vr(o, 4))
    nonce_get(a, 8, "M_end")
    if NX:
        a("s_lshl_b32 s32, s26, 3")
        a("s_add_u32 s32, s32, s14")
        a("s_sub_u32 s32, s32, %d", d0)
        a("s_cmp_gt_u32 s32, %d", NX)
        a("s_cbranch_scc1 P_nx")
        a("s_mul_i32 s32, s20, 4682")
        a("s_lshr_b32 s32, s32, 16")
        a("s_mul_i32 s33, s32, 14")
        a("s_sub_u32 s33, s20, s33")
        a("s_add_u32 s34, s14, %d", 13 - NX - d0)
        a("s_movk_i32 s35, 8192")
        a("s_cmp_eq_u32 s14, %d", d0)
        a("s_cselect_b32 s33, s33, s34")
        a("s_cselect_b32 s36, s66, s64")
        a("s_cselect_b32 s37, s67, s65")
        a("s_cselect_b32 s35, s35, 32768")
        a("s_cselect_b64 vcc, -1, 0")
        a("v_cndmask_b32 v6, v6, v7")
        a("s_lshl_b32 s33, s33, 18")
        a("s_lshl_b32 s32, s32, 9")
        a("s_add_u32 s32, s32, s33")
        add64(a, 36, 36, off_sgpr=32)
        rows(0)
        add64(a, 36, 36, off_sgpr=35)
        rows(1)
        a("s_waitcnt vmcnt(16)")
        a("s_branch P_fl")
        a.label("P_nx")
    a("s_waitcnt vmcnt(0)")
    a.label("P_fl")
    a("s_mov_b64 exec, 1")
    a("global_store_dword v13, v8, s[46:47] sc1")
    a("s_mov_b64 exec, -1")
    T(3)
    a("s_branch P_abend")
    a.label("P_w7")
    a("s_waitcnt vmcnt(0)")
    nonce_put(a, "M_end")
    if w7: w7()
    a.label("P_abend")
    a("s_setprio 0")

def emit_ln(a):
    a("v_add_u32 v14, %d, v14", L_WT)
    X = 16
    for ks in range(14): a("ds_read_b128 %s, v14 offset:%d", vr(X + 4 * ks, 4), ks * 1024)
    F = 80
    for d in range(56):
        if d % 4 == 0: a("s_waitcnt lgkmcnt(%d)", 13 - d // 4)
        a("v_lshlrev_b32 v%d, 16, v%d", F + 2 * d, X + d)
        a("v_and_b32 v%d, 0xffff0000, v%d", F + 2 * d + 1, X + d)
    def allred(acc, tmp):
        a("v_pk_add_f32 v[8:9], v[8:9], v[10:11]")
        a("v_add_f32 v8, v8, v9")
        a("v_mov_b32 v%d, v%d", tmp, acc)
        a("v_permlane32_swap_b32 v%d, v%d", acc, tmp)
        a("v_add_f32 v%d, v%d, v%d", acc, acc, tmp)
        a("v_mov_b32 v%d, v%d", tmp, acc)
        a("v_permlane16_swap_b32 v%d, v%d", acc, tmp)
        a("v_add_f32 v%d, v%d, v%d", acc, acc, tmp)
    P = lambda d: vr(F + 2 * d, 2)
    A = lambda d: vr(8 + 2 * (d & 1), 2)
    for d in range(2): a("v_pk_add_f32 %s, %s, %s", A(d), P(d), P(d + 2))
    for d in range(4, 56): a("v_pk_add_f32 %s, %s, %s", A(d), A(d), P(d))
    allred(8, 9)
    a("v_mul_f32 v12, %s, v8", f32(-1.0 / 448))
    a("v_mov_b32 v13, v12")
    for d in range(56): a("v_pk_add_f32 %s, %s, v[12:13]", P(d), P(d))
    for d in range(2): a("v_pk_mul_f32 %s, %s, %s", A(d), P(d), P(d))
    for d in range(2, 56): a("v_pk_fma_f32 %s, %s, %s, %s", A(d), P(d), P(d), A(d))
    allred(8, 9)
    a("v_mov_b32 v12, %s", f32(1e-5))
    a("v_fmac_f32 v12, %s, v8", f32(1.0 / 448))
    a("v_sqrt_f32 v12, v12")
    a("v_rcp_f32 v12, v12")
    a("s_mul_i32 s36, s20, %d", 14 * 1024)
    a("s_add_u32 s36, s36, 0x%x", XF + 4096)
    add64(a, 36, 4, off_sgpr=36)
    a("v_mov_b32 v13, v12")
    for ks in range(14):
        if ks == 8:
            a("s_add_u32 s36, s36, 8192"); a("s_addc_u32 s37, s37, 0")
        for d in range(4 * ks, 4 * ks + 4): a("v_pk_mul_f32 %s, %s, v[12:13]", P(d), P(d))
        for d in range(4 * ks, 4 * ks + 4): a("v_cvt_pk_f16_f32 v%d, v%d, v%d", X + d, F + 2 * d, F + 2 * d + 1)
        a("global_store_dwordx4 v2, %s, s[36:37] offset:%d sc1", vr(X + 4 * ks, 4), (ks & 7) * 1024 - 4096)
    a("s_lshl_b32 s36, s20, 2")
    a("s_add_u32 s36, s36, 0x%x", LNF)
    a("v_lshlrev_b32 v8, 9, v1")
    a("v_add_u32 v8, s36, v8")
    a("v_mov_b32 v9, s19")
    a("s_waitcnt vmcnt(0)")
    a("s_mov_b32 exec_hi, 0")
    a("global_store_dword v8, v9, s[4:5] sc1")
    a("s_mov_b64 exec, -1")


def emit_x(a, NX, w0, d0, px):
    a("s_sub_u32 s40, s14, %d", w0)
    a("s_cmp_ge_u32 s40, %d", NX)
    a("s_cbranch_scc1 %s_end", px)
    a("s_cmp_lt_i32 s39, 0")
    a("s_cbranch_scc1 %s_end", px)
    ACC = 240; CR = 16; RR = lambda f: 80 + 4 * f if f < 12 else 200 + 4 * (f - 12)
    a("v_lshrrev_b32 v6, 2, v4")
    a("v_xor_b32 v6, v6, v3")
    a("v_lshlrev_b32 v6, 4, v6")
    a("v_lshl_add_u32 v6, v4, 6, v6")
    a("v_add_u32 v6, %d, v6", 32768 + 16384 * d0)
    a("s_lshl_b32 s41, s40, 14")
    a("v_add_u32 v7, s41, v6")
    for kd in range(8):
        for t in range(2):
            a("ds_read_b128 %s, v6 offset:%d", vr(CR + (2 * kd + t) * 4, 4), t * 8192 + kd * 1024)
            a("ds_read_b128 %s, v7 offset:%d", vr(RR(2 * kd + t), 4), 16384 + t * 8192 + kd * 1024)
    a("s_lshl_b32 s42, s39, 2")
    a("s_add_u32 s42, s42, s40")
    a("s_lshl_b32 s42, s42, 11")
    a("s_add_u32 s42, s42, 0x%x", AX)
    a("s_mul_i32 s44, s39, 9363")
    a("s_lshr_b32 s44, s44, 16")
    a("s_mul_i32 s45, s44, 7")
    a("s_sub_u32 s45, s39, s45")
    a("s_mul_i32 s45, s45, %d", NX)
    a("s_add_u32 s45, s45, s40")
    a("s_lshl_b32 s44, s44, 5")
    a("s_add_u32 s44, s44, s45")
    a("s_lshl_b32 s44, s44, 2")
    a("s_add_u32 s44, s44, 0x%x", AFL)
    a("s_mov_b64 s[48:49], 1")
    a("s_mov_b32 s46, %s", f32(SCALE))
    for kd in range(8):
        a("s_waitcnt lgkmcnt(%d)", min(15, 28 - 4 * kd))
        for b in range(2):
            for c in range(2):
                d = vr(ACC + 8 * c + 4 * b, 4)
                a("v_mfma_f32_16x16x32_bf16 %s, %s, %s, %s", d, vr(RR(2 * kd + b), 4), vr(CR + (2 * kd + c) * 4, 4), d if kd else "0")
    a("v_mov_b32 v7, s44")
    a("v_add_u32 v6, s42, v2")
    for r in range(16): a("v_mul_f32 v%d, s46, v%d", ACC + r, ACC + r)
    for d in range(4):
        for e in range(2): a("v_cvt_pk_f16_f32 v%d, v%d, v%d", ACC + 2 * d + e, ACC + 8 * e + 2 * d, ACC + 8 * e + 2 * d + 1)
    a.label(px + "_end")
    a("s_mov_b32 s39, -1")
def x_store(a):
    l = a.newlabel("XS")
    a("s_cmp_eq_u32 s48, 0")
    a("s_cbranch_scc1 %s", l)
    for k in range(2): a("global_store_dwordx4 v6, %s, s[4:5] offset:%d sc1", vr(240 + 4 * k, 4), 1024 * k)
    a.label(l)
def x_flag(a, v):
    l = a.newlabel("XF")
    a("s_cmp_eq_u32 s48, 0")
    a("s_cbranch_scc1 %s", l)
    a("s_waitcnt vmcnt(0)")
    a("s_mov_b64 exec, 1")
    a("global_store_dword v7, v%d, s[4:5] sc1", v)
    a("s_mov_b64 exec, -1")
    a("s_mov_b32 s48, 0")
    a.label(l)
def x_touch(a, NX):
    a("s_mul_i32 s32, s20, 4682")
    a("s_lshr_b32 s32, s32, 16")
    a("s_mul_i32 s33, s32, 14")
    a("s_sub_u32 s33, s20, s33")
    a("s_lshl_b32 s33, s33, 18")
    a("s_lshl_b32 s32, s32, 9")
    a("s_add_u32 s33, s33, s32")
    add64(a, 34, 66, off_sgpr=33)
    a("v_lshrrev_b32 v6, 2, v1")
    a("v_lshlrev_b32 v6, 13, v6")
    a("v_and_b32 v7, 3, v1")
    a("v_lshl_add_u32 v6, v7, 7, v6")
    a("v_add_u32 v7, 0x20000, v6")
    a("global_load_dword v250, v6, s[34:35]")
    a("global_load_dword v250, v7, s[34:35]")
```

```python
from common import *
MF = "v_mfma_f32_16x16x32_f16 %s, %s, %s, %s"
def ln_wait(a, abort, r=9):
    a("s_and_b32 s22, s20, 31")
    a("s_lshl_b32 s22, s22, 9")
    a("s_add_u32 s22, s22, 0x%x", LNF)
    a("v_lshlrev_b32 v%d, 3, v1", r)
    a("v_add_u32 v%d, s22, v%d", r, r)
    a("s_mov_b32 s25, 0x400000")
    lw = a.newlabel("UW")
    a.label(lw)
    a("global_load_dwordx2 %s, v%d, s[4:5] sc1", vr(r + 1, 2), r)
    a("s_sub_u32 s25, s25, 1")
    a("s_cbranch_scc1 %s", abort)
    a("s_waitcnt vmcnt(0)")
    allnon(a, [r + 1, r + 2])
    a("v_cmp_ne_u32 vcc, 0, v%d", r + 1)
    a("s_cbranch_vccnz %s", lw)
def emit_u(a, abort, T=lambda k: None, xf=None):
    WR = 16; XR = (128, 184); ACC = 240; OUT = 248
    a.c("---- U task")
    a("s_mul_i32 s33, s20, 2341")
    a("s_lshr_b32 s33, s33, 16")
    a("s_mul_i32 s34, s33, 28")
    a("s_sub_u32 s34, s20, s34")
    a("s_mul_i32 s28, s14, %d", 14 * 1024)
    a("s_add_u32 s28, s28, 0x%x", XF + 4096)
    add64(a, 28, 4, off_sgpr=28)
    def xld(b):
        for ks in range(14):
            a("global_load_dwordx4 %s, v%d, s[28:29] offset:%d sc1", vr(XR[b] + 4 * ks, 4), 2 if ks < 8 else 13, (ks & 7) * 1024 - 4096)
        a("s_add_u32 s28, s28, %d", 8 * 14 * 1024); a("s_addc_u32 s29, s29, 0")
    a("v_add_u32 v13, 8192, v2")
    a("s_mov_b32 s25, 0x400000")
    a("s_and_b32 s22, s20, 31")
    a("s_lshl_b32 s22, s22, 7")
    a("s_add_u32 s22, s22, s14")
    a("s_lshl_b32 s22, s22, 2")
    a("s_add_u32 s22, s22, 0x%x", LNF)
    a("v_mov_b32 v9, s22")
    a("s_cmp_eq_u32 s14, 7")
    a("s_cbranch_scc1 U_a")
    a.label("U_x")
    a("global_load_dword v10, v9, s[4:5] sc1")
    a("s_sub_u32 s25, s25, 1")
    a("s_cbranch_scc1 %s", abort)
    a("s_waitcnt vmcnt(0)")
    a("v_cmp_ne_u32 vcc, s19, v10")
    a("s_cbranch_vccnz U_x")
    xld(0)
    a("s_cmp_lg_u32 s14, 7")
    a("s_cbranch_scc1 U_b")
    a("v_mov_b32 v8, 0")
    a("s_branch U_c")
    a.label("U_a")
    a("s_mul_i32 s23, s33, 14")
    a("s_lshr_b32 s22, s34, 2")
    a("s_add_u32 s23, s23, s22")
    a("s_lshl_b32 s23, s23, 6")
    a("s_add_u32 s23, s23, 0x%x", ABF)
    a("v_and_b32 v8, 1, v3")
    a("v_mul_u32_u24 v8, %d, v8", 7 * 64)
    a("v_lshl_add_u32 v8, v4, 2, v8")
    a("v_add_u32 v8, s23, v8")
    a.label("U_w")
    a("global_load_dword v12, v8, s[4:5] sc1")
    a("s_sub_u32 s25, s25, 1")
    a("s_cbranch_scc1 %s", abort)
    a("s_waitcnt vmcnt(0)")
    a("v_cmp_eq_u32 vcc, s19, v12")
    a("s_or_b32 vcc_lo, vcc_lo, 0x80808080")
    a("s_cmp_eq_u32 vcc_lo, -1")
    a("s_cbranch_scc0 U_w")
    a("s_barrier")
    T(8)
    a("s_branch U_x")
    a.label("U_b")
    a("s_barrier")
    T(8)
    a("s_lshl_b32 s21, s14, 12")
    a("v_add_u32 v8, s21, v2")
    a("s_mul_i32 s26, s20, %d", 28 * 1024)
    a("s_add_u32 s26, s26, 0x%x", BF)
    add64(a, 26, 4, off_sgpr=26)
    for k in range(4): a("global_load_dwordx4 %s, v8, s[26:27] offset:%d sc1", vr(XR[1] + 4 * k, 4), 1024 * k)
    if xf: xf[0]()
    a.label("U_c")
    a("v_mov_b32 v9, v13")
    def xld(b):
        for ks in range(14):
            a("global_load_dwordx4 %s, v%d, s[28:29] offset:%d sc1", vr(XR[b] + 4 * ks, 4), 2 if ks < 8 else 9, (ks & 7) * 1024 - 4096)
        a("s_add_u32 s28, s28, %d", 8 * 14 * 1024); a("s_addc_u32 s29, s29, 0")
    a("s_lshr_b32 s22, s14, 1")
    a("s_and_b32 s23, s14, 1")
    a("s_mul_i32 s35, s22, 14")
    a("s_lshr_b32 s32, s34, 1")
    a("s_add_u32 s35, s35, s32")
    a("s_lshl_b32 s35, s35, 3")
    a("s_add_u32 s35, s35, s33")
    a("s_lshl_b32 s35, s35, 1")
    a("s_and_b32 s34, s34, 1")
    a("s_add_u32 s35, s35, s34")
    a("s_lshl_b32 s35, s35, 1")
    a("s_add_u32 s35, s35, s23")
    a("s_lshl_b32 s35, s35, 10")
    a("s_add_u32 s35, s35, 0x%x", UF)
    add64(a, 30, 4, off_sgpr=35)
    a("s_lshl_b32 s36, s20, 1")
    a("s_add_u32 s36, s36, s23")
    a("s_lshl_b32 s36, s36, 8")
    a("s_mul_i32 s32, s22, %d", 112 * 1024)
    a("s_add_u32 s32, s32, s36")
    a("s_add_u32 s32, s32, 0x%x", TBX)
    add64(a, 32, 4, off_sgpr=32)
    a("s_min_u32 s36, s36, %d", 31 * 256)
    a("s_lshl_b32 s34, s22, 13")
    a("s_add_u32 s34, s34, s36")
    a("s_add_u32 s34, s34, 0x%x", MEMX)
    add64(a, 34, 4, off_sgpr=34)
    a("s_lshl_b32 s36, s14, 10")
    a("s_lshl_b32 s37, s20, 2")
    a("s_add_u32 s36, s36, s37")
    a("s_add_u32 s36, s36, 0x%x", UFL)
    add64(a, 36, 4, off_sgpr=36)
    for r in range(4): a("v_mov_b32 v%d, -1", 12 + r)
    a("v_mov_b32 v10, 0")
    a("s_mov_b32 s24, 0")
    a("v_mov_b32 v11, s19")
    a("s_cmp_eq_u32 s14, 7")
    a("s_cbranch_scc1 U_d")
    for k in range(4):
        a("s_waitcnt vmcnt(%d)", 3 - k)
        a("ds_write_b128 v8, %s offset:%d", vr(XR[1] + 4 * k, 4), 1024 * k)
    if xf: xf[1]()
    a("s_waitcnt lgkmcnt(0)")
    a.label("U_d")
    a("s_barrier")
    for f in range(28): a("ds_read_b128 %s, v2 offset:%d", vr(WR + 4 * f, 4), f * 1024)
    a("s_cmp_lg_u32 s14, 7")
    a("s_cbranch_scc1 U_e")
    a("s_waitcnt vmcnt(0)")
    a.label("U_e")
    a("s_waitcnt lgkmcnt(0)")
    T(9)
    L = a.newlabel("UT")
    a.label(L)
    for b in range(2):
        sk = a.newlabel("UTs")
        a("s_cmp_eq_u32 s24, %d", 7 if b else 0)
        a("s_cbranch_scc1 %s", sk)
        xld(1 - b)
        a.label(sk)
        for ks in range(14):
            for w in range(2):
                d = vr(ACC + 4 * w, 4)
                a(MF, d, vr(XR[b] + 4 * ks, 4), vr(WR + (w * 14 + ks) * 4, 4), d if ks else "0")
        if xf and b == 0: xf[2]()
        a("s_mov_b64 exec, 0xffff")
        a("global_store_dwordx4 v2, v[12:15], s[32:33] sc1")
        l = a.newlabel("UTm")
        a("s_cmp_ge_u32 s20, 14")
        a("s_cbranch_scc1 %s", l)
        a("global_store_dwordx4 v2, v[12:15], s[34:35] sc1")
        a.label(l)
        a("s_mov_b64 exec, -1")
        for w in range(2):
            a("v_cvt_pk_f16_f32 v%d, v%d, v%d", OUT + w, ACC + 4 * w, ACC + 4 * w + 1)
            a("v_cvt_pk_f16_f32 v%d, v%d, v%d", OUT + 2 + w, ACC + 4 * w + 2, ACC + 4 * w + 3)
        a("global_store_dwordx4 v2, %s, s[30:31] sc1", vr(OUT, 4))
        for r, n in ((30, 4 * 14 * 32768), (32, 4 * 112 * 1024), (34, 4 * 8192)):
            a("s_add_u32 s%d, s%d, %d", r, r, n); a("s_addc_u32 s%d, s%d, 0", r + 1, r + 1)
        a("s_waitcnt vmcnt(0)")
        a("s_mov_b64 exec, 1")
        a("global_store_dword v10, v11, s[36:37] sc1")
        a("s_mov_b64 exec, -1")
        a("s_add_u32 s36, s36, 8192"); a("s_addc_u32 s37, s37, 0")
        if b == 0:
            sk = a.newlabel("UTs")
            a("s_cmp_lg_u32 s24, 0")
            a("s_cbranch_scc1 %s", sk)
            T(10)
            ln_wait(a, abort, XR[1] + 1)
            xld(1)
            a("s_waitcnt vmcnt(0)")
            a.label(sk)
    a("s_add_u32 s24, s24, 1")
    a("s_cmp_lt_u32 s24, 8")
    a("s_cbranch_scc1 %s", L)
```

```python
from common import *
L_MEMI = 0; L_TAI = 7168; L_RED = 11264; L_TB1 = 15360; L_TB2 = 19456; L_BW = 23552; BWSZ = 16384
CHAIN_LDS = L_BW + 7 * BWSZ
MFR = 16; ACC0 = 44; ACC1 = 48; STG = 52; EX = 68; BW = 96; AW = 144
VP = 0

class Prof:
    def __init__(self, a, on, step=40): self.a = a; self.on = on; self.step = step; self.names = ["top"] if on else []
    def __call__(self, name):
        if not self.on or (self.on in (1, 4) and name != "top"): return
        if self.on == 4:
            self.a("s_memtime s[64:65]"); self.a("s_memrealtime s[66:67]"); return
        if (self.on == 3) != name.startswith("a") and name not in ("top", "TA done", "bar2"): return
        if name not in self.names: self.names.append(name)
        k = self.names.index(name)
        assert k < 16
        self.a("s_memtime s[%d:%d]", 64 + 2 * k, 65 + 2 * k)
    def flush(self, n=16):
        if not self.on: return
        a = self.a
        if self.on == 4:
            a("s_bitcmp1_b32 s14, 0")
            a("s_cselect_b32 s64, s66, s64")
            a("s_mov_b32 m0, s24")
            a("v_writelane_b32 v%d, s64, m0", VP)
            return
        l = a.newlabel("PF")
        a("s_cmp_lg_u32 s24, %d", self.step + 1)
        a("s_cbranch_scc1 %s", l)
        for k in range(n): a("v_writelane_b32 v%d, s%d, %d", VP, 64 + 2 * k, k)
        a.label(l)
        for st, ln in ((10, 20), (60, 21)):
            l = a.newlabel("PF")
            a("s_cmp_lg_u32 s24, %d", st)
            a("s_cbranch_scc1 %s", l)
            a("v_writelane_b32 v%d, s64, %d", VP, ln)
            a.label(l)

class LQ:
    def __init__(self, a): self.a = a; self.q = []
    def issue(self, tag, txt, *args): self.a(txt, *args); self.q.append(tag)
    def wait(self, tag):
        if tag not in self.q: return
        last = max(k for k, t in enumerate(self.q) if t == tag)
        self.a("s_waitcnt lgkmcnt(%d)", len(self.q) - 1 - last)
        self.q = self.q[last + 1:]
    def all(self): self.a("s_waitcnt lgkmcnt(0)"); self.q = []

def interleave(a, b):
    a("v_swap_b32 v%d, v%d", b + 1, b + 4)
    a("v_swap_b32 v%d, v%d", b + 3, b + 5)
    a("v_swap_b32 v%d, v%d", b + 2, b + 4)
    a("v_swap_b32 v%d, v%d", b + 5, b + 6)

def code_touch(a, lab, back, va, vd):
    l = a.newlabel("CT")
    a("s_getpc_b64 s[50:51]")
    a.label(l)
    if back:
        a("s_sub_u32 s50, s50, %s-%s", l, lab); a("s_subb_u32 s51, s51, 0")
    else:
        a("s_add_u32 s50, s50, %s-%s", lab, l); a("s_addc_u32 s51, s51, 0")
    a("global_load_dword v%d, v%d, s[50:51]", vd, va)
L_FL = L_BW + 8 * BWSZ
def local_a(a, prof, abort, bload, hi, k0, pd, touch, rdep, bands, ni, ramp, pa, p7, sconst, rot, bp, n0, ct, qt, tpr, mf, NK):
    import pt
    from k1 import SCALE
    R = lambda i: L_BW + i * BWSZ
    NX = 14 - NK; NF = 16 * NK; L = NK - 1
    sl = {14: [R(0), R(1), R(2), 0, R(7), R(4), R(5), R(6), R(3)], 12: [R(0), 0, R(7), R(1), R(2), R(4), R(5), R(6), R(3)]}[NK]
    slot = {k: sl[k % 9] for k in range(14)}
    pt.lanes(a)
    a("v_bfe_u32 v7, v1, 2, 2")
    a("s_lshl_b32 s30, s21, 9")
    def bptr():
        a("s_lshl_b32 s50, s22, 2")
        a("s_add_u32 s50, s50, s60")
        a("s_mul_i32 s50, s50, 14")
        a("s_min_u32 s51, s21, 13")
        a("s_add_u32 s50, s50, s51")
        a("s_mul_i32 s50, s50, %d", 56 * 1024)
        a("s_mul_i32 s51, s61, 7168")
        a("s_add_u32 s50, s50, s51")
        a("s_add_u32 s50, s50, 0x%x", BF + 4096)
        add64(a, 80, 4, off_sgpr=50)
        for i in range(1, 4): add64(a, 80 + 2 * i, 80, imm=14336 * i)
        for i in range(4): a("v_mov_b32 v%d, 0", BW + i)
        if prof == 4: a("s_mov_b32 s78, 0")
        a("s_mul_i32 s50, s22, 56")
        a("s_min_u32 s51, s21, 13")
        a("s_lshr_b32 s51, s51, 1")
        a("s_add_u32 s50, s50, s51")
        a("s_lshl_b32 s50, s50, 6")
        a("s_add_u32 s50, s50, 0x%x", ABF)
    WK = 32; V = 16
    PD = lambda k: BW + 36 + k % 4
    def landed(k, first, l):
        if not first: a("s_branch %sa", l)
        a.label(l)
        a("ds_read_b32 v3, v0")
        a("s_sub_u32 s25, s25, 1")
        a("s_cbranch_scc1 %s", abort)
        a("s_waitcnt lgkmcnt(0)")
        a.label(l + "a")
        a("v_cmp_ne_u32 vcc, 0, v3")
        a("s_bitcmp1_b32 vcc_lo, %d", k)
        a("s_cbranch_scc0 %s", l)
    a("s_cmp_eq_u32 s14, 7")
    a("s_cbranch_scc1 LA_w7")
    a("v_lshlrev_b32 v13, 16, v3")
    a("v_add_u32 v13, v13, v12")
    a("v_lshl_add_u32 v9, v7, 14, v13")
    a("s_mul_i32 s34, s22, 7")
    a("s_add_u32 s34, s34, s14")
    a("s_lshl_b32 s34, s34, 18")
    a("s_add_u32 s34, s34, s30")
    add64(a, 34, 66, off_sgpr=34)
    add64(a, 36, 34, imm=8192)
    a("s_mul_i32 s32, s20, 7")
    a("s_add_u32 s32, s32, s14")
    a("s_lshl_b32 s32, s32, 10")
    a("s_add_u32 s32, s32, 0x%x", MEMR)
    add64(a, 32, 4, off_sgpr=32)
    for r in range(4): a("v_mov_b32 v%d, -1", V + r)
    a("global_store_dwordx4 v2, %s, s[32:33] sc1", vr(V, 4))
    a("v_lshlrev_b32 v0, 2, v1")
    a("v_add_u32 v0, %d, v0", L_FL)
    a("v_mov_b32 v8, %d", pt.L_NON)
    a("v_cmp_gt_u32 vcc, 16, v1")
    a("v_cndmask_b32 v0, v8, v0")
    a("s_lshr_b32 s50, s60, 1")
    a("s_lshl_b32 s50, s50, 2")
    a("s_add_u32 s50, s50, %d", L_FL + 384)
    a("v_mov_b32 v8, s50")
    a("v_cmp_gt_u32 vcc, 17, v1")
    a("v_cndmask_b32 v0, v8, v0")
    a("v_mov_b32 v8, %d", L_FL + 392)
    a("v_cmp_gt_u32 vcc, 18, v1")
    a("v_cndmask_b32 v0, v8, v0")
    a("v_and_b32 v8, 1, v3")
    a("v_lshrrev_b32 v13, 1, v3")
    def wkld(m): a("global_load_dwordx4 %s, v9, s[%d:%d] offset:%d" + nt(1), vr(WK + m * 4, 4), 34 + 2 * (m & 1), 35 + 2 * (m & 1), 64 * (m >> 1))
    a("s_cmp_ge_u32 s14, 4")
    a("s_cbranch_scc1 LA_i0")
    a("s_barrier")
    for m in range(16):
        if m % 4 == 0 and bp[m // 4] >= 0 and (m == 0 or bp[m // 4] != bp[m // 4 - 1]): landed(bp[m // 4], True, "LA_b%d" % m)
        wkld(m)
    a("s_branch LA_i1")
    a.label("LA_i0")
    for m in range(16): wkld(m)
    a("s_setprio %d", pa)
    a("s_barrier")
    a.label("LA_i1")
    bptr()
    a("s_lshl_b32 s36, s14, 11")
    a("s_add_u32 s36, s36, %d", sl[8])
    if mf == 32:
        a("v_lshrrev_b32 v14, 2, v4")
        a("v_xor_b32 v14, v14, v13")
        a("v_lshlrev_b32 v14, 4, v14")
        a("v_lshl_add_u32 v14, v4, 6, v14")
        a("v_lshl_add_u32 v5, v8, 13, v14")
        a("v_add_u32 v5, %d, v5", slot[0])
        a("v_xor_b32 v6, 32, v5")
        a("v_lshl_add_u32 v10, v8, 10, v14")
        a("v_add_u32 v10, s36, v10")
        a("v_xor_b32 v11, 32, v10")
    else:
        a("v_add_u32 v5, %d, v14", slot[0])
        a("v_add_u32 v10, s36, v14")
        a("v_add_u32 v11, 1024, v10")
    a("v_add_u32 v12, s36, v2")
    a("s_lshl_b32 s50, s14, 2")
    a("s_add_u32 s50, s50, %d", L_FL + 64)
    a("v_mov_b32 v1, s50")
    a("s_and_b32 s50, s60, 1")
    a("s_lshl_b32 s50, s50, 2")
    a("s_add_u32 s50, s50, s61")
    a("s_lshl_b32 s50, s50, 2")
    a("s_lshl_b32 s88, 0x0f0f, s50")
    a("s_cmp_eq_u32 s23, 0")
    a("s_cselect_b32 s89, -1, s88")
    a("s_mov_b32 s96, %s", f32(SCALE))
    a("s_mul_i32 s50, s14, %d", NX)
    a("s_lshl_b32 s72, %d, s50", (1 << NX) - 1)
    a("s_mov_b32 s73, %s", "s72" if NX else "-1")
    a("s_mul_i32 s50, s20, 7")
    a("s_add_u32 s50, s50, s14")
    a("s_lshl_b32 s50, s50, 13")
    a("s_add_u32 s50, s50, 0x%x", AX)
    add64(a, 74, 4, off_sgpr=50)
    sconst()
    for kd in range(8):
        a("s_waitcnt vmcnt(%d)", 14 - 2 * kd)
        for t in range(2): a("ds_write_b128 v12, %s offset:%d", vr(WK + (2 * kd + t) * 4, 4), 1024 * t)
        for c in range(2): a("ds_read_b128 %s, v%d", vr(WK + (2 * kd + c) * 4, 4), 10 + c)
    if prof == 4: a("s_memrealtime s[76:77]")
    landed(0, True, "LA_l0")
    if prof == 4: a("s_memrealtime s[90:91]")
    q = LQ(a)
    free = [(8, 224), (12, 224), (BW + 40, 224), (BW + 44, 224)] + [(AW + 8 * (NK - 2) + 4 * i, NF - 32) for i in range(4)]
    buf = {}; nxt = [0]
    def rd(cur, lim):
        while nxt[0] < min(lim, cur + 1 + rdep):
            F = nxt[0]
            ok = [x for x in free if x[1] > F]
            if not ok: return
            x = min(ok, key=lambda y: y[1]); free.remove(x); buf[F] = x
            if F and not (F & 15):
                for r in (5, 6)[:mf // 16]: a("v_add_u32 v%d, %d, v%d", r, slot[F >> 4] - slot[(F >> 4) - 1], r)
            if mf == 32: q.issue(F, "ds_read_b128 %s, v%d offset:%d", vr(x[0], 4), 5 + (F & 1), ((F & 15) >> 1) * 1024)
            else: q.issue(F, "ds_read_b128 %s, v5 offset:%d", vr(x[0], 4), ((F & 15) >> 1) * 1024 + (F & 1) * 8192)
            nxt[0] += 1
    def acc(ks): return V if ks & 1 else AW + 8 * ks
    def cvt_ops(ks):
        Rr = AW + 8 * ks; X = acc(ks); ops = []
        for d in range(4):
            for e in range(2):
                s0 = X + 8 * e + 2 * d
                cv = ("v_cvt_pk_f16_f32 v%d, v%d, v%d", Rr + 2 * d + e, s0, s0 + 1)
                if pd == 0: ops.append([("v_mul_f32 v%d, s96, v%d", s0, s0), ("v_mul_f32 v%d, s96, v%d", s0 + 1, s0 + 1), cv])
                else: ops.append([("v_fma_mixlo_f16 v%d, v%d, s96, 0", Rr + 2 * d + e, s0), ("v_fma_mixhi_f16 v%d, v%d, s96, 0", Rr + 2 * d + e, s0 + 1)])
        for d in range(4): ops.append([("v_permlane16_swap_b32 v%d, v%d", Rr + 2 * d, Rr + 2 * d + 1)] if mf == 32 else [])
        return ops
    def bgo():
        if prof == 4: a("s_memrealtime s[78:79]")
        bload(range(5))
        a("ds_write_b32 v1, v0 offset:192")
        a("s_mov_b32 s89, -1")
    def ago():
        for i in range(2 * NX): a("global_load_dwordx4 %s, v2, s[74:75] offset:%d sc1", vr(AW + 8 * NK + 4 * i, 4), 1024 * i)
        a("s_mov_b32 s73, -1")
    tail = []
    rd(-1, 16)
    for ks in range(NK):
        ops = cvt_ops(ks - 1) if ks else []
        sched = {2: [0], 3: [1], 4: [2], 8: [3, 8], 9: [4], 10: [5, 9], 11: [6], 12: [7, 10], 13: [11]}
        for m in range(16):
            F = ks * 16 + m
            q.wait(F)
            fl = [o for g in sched.get(m, []) for o in ops[g]] if ops else []
            if mf == 32:
                d = vr(acc(ks), 16)
                a("v_mfma_f32_32x32x16_bf16 %s, %s, %s, %s", d, vr(buf[F][0], 4), vr(WK + m * 4, 4), d if m else "0")
                if ks == L: free.append((WK + m * 4, 224))
            else:
                for c in range(2):
                    d = vr(acc(ks) + 8 * c + 4 * (m & 1), 4)
                    a("v_mfma_f32_16x16x32_bf16 %s, %s, %s, %s", d, vr(buf[F][0], 4), vr(WK + ((m & 14) + c) * 4, 4), d if m > 1 else "0")
                    if c == 0:
                        for o in fl[:2]: a(*o)
                        fl = fl[2:]
                    if ks == L and (m & 1): free.append((WK + ((m & 14) + c) * 4, 224))
            for o in fl: a(*o)
            free.append(buf[F])
            row = {9: 7, L: 8}.get(ks, ks if ks <= NK - 9 else None)
            if m == 0 and row is not None: q.issue("pr", "ds_write_b32 v1, v0 offset:%d", 32 * row)
            if m == 13 and ks < L - 1 or (F == 0): q.issue("fl", "ds_read_b32 v3, v0")
            if m == 5 and ks < L:
                q.wait("fl")
                a("v_cmp_ne_u32 vcc, 0, v3")
                a("v_readlane_b32 s50, v3, 17")
                if ks == L - 1: a("v_readlane_b32 s19, v3, 16")
                if NX and ks >= 5: a("v_readlane_b32 s51, v3, 18")
            if m == 6 and ks < L:
                a("s_bitcmp1_b32 vcc_lo, %d", ks + 1)
                a("s_cbranch_scc0 LA_l%d", ks + 1)
                a.label("LA_m%d" % (ks + 1))
                def slow(k=ks + 1):
                    landed(k, True, "LA_l%d" % k)
                    a("s_branch LA_m%d", k)
                tail.append(slow)
            rd(F, min(NF, 16 * (ks + 1 + (m >= 6))))
            if m == 7 and k0 <= ks < L:
                a("s_and_b32 s50, s50, s88")
                a("s_cmp_eq_u32 s50, s89")
                a("s_cbranch_scc1 LA_g%d", ks)
                a.label("LA_h%d" % ks)
                def go(k=ks):
                    a.label("LA_g%d" % k)
                    bgo()
                    a("s_waitcnt lgkmcnt(0)")
                    a("s_branch LA_h%d", k)
                tail.append(go)
            if m == 14 and NX and 5 <= ks < L:
                a("s_and_b32 s51, s51, s72")
                a("s_cmp_eq_u32 s51, s73")
                a("s_cbranch_scc1 LA_a%d", ks)
                a.label("LA_b%d" % ks)
                def goa(k=ks):
                    a.label("LA_a%d" % k)
                    ago()
                    a("s_branch LA_b%d", k)
                tail.append(goa)
    a.label("LA_e0")
    a("s_cmp_eq_u32 s89, -1")
    a("s_cbranch_scc1 LA_e1")
    a("ds_read_b32 v3, v0")
    a("s_sub_u32 s25, s25, 1")
    a("s_cbranch_scc1 %s", abort)
    a("s_waitcnt lgkmcnt(0)")
    a("v_readlane_b32 s50, v3, 17")
    a("s_and_b32 s50, s50, s88")
    a("s_cmp_eq_u32 s50, s89")
    a("s_cbranch_scc0 LA_e0")
    bgo()
    a.label("LA_e1")
    a("s_setprio %d", tpr)
    a("v_lshrrev_b32 v1, 4, v2")
    if prof == 4: a("s_memrealtime s[92:93]")
    a("s_cmp_eq_u32 s23, 0")
    a("s_cbranch_scc1 LA_e2")
    bload([5] + hi)
    a.label("LA_e2")
    for o in cvt_ops(L):
        for x in o: a(*x)
    a("v_lshrrev_b32 v3, 4, v1")
    a("s_mov_b32 s96, 0")
    a("s_cmp_lt_u32 s14, 4" if rot else "s_cmp_eq_u32 s61, 1")
    a("s_cbranch_scc1 LA_end")
    for i in range(56):
        if NX and i == 56 - 8 * NX:
            a("s_mov_b32 s96, 1")
            a("s_cmp_eq_u32 s73, -1")
            a("s_cselect_b32 s50, s23, 0")
            a("s_cmp_eq_u32 s50, 0")
            a("s_cbranch_scc1 LA_end")
            a("s_mov_b32 s96, 0")
            a("s_waitcnt vmcnt(18)")
        a("v_swap_b32 v%d, v%d", AW + i, AW + 56 + i)
    a("s_branch LA_end")
    for f in tail: f()
    a.label("LA_w7")
    a("s_setprio %d", p7)
    if mf == 32:
        a("v_and_b32 v13, 1, v3")
        a("v_lshl_add_u32 v8, v13, 17, v12")
        a("v_lshrrev_b32 v13, 1, v3")
        a("v_lshl_add_u32 v8, v13, 15, v8")
    else: a("v_lshl_add_u32 v8, v3, 16, v12")
    a("v_lshl_add_u32 v8, v7, 13, v8")
    a("s_mul_i32 s31, s22, %d", (7 << 18) * rot)
    a("s_add_u32 s32, s30, s31")
    add64(a, 32, 64, off_sgpr=32)
    a("s_sub_u32 s31, %d, s31", 7 << 18)
    a("s_add_u32 s30, s30, s31")
    add64(a, 30, 64, off_sgpr=30)
    vq = []
    def half(i):
        add64(a, 34, 32 if i < 14 else 30, imm=(((i >> 1) % 7) << 18) + (i & 1) * (mf // 4) * 8192)
        for kd in range(8):
            a("s_mov_b32 m0, %d", slot[i >> 1] + (i & 1) * 8192 + 960 * kd)
            a("global_load_lds_dwordx4 v8, s[34:35] offset:%d" + nt(2), 64 * kd)
            vq.append(i)
    def vwait(tag):
        last = max(k for k, t in enumerate(vq) if t == tag)
        a("s_waitcnt vmcnt(%d)", len(vq) - 1 - last)
        del vq[:last + 1]
    DEP = 7
    for i in range(n0):
        if i == ni: a("s_barrier")
        half(i)
    pt.nonce_ld(a); vq.append("N")
    if ni >= n0: a("s_barrier")
    issued = [n0]
    bptr()
    a("v_lshlrev_b32 v10, 3, v1")
    a("s_lshl_b32 s51, s20, 9")
    a("s_add_u32 s51, s51, 0x%x", LNF)
    a("v_add_u32 v12, s51, v10")
    a("v_lshrrev_b32 v13, 3, v1")
    a("v_mul_u32_u24 v13, %d, v13", 7 * 64)
    a("v_and_b32 v14, 7, v1")
    a("v_lshl_add_u32 v13, v14, 3, v13")
    a("v_add_u32 v13, s50, v13")
    a("v_min_u32 v11, 6, v14")
    a("v_lshlrev_b32 v11, 2, v11")
    a("v_add_u32 v11, %d, v11", L_FL + 64)
    a("v_and_b32 v14, 31, v1")
    a("v_lshlrev_b32 v9, 7, v14")
    a("v_lshlrev_b32 v14, 2, v14")
    a("v_add_u32 v14, 0x%x, v14", RDY)
    a("v_lshrrev_b32 v10, 5, v1")
    a("v_mul_u32_u24 v10, 14336, v10")
    a("v_add_u32 v9, v9, v10")
    a("s_lshl_b32 s50, s20, 2")
    a("s_add_u32 s50, s50, 0x%x", RDY)
    a("v_mov_b32 v15, s50")
    a("v_mov_b32 v5, %d", L_FL)
    a("v_min_u32 v27, %d, v1", max(7 * NX - 1, 0))
    a("v_lshlrev_b32 v27, 2, v27")
    a("s_lshl_b32 s50, s20, 7")
    a("s_add_u32 s50, s50, 0x%x", AFL)
    a("v_add_u32 v27, s50, v27")
    a("s_and_b32 s50, s20, 3")
    a("s_lshl_b32 s50, s50, 13")
    a("v_lshlrev_b32 v23, 7, v1")
    a("v_add_u32 v23, s50, v23")
    a("v_and_b32 v24, 0x3fff, v23")
    a("v_lshrrev_b32 v25, 2, v1")
    a("v_lshlrev_b32 v25, 13, v25")
    a("v_and_b32 v26, 3, v1")
    a("v_lshl_add_u32 v25, v26, 7, v25")
    a("s_lshl_b32 s50, s22, 17")
    a("v_add_u32 v25, s50, v25")
    for i in range(16):
        vwait(i)
        if i == ct[0]: code_touch(a, "LA_m7", 1, 24, 21); vq.append("T")
        if i == max(n0, 4): pt.nonce_put(a, abort)
        if i & 1: a("ds_write_b32 v5, v5 offset:%d", 4 * (i >> 1))
        upto = min(16, i + 1 + ramp.get(i, DEP))
        while issued[0] < upto: half(issued[0]); issued[0] += 1
        if qt <= i < qt + 6:
            add64(a, 34, 30, imm=(i - qt + 1) << 18)
            a("global_load_dword v21, v25, s[34:35]" + nt(32)); vq.append("T")
    def bpoll():
        a("global_load_dwordx2 v[16:17], v13, s[4:5] sc1")
        if NX: a("global_load_dword v18, v27, s[4:5] sc1")
        a("s_sub_u32 s25, s25, 1")
        a("s_cbranch_scc1 %s", abort)
        a("s_waitcnt vmcnt(0)")
        a("v_cmp_eq_u32 vcc, s19, v17")
        a("s_or_b32 vcc_lo, vcc_lo, 0x88888888")
        a("s_or_b32 vcc_hi, vcc_hi, 0x88888888")
        a("v_cmp_eq_u32 s[50:51], s19, v16")
        a("s_and_b64 s[50:51], s[50:51], vcc")
        a("v_mov_b32 v16, s50")
        a("v_mov_b32 v17, s51")
        a("ds_write_b64 v5, v[16:17] offset:384")
        if NX:
            a("v_cmp_eq_u32 vcc, s19, v18")
            a("v_mov_b32 v18, vcc_lo")
            a("ds_write_b32 v5, v18 offset:392")
    def prog(row, l):
        a("ds_read_b32 v6, v11 offset:%d", 32 * row)
        a("s_waitcnt lgkmcnt(0)")
        a("v_cmp_eq_u32 vcc, 0, v6")
        a("s_cbranch_vccnz %s", l)
    for k in range(8, NK):
        l = "LA_f%d" % k
        a("s_branch %sa", l)
        a.label(l)
        bpoll()
        for kk in range(max(8, k - 2), k): a("ds_write_b32 v5, v5 offset:%d", 4 * kk)
        a.label(l + "a")
        prog(k - 8, l)
        if k == 8:
            a("s_or_b32 s50, s19, s17")
            a("v_mov_b32 v16, s50")
            a("s_mov_b64 exec, 1")
            a("global_store_dword v15, v16, s[4:5] sc1")
            a("s_mov_b64 exec, -1")
        if k >= 10:
            a("s_waitcnt vmcnt(16)")
            a("ds_write_b32 v5, v5 offset:%d", 4 * (k - 2))
        if k == ct[1]: code_touch(a, "LA_e0", 1, 23, 21)
        half(2 * k); half(2 * k + 1)
    a("s_waitcnt vmcnt(16)")
    a("ds_write_b32 v5, v5 offset:%d", 4 * (NK - 2))
    a.label("LA_p")
    bpoll()
    a("ds_write_b32 v5, v5 offset:%d", 4 * (NK - 1))
    a("s_cmp_eq_u32 s23, 0")
    a("s_cbranch_scc1 LA_q")
    a("s_cmp_eq_u64 s[50:51], -1")
    a("s_cbranch_scc0 LA_p")
    a.label("LA_p2")
    a("s_sub_u32 s25, s25, 1")
    a("s_cbranch_scc1 %s", abort)
    prog(6, "LA_p2")
    def pol2():
        a("global_load_dwordx2 v[18:19], v12, s[4:5] sc1")
        a("global_load_dword v20, v14, s[4:5] sc1")
        if NX: a("global_load_dword v26, v27, s[4:5] sc1")
    pol2()
    bload(range(6))
    bload(hi)
    if touch:
        a("s_mul_i32 s50, s61, 14336")
        a("s_add_u32 s50, s50, %d", 3 * 14 * 56 * 1024 + 1024 - 7168)
        a("s_sub_u32 s34, s80, s50")
        a("s_subb_u32 s35, s81, 0")
        for qq in range(3):
            for i in range(2):
                a("global_load_dword v21, v9, s[34:35] sc1")
                a("s_add_u32 s34, s34, %d", 28672 if i < 1 else 14 * 56 * 1024 - 28672); a("s_addc_u32 s35, s35, 0")
    a("s_waitcnt vmcnt(%d)", 28 + 6 * touch)
    a("s_branch LA_q1")
    a.label("LA_q")
    pol2()
    a("s_sub_u32 s25, s25, 1")
    a("s_cbranch_scc1 %s", abort)
    a("s_waitcnt vmcnt(0)")
    a.label("LA_q1")
    a("v_and_b32 v22, -2, v20")
    if NX:
        a("v_cmp_eq_u32 vcc, s19, v26")
        a("v_mov_b32 v7, vcc_lo")
        a("ds_write_b32 v5, v7 offset:392")
    allnon(a, [18, 19, 22])
    a("v_cmp_ne_u32 vcc, 0, v18")
    a("s_cbranch_vccnz LA_q")
    a("v_cmp_ne_u32 vcc, s19, v20")
    a("s_or_b32 s50, vcc_lo, vcc_hi")
    a("s_cselect_b32 s50, 3, 1")
    a("v_mov_b32 v7, s50")
    a("ds_write2_b32 v5, v7, v7 offset0:%d offset1:%d", 16 + 7 * 8 + 7, 16 + 8 * 8 + 7)
    a("s_lshr_b32 s97, s50, 1")
    a("s_mov_b32 s96, 0")
    a("s_mov_b32 s72, 0")
    a("s_mov_b32 s73, -1")
    a("v_mov_b32 v0, v5")
    a("s_mov_b64 s[74:75], s[4:5]")
    a("s_setprio 0")
    sconst()
    a("s_waitcnt lgkmcnt(0)")
    a.label("LA_end")

SM = "v_smfmac_f32_16x16x64_f16 %s, %s, %s, v5"
def emit_chain(a, prof=False, nv=64, ns=(0, 0, 0, 0), bpos=9, nb2=4, nb3=8, gpos=13, g2=1, pdel=1, p2=1, flag=1, fpos=5, dep=6, dep2=7, nb7=0, xp=0, abort="CH_abort", merged=True, dbgout=0, k0=1, pd=0, touch=1, rdep=8, bands=(), ni=4, ramp={0: 3, 1: 4, 2: 3}, pa=1, p7=0, ctouch=1, rot=1, bp=(-1, -1, -1, -1), n0=4, ct=(-1, -1), qt=99, fin=3, tpr=0, mf=32, nk=14, gm=0, sw=0, lp=1, pz=3, lt=0, wu=0, s4=0):
    P = Prof(a, prof)
    npf = nv + sum(ns)
    def spf(w):
        o = nv + sum(ns[:w - 4])
        for i in range(ns[w - 4]): a("s_load_dword s96, s[54:55], %d", (o + i) * 128)
    MODE = {"ST": "", "PX": ""}
    a.c("---- chain, role s20")
    a("s_lshr_b32 s21, s20, 1")
    a("s_and_b32 s22, s20, 1")
    a("s_cmp_lt_u32 s20, 28")
    a("s_cselect_b32 s23, 1, 0")
    a("s_mov_b32 s25, 0x100000")
    a("s_and_b32 s60, s14, 3")
    a("s_lshr_b32 s61, s14, 2")
    a("s_xor_b32 s61, s61, s22")
    a("s_xor_b32 s61, s61, 1")
    def breg(n): return BW + n * 8 if n < 6 else 32 + (n - 6) * 8
    def bload(ns_):
        for n in ns_:
            for w in range(2):
                b = 80 + 4 * (n & 1) + 2 * w
                a("global_load_dwordx4 %s, v2, s[%d:%d] offset:%d sc1", vr(breg(n) + w * 4, 4), b, b + 1, (n >> 1) * 1024 - 4096)
    hi = [10, 11, 12, 13, 6, 7, 8, 9]
    def sconst():
        a("s_mov_b32 s46, 0x00ff00ff")
        a("s_mov_b32 s47, 0x00ff00ff")
        add64(a, 26, 4, imm=MEMR)
        add64(a, 28, 4, imm=SR)
        for r in (30, 32, 58): a("s_mov_b64 s[%d:%d], s[26:27]", r, r + 1)
        for r in (34, 36): a("s_mov_b64 s[%d:%d], s[28:29]", r, r + 1)
        a("s_mul_i32 s42, s22, 7168")
        a("s_and_b32 s43, s14, 1")
        a("s_xor_b32 s43, s43, 1")
        a("s_mul_i32 s43, s43, 14336")
        a("s_add_u32 s42, s42, s43")
        a("s_add_u32 s42, s42, 0x%x", XF + 4096)
        add64(a, 42, 4, off_sgpr=42)
        a("s_sub_u32 s44, s20, 28")
        a("s_max_i32 s44, s44, 0")
        a("s_mul_i32 s44, s44, 7168")
        a("s_add_u32 s44, s44, 0x%x", XF + 2 * 28 * 1024)
        add64(a, 44, 4, off_sgpr=44)
        a("s_mov_b32 s24, 0")
        a("s_mov_b64 s[62:63], 0")
        a("s_min_u32 s38, s20, 27")
        a("s_mul_i32 s38, s38, %d", 16 * 1024)
        a("s_add_u32 s38, s38, 0x%x", UF)
        add64(a, 38, 4, off_sgpr=38)
        a("s_lshl_b32 s40, s21, 13")
        a("s_lshl_b32 s41, s22, 11")
        a("s_add_u32 s40, s40, s41")
        a("s_add_u32 s40, s40, 0x%x", TBX - 28 * 4096 + 2048)
        add64(a, 40, 4, off_sgpr=40)
        add64(a, 48, 4, imm=MEMX)
        a("s_mov_b64 s[54:55], s[38:39]")
        a("s_sub_u32 s56, s20, 28")
        a("s_max_i32 s56, s56, 0")
        a("s_mul_i32 s56, s56, %d", 7 * 16384)
        a("s_add_u32 s56, s56, 0x%x", UF + 2 * 28 * 16 * 1024)
        add64(a, 56, 4, off_sgpr=56)
        add64(a, 52, 4, imm=UFL)
    local_a(a, prof, abort, bload, hi, k0, pd, touch, rdep, bands, ni, ramp, pa, p7, sconst, rot, bp, n0, ct, qt, tpr, mf, nk)
    def TS(k):
        if prof == 4: a("s_memrealtime s[%d:%d]", TSR[k], TSR[k] + 1)
    TSR = [64, 66, 68, 70, 88, 72]
    def achk(l, block):
        if nk == 14: return
        a("s_cmp_eq_u32 s73, -1")
        a("s_cbranch_scc1 %s", l)
        a.label(l + "p")
        a("ds_read_b32 v28, v0")
        a("s_sub_u32 s25, s25, 1")
        a("s_cbranch_scc1 %s", abort)
        a("s_waitcnt lgkmcnt(0)")
        a("v_readlane_b32 s50, v28, 18")
        a("s_and_b32 s50, s50, s72")
        a("s_cmp_eq_u32 s50, s73")
        a("s_cbranch_scc0 %s", l + "p" if block else l)
        for i in range(2 * (14 - nk)): a("global_load_dwordx4 %s, v2, s[74:75] offset:%d sc1", vr(AW + 8 * nk + 4 * i, 4), 1024 * i)
        a("s_mov_b32 s73, -1")
        a.label(l)
    TS(0)
    a("s_min_u32 s50, s14, 6")
    a("s_lshl_b32 s50, s50, 10")
    a("v_add_u32 v14, s50, v2")
    a("s_sub_u32 s50, s14, 3")
    a("s_cmp_ge_u32 s50, 4")
    a("s_cbranch_scc1 CH_m0")
    a("v_bfe_u32 v16, v14, 4, 3")
    a("v_mul_u32_u24 v16, 896, v16")
    a("v_lshrrev_b32 v17, 9, v14")
    a("v_lshl_add_u32 v16, v17, 6, v16")
    a("v_bfe_u32 v17, v14, 7, 1")
    a("v_lshl_add_u32 v16, v17, 5, v16")
    a("v_bfe_u32 v17, v14, 8, 1")
    a("v_lshl_add_u32 v16, v17, 3, v16")
    a("global_load_dwordx2 v[20:21], v16, s[12:13]")
    a("global_load_dwordx2 v[22:23], v16, s[12:13] offset:16")
    a("s_cmp_eq_u32 s14, 3")
    a("s_cbranch_scc1 CH_m0")
    a("global_load_dwordx2 v[24:25], v16, s[12:13] offset:-512")
    a("global_load_dwordx2 v[26:27], v16, s[12:13] offset:-496")
    a.label("CH_m0")
    a("v_bfe_u32 v5, v4, 1, 1")
    a("v_mul_u32_u24 v5, 0xaaaa, v5")
    a("v_add_u32 v5, 0x4444, v5")
    a("v_lshrrev_b32 v6, 2, v4")
    a("v_lshlrev_b32 v6, 1, v6")
    a("v_and_b32 v7, 1, v4")
    a("v_add_u32 v6, v6, v7")
    a("v_lshlrev_b32 v6, 4, v6")
    a("v_lshl_add_u32 v6, v3, 7, v6")
    a("s_mul_i32 s50, s61, 3584")
    a("v_add_u32 v6, s50, v6")
    a("v_lshrrev_b32 v7, 2, v4")
    a("v_lshlrev_b32 v7, 7, v7")
    a("v_lshl_add_u32 v7, v3, 5, v7")
    a("v_and_b32 v8, 3, v4")
    a("v_lshl_add_u32 v7, v8, 2, v7")
    a("s_lshl_b32 s50, s14, 9")
    a("s_add_u32 s50, s50, %d", L_TAI)
    a("v_add_u32 v7, s50, v7")
    a("s_lshl_b32 s50, s60, 10")
    a("s_add_u32 s50, s50, %d", L_TB1)
    a("v_add_u32 v12, s50, v2")
    a("s_cmp_ge_u32 s14, 4")
    a("s_cbranch_scc1 CH_c4")
    a("s_lshr_b32 s50, s60, 1")
    a("s_lshl_b32 s50, s50, 10")
    a("s_and_b32 s51, s60, 1")
    a("s_lshl_b32 s51, s51, 3")
    a("s_add_u32 s50, s50, s51")
    a("s_add_u32 s50, s50, %d", L_TB2)
    a("v_add_u32 v8, s50, v2")
    a("s_lshl_b32 s50, s60, 10")
    a("s_add_u32 s50, s50, %d", L_RED)
    if lp:
        a("v_and_b32 v9, 7, v1")
        a("v_lshlrev_b32 v9, 2, v9")
        a("v_lshl_add_u32 v9, v3, 6, v9")
        a("v_bfe_u32 v16, v1, 3, 1")
        a("v_lshl_add_u32 v9, v16, 8, v9")
    else: a("v_lshlrev_b32 v9, 2, v1")
    a("v_add_u32 v9, s50, v9")
    a("s_lshl_b32 s50, s22, 2")
    a("s_add_u32 s50, s50, s60")
    a("s_lshl_b32 s51, s50, 11")
    if sw:
        a("v_lshrrev_b32 v16, 2, v4")
        a("v_lshlrev_b32 v16, 1, v16")
        a("v_and_b32 v17, 1, v4")
        a("v_add_u32 v16, v16, v17")
        a("v_bfe_u32 v17, v4, 1, 1")
        a("v_lshl_add_u32 v18, v17, 3, v16")
        a("v_lshl_add_u32 v18, v3, 4, v18")
        a("v_lshl_add_u32 v10, v18, 4, s51")
    else: a("v_add_u32 v10, s51, v2")
    a("s_lshl_b32 s51, s50, 9")
    a("s_add_u32 s51, s51, 16384")
    if sw:
        a("v_lshl_add_u32 v11, v3, 3, v16")
        a("v_lshl_add_u32 v11, v17, 5, v11")
        a("v_lshlrev_b32 v11, 2, v11")
    else: a("v_lshlrev_b32 v11, %d, v1", 2 + gm)
    a("v_add_u32 v11, s51, v11")
    a("s_lshl_b32 s50, s60, 12")
    a("v_add_u32 v13, s50, v2")
    a("s_branch CH_c5")
    a.label("CH_c4")
    a("v_mov_b32 v11, 0")
    a("v_and_b32 v16, 7, v4")
    a("s_cmp_eq_u32 s14, 5")
    a("s_cselect_b64 vcc, -1, 0")
    a("v_lshlrev_b32 v8, 4, v16")
    a("v_lshl_add_u32 v17, v3, 7, v8")
    a("v_and_b32 v18, 1, v3")
    a("v_lshl_add_u32 v8, v18, 8, v8")
    a("v_lshrrev_b32 v18, 1, v3")
    a("v_lshl_add_u32 v8, v18, 3, v8")
    a("v_cndmask_b32 v8, v17, v8")
    a("v_add_u32 v8, %d, v8", L_TAI)
    a("v_lshrrev_b32 v17, 1, v16")
    a("v_lshlrev_b32 v17, 2, v17")
    a("v_and_b32 v18, 1, v16")
    a("v_add_u32 v17, v17, v18")
    a("s_and_b32 s50, s21, 1")
    a("s_lshl_b32 s50, s50, 1")
    a("v_add_u32 v17, s50, v17")
    if sw:
        a("s_lshl_b32 s50, s50, 2")
        a("v_add_u32 v17, s50, v16")
    a("s_lshr_b32 s50, s21, 1")
    a("s_lshl_b32 s50, s50, 1")
    a("s_add_u32 s50, s50, s22")
    a("s_lshl_b32 s51, s50, 1")
    a("s_add_u32 s51, s51, 7")
    a("s_sub_u32 s51, s51, s14")
    a("s_lshl_b32 s51, s51, 9")
    a("v_lshlrev_b32 v9, 4, v17")
    a("v_lshrrev_b32 v18, 1, v3")
    a("v_lshl_add_u32 v9, v18, 8, v9")
    a("v_and_b32 v18, 1, v3")
    a("v_lshl_add_u32 v9, v18, 3, v9")
    a("v_add_u32 v9, s51, v9")
    a("s_lshl_b32 s51, s50, 8")
    a("s_add_u32 s51, s51, 16384")
    if gm:
        a("s_mul_i32 s50, s22, 252")
        a("s_sub_u32 s51, s51, s50")
    if sw:
        a("s_and_b32 s50, s21, 1")
        a("s_lshl_b32 s50, s50, 7")
        a("s_add_u32 s51, s51, s50")
        a("v_lshl_add_u32 v17, v3, 3, v16")
    else: a("v_lshl_add_u32 v17, v3, 4, v17")
    a("v_lshlrev_b32 v18, %d, v17", 2 + gm)
    a("v_add_u32 v18, s51, v18")
    a("v_cndmask_b32 v9, v9, v18")
    a("v_bfe_u32 v13, v1, 1, 1")
    a("v_lshlrev_b32 v13, 7, v13")
    a("v_and_b32 v16, 1, v1")
    a("v_lshl_add_u32 v13, v16, 3, v13")
    a("v_bfe_u32 v16, v1, 2, 2")
    a("v_lshl_add_u32 v13, v16, 5, v13")
    a("v_lshrrev_b32 v16, 5, v1")
    a("v_lshl_add_u32 v13, v16, 4, v13")
    a("v_bfe_u32 v16, v1, 4, 1")
    a("v_lshl_add_u32 v13, v16, 8, v13")
    if lp: a("v_lshlrev_b32 v13, 3, v1")
    a("s_mul_i32 s50, s22, 7168")
    a("s_lshl_b32 s51, s21, 9")
    a("s_add_u32 s50, s50, s51")
    a("v_add_u32 v13, s50, v13")
    a("v_min_u32 v10, %d, v1", max(nv - 1, 0))
    a("v_lshlrev_b32 v10, 7, v10")
    a("v_add_u32 v16, 2048, v8")
    a("v_cndmask_b32 v10, v10, v16")
    a.label("CH_c5")
    a("s_mul_i32 s50, s61, 7168")
    a("s_sub_u32 s50, 3584, s50")
    a("v_add_u32 v3, s50, v6")
    a("s_lshl_b32 s50, s20, 7")
    a("s_add_u32 s50, s50, %d", 192 * 1024)
    a("v_mov_b32 v4, s50")
    a("s_cmp_lg_u32 s23, 0")
    a("s_cbranch_scc1 CH_hs")
    NL = max(128 - npf, 1); NHP = (7 * NL + 319) // 320
    a("s_and_b32 s50, s20, 1")
    a("s_lshl_b32 s50, s50, 2")
    a("s_add_u32 s50, s50, s60")
    a("s_min_u32 s50, s50, 6")
    a("s_lshl_b32 s50, s50, 10")
    a("v_lshrrev_b32 v4, 5, v1")
    a("v_lshlrev_b32 v4, 9, v4")
    a("v_bfe_u32 v16, v1, 4, 1")
    a("v_lshl_add_u32 v4, v16, 7, v4")
    a("v_and_b32 v16, 7, v1")
    a("v_lshl_add_u32 v4, v16, 4, v4")
    a("v_bfe_u32 v16, v1, 3, 1")
    a("v_lshl_add_u32 v4, v16, 3, v4")
    a("v_add_u32 v4, s50, v4")
    a("v_add_u32 v13, s50, v2")
    a("s_sub_u32 s50, s20, 28")
    a("s_lshl_b32 s50, s50, 7")
    a("s_add_u32 s50, s50, %d", 192 * 1024)
    a("v_mov_b32 v11, s50")
    a("s_cmp_lg_u32 s14, 7")
    a("s_cbranch_scc1 CH_h7")
    a("v_min_u32 v10, 55, v1")
    a("v_lshlrev_b32 v10, 7, v10")
    a.label("CH_h7")
    for i in range(NHP):
        a("s_min_u32 s50, s14, 4")
        a("s_add_u32 s50, s50, %d", 5 * i)
        a("s_lshl_b32 s50, s50, 6")
        a("v_add_u32 v16, s50, v1")
        a("v_min_u32 v16, %d, v16", 7 * NL - 1)
        a("v_cvt_f32_u32 v17, v16")
        a("v_add_f32 v17, 0.5, v17")
        a("v_mul_f32 v17, %s, v17", f32(1.0 / NL))
        a("v_cvt_u32_f32 v17, v17")
        a("v_mul_u32_u24 v18, %d, v17", NL)
        a("v_sub_u32 v16, v16, v18")
        a("v_add_u32 v16, %d, v16", 128 - NL)
        a("v_lshlrev_b32 v16, 7, v16")
        a("v_lshl_add_u32 v%d, v17, 14, v16", BW + i)
    a.label("CH_hs")
    XR = EX; UR = EX; GX = EX + 16; GM = EX + 24
    def xload():
        for k in range(7):
            a("global_load_dwordx4 %s, v2, s[42:43] offset:%d sc1", vr(XR + 4 * k, 4), k * 1024 - 4096)
    a("s_mul_i32 s50, s14, %d", BWSZ)
    a("s_add_u32 s50, s50, %d", L_BW)
    a("v_add_u32 v15, s50, v2")
    a("v_min_u32 v16, 55, v1")
    a("v_lshlrev_b32 v16, 4, v16")
    a("v_and_b32 v30, 7, v1")
    a("v_lshlrev_b32 v30, 2, v30")
    a("v_add_u32 v30, %d, v30", L_FL + 64 + 8 * 32)
    a("s_cmp_ge_u32 s14, 3")
    a("s_cselect_b32 s50, 32, 0")
    a("v_subrev_u32 v31, s50, v30")
    X = "CI"
    def skip(cond, l):
        a({"noA": "s_cmp_eq_u32 s14, 7", "noB": "s_cmp_eq_u32 s23, 0"}[cond])
        a("s_cbranch_scc1 %s%s", X, l)
    def row(v):
        l = a.newlabel("CR")
        a.label(l)
        a("ds_read_b32 v28, v%d", v)
        a("s_sub_u32 s25, s25, 1")
        a("s_cbranch_scc1 %s", abort)
        a("s_waitcnt lgkmcnt(0)")
        a("v_cmp_eq_u32 vcc, 0, v28")
        a("s_cbranch_vccnz %s", l)
    TS(1)
    skip("noA", "c1")
    row(31)
    a("v_readlane_b32 s97, v28, 7")
    a("s_lshr_b32 s97, s97, 1")
    achk("CIa", 0)
    TS(2)
    for c in range(2):
        a.label(X + "c%d" % c)
        skip("noB", "h")
        a("s_waitcnt vmcnt(16)")
        for n in range(6): interleave(a, breg(n))
        TS(3)
        for i, n in enumerate(hi):
            a("s_waitcnt vmcnt(%d)", 14 - 2 * i)
            b = breg(n)
            if c:
                for d in range(8): a("v_mov_b32 v%d, v%d", AW + 8 * (n - 6) + d, b + (d >> 1) + 4 * (d & 1))
            else:
                interleave(a, b)
                for hf in range(2):
                    a("ds_write_b128 v15, %s offset:%d", vr(b + 4 * hf, 4), (n - 6) * 2048 + hf * 1024)
        if c == 0: a("s_branch %sh", X)
    a.label(X + "h")
    TS(4)
    achk("CIb", 0)
    a("s_cmp_lt_u32 s14, 3")
    a("s_cbranch_scc1 CI2")
    a("s_waitcnt lgkmcnt(0)")
    a("s_cmp_lt_u32 s14, 6")
    a("s_cbranch_scc1 CIx")
    xload()
    a.label("CIx")
    a("s_cmp_lg_u32 s60, 3")
    a("s_cbranch_scc1 CIu")
    a("s_cmp_lg_u32 s14, 7")
    a("s_cbranch_scc1 CIt")
    a("s_mul_i32 s50, s20, 5120")
    add64(a, 50, 26, off_sgpr=50)
    a("v_min_u32 v19, 39, v1")
    a("v_lshlrev_b32 v19, 7, v19")
    a("global_load_dword v29, v19, s[50:51] sc1")
    if ctouch: code_touch(a, "CI2", 0, 23, 29)
    if wu & 1:
        a("global_load_dword v29, v2, s[40:41] sc1")
        a("global_load_dword v29, v2, s[48:49] sc1")
    a.label("CIt")
    a("s_lshr_b32 s50, s14, 2")
    a("s_lshl_b32 s50, s50, 12")
    a("v_add_u32 v17, s50, v16")
    if nk < 14:
        a("v_min_u32 v19, %d, v1", 7 * (14 - nk) - 1)
        a("v_lshlrev_b32 v19, 2, v19")
        a("s_lshl_b32 s50, s20, 7")
        a("s_add_u32 s50, s50, 0x%x", AFL)
        a("v_add_u32 v19, s50, v19")
        a("v_mov_b32 v18, %d", L_FL + 392)
    a.label("CH_t0")
    if nk < 14: a("global_load_dword v48, v19, s[4:5] sc1")
    for k in range(4): a("global_load_dwordx4 %s, v17, s[52:53] offset:%d sc1", vr(32 + 4 * k, 4), 1024 * k)
    a("s_sub_u32 s25, s25, 1")
    a("s_cbranch_scc1 %s", abort)
    if nk < 14:
        a("s_waitcnt vmcnt(4)")
        a("v_cmp_eq_u32 vcc, s19, v48")
        a("v_mov_b32 v49, vcc_lo")
        a("ds_or_b32 v18, v49")
        achk("CId", 0)
    a("s_waitcnt vmcnt(0)")
    allnon(a, list(range(32, 48 + (nk < 14))))
    a("v_cmp_ne_u32 vcc, 0, v32")
    a("s_cbranch_vccnz CH_t0")
    if wu & 2:
        a("s_cmp_eq_u32 s14, 7")
        a("s_cbranch_scc1 CIu")
        a("v_lshlrev_b32 v19, 7, v1")
        a("v_add_u32 v18, 8192, v19")
        a("global_load_dword v29, v19, s[38:39] sc1")
        a("global_load_dword v29, v18, s[38:39] sc1")
        a("v_add_u32 v19, %d, v18", 28 * 16384)
        a("global_load_dword v29, v19, s[38:39] sc1")
    a.label("CIu")
    row(30)
    a("s_cmp_eq_u32 s14, 7")
    a("s_cbranch_scc1 CI2")
    a("s_waitcnt vmcnt(0)")
    def m0cvt(r):
        for d in range(4):
            a("v_lshlrev_b32 v18, 16, v%d", r + d)
            a("v_and_b32 v%d, 0xffff0000, v%d", r + d, r + d)
            a("v_cvt_pk_f16_f32 v%d, v18, v%d", r + d, r + d)
    m0cvt(20)
    a("ds_write_b128 v14, v[20:23]")
    a("s_cmp_eq_u32 s14, 3")
    a("s_cbranch_scc1 CI2")
    m0cvt(24)
    a("v_subrev_u32 v18, 4096, v14")
    a("ds_write_b128 v18, v[24:27]")
    a.label("CI2")
    achk("CIc", 1)
    a("v_mov_b32 v0, 0")
    a("s_waitcnt vmcnt(0) lgkmcnt(0)")
    if nk < 14:
        a("s_cmp_eq_u32 s96, 0")
        a("s_cbranch_scc1 CIs")
        for i in range(8 * nk - 56, 56): a("v_swap_b32 v%d, v%d", AW + i, AW + 56 + i)
        a.label("CIs")
    if prof == 4:
        a("s_memrealtime s[94:95]")
        for w, r in ((4, 90), (2, 92), (6, 78)):
            a("s_cmp_eq_u32 s14, %d", w)
            a("s_cselect_b32 s98, s%d, s98", r)
    if prof == 4:
        TS(5)
        a("s_waitcnt lgkmcnt(0)")
        for k in range(6): a("v_writelane_b32 v24, s%d, %d", TSR[k], k + 1)
        a("v_writelane_b32 v24, s92, 0")
        a("v_writelane_b32 v24, s94, 7")
        a("v_writelane_b32 v24, s76, 8")
        a("v_writelane_b32 v24, s90, 9")
        a("s_lshl_b32 s50, s20, 3")
        a("s_add_u32 s50, s50, s14")
        a("s_lshl_b32 s50, s50, 8")
        a("s_add_u32 s50, s50, 0x%x", POIS_END + 0x300000)
        a("v_lshlrev_b32 v25, 2, v1")
        a("v_add_u32 v25, s50, v25")
        a("global_store_dword v25, v24, s[4:5]")
    a("v_mov_b32 v%d, v16", STG + 8)
    for i in range(8): a("v_mov_b32 v%d, s19", STG + i)
    def slotptr(d, base, delta, stride):
        a("s_add_u32 s50, s24, %d", delta)
        a("s_and_b32 s50, s50, 3")
        a("s_mul_i32 s50, s50, %d", stride)
        add64(a, d, base, off_sgpr=50)
    def adv(r, n):
        if (xp & 1) and r in (38, 42, 44, 54, 56): return
        a("s_add_u32 s%d, s%d, %d", r, r, n); a("s_addc_u32 s%d, s%d, 0", r + 1, r + 1)
    def ptrs(w, first=False):
        if w != 4: slotptr(34, 28, 0, SR_STRIDE)
        if w >= 5: slotptr(36, 28, 3, SR_STRIDE)
        slotptr(30, 26, 1, MEMR_STRIDE)
        if w == 6: slotptr(32, 26, 3, MEMR_STRIDE)
        if w >= 6: adv(42, 28 * 1024)
        if w >= 4: adv(54, 28 * 16384)
        if first: return
        if w < 4: adv(38, 28 * 16384); adv(48, 8192)
        if w == 7: adv(40, 28 * 4096); adv(44, 28 * 1024)
        if w <= 4: adv(56, 28 * 16384)
    G1 = (GX, GX + 4, GM, GM + 1); G2 = (MFR + 24, STG + 12, EX + 26, EX + 27)
    def gather(G=G1):
        a("global_load_dwordx4 %s, v10, s[34:35] sc1", vr(G[0], 4))
        a("global_load_dwordx4 %s, v10, s[34:35] offset:1024 sc1", vr(G[1], 4))
        if gm: a("global_load_dwordx2 %s, v11, s[34:35] sc1", vr(G[2], 2)); return
        a("global_load_dword v%d, v11, s[34:35] sc1", G[2])
        a("global_load_dword v%d, v11, s[34:35] offset:256 sc1", G[3])
    def zero(r, n=4):
        for i in range(n): a("v_mov_b32 v%d, 0", r + i)
    def memx():
        a("ds_read2_b64 %s, v4 offset0:0 offset1:32", vr(STG, 4))
        a("s_waitcnt lgkmcnt(0)")
        a("global_store_dwordx4 v13, %s, s[48:49] sc1", vr(STG, 4))
    def tbx_read(d):
        for k in range(4):
            a("ds_read_b128 %s, v2 offset:%d", vr(d + 4 * k, 4), L_TB2 + k * 1024)
    def tbx_store(d):
        for k in range(4):
            a("global_store_dwordx4 v2, %s, s[40:41] offset:%d sc1", vr(d + 4 * k, 4), (k >> 1) * 4096 + (k & 1) * 1024 - 2048)

    class TB:
        def __init__(self, w, q):
            self.w = w; self.q = q
            self.loc = {n: BW + 8 * n for n in range(6)}
            if w == 7:
                for n in range(6, 14): self.loc[n] = AW + 8 * (n - 6)
                self.pend = []; self.order = list(range(14))
            else:
                self.pend = list(range(6, 14))
                self.order = [6, 0, 7, 1, 8, 2, 9, 3, 10, 4, 11, 5, 12, 13]
            self.lds = set(self.pend); self.pos = 0
        def stage(self, slot):
            if not self.pend: return
            n = self.pend.pop(0); self.loc[n] = slot
            for hf in range(2):
                self.q.issue(("B", n), "ds_read_b128 %s, v15 offset:%d", vr(slot + 4 * hf, 4), (n - 6) * 2048 + hf * 1024)
        def late(self):
            self.order = [0, 1, 2, 6, 3, 7, 4, 8, 5, 9, 10, 11, 12, 13]
        def run(self, upto, hooks={}):
            while self.pos < upto:
                n = self.order[self.pos]
                self.q.wait(("M", n >> 1))
                if n in self.lds: self.q.wait(("B", n))
                a(SM, vr(ACC1 if n & 1 else ACC0, 4), vr(MFR + 4 * (n >> 1), 4), vr(self.loc[n], 8))
                if n in self.lds: self.stage(self.loc[n])
                if self.pos in hooks: hooks[self.pos]()
                self.pos += 1
    TBO = MFR; TPR = MFR + 8; PX = MFR + 12; PM = MFR + 16; T0 = MFR + 18; T1 = MFR + 19; RZ = MFR + 20
    ONE = STG; ZA = STG + 8
    def tb_cvt(d):
        for b, acc in enumerate((ACC0, ACC1)):
            a("v_cvt_pk_f16_f32 v%d, v%d, v%d", d + 2 * b, acc, acc + 1)
            a("v_cvt_pk_f16_f32 v%d, v%d, v%d", d + 2 * b + 1, acc + 2, acc + 3)
    def tb_give(d=TBO):
        tb_cvt(d)
        a("ds_write_b128 v12, %s", vr(d, 4))
        a("s_waitcnt lgkmcnt(0)")
        P("TB done")
    def tb_take1():
        a("s_barrier")
        a("ds_read_b128 %s, v12", vr(TPR, 4))
    def tb_take2():
        a("s_waitcnt lgkmcnt(0)")
        for d in range(4): a("v_pk_add_f16 v%d, v%d, v%d", TBO + d, TBO + d, TPR + d)
    def tb_take3():
        for b in range(2): a("ds_write_b64 v8, %s offset:%d", vr(TBO + 2 * b, 2), b * 2048)
    def mread(q, n):
        q.issue(("O", n) if n < 7 else ("M", n - 7), "ds_read_b128 %s, v%d offset:%d", vr(MFR + 4 * (n % 7), 4), 3 if n < 7 else 6, (n % 7) * 512)

    FLG = 192 * 1024
    class _N:
        def __call__(self, *x): pass
    def wave_loop(w, hp):
        pv = w < 4; N = MODE["PX"] + ("H%d" if hp else "C%d") % w
        ST = MODE["ST"]
        uchk = merged and hp and w == 4
        def ufl_ld(delta):
            a("s_add_u32 s50, s24, %d", delta)
            a("s_min_u32 s50, s50, 63")
            a("s_lshl_b32 s50, s50, 11")
            add64(a, 50, 52, off_sgpr=50)
            for k in range(2): a("global_load_dwordx4 %s, v%d, s[50:51] offset:%d sc1", vr(STG + 4 * k, 4), STG + 8, 1024 * k)
        TA = GX if pv else ACC0
        W7 = AW + 64
        r = {7: W7}.get(w, EX); r2 = r + 8; t = MFR
        pol = w != 6
        tail = []
        def poll(r):
            a("global_load_dwordx4 %s, v14, s[58:59] offset:-3584 sc1", vr(r, 4))
            a("global_load_dwordx4 %s, v14, s[58:59] offset:3584 sc1", vr(r + 4, 4))
        def newtb(q0, q):
            if hp: return None
            tb = TB(w, q0)
            if w < 6: tb.stage(STG); tb.stage(STG + 8)
            tb.q = q
            return tb
        def pre():
            newtb(LQ(a), None)
            if w != 7: zero(TA)
            if (pv or w == 7) and not hp: zero(ACC0); zero(ACC1)
            a("s_setprio 1")
        def mchk(x, lab):
            for d in range(4): a("v_pk_add_f16 v%d, v%d, v%d", t + d, x + d, x + 4 + d)
            a("ds_write_b128 v14, %s", vr(t, 4))
            a("v_pk_maximum3_f16 v%d, v%d, v%d, v%d", t + 4, t, t + 1, t + 2)
            a("v_pk_maximum3_f16 v%d, v%d, v%d, v%d", t + 4, t + 4, t + 3, t + 3)
            a("v_cmp_u_f16 vcc, v%d, v%d", t + 4, t + 4)
            a("s_cbranch_vccnz %s", lab)
        a.label(N + "_entry")
        if lt and w == 4: a("s_memrealtime s[98:99]")
        if w == 6 and not hp: add64(a, 48, 4, imm=MEMP)
        if (wu & 4) and w >= 5 and not ST:
            for i in range(2): a("v_mov_b32 v%d, -1", MFR + i)
            for k in (1, 2):
                if w == 6 and not hp:
                    add64(a, 50, 26, imm=k * MEMR_STRIDE)
                    a("global_store_dwordx2 v13, %s, s[50:51]", vr(MFR, 2))
            a("s_mov_b64 exec, s[46:47]")
            for k in (1, 2):
                add64(a, 50, 28, imm=k * SR_STRIDE)
                if w == 5: a("global_store_dword v9, v%d, s[50:51]", MFR)
                else: a("global_store_dwordx2 v9, %s, s[50:51]", vr(MFR, 2))
            a("s_mov_b64 exec, -1")
        if w == 7 and hp and (fin & 4):
            a("s_getpc_b64 s[48:49]")
            a.label(N + "_pc")
            a("s_sub_u32 s48, s48, %s_pc-%sC0_fin", N, MODE["PX"]); a("s_subb_u32 s49, s49, 0")
            a("s_and_b32 s50, s20, 1")
            a("s_lshl_b32 s50, s50, 13")
            a("v_lshlrev_b32 v%d, 7, v1", BW + 30)
            a("v_add_u32 v%d, s50, v%d", BW + 30, BW + 30)
        ptrs(w, True)
        pre()
        a("s_branch %s_top", N)
        a.raw(".p2align 6")
        a.label(N + "_loop")
        if pol:
            a("s_waitcnt vmcnt(%d)", 2 if p2 else 0)
            mchk(r, N + "_mre")
            def mre():
                a.label(N + "_mre")
                poll(r)
                P("M re")
                if prof: a("s_add_u32 s62, s62, 1")
                a("s_sub_u32 s25, s25, 1")
                a("s_cbranch_scc1 %s", abort)
                if p2:
                    a("s_waitcnt vmcnt(2) lgkmcnt(0)")
                    mchk(r2, N + "_mre2")
                    a("s_branch %s_got", N)
                    a.label(N + "_mre2")
                    poll(r2)
                a("s_waitcnt lgkmcnt(0)")
                a("s_branch %s_loop", N)
            tail.append(mre)
        else:
            if fin & 1:
                a("s_cmp_eq_u32 s24, 63")
                a("s_cbranch_scc1 %s_top", N)
            a("s_waitcnt vmcnt(0)")
        a.label(N + "_got")
        P("mem got")
        a.label(N + "_top")
        a("s_cmp_eq_u32 s24, 63")
        a("s_waitcnt lgkmcnt(0)")
        a("s_barrier")
        P("top")
        a("s_cbranch_scc1 %s_fin", N)
        q = LQ(a)
        tb = newtb(LQ(_N()), q)
        if w != 7:
            dp = dep if pv else dep2
            for n in range(dp): mread(q, n)
            for n in range(14):
                if n == 0: P("a pre")
                q.wait(("O", n) if n < 7 else ("M", n - 7))
                a(SM, vr(TA, 4), vr(MFR + 4 * (n % 7), 4), vr(AW + n * 8, 8))
                if n in (0, 2, 4, 6, 8, 10, 13): P("a%d" % n)
                if n + dp < 14: mread(q, n + dp)
            if pv and not hp:
                for k in range(2): a("global_load_dwordx4 %s, v13, s[38:39] offset:%d sc1", vr(UR + 4 * k, 4), k * 1024)
            a("v_cvt_pk_f16_f32 v%d, v%d, v%d", TA, TA, TA + 2)
            a("v_cvt_pk_f16_f32 v%d, v%d, v%d", TA + 1, TA + 1, TA + 3)
            q.issue("T", "ds_write2_b32 v7, v%d, v%d offset0:0 offset1:4", TA, TA + 1)
            if pv:
                a("s_setprio 0")
                if hp:
                    if not (xp & 2): memx()
                else:
                    for k in range(2, 4): a("global_load_dwordx4 %s, v13, s[38:39] offset:%d sc1", vr(UR + 4 * k, 4), k * 1024)
                    tb.run(nb2)
            if uchk:
                a.label(N + "_uc")
                allnon(a, [STG + i for i in range(8)])
                a("v_cmp_ne_u32 vcc, 0, v%d", STG)
                a("s_cbranch_vccnz %s_ure", N)
                def ure():
                    a.label(N + "_ure")
                    ufl_ld(3)
                    a("s_sub_u32 s25, s25, 1")
                    a("s_cbranch_scc1 %s", abort)
                    a("s_waitcnt vmcnt(0)")
                    a("s_branch %s_uc", N)
                tail.append(ure)
            q.wait("T")
            if w == 5: a("s_waitcnt vmcnt(0)")
        elif hp:
            a("global_load_dword v%d, v10, s[44:45] sc1", BW + 28)
            if fin & 4: a("global_load_dword v%d, v%d, s[48:49]", BW + 29, BW + 30)
        else:
            a("s_setprio 0")
            if nv > 0: a("global_load_dword v4, v10, s[54:55] sc1")
            tbx_read(STG)
            a("s_waitcnt lgkmcnt(0)")
            if not (xp & 2): tbx_store(STG)
            for n in range(7, 14): mread(q, n)
            tb.run(nb7)
        P("TA done")
        a("s_barrier")
        P("bar2")
        def pubS():
            a("s_barrier")
            P("pubS")
        def gath():
            P("G iss")
            gather()
        if w >= 5:
            a("s_setprio %d", p7)
            ring = {5: [EX + 4 * k for k in range(7)], 6: [STG, STG + 4, STG + 8, STG + 12, ACC1], 7: [W7 + 16 + 4 * k for k in range(7)]}[w]
            SA = W7 + 44 if w == 7 else ACC0
            D = len(ring)
            def trd(k):
                if w == 5: q.issue(("S", k), "ds_read2_b64 %s, v%d offset0:%d offset1:%d", vr(ring[k], 4), 8 if k < 4 else 10, (k & 3) * 64, (k & 3) * 64 + 16)
                else: q.issue(("S", k), "ds_read_b128 %s, v8 offset:%d", vr(ring[k % D], 4), k * 512)
            for k in range(min(D, 7)): trd(k)
            for k in range(7):
                q.wait(("S", k))
                a("v_mfma_f32_16x16x32_f16 %s, %s, %s, %s", vr(SA, 4), vr((MFR if w == 5 else XR) + 4 * k, 4), vr(ring[k % D], 4), vr(SA, 4) if k else "0")
                if k + D < 7: trd(k + D)
            o = ring[2]
            if not (s4 and w > 5): a("s_mov_b64 exec, s[46:47]")
            late = (pz & 1) and not hp
            if not late: a("v_mov_b32 v%d, -1", o + 2)
            if w == 5:
                a("v_cvt_pk_f16_f32 v%d, v%d, v%d", o, ACC0, ACC0 + 1)
                a("global_store_dword v9, v%d, s[34:35] %s", o, ST)
                if not late: a("global_store_dword v9, v%d, s[36:37] %s", o + 2, ST)
            else:
                if not late: a("v_mov_b32 v%d, -1", o + 3)
                if s4: o = ring[3]; oo = ring[2]
                a("v_cvt_pk_f16_f32 v%d, v%d, v%d", o, SA, SA + 1)
                a("v_cvt_pk_f16_f32 v%d, v%d, v%d", o + 1, SA + 2, SA + 3)
                if s4:
                    for i in range(2): a("v_permlane16_swap_b32 v%d, v%d", o + i, o + 2 + i)
                    a("s_mov_b32 exec_lo, 0xff")
                    a("s_mov_b32 exec_hi, 0xff")
                    a("global_store_dwordx4 v9, %s, s[34:35] %s", vr(o, 4), ST)
                    o = oo
                    if not late: a("s_mov_b64 exec, s[46:47]")
                else: a("global_store_dwordx2 v9, %s, s[34:35] %s", vr(o, 2), ST)
                if not late: a("global_store_dwordx2 v9, %s, s[36:37] %s", vr(o + 2, 2), ST)
            a("s_mov_b64 exec, -1")
            a("s_setprio 0")
            P("S pub")
            pubS()
            if not hp:
                if w == 6: tb.stage(STG)
                if w < 7: zero(ACC0); zero(ACC1)
                if w == 6:
                    tb.late()
                    tb.stage(STG + 8)
                tb.run(14)
                tb_give()
                a("s_barrier")
                if w >= 6: xload()
                for i in range(2): a("v_mov_b32 v%d, -1", ACC1 + i)
                if w == 6 and (pz & 2): a("global_store_dwordx2 v13, %s, s[32:33] %s", vr(ACC1, 2), ST)
                if late:
                    a("s_mov_b64 exec, s[46:47]")
                    if w == 5: a("global_store_dword v9, v%d, s[36:37] %s", ACC1, ST)
                    else: a("global_store_dwordx2 v9, %s, s[36:37] %s", vr(ACC1, 2), ST)
                    a("s_mov_b64 exec, -1")
                if w != 6: spf(w)
        elif hp:
            if w == 4: a("s_setprio 0")
            pubS()
        elif pv: tb.run(nb3); pubS(); tb.run(14, {gpos: gath})
        else:
            a("s_setprio 0")
            zero(ACC0); zero(ACC1)
            tb.run(14, {bpos: pubS})
            tb_give()
            spf(4)
            a("s_barrier")
        if hp:
            if w <= 4:
                for i in range(NHP): a("global_load_dword v%d, v%d, s[56:57] sc1", EX + i, BW + i)
                if uchk: ufl_ld(4)
            elif w >= 6: xload()
            elif flag:
                for i in range(flag - 1): a("global_load_dword v%d, v11, s[26:27] sc1", EX + i)
                a.label(N + "_fl")
                a("s_sub_u32 s25, s25, 1")
                a("s_cbranch_scc1 %s", abort)
                for i in range(flag):
                    a("global_load_dword v%d, v11, s[26:27] sc1", EX + (i + flag - 1) % flag)
                    a("s_waitcnt vmcnt(%d)", flag - 1)
                    a("v_cmp_gt_i32 vcc, s24, v%d", EX + i)
                    if i < flag - 1: a("s_cbranch_vccz %s_fd", N)
                    else: a("s_cbranch_vccnz %s_fl", N)
                a.label(N + "_fd")
            if flag: a("s_barrier")
        if pv and not hp:
            for i in range(8): a("v_mov_b32 v%d, 0x3c003c00", ONE + i)
            if gpos == 18: gath()
            zero(ZA)
            if gpos == 14: gath()
            tb_cvt(TBO)
            if gpos == 16: gath()
            zero(TBO + 4, 2); zero(PM + 1, 1)
            if gpos == 17: gath()
            zero(ACC0); zero(ACC1)
            if w == 3: a("v_mov_b32 v%d, s24", RZ)
            if gpos == 15: gath()
            if g2: gather(G2)
            P("II")
            def gchk(G, lab):
                for d in range(4): a("v_pk_add_f16 v%d, v%d, v%d", PX + d, G[0] + d, G[1] + d)
                a("v_pk_add_f16 v%d, v%d, v%d", PM, G[2], G[3])
                a("v_pk_maximum3_f16 v%d, v%d, v%d, v%d", T0, PX, PX + 1, PX + 2)
                a("v_pk_maximum3_f16 v%d, v%d, v%d, v%d", T0, T0, PX + 3, PM)
                a("v_pk_maximum3_f16 v%d, v%d, v%d, v%d op_sel:[0,1,0] op_sel_hi:[1,0,1]", T0, T0, T0, T0)
                a("v_mov_b32 v%d, v%d", T1, T0)
                a("v_cmp_u_f16 vcc, v%d, v%d", T0, T0)
                a("v_permlane32_swap_b32 v%d, v%d", T0, T1)
                a("v_pk_max_f16 v%d, v%d, v%d", T0, T0, T1)
                a("v_mov_b32 v%d, v%d", T1, T0)
                a("s_cbranch_vccnz %s", lab)
            a.label(N + "_sp")
            a("s_waitcnt vmcnt(%d)", 4 if g2 else 0)
            gchk(G1, N + "_gre")
            def gre():
                a.label(N + "_gre")
                P("G re")
                if prof: a("s_add_u32 s63, s63, 1")
                gather()
                a("s_sub_u32 s25, s25, 1")
                a("s_cbranch_scc1 %s", abort)
                if g2:
                    a("s_waitcnt vmcnt(4)")
                    gchk(G2, N + "_gre2")
                    a("s_branch %s_sok", N)
                    a.label(N + "_gre2")
                    gather(G2)
                a("s_branch %s_sp", N)
            tail.append(gre)
            a.label(N + "_sok")
            P("S got")
            a("v_permlane16_swap_b32 v%d, v%d", T0, T1)
            a("v_pk_max_f16 v%d, v%d, v%d", T0, T0, T1)
            for x in (PM, PX, PX + 1, PX + 2, PX + 3):
                a("v_pk_add_f16 v%d, v%d, v%d neg_lo:[0,1] neg_hi:[0,1]", x, x, T0)
            nex = [0]
            def ex(x, hi):
                a("v_exp_f16_sdwa v%d, v%d dst_sel:WORD_%d dst_unused:UNUSED_PRESERVE src0_sel:WORD_%d", x, x, hi, hi)
                if w == 3 and flag and nex[0] == fpos: a("global_store_dword v4, v%d, s[26:27] %s", RZ, ST)
                nex[0] += 1
            S2 = "v_smfmac_f32_16x16x32_f16 %s, %s, %s, v5"
            ex(PM, 0); ex(PX, 0)
            tb_take1()
            P("bar3")
            ex(PM, 1); ex(PX + 1, 0); ex(PX, 1)
            a(S2, vr(ZA, 4), vr(PM, 2), vr(ONE, 4))
            ex(PX + 2, 0); ex(PX + 1, 1); ex(PX + 3, 0); ex(PX + 2, 1); ex(PX + 3, 1)
            a(SM, vr(ZA, 4), vr(PX, 4), vr(ONE, 8))
            a(SM, vr(ACC0, 4), vr(PX, 4), vr(UR, 8))
            a(SM, vr(ACC1, 4), vr(PX, 4), vr(UR + 8, 8))
            tb_take2()
            a(S2, vr(ACC0, 4), vr(PM, 2), vr(TBO, 4))
            a(S2, vr(ACC1, 4), vr(PM, 2), vr(TBO + 2, 4))
            for i in range(4): a("v_rcp_f32 v%d, v%d", RZ + i, ZA + i)
            for b, acc in enumerate((ACC0, ACC1)):
                a("v_pk_mul_f32 %s, %s, %s", vr(acc, 2), vr(acc, 2), vr(RZ, 2))
                a("v_pk_fma_f32 %s, %s, %s, %s", vr(acc, 2), vr(acc + 2, 2), vr(RZ + 2, 2), vr(acc, 2))
                if lp: a("ds_write2_b32 v9, v%d, v%d offset0:%d offset1:%d", acc, acc + 1, 128 * b, 128 * b + 8)
                else: a("ds_write2st64_b32 v9, v%d, v%d offset0:%d offset1:%d", acc, acc + 1, b, 2 + b)
            tb_take3()
            a("s_waitcnt lgkmcnt(2)")
            P("red wr")
        if not hp:
            a("s_barrier")
            if w == 6:
                R = MFR
                for k in range(4): a("ds_read_b128 %s, v2 offset:%d", vr(R + 4 * k, 4), L_RED + k * 1024)
                if not (pz & 2):
                    a("v_mov_b32 v%d, -1", R + 16)
                    a("v_mov_b32 v%d, -1", R + 17)
                a("s_waitcnt lgkmcnt(2)")
                for d in (0, 2): a("v_pk_add_f32 %s, %s, %s", vr(R + d, 2), vr(R + d, 2), vr(R + 4 + d, 2))
                a("s_waitcnt lgkmcnt(1)")
                for d in (0, 2): a("v_pk_add_f32 %s, %s, %s", vr(R + d, 2), vr(R + d, 2), vr(R + 8 + d, 2))
                a("s_waitcnt lgkmcnt(0)")
                for d in (0, 2): a("v_pk_add_f32 %s, %s, %s", vr(R + d, 2), vr(R + d, 2), vr(R + 12 + d, 2))
                a("v_cvt_pk_f16_f32 v%d, v%d, v%d", R, R, R + 1)
                a("v_cvt_pk_f16_f32 v%d, v%d, v%d", R + 1, R + 2, R + 3)
                a("global_store_dwordx2 v13, %s, s[30:31] %s", vr(R, 2), ST)
                if not (pz & 2): a("global_store_dwordx2 v13, %s, s[32:33] %s", vr(R + 16, 2), ST)
                P("mem pub")
                spf(6)
            a("s_barrier")
            if w == 6:
                a("s_cmp_eq_u32 s24, 62")
                a("s_cselect_b64 exec, -1, 0")
                a("global_store_dwordx2 v13, %s, s[48:49] sc1", vr(MFR, 2))
                a("s_mov_b64 exec, -1")
        a("s_add_u32 s58, s30, 3584"); a("s_addc_u32 s59, s31, 0")
        pd = 0 if hp else pdel
        def p1(): poll(r); P("M iss")
        if pol and pd == 0: p1()
        a("s_add_u32 s24, s24, 1")
        ptrs(w)
        if pol and pd == 1: p1()
        if pv and not hp: a("s_waitcnt vmcnt(%d)", 0 if pd == 2 else 2)
        pre()
        if pol and pd == 2: p1()
        if P.on:
            a("s_waitcnt lgkmcnt(0)")
            P.flush()
        if pol and p2: poll(r2)
        a("s_branch %s_loop", N)
        for f in tail: f()
        a.label(N + "_fin")
        if lt and w == 4:
            a("s_memrealtime s[100:101]")
            a("s_lshl_b32 s50, s20, 4")
            a("s_add_u32 s50, s50, 0x%x", POIS_END)
            a("v_mov_b32 v%d, s50", EX + 4)
            a("s_waitcnt vmcnt(0) lgkmcnt(0)")
            for i, r in enumerate((98, 100, 18)): a("v_mov_b32 v%d, s%d", EX + i, r)
            a("global_store_dwordx3 v%d, %s, s[4:5]", EX + 4, vr(EX, 3))
        a("s_setprio 0")
        if w != 6 or not (fin & 1): a("s_waitcnt vmcnt(0)")
        if hp:
            if pv: memx()
            a("s_branch CH_fin" if prof else "s_endpgm")
            return
        q = LQ(a)
        tb = newtb(LQ(_N()), q)
        for n in range(7, 14): mread(q, n)
        if pv and (fin & 2): adv(40, 64 * 28 * 4096 - L_TB2)
        if w == 7: tbx_read(W7)
        if w == 6: tb.stage(STG); tb.stage(STG + 8)
        if w in (4, 5, 6): zero(ACC1)
        q.all()
        if w == 7: tbx_store(W7); adv(40, 28 * 4096)
        tb.run(14)
        if pv and (fin & 2):
            tb_cvt(TBO); tb_take1(); tb_take2()
            for b in range(2): a("global_store_dwordx2 v8, %s, s[40:41] offset:%d sc1", vr(TBO + 2 * b, 2), b * 4096 - 2048)
        elif pv:
            tb_cvt(TBO); tb_take1(); tb_take2(); tb_take3()
            a("s_waitcnt lgkmcnt(0)")
        else:
            tb_give()
            a("s_barrier")
        if not (fin & 2): a("s_barrier")
        if w == 7 and not (fin & 2):
            tbx_read(MFR)
            a("s_waitcnt lgkmcnt(0)")
            tbx_store(MFR)
        a("s_branch CH_fin" if prof else "s_endpgm")
    if merged:
        a("s_cmp_lg_u32 s97, 0")
        a("s_cbranch_scc1 CH_mixed")
    for px, st in ((("", ""), ("X", "sc1")) if merged else (("", ""),)):
        MODE["PX"] = px; MODE["ST"] = st
        if px: a.label("CH_mixed")
        for hp in (0, 1):
            H = px + ("H" if hp else "C")
            if hp: a.label(px + "CH_hdisp")
            else:
                a("s_cmp_eq_u32 s23, 0")
                a("s_cbranch_scc1 %sCH_hdisp", px)
            for w in (3, 4, 5, 6, 7):
                a("s_cmp_eq_u32 s14, %d", w)
                a("s_cbranch_scc1 %s%d_entry", H, w)
            for w in (0, 3, 4, 5, 6, 7): wave_loop(w, hp)
    a.label("CH_fin")
    a("s_waitcnt vmcnt(0)")
    if dbgout:
        a("s_or_b32 s50, s20, s14")
        a("s_cmp_lg_u32 s50, 1")
        a("s_cbranch_scc1 CH_nodbg")
        a("s_cmp_lg_u32 s20, 0")
        a("s_cbranch_scc1 CH_nodbg")
        a("s_mov_b32 s52, s100")
        a("v_readlane_b32 s50, v0, 1")
        a("v_readlane_b32 s51, v0, 63")
        a("s_sub_u32 s52, s100, s52")
        a("s_sub_u32 s50, s50, s100")
        a("s_sub_u32 s51, s51, s100")
        a("s_sub_u32 s53, s64, s98")
        a("v_mov_b32 v16, s52"); a("v_mov_b32 v17, s50"); a("v_mov_b32 v18, s51"); a("v_mov_b32 v19, s53")
        a("s_sub_u32 s53, s66, s100")
        a("v_mov_b32 v20, s53")
        a("v_mov_b32 v21, 0")
        a("global_store_dwordx4 v21, v[16:19], s[10:11]")
        a("global_store_dword v21, v20, s[10:11] offset:16")
        a.label("CH_nodbg")
    if prof:
        a("s_lshl_b32 s50, s20, 3")
        a("s_add_u32 s50, s50, s14")
        a("s_lshl_b32 s50, s50, 8")
        a("s_add_u32 s50, s50, 0x%x", POIS_END)
        add64(a, 50, 4, off_sgpr=50)
        if prof == 4:
            a("s_bitcmp1_b32 s14, 0")
            a("s_cselect_b32 s98, s100, s98")
            a("s_cmp_eq_u32 s14, 3")
            a("s_cselect_b32 s98, s94, s98")
            a("s_memrealtime s[94:95]")
            a("s_waitcnt lgkmcnt(0)")
            a("s_cmp_eq_u32 s14, 5")
            a("s_cselect_b32 s98, s66, s98")
            a("s_cmp_eq_u32 s14, 7")
            a("s_cselect_b32 s98, s94, s98")
            a("v_writelane_b32 v%d, s98, 0", VP)
        else:
            a("v_writelane_b32 v%d, s62, 22", VP)
            a("v_writelane_b32 v%d, s63, 23", VP)
        a("v_lshlrev_b32 v16, 2, v1")
        a("global_store_dword v16, v%d, s[50:51]", VP)
    return P.names
```

```python
from common import *
LX = 0; LM = 28 * 1024; LP = 36 * 1024; LPM = 52 * 1024
MF = "v_mfma_f32_16x16x32_f16 %s, %s, %s, %s"
def emit_f(a, abort, nb, pre=None, prof=0, gate=2, lq=0, ntask=0, fo=0):
    dry = fo & 1; direct = fo & 2; split = fo & 4; ngate = fo & 8; two = fo & 16; tp = (fo >> 5) & 3
    QR = 16; SX = 128; SMm = 144; RING = 152; UE = 176; FOR = 248; TBR = 72; PR = 104
    a.c("---- F task")
    a("s_mov_b32 s25, 0x400000")
    a("s_min_u32 s24, s14, 6")
    a("s_mul_i32 s23, s23, 7")
    a("s_add_u32 s23, s23, s24")
    if nb == 2: a("s_lshl_b32 s23, s23, 1")
    a("s_mul_i32 s26, s21, %d", 28 * 1024)
    a("s_add_u32 s26, s26, 0x%x", XF)
    add64(a, 26, 4, off_sgpr=26)
    a("s_lshl_b32 s28, s21, 4")
    a("s_lshl_b32 s29, s14, 1")
    a("s_add_u32 s28, s28, s29")
    a("s_lshl_b32 s28, s28, 1")
    a("s_add_u32 s28, s28, s22")
    a("s_mul_i32 s28, s28, %d", 14 * 1024)
    a("s_add_u32 s28, s28, 0x%x", QF + 4096)
    add64(a, 28, 4, off_sgpr=28)
    a("s_mul_i32 s30, s21, 28")
    a("s_add_u32 s30, s30, s23")
    a("s_lshr_b32 s32, s30, 1")
    a("s_lshl_b32 s32, s32, 15")
    a("s_and_b32 s31, s30, 1")
    a("s_lshl_b32 s33, s31, 11")
    a("s_add_u32 s32, s32, s33")
    a("s_add_u32 s32, s32, 0x%x", UF + 4096)
    add64(a, 32, 4, off_sgpr=32)
    a("s_lshl_b32 s34, s30, 1")
    a("s_add_u32 s34, s34, s22")
    a("s_lshl_b32 s34, s34, 10")
    a("s_add_u32 s34, s34, 0x%x", FO)
    add64(a, 34, 4, off_sgpr=34)
    a("s_lshl_b32 s36, s30, 12")
    a("s_add_u32 s36, s36, 0x%x", TBX + 4096)
    add64(a, 36, 4, off_sgpr=36)
    a("s_lshl_b32 s38, s21, 13")
    a("s_lshl_b32 s39, s24, 10")
    a("s_add_u32 s38, s38, s39")
    a("s_add_u32 s38, s38, 0x%x", MEMX)
    a("s_add_u32 s39, s39, %d", LM)
    a("v_add_u32 v14, s39, v2")
    add64(a, 38, 4, off_sgpr=38)
    a("s_add_u32 s52, s21, %d", gate)
    a("s_min_u32 s52, s52, 63")
    a("s_lshl_b32 s52, s52, 13")
    a("s_add_u32 s52, s52, 0x%x", MEMX)
    add64(a, 52, 4, off_sgpr=52)
    a("s_lshl_b32 s48, s21, 1")
    a("s_add_u32 s48, s48, s22")
    a("s_mul_i32 s48, s48, %d", 16 * 896)
    a("s_lshr_b32 s49, s23, 1")
    a("s_lshl_b32 s49, s49, 6")
    a("s_add_u32 s48, s48, s49")
    a("s_lshl_b32 s49, s31, 3")
    a("s_add_u32 s48, s48, s49")
    add64(a, 48, 8, off_sgpr=48)
    a("v_mul_u32_u24 v15, 896, v4")
    a("v_lshl_add_u32 v15, v3, 4, v15")
    for k in range(1, 4): a("v_add_u32 v%d, %d, v2", 4 + k, k * 8192)
    a("v_lshrrev_b32 v12, 2, v4")
    a("v_lshlrev_b32 v12, 1, v12")
    a("v_and_b32 v13, 1, v4")
    a("v_add_u32 v12, v12, v13")
    a("v_lshlrev_b32 v12, 4, v12")
    a("v_lshl_add_u32 v12, v3, 7, v12")
    a("v_add_u32 v12, %d, v12", LM)
    a("v_lshlrev_b32 v13, 2, v3")
    a("v_sub_u32 v13, v4, v13")
    for r in range(4): a("v_cmp_le_i32 s[%d:%d], %d, v13", 40 + 2 * r, 41 + 2 * r, r)
    ld = [a.newlabel("Fd") for tt in range(2)]; lre = a.newlabel("Fre")
    if dry:
        a("s_mov_b32 s54, 1")
        a("s_cmp_eq_u32 s22, 1")
        a("s_cbranch_scc1 %s", ld[1])
        a("s_branch %s", ld[0])
        a.label(lre)
        a("s_mov_b32 s54, 0")
        a("s_waitcnt vmcnt(0)")
    if pre: pre()
    a("s_barrier")
    a("v_mov_b32 v8, %d", lq)
    a("ds_read_b32 v9, v8")
    a("s_waitcnt lgkmcnt(0)")
    a("v_readfirstlane_b32 s55, v9")
    av = lambda off: ([2, 5, 6, 7][off // 8192], off % 8192 - 4096)
    end = a.newlabel("Fend")
    l1 = a.newlabel("Ft1")
    a("s_cmp_eq_u32 s22, 1")
    a("s_cbranch_scc1 %s", l1)
    for tt in range(2):
        if tt: a.label(l1)
        nx = 2 * (tt + 1)
        a("s_mul_i32 s50, s24, %d", nx * 1024)
        a("v_add_u32 v8, s50, v2")
        a("s_add_u32 m0, s50, %d", LX)
        for k in range(nx): a("global_load_lds_dwordx4 v8, s[26:27] offset:%d", 1024 * k)
        for hh in range(2):
            for ks in range(14):
                v, o = av(ks * 1024)
                a("global_load_dwordx4 %s, v%d, s[28:29] offset:%d sc1" + nt(1024), vr(QR + (hh * 14 + ks) * 4, 4), v, o)
            if hh == 0:
                a("s_add_u32 s28, s28, %d", 28 * 1024); a("s_addc_u32 s29, s29, 0")
        ufr = [(p, t, b) for p in range(8) for t in range(tt + 1) for b in range(nb)]
        ureg = {f: (UE + 4 * n if n < 18 else QR + 4 * (n - 18)) for n, f in enumerate(ufr)}
        def uld(f):
            p, t, b = f
            v, o = av((p * 4 + b * 2 + t) * 1024)
            a("global_load_dwordx4 %s, v%d, s[32:33] offset:%d sc1" + nt(2048), vr(ureg[f], 4), v, o)
        for f in ufr[:18]: uld(f)
        for b in range(nb): a("global_load_dwordx4 %s, v2, s[34:35] offset:%d sc1" + nt(1024), vr(FOR + 4 * b, 4), b * 2048)
        ne = min(len(ufr), 18) + nb
        a("s_waitcnt vmcnt(%d)", 28 + ne)
        a("s_barrier")
        fr = [(ks, t) for ks in range(14) for t in range(tt + 1)]
        def rd(n):
            ks, t = fr[n]
            a("ds_read_b128 %s, v2 offset:%d", vr(RING + (n % 6) * 4, 4), LX + (t * 14 + ks) * 1024)
        for n in range(5): rd(n)
        a("s_waitcnt vmcnt(%d)", ne)
        for n in range(len(fr)):
            if n + 5 < len(fr): rd(n + 5)
            a("s_waitcnt lgkmcnt(%d)", min(5, len(fr) - 1 - n))
            ks, t = fr[n]
            for hh in range(2):
                d = vr(SX + (hh * 2 + t) * 4, 4)
                a(MF, d, vr(RING + (n % 6) * 4, 4), vr(QR + (hh * 14 + ks) * 4, 4), d if ks else "0")
        a("v_mov_b32 v8, 0xff800000")
        vals = []
        for hh in range(2):
            for r in range(4):
                x = SX + (hh * 2 + tt) * 4 + r
                a("v_cndmask_b32 v%d, v8, v%d, s[%d:%d]", x, x, 40 + 2 * r, 41 + 2 * r)
            vals.append([SX + (hh * 2 + t) * 4 + r for t in range(tt + 1) for r in range(4)] + [SMm + hh * 4, SMm + hh * 4 + 1])
        n = len(vals[0])
        M0 = [13, 0]
        for hh in range(2): a("v_max_f32 v%d, v%d, v%d", M0[hh], vals[hh][0], vals[hh][1])
        for k in range(2, n - 2, 2):
            for hh in range(2): a("v_max3_f32 v%d, v%d, v%d, v%d", M0[hh], M0[hh], vals[hh][k], vals[hh][k + 1])
        M = [RING, RING + 1]; T = [RING + 2, RING + 3]; ZX = [FOR + 4, FOR + 5]
        def allred(op, M=M):
            for sw in ("v_permlane32_swap_b32", "v_permlane16_swap_b32"):
                for hh in range(2): a("v_mov_b32 v%d, v%d", T[hh], M[hh])
                for hh in range(2): a("%s v%d, v%d", sw, M[hh], T[hh])
                for hh in range(2): a("%s v%d, v%d, v%d", op, M[hh], M[hh], T[hh])
        if split:
            allred("v_max_f32", M0)
            for k in range(n - 2):
                for hh in range(2): a("v_sub_f32 v%d, v%d, v%d", vals[hh][k], vals[hh][k], M0[hh])
            for k in range(n - 2):
                for hh in range(2): a("v_exp_f32 v%d, v%d", vals[hh][k], vals[hh][k])
            for hh in range(2): a("v_add_f32 v%d, v%d, v%d", ZX[hh], vals[hh][0], vals[hh][1])
            for k in range(2, n - 2):
                for hh in range(2): a("v_add_f32 v%d, v%d, v%d", ZX[hh], ZX[hh], vals[hh][k])
        lp = a.newlabel("Fmp"); lg = a.newlabel("Fg"); lb = a.newlabel("Fgb"); l63 = a.newlabel("Fl")
        if direct:
            a("s_cmp_eq_u32 s21, 63")
            a("s_cbranch_scc1 %s", l63)
        if gate:
            a("s_cmp_ge_u32 s21, %d", 61 if ngate else 63)
            a("s_cbranch_scc1 %s", lp)
            a("s_cmp_lg_u32 s14, 7")
            a("s_cbranch_scc1 %s", lb)
            a("v_mov_b32 v8, 0")
            a.label(lg)
            a("global_load_dword v9, v8, s[52:53] sc1")
            a("s_sub_u32 s25, s25, 1")
            a("s_cbranch_scc1 %s", abort)
            a("s_waitcnt vmcnt(0)")
            a("v_cmp_eq_u32 vcc, -1, v9")
            a("s_cbranch_vccnz %s", lg)
            a.label(lb)
            a("s_barrier")
        a.label(lp)
        a("global_load_dwordx4 v[8:11], v2, s[38:39] sc1")
        a("s_sub_u32 s25, s25, 1")
        a("s_cbranch_scc1 %s", abort)
        a("s_waitcnt vmcnt(0)")
        a("v_pk_maximum3_f16 v%d, v8, v9, v10", RING)
        a("v_pk_maximum3_f16 v%d, v%d, v11, v11", RING, RING)
        a("v_cmp_u_f16 vcc, v%d, v%d", RING, RING)
        a("s_cbranch_vccnz %s", lp)
        a("ds_write_b128 v14, v[8:11]")
        if direct:
            a("s_branch %s", ld[tt])
            a.label(l63)
            a("s_lshl_b32 s50, s24, 10")
            a("s_add_u32 s38, s50, 0x%x", MEMP + 3584)
            add64(a, 38, 4, off_sgpr=38)
            a("v_and_b32 v14, 0x270, v2")
            a("v_bfe_u32 v8, v1, 3, 1")
            a("v_lshl_add_u32 v14, v8, 8, v14")
            a("v_bfe_u32 v8, v1, 4, 1")
            a("v_lshl_add_u32 v14, v8, 3, v14")
            a("s_add_u32 s50, s50, %d", LM)
            a("v_add_u32 v14, s50, v14")
            a.label(l63 + "p")
            a("global_load_dwordx4 v[8:11], v2, s[38:39] offset:-3584 sc1")
            a("global_load_dwordx4 %s, v2, s[38:39] offset:3584 sc1", vr(RING + 4, 4))
            a("s_sub_u32 s25, s25, 1")
            a("s_cbranch_scc1 %s", abort)
            a("s_waitcnt vmcnt(0)")
            for d in range(4): a("v_pk_add_f16 v%d, v%d, v%d", 8 + d, 8 + d, RING + 4 + d)
            a("ds_write2_b64 v14, v[8:9], v[10:11] offset0:0 offset1:16")
            a("v_pk_maximum3_f16 v%d, v8, v9, v10", RING)
            a("v_pk_maximum3_f16 v%d, v%d, v11, v11", RING, RING)
            a("v_cmp_u_f16 vcc, v%d, v%d", RING, RING)
            a("s_waitcnt lgkmcnt(0)")
            a("s_cbranch_vccnz %sp", l63)
        a.label(ld[tt])
        if prof: a("s_memrealtime s[64:65]")
        a("s_waitcnt lgkmcnt(0)")
        a("s_barrier")
        def rm(n): a("ds_read_b128 %s, v12 offset:%d", vr(RING + (n % 6) * 4, 4), n * 512)
        for k in range(5): rm(k)
        for k in range(14):
            if k + 5 < 14: rm(k + 5)
            a("s_waitcnt lgkmcnt(%d)", min(5, 13 - k))
            for hh in range(2):
                d = vr(SMm + hh * 4, 4)
                a(MF, d, vr(RING + (k % 6) * 4, 4), vr(QR + (hh * 14 + k) * 4, 4), d if k else "0")
        for f in ufr[18:]: uld(f)
        def tbl(R=TBR):
            for b in range(nb):
                for pp in range(4):
                    a("global_load_dwordx4 %s, v2, s[36:37] offset:%d sc1", vr(R + (b * 4 + pp) * 4, 4), (b * 4 + pp) * 1024 - 4096)
        if tp == 0: tbl()
        a("s_lshl_b32 s50, s14, 11")
        a("s_add_u32 s50, s50, %d", LP)
        a("v_add_u32 v8, s50, v2")
        a("s_lshr_b32 s50, s14, 1")
        a("s_lshl_b32 s50, s50, 10")
        a("s_and_b32 s51, s14, 1")
        a("s_lshl_b32 s51, s51, 3")
        a("s_add_u32 s50, s50, s51")
        a("s_add_u32 s50, s50, %d", LPM)
        a("v_add_u32 v9, s50, v2")
        for hh in range(2): a("v_max3_f32 v%d, v%d, v%d, v%d", M[hh], M0[hh], vals[hh][n - 2], vals[hh][n - 1])
        allred("v_max_f32")
        if tp == 1: tbl()
        if split:
            late = [[M0[hh], vals[hh][n - 2], vals[hh][n - 1]] for hh in range(2)]
            for k in range(3):
                for hh in range(2): a("v_sub_f32 v%d, v%d, v%d", late[hh][k], late[hh][k], M[hh])
            for k in range(3):
                for hh in range(2): a("v_exp_f32 v%d, v%d", late[hh][k], late[hh][k])
            for hh in range(2): a("v_fma_f32 v%d, v%d, v%d, v%d", M[hh], M0[hh], ZX[hh], late[hh][1])
            for hh in range(2): a("v_add_f32 v%d, v%d, v%d", M[hh], M[hh], late[hh][2])
            allred("v_add_f32")
            for hh in range(2): a("v_rcp_f32 v%d, v%d", M[hh], M[hh])
            for k in range(3):
                for hh in range(2): a("v_mul_f32 v%d, v%d, v%d", late[hh][k], late[hh][k], M[hh])
            for k in range(n - 2):
                for hh in range(2): a("v_mul_f32 v%d, v%d, v%d", vals[hh][k], vals[hh][k], M0[hh])
        else:
            for k in range(n):
                for hh in range(2): a("v_sub_f32 v%d, v%d, v%d", vals[hh][k], vals[hh][k], M[hh])
            for k in range(n):
                for hh in range(2): a("v_exp_f32 v%d, v%d", vals[hh][k], vals[hh][k])
            for hh in range(2): a("v_add_f32 v%d, v%d, v%d", M[hh], vals[hh][0], vals[hh][1])
            for k in range(2, n):
                for hh in range(2): a("v_add_f32 v%d, v%d, v%d", M[hh], M[hh], vals[hh][k])
            allred("v_add_f32")
            for hh in range(2): a("v_rcp_f32 v%d, v%d", M[hh], M[hh])
            for k in range(n):
                for hh in range(2): a("v_mul_f32 v%d, v%d, v%d", vals[hh][k], vals[hh][k], M[hh])
        if tp == 2: tbl()
        O = RING + 4
        for t in range(tt + 1):
            for hh in range(2):
                for r2 in range(2):
                    x = SX + (hh * 2 + t) * 4 + 2 * r2
                    a("v_cvt_pk_f16_f32 v%d, v%d, v%d", O + 4 * t + 2 * r2 + hh, x, x + 1)
            a("ds_write_b128 v8, %s offset:%d", vr(O + 4 * t, 4), t * 1024)
        for hh in range(2): a("v_cvt_pk_f16_f32 v%d, v%d, v%d", O + 8 + hh, SMm + hh * 4, SMm + hh * 4 + 1)
        a("ds_write_b64 v9, %s", vr(O + 8, 2))
        a("s_waitcnt lgkmcnt(0)")
        a("s_barrier")
        a("s_cmp_eq_u32 s14, 7")
        a("s_cbranch_scc1 %s", end)
        if prof: a("s_memrealtime s[66:67]"); a("s_waitcnt lgkmcnt(0)")
        pf = [(p, t) for p in range(8) for t in range(tt + 1)]
        PMR = RING
        def rp(n):
            p, t = pf[n]
            a("ds_read_b128 %s, v2 offset:%d", vr(PR + (n % 6) * 4, 4), LP + (p * 2 + t) * 1024)
        for pp in range(4): a("ds_read_b128 %s, v2 offset:%d", vr(PMR + 4 * pp, 4), LPM + pp * 1024)
        for k in range(5): rp(k)
        if two: tbl(TBR + 16)
        for k in range(len(pf)):
            if k + 5 < len(pf): rp(k + 5)
            a("s_waitcnt lgkmcnt(%d)", min(5, len(pf) - 1 - k))
            p, t = pf[k]
            last = nb * k + nb - 1
            if last >= 18: a("s_waitcnt vmcnt(%d)", 4 * nb + len(ufr) - 1 - last)
            for b in range(nb):
                d = vr(FOR + 4 * b, 4)
                a(MF, d, vr(ureg[(p, t, b)], 4), vr(PR + (k % 6) * 4, 4), d)
        lt = a.newlabel("Ftb"); lr = a.newlabel("Ftr"); ls = a.newlabel("Fts")
        def fin(R, cnt):
            a("s_waitcnt vmcnt(%d)", cnt)
            for pp in range(4):
                for b in range(nb):
                    d = vr(SX + 4 * b, 4)
                    a(MF, d, vr(R + (b * 4 + pp) * 4, 4), vr(PMR + 4 * pp, 4), d if pp else vr(FOR + 4 * b, 4))
            a("v_pk_add_f32 v[8:9], %s, %s", vr(SX, 2), vr(SX + 2, 2))
            if nb == 2:
                a("v_pk_add_f32 v[10:11], %s, %s", vr(SX + 4, 2), vr(SX + 6, 2))
                a("v_pk_add_f32 v[8:9], v[8:9], v[10:11]")
            a("v_cmp_u_f32 vcc, v8, v9")
            for k in range(2 * nb): a("v_cvt_pk_bf16_f32 v%d, v%d, v%d", 8 + k, SX + 2 * k, SX + 2 * k + 1)
        a.label(lt)
        fin(TBR, 4 if two else 0)
        if dry:
            a("s_cmp_lg_u32 s54, 0")
            a("s_cbranch_scc1 %s", lre)
        a("s_cbranch_vccnz %s", lr)
        a.label(ls)
        a("global_store_dwordx%d v15, %s, s[48:49]" + nt(512), 2 * nb, vr(8, 2 * nb))
        if prof:
            a("s_memrealtime s[68:69]")
            a("s_waitcnt vmcnt(0)")
            a("s_memrealtime s[70:71]")
            a("s_waitcnt lgkmcnt(0)")
            for k in range(4): a("v_mov_b32 v%d, s%d", 8 + k, 64 + 2 * k)
            a("s_lshl_b32 s50, s20, 3")
            a("s_add_u32 s50, s50, s14")
            a("s_lshl_b32 s50, s50, 4")
            a("s_add_u32 s50, s50, 0x%x", POIS_END + 0x10000)
            add64(a, 50, 4, off_sgpr=50)
            a("v_mov_b32 v12, 0")
            a("global_store_dwordx4 v12, v[8:11], s[50:51]")
        a("s_cmp_lt_u32 s55, 0x%x", ntask)
        a("s_cbranch_scc1 %s", end)
        a("s_endpgm")
        a.label(lr)
        tbl()
        if two:
            fin(TBR + 16, 4)
            a("s_cbranch_vccz %s", ls)
            tbl(TBR + 16)
        a("s_sub_u32 s25, s25, 1")
        a("s_cbranch_scc0 %s", lt)
        a("s_branch %s", abort)
    a.label(end)
    if dry:
        a("s_cmp_lg_u32 s54, 0")
        a("s_cbranch_scc1 %s", lre)
    a("s_cmp_ge_u32 s55, 0x%x", ntask)
    a("s_cbranch_scc1 %s", abort)
    a("s_waitcnt vmcnt(0)")
```

```python
from common import *
import chain, ut, g1, g2, ft, pt
from pt import L_TK, MAIN_LDS
FSPLIT = 60
N_G1, N_G2, N_F = 224, 224, 4 * FSPLIT + 8 * (64 - FSPLIT)
KN = "parallel_sum__memory_aug_recurrent_mem_tr__dense_activation_relu__prompt_kernel"
def only(a, w, l):
    a("s_cmp_lg_u32 s14, %d", w)
    a("s_cbranch_scc1 %s", l)
def emit_main(a, prof=0, force_mixed=False, gate=2, g0=34, npre=0, nlook=3, tch=3, qend=1, ntb=0, at=0, wo=0, wm=0, wr=64, xw=5, xd=4, xt=1, fo=94, **kw):
    assert g0 > 0
    NT[0] = ntb
    NX = 14 - kw.get('nk', 14)
    def T(k):
        if prof and k >= 20:
            l = a.newlabel("ST")
            if k >= 23: a("s_cmp_lg_u32 s26, 0"); a("s_cbranch_scc1 %s", l)
            a("s_memrealtime s[60:61]"); a("s_waitcnt lgkmcnt(0)"); a("v_writelane_b32 v5, s60, %d", k)
            a.label(l)
        elif prof: a("s_memrealtime s[%d:%d]", 76 + 2 * k, 77 + 2 * k)
    a.raw(".p2align 8")
    a.label(KN)
    a("s_cmp_ge_u32 s2, 256")
    a("s_cbranch_scc1 M_end")
    a("s_load_dwordx2 s[10:11], s[0:1], 88")
    a("s_memrealtime s[18:19]")
    a("s_getreg_b32 s16, hwreg(HW_REG_XCC_ID)")
    a("s_getreg_b32 s15, hwreg(HW_REG_HW_ID)")
    a("s_and_b32 s16, s16, 7")
    pt.load_ptrs(a)
    main_prologue(a)
    if wo:
        assert wo * 2**20 + AX + 224 * 8192 <= WS_SIZE
        add64(a, 4, 4, imm=wo << 20)
    if prof: a("s_memtime s[98:99]"); a("s_mov_b32 s100, s18"); a("s_mov_b32 s76, s18")
    T(20)
    a("s_or_b32 s18, s18, 0x40000000")
    a("s_and_b32 s18, s18, 0x7ffffffe")
    a("s_mov_b32 s19, 0")
    a("s_mov_b32 s17, 0")
    a("s_mov_b32 s101, 0")
    a("s_mov_b32 s39, -1")
    a("s_mov_b64 s[48:49], 0")
    if force_mixed:
        a("s_bfe_u32 s20, s2, 0x10003")
        a("s_or_b32 s16, s16, s20")
    a("s_lshl_b32 s21, s16, 5")
    a("s_cmp_eq_u32 s14, 0")
    a("s_cbranch_scc1 M_s0")
    if tch:
        a("s_bfe_u32 s22, s15, 0x2000d")
        a("s_bfe_u32 s23, s15, 0x30008")
        a("s_lshl_b32 s22, s22, 3")
        a("s_add_u32 s22, s22, s23")
        a("v_lshrrev_b32 v6, 2, v1")
        a("v_lshlrev_b32 v6, 13, v6")
        a("v_and_b32 v7, 3, v1")
        a("v_lshl_add_u32 v6, v7, 7, v6")
        a("s_sub_u32 s23, s14, 1")
        a("s_cmp_lg_u32 s16, 0")
        a("s_cbranch_scc1 M_t1")
        a("s_and_b32 s24, s22, 1")
        a("s_lshr_b32 s25, s22, 1")
        a("s_lshl_b32 s25, s25, 9")
        a("s_cmp_eq_u32 s14, 7")
        a("s_cbranch_scc1 M_t0")
        a("s_mul_i32 s24, s24, 14")
        a("s_add_u32 s24, s24, s23")
        a("s_add_u32 s24, s24, 8")
        a("s_lshl_b32 s24, s24, 17")
        a("s_add_u32 s24, s24, s25")
        add64(a, 24, 66, off_sgpr=24)
        a("s_branch M_t8")
        a.label("M_t0")
        a("s_mul_i32 s24, s24, %d", (7 << 18) if kw.get("rot", 1) else (1 << 18))
        a("s_add_u32 s24, s24, s25")
        add64(a, 24, 64, off_sgpr=24)
        a("global_load_dword v102, v6, s[24:25]" + nt(16))
        a("v_add_u32 v6, 0x20000, v6")
        a.label("M_t8")
        a("global_load_dword v102, v6, s[24:25]" + nt(16))
        a("s_branch M_ta")
        a.label("M_t1")
        a("s_add_u32 s22, s22, s21")
        a("s_sub_u32 s22, s22, 32")
        a("s_lshr_b32 s26, s22, 1")
        a("s_mul_i32 s27, s26, 147")
        a("s_lshr_b32 s27, s27, 10")
        a("s_mul_i32 s28, s27, 7")
        a("s_sub_u32 s28, s26, s28")
        a("s_and_b32 s29, s22, 1")
        a("s_and_b32 s30, s23, 1")
        a("s_cmp_ge_u32 s23, 2")
        a("s_cbranch_scc1 M_t2")
        a("s_mul_i32 s24, s29, 7")
        a("s_add_u32 s24, s24, s28")
        a("s_lshl_b32 s24, s24, 1")
        a("s_add_u32 s24, s24, s30")
        a("s_lshl_b32 s24, s24, 17")
        a("s_lshl_b32 s25, s27, 9")
        a("s_add_u32 s24, s24, s25")
        add64(a, 24, 68, off_sgpr=24)
        a("s_branch M_t9")
        a.label("M_t2")
        a("s_cmp_ge_u32 s23, 4")
        a("s_cbranch_scc1 M_t3")
        a("s_lshl_b32 s24, s27, 2")
        a("s_lshl_b32 s25, s29, 1")
        a("s_add_u32 s24, s24, s25")
        a("s_add_u32 s24, s24, s30")
        a("s_mul_i32 s24, s24, %d", 64 * 896)
        a("s_lshl_b32 s25, s28, 7")
        a("s_add_u32 s24, s24, s25")
        add64(a, 24, 70, off_sgpr=24)
        a("v_mul_u32_u24 v6, 896, v1")
        a("s_branch M_t9")
        a.label("M_t3")
        a("s_cmp_lg_u32 s14, 7")
        a("s_cbranch_scc1 M_t4")
        if NX and (xt & 1):
            a("s_and_b32 s24, s22, %d", 2 * NX - 1)
            a("s_add_u32 s24, s24, %d", 28 - 2 * NX)
            a("s_lshl_b32 s24, s24, 17")
            a("s_lshl_b32 s25, s27, 9")
            a("s_add_u32 s24, s24, s25")
            add64(a, 24, 64, off_sgpr=24)
            a("s_branch M_t9")
        else:
            if wm & 1:
                a("v_lshlrev_b32 v6, 7, v1")
                for i in range(2):
                    a("s_add_u32 s24, s22, %d", wr + 224 * i)
                    a("s_cmp_ge_u32 s24, 448")
                    a("s_cbranch_scc1 M_ta")
                    a("s_lshl_b32 s24, s24, 13")
                    add64(a, 24, 64, off_sgpr=24)
                    a("global_load_dword v102, v6, s[24:25]")
            if wm & 8:
                a("s_sub_u32 s24, s21, 32")
                a("s_mul_i32 s25, s24, 4682")
                a("s_lshr_b32 s25, s25, 16")
                a("s_mul_i32 s25, s25, 14")
                a("s_sub_u32 s25, s24, s25")
                a("s_sub_u32 s26, s22, s24")
                a("s_cmp_lt_u32 s26, s25")
                a("s_cselect_b32 s26, 0, 32")
                a("s_add_u32 s26, s26, s22")
                a("s_sub_u32 s26, s26, s25")
                a("s_add_u32 s24, s24, 31")
                a("s_mul_i32 s24, s24, 4682")
                a("s_lshr_b32 s24, s24, 16")
                a("s_mul_i32 s25, s26, 4682")
                a("s_lshr_b32 s25, s25, 16")
                a("s_cmp_gt_u32 s25, s24")
                a("s_cbranch_scc1 M_ta")
                a("s_mul_i32 s24, s25, 14")
                a("s_sub_u32 s26, s26, s24")
                a("s_and_b32 s24, s26, 1")
                a("s_mul_i32 s24, s24, 7")
                a("s_lshr_b32 s26, s26, 1")
                a("s_add_u32 s24, s24, s26")
                a("s_lshl_b32 s24, s24, 18")
                a("s_lshl_b32 s25, s25, 9")
                a("s_add_u32 s24, s24, s25")
                add64(a, 24, 68, off_sgpr=24)
                a("global_load_dword v102, v6, s[24:25]" + nt(64))
                a("v_add_u32 v6, 0x20000, v6")
                a("s_branch M_t9")
            a("s_branch M_ta")
        a.label("M_t4")
        a("s_cmp_lt_u32 s22, 128")
        a("s_cbranch_scc1 M_t5")
        if wm & 4:
            a("s_mul_i32 s24, s30, 224")
            a("s_add_u32 s24, s24, s22")
            a("s_sub_u32 s24, s24, 128")
            a("s_lshl_b32 s24, s24, 13")
            add64(a, 24, 66, off_sgpr=24)
            a("v_lshlrev_b32 v6, 7, v1")
            a("global_load_dword v102, v6, s[24:25]")
        a("s_branch M_ta")
        a.label("M_t5")
        a("s_lshl_b32 s24, s22, 1")
        a("s_add_u32 s24, s24, s30")
        a("s_mul_i32 s24, s24, 7168")
        add64(a, 24, 6, off_sgpr=24)
        a("v_min_u32 v6, 55, v1")
        a("v_lshlrev_b32 v6, 7, v6")
        a.label("M_t9")
        a("global_load_dword v102, v6, s[24:25]" + nt(64))
        a.label("M_ta")
        if tch > 1:
            only(a, 1, "M_tk")
            a("s_getpc_b64 s[24:25]")
            a.label("M_pc")
            a("s_cmp_eq_u32 s16, 0")
            a("s_movk_i32 s26, 16384")
            a("s_cselect_b32 s27, s26, %s", "M_chk-M_pc" if tch > 2 else "s26")
            a("s_bitcmp1_b32 s22, 1")
            a("s_cselect_b32 s27, s27, 0")
            a("s_and_b32 s26, s22, 1")
            a("s_lshl_b32 s26, s26, 13")
            a("s_add_u32 s26, s26, s27")
            a("v_lshlrev_b32 v6, 7, v1")
            a("v_add_u32 v6, s26, v6")
            a("global_load_dword v102, v6, s[24:25]")
    a("s_branch M_tk")
    a.label("M_s0")
    a("v_and_b32 v6, 31, v1")
    a("v_lshlrev_b32 v6, 2, v6")
    a("v_add_u32 v6, %d, v6", L_TK)
    a("v_mov_b32 v7, 0")
    a("ds_write_b32 v6, v7")
    a.label("M_tk")
    T(21)
    only(a, 0, "M_r1")
    a("v_mov_b32 v6, s21")
    a("v_mov_b32 v7, 1")
    a("s_mov_b64 exec, 1")
    a("global_atomic_add v8, v6, v7, s[10:11] sc0 sc1")
    a("s_mov_b64 exec, -1")
    a("v_lshlrev_b32 v9, 3, v1")
    a("v_add_u32 v9, %d, v9", chain.L_FL)
    a("v_mov_b32 v10, 0")
    a("v_mov_b32 v11, 0")
    a("ds_write_b64 v9, v[10:11]")
    a("s_mov_b64 exec, 1")
    a("v_mov_b32 v6, %d", L_TK + 32)
    a("v_mov_b32 v7, %d", C_NON * 4)
    a("v_mov_b32 v10, s18")
    a("s_waitcnt vmcnt(0)")
    a("ds_write_b32 v6, v8")
    a("v_cmp_eq_u32 vcc, s19, v8")
    a("s_cbranch_vccz M_r0")
    a("global_atomic_cmpswap v7, v[10:11], s[10:11] sc1")
    a.label("M_r0")
    a("s_mov_b64 exec, -1")
    a.label("M_r1")
    a("s_waitcnt lgkmcnt(0)")
    a("s_barrier")
    a("v_mov_b32 v6, %d", L_TK + 32)
    a("ds_read_b32 v8, v6")
    a("s_waitcnt lgkmcnt(0)")
    a("v_readfirstlane_b32 s20, v8")
    a("s_cmp_lt_u32 s20, 32")
    a("s_cbranch_scc1 M_r2")
    a("s_cmp_eq_u32 s17, 0")
    a("s_cbranch_scc1 M_chk")
    a("s_branch M_acq")
    a.label("M_r2")
    a("s_cmp_eq_u32 s21, 0")
    a("s_cbranch_scc1 M_chain")
    a("s_add_u32 s20, s20, s21")
    a("s_sub_u32 s20, s20, 32")
    T(22)
    a.label("M_ab")
    def look():
        a("s_lshr_b32 s21, s20, 5")
        a("s_lshl_b32 s21, s21, 2")
        a("s_add_u32 s21, s21, %d", pt.L_UM)
        a("s_lshl_b32 s22, 1, s20")
        a("v_mov_b32 v6, s21")
        a("v_mov_b32 v7, s22")
        a("ds_or_b32 v6, v7")
        a("v_and_b32 v6, 7, v1")
        a("v_lshlrev_b32 v6, 5, v6")
        a("s_mov_b32 s22, %d", nlook)
        a.label("M_l0")
        a("global_load_dword v8, v6, s[10:11] sc1")
        a("s_waitcnt vmcnt(0)")
        a("v_cmp_gt_u32 vcc, 32, v8")
        a("s_and_b32 s21, vcc_lo, 0xff")
        a("s_cbranch_scc0 M_l1")
        a("s_sub_u32 s22, s22, 1")
        a("s_cbranch_scc0 M_l0")
        a.label("M_l1")
        a("v_mov_b32 v6, %d", L_TK + 36)
        a("v_mov_b32 v9, s21")
        a("ds_write_b32 v6, v9")
        a("s_waitcnt lgkmcnt(0)")
    def w7():
        a("s_cmp_eq_u32 s26, 0")
        a("s_cbranch_scc1 M_w7b")
        a("s_mov_b32 s44, s20")
        a("s_mov_b32 s42, %d", pt.L_WT)
        a.label("M_w7a")
        pt.wtask(a)
        a("s_add_u32 s44, s44, 224")
        a("s_cmp_lt_u32 s44, 392")
        a("s_cbranch_scc1 M_w7a")
        a("s_branch P_abend")
        a.label("M_w7b")
        if NX and (xt & 2): pt.x_touch(a, NX)
        a("s_cmp_ge_u32 s20, 128")
        a("s_cbranch_scc1 M_w7c")
        pt.emit_ln(a)
        T(2)
        a.label("M_w7c")
        look()
        T(3)
    a("s_mov_b32 s26, 0")
    a.label("M_ab2")
    pt.emit_p(a, T, NX, xd, w7, wr if wm & 2 else 0)
    a("s_cmp_eq_u32 s26, 0")
    a("s_cbranch_scc1 M_ab3")
    a("s_mov_b32 s38, %d", C_P * 4)
    signal(a, 38)
    if prof:
        a("s_waitcnt lgkmcnt(0)")
        a("v_mov_b32 v8, v5")
        for k in range(7): a("v_writelane_b32 v8, s%d, %d", 76 + 2 * k, k)
        for k in range(3): a("v_writelane_b32 v8, s%d, %d", 92 + 2 * k, 7 + k)
        a("s_lshl_b32 s60, s20, 3")
        a("s_add_u32 s60, s60, s14")
        a("s_lshl_b32 s60, s60, 8")
        a("s_add_u32 s60, s60, 0x%x", POIS_END + 0x100000)
        add64(a, 60, 4, off_sgpr=60)
        a("v_lshlrev_b32 v9, 2, v1")
        a("global_store_dword v9, v8, s[60:61]")
    a("s_mov_b32 s39, -1")
    a("s_mov_b64 s[48:49], 0")
    a("s_branch M_u")
    a.label("M_ab3")
    if prof:
        a("s_waitcnt lgkmcnt(0)")
        a("s_mov_b32 s84, s78"); a("s_mov_b32 s86, s80"); a("s_mov_b32 s88, s82")
    a("s_barrier")
    a("s_mov_b32 s39, s20")
    a("s_mov_b64 s[48:49], 0")
    a("v_mov_b32 v6, %d", L_TK + 36)
    a("ds_read_b32 v8, v6")
    a("v_and_b32 v6, 7, v1")
    a("v_lshlrev_b32 v6, 2, v6")
    a("v_add_u32 v6, %d, v6", pt.L_UM)
    a("ds_read_b32 v9, v6")
    a("s_waitcnt lgkmcnt(0)")
    a("v_readfirstlane_b32 s16, v8")
    a("s_and_b32 s21, s16, 0xfe")
    a("s_or_b32 s21, s21, s101")
    a("s_cbranch_scc0 M_uph")
    if NX:
        a("s_waitcnt vmcnt(0)")
        a("s_barrier")
        pt.emit_x(a, NX, xw, xd, "XS")
        pt.x_store(a)
        a("v_mov_b32 v10, s19")
        a("s_waitcnt vmcnt(0)")
        pt.x_flag(a, 10)
    a.label("M_cl")
    a("s_cmp_eq_u32 s101, 0")
    a("s_cbranch_scc1 M_chk")
    a("s_ff1_i32_b32 s21, s101")
    a("s_bitset0_b32 s101, s21")
    a("v_readlane_b32 s20, v0, s21")
    a("s_lshl_b32 s21, s21, 5")
    a("s_add_u32 s20, s20, s21")
    a("s_sub_u32 s20, s20, 32")
    a("s_branch M_ab")
    a.label("M_chain")
    names = chain.emit_chain(a, prof, abort="M_end", **kw)
    a("s_endpgm")
    a.label("M_chk")
    a("s_barrier")
    only(a, 7, "M_n1")
    pt.nonce_ld(a)
    a("s_waitcnt vmcnt(0)")
    pt.nonce_put(a, "M_end")
    a.label("M_n1")
    only(a, 0, "M_c1")
    a("v_lshlrev_b32 v6, 5, v1")
    a("v_mov_b32 v7, 1")
    a("v_mov_b32 v8, 64")
    a("v_lshlrev_b32 v9, 2, v1")
    a("v_add_u32 v9, %d, v9", L_TK)
    a("s_mov_b64 exec, 0xff")
    a("global_load_dword v8, v6, s[10:11] sc1")
    a("s_waitcnt vmcnt(0)")
    a("v_cmp_gt_u32 vcc, 32, v8")
    a("s_and_b32 exec_lo, vcc_lo, 0xfe")
    a("s_cbranch_scc0 M_c1x")
    a("global_atomic_add v8, v6, v7, s[10:11] sc0 sc1")
    a("s_waitcnt vmcnt(0)")
    a.label("M_c1x")
    a("s_mov_b32 exec_lo, 0xff")
    a("ds_write_b32 v9, v8")
    a("s_mov_b64 exec, -1")
    a.label("M_c1")
    a("s_waitcnt lgkmcnt(0)")
    a("s_barrier")
    a("v_and_b32 v6, 7, v1")
    a("v_lshlrev_b32 v6, 2, v6")
    a("v_add_u32 v6, %d, v6", L_TK)
    a("ds_read_b32 v0, v6")
    a("ds_read_b32 v9, v6 offset:%d", pt.L_UM - L_TK)
    pt.nonce_get(a, 8, "M_end")
    a("v_cmp_gt_u32 vcc, 32, v0")
    a("s_mov_b32 s16, vcc_lo")
    a("s_and_b32 s101, vcc_lo, 0xfe")
    a("s_cbranch_scc1 M_cl")
    a.label("M_uph")
    a("v_mov_b32 v0, v9")
    a("s_mov_b32 s17, -1")
    a.label("M_u")
    a("s_cmp_lg_u32 s101, 0")
    a("s_cbranch_scc1 M_u0")
    a("s_add_u32 s17, s17, 1")
    a("s_cmp_eq_u32 s17, 7")
    a("s_cbranch_scc1 M_u1")
    a("v_readlane_b32 s101, v0, s17")
    a("s_branch M_u")
    a.label("M_u0")
    a("s_ff1_i32_b32 s21, s101")
    a("s_bitset0_b32 s101, s21")
    a("s_lshl_b32 s20, s17, 5")
    a("s_add_u32 s20, s20, s21")
    ut.emit_u(a, "M_end", T, (lambda: pt.emit_x(a, NX, xw, xd, 'XU'), lambda: pt.x_store(a), lambda: pt.x_flag(a, 11)) if NX else None, at)
    a("s_mov_b32 s26, 1")
    a("s_barrier")
    a("s_branch M_ab2")
    a.label("M_u1")
    a("s_mov_b32 s21, 0")
    a("s_mov_b32 s17, 1")
    a("s_bitcmp1_b32 s16, 0")
    a("s_cbranch_scc1 M_tk")
    a.label("M_acq")
    a("s_mov_b32 s25, 0x400000")
    only(a, 0, "M_next")
    a("s_mov_b32 s21, %d", C_P * 4)
    wait_cnt(a, 21, 224, "M_end")
    a("buffer_inv sc1")
    a.label("M_next")
    a("s_barrier")
    only(a, 0, "M_q1")
    a("v_mov_b32 v6, %d", C_Q * 4)
    a("v_mov_b32 v7, 1")
    a("s_mov_b64 exec, 1")
    a("global_atomic_add v8, v6, v7, s[10:11] sc0 sc1")
    a("v_mov_b32 v6, %d", L_TK)
    a("s_waitcnt vmcnt(0)")
    a("ds_write_b32 v6, v8")
    a("s_mov_b64 exec, -1")
    a("s_waitcnt lgkmcnt(0)")
    a.label("M_q1")
    a("s_barrier")
    a("v_mov_b32 v6, %d", L_TK)
    a("ds_read_b32 v8, v6")
    a("s_waitcnt lgkmcnt(0)")
    a("v_readfirstlane_b32 s15, v8")
    a("s_mov_b32 s25, 0x400000")
    a("s_cmp_lt_u32 s15, %d", N_G1)
    a("s_cbranch_scc0 M_d2")
    a("s_mul_i32 s20, s15, 2341")
    a("s_lshr_b32 s20, s20, 16")
    a("s_mul_i32 s21, s20, 28")
    a("s_sub_u32 s21, s15, s21")
    g1.emit_g1(a, first=8)
    a("s_branch M_next")
    a.label("M_d2")
    a("s_sub_u32 s20, s15, %d", N_G1)
    a("s_cmp_lt_u32 s20, %d", N_G2)
    a("s_cbranch_scc0 M_d3")
    only(a, 0, "M_d2w")
    a("s_mul_i32 s21, s20, 2341")
    a("s_lshr_b32 s21, s21, 16")
    g1_cnt(a, 21, 21)
    wait_cnt(a, 21, 28, "M_end")
    a.label("M_d2w")
    a("s_barrier")
    g2.emit_g2(a)
    a("s_branch M_next")
    a.label("M_d3")
    a("s_sub_u32 s20, s20, %d", N_G2)
    a("s_cmp_lt_u32 s20, %d", N_F)
    a("s_cbranch_scc0 M_end")
    for nb in (2, 1):
        X = "M%d" % nb
        def pre():
            if g0:
                only(a, 3, X + "_fg")
                a("s_mul_i32 s50, s21, %d", (57 - g0) * 1024 // 63)
                a("s_lshr_b32 s50, s50, 10")
                a("s_add_u32 s50, s50, %d", g0)
                a("s_lshl_b32 s50, s50, 13")
                a("s_add_u32 s50, s50, 0x%x", MEMX)
                add64(a, 50, 4, off_sgpr=50)
                a("v_mov_b32 v8, 128")
                a.label(X + "_fgl")
                a("global_load_dword v9, v8, s[50:51] sc1")
                a("s_sub_u32 s25, s25, 1")
                a("s_cbranch_scc1 M_end")
                a("s_waitcnt vmcnt(0)")
                a("v_cmp_eq_u32 vcc, -1, v9")
                a("s_cbranch_vccnz %s_fgl", X)
                a("v_mov_b32 v8, %d", C_Q * 4)
                a("global_load_dword v9, v8, s[10:11] sc1")
                a("v_mov_b32 v8, %d", L_TK + 44)
                a("s_waitcnt vmcnt(0)")
                a("ds_write_b32 v8, v9")
                a("s_waitcnt lgkmcnt(0)")
                a.label(X + "_fg")
            a("s_cmp_gt_u32 s14, 2")
            a("s_cbranch_scc1 %s_fw", X)
            a("s_cmp_eq_u32 s14, 2")
            a("s_cbranch_scc1 %s_fw2", X)
            a("s_lshl_b32 s50, s21, 1")
            a("s_add_u32 s50, s50, s14")
            a("s_lshl_b32 s50, s50, 10")
            wait_ufl(a, 50, "M_end", t=16)
            a("s_branch %s_fw", X)
            a.label(X + "_fw2")
            a("s_lshr_b32 s50, s21, 1")
            g2_cnt(a, 50, 50, 51)
            wait_cnt(a, 50, 7, "M_end")
            a.label(X + "_fw")
        if nb == 2:
            a("s_cmp_ge_u32 s20, %d", 4 * FSPLIT)
            a("s_cbranch_scc1 M_d4")
            a("s_lshr_b32 s21, s20, 2")
            a("s_bfe_u32 s22, s20, 0x10001")
            a("s_and_b32 s23, s20, 1")
        else:
            a.label("M_d4")
            a("s_add_u32 s21, s20, %d", 4 * FSPLIT)
            a("s_lshr_b32 s21, s21, 3")
            a("s_bfe_u32 s22, s20, 0x10002")
            a("s_and_b32 s23, s20, 3")
        ft.emit_f(a, "M_end", nb, pre, prof, gate, L_TK + 44, N_G1 + N_G2 + N_F if qend else 0xffffffff, fo if nb == 1 else 0)
        a("s_branch M_next")
    a.label("M_end")
    a("s_endpgm")
    return names
```

```python
from common import *
MF = "v_mfma_f32_16x16x32_f16 %s, %s, %s, %s"
def ln_wait(a, abort, r=9):
    a("s_and_b32 s22, s20, 31")
    a("s_lshl_b32 s22, s22, 9")
    a("s_add_u32 s22, s22, 0x%x", LNF)
    a("v_lshlrev_b32 v%d, 3, v1", r)
    a("v_add_u32 v%d, s22, v%d", r, r)
    a("s_mov_b32 s25, 0x400000")
    lw = a.newlabel("UW")
    a.label(lw)
    a("global_load_dwordx2 %s, v%d, s[4:5] sc1", vr(r + 1, 2), r)
    a("s_sub_u32 s25, s25, 1")
    a("s_cbranch_scc1 %s", abort)
    a("s_waitcnt vmcnt(0)")
    allnon(a, [r + 1, r + 2])
    a("v_cmp_ne_u32 vcc, 0, v%d", r + 1)
    a("s_cbranch_vccnz %s", lw)
def emit_u(a, abort, T=lambda k: None, xf=None, at=0):
    WR = 16; XR = (128, 184); ACC = 240; OUT = 248
    a.c("---- U task")
    a("s_mul_i32 s33, s20, 2341")
    a("s_lshr_b32 s33, s33, 16")
    a("s_mul_i32 s34, s33, 28")
    a("s_sub_u32 s34, s20, s34")
    a("s_mul_i32 s28, s14, %d", 14 * 1024)
    a("s_add_u32 s28, s28, 0x%x", XF + 4096)
    add64(a, 28, 4, off_sgpr=28)
    def xld(b):
        for ks in range(14):
            a("global_load_dwordx4 %s, v%d, s[28:29] offset:%d sc1", vr(XR[b] + 4 * ks, 4), 2 if ks < 8 else 13, (ks & 7) * 1024 - 4096)
        a("s_add_u32 s28, s28, %d", 8 * 14 * 1024); a("s_addc_u32 s29, s29, 0")
    a("v_add_u32 v13, 8192, v2")
    a("s_mov_b32 s25, 0x400000")
    a("s_and_b32 s22, s20, 31")
    a("s_lshl_b32 s22, s22, 7")
    a("s_add_u32 s22, s22, s14")
    a("s_lshl_b32 s22, s22, 2")
    a("s_add_u32 s22, s22, 0x%x", LNF)
    a("v_mov_b32 v9, s22")
    a("s_cmp_eq_u32 s14, 7")
    a("s_cbranch_scc1 U_a")
    a.label("U_x")
    a("global_load_dword v10, v9, s[4:5] sc1")
    a("s_sub_u32 s25, s25, 1")
    a("s_cbranch_scc1 %s", abort)
    a("s_waitcnt vmcnt(0)")
    a("v_cmp_ne_u32 vcc, s19, v10")
    a("s_cbranch_vccnz U_x")
    xld(0)
    a("s_cmp_lg_u32 s14, 7")
    a("s_cbranch_scc1 U_b")
    a("v_mov_b32 v8, 0")
    a("s_branch U_c")
    a.label("U_a")
    a("s_mul_i32 s23, s33, 14")
    a("s_lshr_b32 s22, s34, 2")
    a("s_add_u32 s23, s23, s22")
    a("s_lshl_b32 s23, s23, 6")
    a("s_add_u32 s23, s23, 0x%x", ABF)
    a("v_and_b32 v8, 1, v3")
    a("v_mul_u32_u24 v8, %d, v8", 7 * 64)
    a("v_lshl_add_u32 v8, v4, 2, v8")
    a("v_add_u32 v8, s23, v8")
    a.label("U_w")
    a("global_load_dword v12, v8, s[4:5] sc1")
    a("s_sub_u32 s25, s25, 1")
    a("s_cbranch_scc1 %s", abort)
    a("s_waitcnt vmcnt(0)")
    a("v_cmp_eq_u32 vcc, s19, v12")
    a("s_or_b32 vcc_lo, vcc_lo, 0x80808080")
    a("s_cmp_eq_u32 vcc_lo, -1")
    a("s_cbranch_scc0 U_w")
    a("s_barrier")
    T(8)
    a("s_branch U_x")
    a.label("U_b")
    a("s_barrier")
    T(8)
    a("s_lshl_b32 s21, s14, 12")
    a("v_add_u32 v8, s21, v2")
    a("s_mul_i32 s26, s20, %d", 28 * 1024)
    a("s_add_u32 s26, s26, 0x%x", BF)
    add64(a, 26, 4, off_sgpr=26)
    for k in range(4): a("global_load_dwordx4 %s, v8, s[26:27] offset:%d sc1", vr(XR[1] + 4 * k, 4), 1024 * k)
    if xf: xf[0]()
    a.label("U_c")
    a("v_mov_b32 v9, v13")
    def xld(b):
        for ks in range(14):
            a("global_load_dwordx4 %s, v%d, s[28:29] offset:%d sc1", vr(XR[b] + 4 * ks, 4), 2 if ks < 8 else 9, (ks & 7) * 1024 - 4096)
        a("s_add_u32 s28, s28, %d", 8 * 14 * 1024); a("s_addc_u32 s29, s29, 0")
    a("s_lshr_b32 s22, s14, 1")
    a("s_and_b32 s23, s14, 1")
    a("s_mul_i32 s35, s22, 14")
    a("s_lshr_b32 s32, s34, 1")
    a("s_add_u32 s35, s35, s32")
    a("s_lshl_b32 s35, s35, 3")
    a("s_add_u32 s35, s35, s33")
    a("s_lshl_b32 s35, s35, 1")
    a("s_and_b32 s34, s34, 1")
    a("s_add_u32 s35, s35, s34")
    a("s_lshl_b32 s35, s35, 1")
    a("s_add_u32 s35, s35, s23")
    a("s_lshl_b32 s35, s35, 10")
    a("s_add_u32 s35, s35, 0x%x", UF)
    add64(a, 30, 4, off_sgpr=35)
    a("s_lshl_b32 s36, s20, 1")
    a("s_add_u32 s36, s36, s23")
    a("s_lshl_b32 s36, s36, 8")
    a("s_mul_i32 s32, s22, %d", 112 * 1024)
    a("s_add_u32 s32, s32, s36")
    a("s_add_u32 s32, s32, 0x%x", TBX)
    add64(a, 32, 4, off_sgpr=32)
    a("s_min_u32 s36, s36, %d", 31 * 256)
    a("s_lshl_b32 s34, s22, 13")
    a("s_add_u32 s34, s34, s36")
    a("s_add_u32 s34, s34, 0x%x", MEMX)
    add64(a, 34, 4, off_sgpr=34)
    a("s_lshl_b32 s36, s14, 10")
    a("s_lshl_b32 s37, s20, 2")
    a("s_add_u32 s36, s36, s37")
    a("s_add_u32 s36, s36, 0x%x", UFL)
    add64(a, 36, 4, off_sgpr=36)
    for r in range(4): a("v_mov_b32 v%d, -1", 12 + r)
    a("v_mov_b32 v10, 0")
    a("s_mov_b32 s24, 0")
    a("v_mov_b32 v11, s19")
    a("s_cmp_eq_u32 s14, 7")
    a("s_cbranch_scc1 U_d")
    for k in range(4):
        a("s_waitcnt vmcnt(%d)", 3 - k)
        a("ds_write_b128 v8, %s offset:%d", vr(XR[1] + 4 * k, 4), 1024 * k)
    if xf: xf[1]()
    a("s_waitcnt lgkmcnt(0)")
    a.label("U_d")
    a("s_barrier")
    for f in range(28): a("ds_read_b128 %s, v2 offset:%d", vr(WR + 4 * f, 4), f * 1024)
    a("s_cmp_lg_u32 s14, 7")
    a("s_cbranch_scc1 U_e")
    a("s_waitcnt vmcnt(0)")
    a.label("U_e")
    a("s_waitcnt lgkmcnt(0)")
    T(9)
    if at:
        a("s_mul_i32 s40, s20, 4682")
        a("s_lshr_b32 s40, s40, 16")
        a("s_mul_i32 s41, s40, 14")
        a("s_sub_u32 s41, s20, s41")
        a("s_and_b32 s42, s41, 1")
        a("s_mul_i32 s42, s42, 7")
        a("s_add_u32 s42, s42, s14")
        a("s_and_b32 s41, s41, 14")
        a("s_cmp_eq_u32 s14, 7")
        a("s_cselect_b32 s41, s41, s42")
        a("s_cselect_b32 s42, s66, s64")
        a("s_cselect_b32 s43, s67, s65")
        a("s_cselect_b32 s44, 4, 2")
        a("s_lshl_b32 s41, s41, 18")
        a("s_lshl_b32 s40, s40, 9")
        a("s_add_u32 s40, s40, s41")
        add64(a, 42, 42, off_sgpr=40)
        a("s_and_b32 s45, s14, 1")
        a("s_lshl_b32 s45, s45, 1")
        a("s_cmp_eq_u32 s14, 7")
        a("s_cselect_b32 s45, 0, s45")
        a("s_add_u32 s45, s45, %d", at)
        a("v_lshrrev_b32 v253, 2, v1")
        a("v_lshlrev_b32 v253, 13, v253")
        a("v_and_b32 v254, 3, v1")
        a("v_lshl_add_u32 v253, v254, 7, v253")
    L = a.newlabel("UT")
    a.label(L)
    for b in range(2):
        sk = a.newlabel("UTs")
        a("s_cmp_eq_u32 s24, %d", 7 if b else 0)
        a("s_cbranch_scc1 %s", sk)
        xld(1 - b)
        a.label(sk)
        if at and b == 0:
            l = a.newlabel("UTa")
            a("s_sub_u32 s40, s24, s45")
            a("s_cmp_ge_u32 s40, s44")
            a("s_cbranch_scc1 %s", l)
            a("s_lshl_b32 s40, s40, 17")
            a("v_add_u32 v254, s40, v253")
            a("global_load_dword v252, v254, s[42:43]")
            a.label(l)
        for ks in range(14):
            for w in range(2):
                d = vr(ACC + 4 * w, 4)
                a(MF, d, vr(XR[b] + 4 * ks, 4), vr(WR + (w * 14 + ks) * 4, 4), d if ks else "0")
        if xf and b == 0: xf[2]()
        a("s_mov_b64 exec, 0xffff")
        a("global_store_dwordx4 v2, v[12:15], s[32:33] sc1")
        l = a.newlabel("UTm")
        a("s_cmp_ge_u32 s20, 14")
        a("s_cbranch_scc1 %s", l)
        a("global_store_dwordx4 v2, v[12:15], s[34:35] sc1")
        a.label(l)
        a("s_mov_b64 exec, -1")
        for w in range(2):
            a("v_cvt_pk_f16_f32 v%d, v%d, v%d", OUT + w, ACC + 4 * w, ACC + 4 * w + 1)
            a("v_cvt_pk_f16_f32 v%d, v%d, v%d", OUT + 2 + w, ACC + 4 * w + 2, ACC + 4 * w + 3)
        a("global_store_dwordx4 v2, %s, s[30:31] sc1", vr(OUT, 4))
        for r, n in ((30, 4 * 14 * 32768), (32, 4 * 112 * 1024), (34, 4 * 8192)):
            a("s_add_u32 s%d, s%d, %d", r, r, n); a("s_addc_u32 s%d, s%d, 0", r + 1, r + 1)
        a("s_waitcnt vmcnt(0)")
        a("s_mov_b64 exec, 1")
        a("global_store_dword v10, v11, s[36:37] sc1")
        a("s_mov_b64 exec, -1")
        a("s_add_u32 s36, s36, 8192"); a("s_addc_u32 s37, s37, 0")
        if b == 0:
            sk = a.newlabel("UTs")
            a("s_cmp_lg_u32 s24, 0")
            a("s_cbranch_scc1 %s", sk)
            T(10)
            ln_wait(a, abort, XR[1] + 1)
            xld(1)
            a("s_waitcnt vmcnt(0)")
            a.label(sk)
    a("s_add_u32 s24, s24, 1")
    a("s_cmp_lt_u32 s24, 8")
    a("s_cbranch_scc1 %s", L)
```
